```python
import torch

def _softmax(x, axis=-1):
    return torch.softmax(x, dim=axis)

def _gelu(x):
    return torch.nn.functional.gelu(x, approximate='tanh')

def _silu(x):
    return torch.nn.functional.silu(x)

def _sigmoid(x):
    return torch.sigmoid(x)

def _layernorm(x, axis=-1, eps=1e-05):
    m = x.mean(dim=axis, keepdim=True)
    v = x.var(dim=axis, keepdim=True, unbiased=False)
    return (x - m) / torch.sqrt(v + eps)

def _scatter_add(tgt, idx, src, axis=0):
    return tgt.clone().index_add_(axis, idx, src)

def _segment_sum(src, seg, n):
    out = torch.zeros((n,) + src.shape[1:], dtype=src.dtype)
    return out.index_add_(0, seg, src)

def _pad(x, pw):
    flat = tuple((v for pair in reversed(pw) for v in pair))
    return torch.nn.functional.pad(x, flat)
kernel_name = 'parallel_sum__linear_attn_block__mixer_gmlp__prompt'

def setup_inputs():

    _w = lambda a: (lambda t: t.to(torch.bfloat16) if t.is_floating_point() else t)(torch.as_tensor(a))

    def _A_setup():
        B, S, D = (1, 2048, 640)
        return {'x': _w((lambda *s: torch.randn(*s, dtype=torch.bfloat16) * 0.05)(B, S, D)), 'wqkv': _w((lambda *s: torch.randn(*s, dtype=torch.bfloat16) * 0.8)(D, 3 * D)), 'wo': _w((lambda *s: torch.randn(*s, dtype=torch.bfloat16) * 0.2)(D, D))}
    _A_in = _A_setup()

    def _B_setup():
        B, S, D, F = (1, 2048, 640, 1728)
        Fh = F // 2
        return {'x': _w((lambda *s: torch.randn(*s, dtype=torch.bfloat16) * 0.05)(B, S, D)), 'w_in': _w((lambda *s: torch.randn(*s, dtype=torch.bfloat16) * 0.4)(D, 2 * Fh)), 'w_sp': _w(0.01 * (lambda *s: torch.randn(*s, dtype=torch.bfloat16) * 0.4)(S, S)), 'b_sp': _w(1.0 + 0.01 * (lambda *s: torch.randn(*s, dtype=torch.bfloat16) * 0.05)(S)), 'w_out': _w((lambda *s: torch.randn(*s, dtype=torch.bfloat16) * 0.05)(Fh, D))}
    _B_in = _B_setup()
    return {'A_x': _A_in['x'], 'A_wqkv': _A_in['wqkv'], 'A_wo': _A_in['wo'], 'B_x': _B_in['x'], 'B_w_in': _B_in['w_in'], 'B_w_sp': _B_in['w_sp'], 'B_b_sp': _B_in['b_sp'], 'B_w_out': _B_in['w_out']}

def reference(A_x, A_wqkv, A_wo, B_x, B_w_in, B_w_sp, B_b_sp, B_w_out):

    def _A_ref(x, wqkv, wo):
        B, S, D = x.shape
        H = 32
        Dh = D // H
        qkv = (lambda x, *d: x.permute(*d))((x @ wqkv).reshape(B, S, 3, H, Dh), 2, 0, 3, 1, 4)
        q, k, v = (qkv[0], qkv[1], qkv[2])
        phi = lambda t: torch.where(t > 0, t + 1, torch.exp(t)) + 1e-06
        pq, pk = (phi(q), phi(k))
        kv = torch.einsum('bhsd,bhse->bhde', pk, v)
        z = torch.einsum('bhsd->bhd', pk)
        num = torch.einsum('bhqd,bhde->bhqe', pq, kv)
        den = torch.einsum('bhqd,bhd->bhq', pq, z)[..., None] + 1e-06
        o = num / den
        return (lambda x, *d: x.permute(*d))(o, 0, 2, 1, 3).reshape(B, S, D) @ wo

    def _B_ref(x, w_in, w_sp, b_sp, w_out):
        B, S, D = x.shape
        F = w_in.shape[-1]
        Fh = F // 2
        z = _gelu(torch.einsum('bsd,df->bsf', x, w_in))
        z1 = z[..., :Fh].clone()
        z2 = _layernorm(z[..., Fh:], axis=-1)
        g = torch.einsum('ts,bsf->btf', w_sp, z2) + b_sp[None, :, None]
        return torch.einsum('bsf,fd->bsd', z1 * g, w_out)
    x = A_x
    xn = _layernorm(x, axis=-1)
    return x + _A_ref(xn, A_wqkv, A_wo) + _B_ref(xn, B_w_in, B_w_sp, B_b_sp, B_w_out)
```

```python
import re
import struct

TRANS = ("v_exp_f32", "v_log_f32", "v_rcp_f32", "v_rsq_f32", "v_sqrt_f32", "v_sin_f32", "v_cos_f32")


def f2u(x):
    return struct.unpack("<I", struct.pack("<f", x))[0]


def fhex(x):
    return "0x%08x" % f2u(x)


def vr(a, n=1):
    return "v%d" % a if n == 1 else "v[%d:%d]" % (a, a + n - 1)


def sr(a, n=1):
    return "s%d" % a if n == 1 else "s[%d:%d]" % (a, a + n - 1)


_REG = re.compile(r"^(-|abs\(|-abs\()?([vsa])(?:(\d+)|\[(\d+):(\d+)\])\)?$")


def regs_of(op):
    op = op.strip()
    if op == "vcc":
        return {("s", 106), ("s", 107)}
    if op == "exec":
        return {("s", 126), ("s", 127)}
    if op == "m0":
        return {("s", 124)}
    m = _REG.match(op)
    if not m:
        return set()
    k = m.group(2)
    if m.group(3) is not None:
        return {(k, int(m.group(3)))}
    return {(k, i) for i in range(int(m.group(4)), int(m.group(5)) + 1)}


class Ins:
    __slots__ = ("text", "op", "ops", "mods", "wr", "rd", "kind", "passes", "srcc", "srcab", "label", "target")

    def __init__(self, text):
        self.text = text
        self.label = None
        self.target = None
        self.wr = set()
        self.rd = set()
        self.srcc = set()
        self.srcab = set()
        self.passes = 0
        t = text.split(";")[0].strip()
        if t.endswith(":"):
            self.kind = "label"
            self.label = t[:-1]
            self.op = ""
            self.ops = []
            self.mods = ""
            return
        if t.startswith(".") or not t:
            self.kind = "dir"
            self.op = ""
            self.ops = []
            self.mods = ""
            return
        parts = t.split(None, 1)
        self.op = op = parts[0]
        rest = parts[1] if len(parts) > 1 else ""
        raw = [x.strip() for x in rest.split(",")] if rest else []
        self.mods = ""
        if raw:
            lp = raw[-1].split(None, 1)
            raw[-1] = lp[0] if lp else ""
            self.mods = lp[1] if len(lp) > 1 else ""
        self.ops = ops = raw
        R = [regs_of(o) for o in ops]
        allr = set().union(*R) if R else set()
        if op.startswith("v_mfma"):
            self.kind = "mfma"
            self.wr = R[0]
            self.srcab = R[1] | R[2]
            self.srcc = R[3]
            self.rd = self.srcab | self.srcc
            if "32x32x2_f32" in op:
                self.passes = 16
                self.kind = "sgemm"
            elif "16x16x4_f32" in op:
                self.passes = 8
                self.kind = "sgemm"
            elif "32x32" in op:
                self.passes = 8
            else:
                self.passes = 4
        elif op.startswith("v_cmp"):
            self.kind = "valu"
            self.wr = R[0]
            self.rd = set().union(*R[1:])
        elif op.startswith("v_"):
            self.kind = "valu"
            self.wr = set(R[0])
            self.rd = set().union(*R[1:]) if len(R) > 1 else set()
            if op.startswith(("v_fmac", "v_dot2c", "v_pk_fmac")):
                self.rd |= R[0]
            if op.startswith("v_permlane") or op.startswith("v_swap"):
                self.rd |= R[0]
                self.wr |= R[1]
            if op.startswith(("v_add_co", "v_sub_co", "v_addc_co")):
                self.wr |= R[1]
                self.rd = set().union(*R[2:])
            if op.startswith("v_cndmask") and len(ops) == 3:
                self.rd |= regs_of("vcc")
            if "_dpp" in op or "row_" in self.mods or "quad_perm" in self.mods:
                self.rd |= R[0]
            if op == "v_nop":
                self.kind = "other"
        elif op.startswith("ds_read") or op.startswith("ds_bpermute") or op.startswith("ds_swizzle") or op.startswith("ds_permute"):
            self.kind = "ds"
            self.wr = R[0]
            self.rd = set().union(*R[1:])
        elif op.startswith("ds_"):
            self.kind = "ds"
            self.rd = allr
        elif op.startswith(("buffer_load", "global_load")):
            self.kind = "vmem"
            if " lds" in (" " + self.mods) or "_lds_" in op:
                self.rd = allr | regs_of("m0")
                self.kind = "vmem_lds"
            else:
                self.wr = R[0]
                self.rd = set().union(*R[1:])
        elif op.startswith(("buffer_store", "global_store", "buffer_atomic", "global_atomic")):
            self.kind = "vmem"
            self.rd = allr
            if "atomic" in op and "sc0" in self.mods:
                self.wr = R[0]
        elif op.startswith(("buffer_wbl2", "buffer_inv")):
            self.kind = "vmem"
        elif op.startswith(("s_load", "s_buffer_load", "s_memtime", "s_memrealtime")):
            self.kind = "smem"
            self.wr = R[0]
            self.rd = set().union(*R[1:]) if len(R) > 1 else set()
        elif op.startswith(("s_branch", "s_cbranch")):
            self.kind = "branch"
            self.target = ops[0]
        elif op.startswith(("s_cmp", "s_bitcmp", "s_waitcnt", "s_barrier", "s_nop", "s_endpgm", "s_sleep", "s_setprio")):
            self.kind = "salu"
            self.rd = allr
        elif op.startswith("s_"):
            self.kind = "salu"
            self.wr = set(R[0]) if R else set()
            self.rd = set().union(*R[1:]) if len(R) > 1 else set()
            if "saveexec" in op:
                self.wr |= regs_of("exec")
        else:
            raise ValueError("unknown instruction: " + text)

    def states(self):
        if self.kind in ("label", "dir"):
            return 0
        if self.op == "s_nop":
            return int(self.ops[0], 0) + 1
        return 1


def need_between(p, c):
    n = 0
    pk, ck = p.kind, c.kind
    cmf = ck in ("mfma", "sgemm")
    if pk == "valu":
        vw = {r for r in p.wr if r[0] in "va"}
        sw = {r for r in p.wr if r[0] == "s"}
        if cmf and vw & c.rd:
            n = max(n, 2)
        if p.op.startswith(TRANS) and ck == "valu" and not c.op.startswith(TRANS) and vw & c.rd:
            n = max(n, 1)
        if p.op.startswith(TRANS) and ck in ("vmem", "ds", "vmem_lds") and vw & c.rd:
            n = max(n, 1)
        if sw:
            if ck == "valu" and sw & c.rd:
                n = max(n, 4 if c.op.startswith(("v_readlane", "v_writelane")) else 2)
            if ck in ("vmem", "vmem_lds") and sw & c.rd:
                n = max(n, 5)
            if ck in ("salu", "branch", "smem") and (sw & c.rd or (ck == "branch" and "vcc" in c.op)):
                n = max(n, 1)
        if ck == "valu" and vw & c.rd:
            if c.op.startswith(("v_readfirstlane", "v_readlane")):
                n = max(n, 1)
            if c.op.startswith("v_permlane") or "_dpp" in c.op or "row_" in c.mods or "quad_perm" in c.mods:
                n = max(n, 2)
            if "sdwa" in p.op or "op_sel" in p.mods:
                n = max(n, 1)
        if p.op.startswith("v_dot"):
            if vw & (c.rd | c.wr):
                same = c.op == p.op
                if same and not (vw & set().union(*[regs_of(o) for o in c.ops[1:3]])):
                    pass
                else:
                    n = max(n, 3)
    elif pk in ("mfma", "sgemm"):
        xdl = pk == "mfma"
        tab_rw = {4: 8, 8: 12, 16: 20} if xdl else {4: 6, 8: 10, 16: 18}
        if cmf:
            if p.wr & c.srcab:
                n = max(n, tab_rw[p.passes])
            if p.wr & c.srcc:
                if p.wr == c.srcc and pk == ck and p.passes == c.passes:
                    pass
                elif xdl:
                    n = max(n, {4: 6, 8: 10, 16: 18}[p.passes])
                elif ck == "sgemm":
                    n = max(n, {4: 4, 8: 8, 16: 16}[p.passes])
            elif p.wr & c.wr:
                n = max(n, tab_rw[p.passes])
        elif ck in ("valu", "vmem", "ds", "vmem_lds"):
            if p.wr & (c.rd | c.wr):
                n = max(n, tab_rw[p.passes])
            if xdl and ck == "valu" and p.srcc & c.wr:
                n = max(n, {4: 3, 8: 7, 16: 15}[p.passes])
    elif pk == "salu":
        if ("s", 124) in p.wr and ck == "vmem_lds":
            n = max(n, 1)
    elif pk == "vmem":
        if ("store" in p.op or "atomic" in p.op) and ("x4" in p.op or "x3" in p.op):
            data = regs_of(p.ops[0]) if p.op.startswith("buffer") else regs_of(p.ops[1])
            if data & c.wr:
                n = max(n, 2 if ck == "valu" else 1)
    return n


class Asm:
    def __init__(self):
        self.ins = []
        self.uid = 0

    def __call__(self, text):
        for line in text.split("\n"):
            line = line.strip()
            if not line:
                continue
            if line.startswith(";"):
                i = Ins(".")
                i.text = line
                self.ins.append(i)
                continue
            i = Ins(line)
            if i.kind not in ("label", "dir"):
                need = self._need(self.ins, i)
                if need > 0:
                    while need > 0:
                        k = min(need, 16)
                        self.ins.append(Ins("s_nop %d" % (k - 1)))
                        need -= k
            self.ins.append(i)

    @staticmethod
    def _need(prev, c):
        dist = 0
        need = 0
        for p in reversed(prev):
            if p.kind in ("label", "dir"):
                continue
            if p.op in ("s_branch", "s_endpgm"):
                break
            if dist >= 20:
                break
            nb = need_between(p, c)
            if nb > dist:
                need = max(need, nb - dist)
            dist += p.states()
        return need

    def label(self, base="L"):
        self.uid += 1
        return "%s_%d" % (base, self.uid)

    def check_edges(self):
        idx = {i.label: n for n, i in enumerate(self.ins) if i.kind == "label"}
        bad = []
        for n, b in enumerate(self.ins):
            if b.kind != "branch":
                continue
            t = idx[b.target]
            prev = []
            for p in reversed(self.ins[: n + 1]):
                if p is not b and p.op in ("s_branch", "s_endpgm"):
                    break
                prev.append(p)
                if len(prev) > 40:
                    break
            prev.reverse()
            seq = [p for p in prev if p.kind not in ("label", "dir")]
            seq = [Ins("s_nop 0") if p.kind == "branch" else p for p in seq]
            cnt = 0
            for c in self.ins[t:]:
                if c.kind in ("label", "dir"):
                    continue
                need = self._need(seq, c)
                if need > 0:
                    bad.append((b.text, c.text, need))
                if c.op in ("s_branch", "s_endpgm"):
                    break
                seq.append(Ins("s_nop 0") if c.kind == "branch" else c)
                cnt += 1
                if cnt > 22:
                    break
        return bad

    def check_waits(self):
        bad = []
        lg = []
        vm = []
        for i in self.ins:
            if i.kind in ("label", "dir"):
                continue
            if i.op in ("s_endpgm", "s_branch"):
                lg, vm = [], []
                continue
            if i.op == "s_waitcnt":
                txt = " ".join(i.ops) + " " + i.mods
                m = re.search(r"lgkmcnt\((\d+)\)", txt)
                if m:
                    n = int(m.group(1))
                    if n == 0:
                        lg = []
                    else:
                        ds = [e for e in lg if e[0] == "ds"]
                        ds = ds[-n:] if n < len(ds) else ds
                        lg = [e for e in lg if e[0] == "smem"] + ds
                m = re.search(r"vmcnt\((\d+)\)", txt)
                if m:
                    n = int(m.group(1))
                    vm = [] if n == 0 else (vm[-n:] if n < len(vm) else vm)
                continue
            touched = i.rd | i.wr
            for k, regs in lg:
                if regs & touched:
                    bad.append(("lgkm", i.text))
                    break
            for regs in vm:
                if regs & touched:
                    bad.append(("vm", i.text))
                    break
            if i.kind == "ds":
                lg.append(("ds", set(i.wr)))
            elif i.kind == "smem" and not i.op.startswith("s_mem"):
                lg.append(("smem", set(i.wr)))
            elif i.kind in ("vmem", "vmem_lds"):
                vm.append(set(i.wr))
        return bad

    def text(self):
        out = []
        for i in self.ins:
            if i.kind == "label" or i.text.startswith(".") or i.text.startswith(";"):
                out.append(i.text)
            else:
                out.append("  " + i.text)
        return "\n".join(out) + "\n"

    def max_regs(self, start=0):
        mv = ms = -1
        for i in self.ins[start:]:
            for k, n in i.rd | i.wr:
                if k == "v":
                    mv = max(mv, n)
                elif k == "s" and n < 102:
                    ms = max(ms, n)
        return mv, ms
```

```python
S, D, F, FH = 2048, 640, 1728, 864
NAME = "parallel_sum__linear_attn_block__mixer_gmlp__prompt"

WS_QKV = 0x0000000
NG_QKV = 120
WS_Z = 0x0780000
NG_Z = 108
WS_A3 = 0x0E80000
NG_A3 = 94
WS_B3 = 0x1480000
WS_KV = 0x1680000
WS_CNT = 0x1694000
WS_FL = 0x16A0000
WS_ST2 = 0x16B0000
WS_END = 0x1730000

KA_X, KA_WQKV, KA_WO, KA_BX, KA_WIN, KA_WSP, KA_BSP, KA_WOUT, KA_OUT, KA_DBG, KA_WS = [8 * i for i in range(11)]
```

```python
import sys
from asmlib import *
from common import *
import k1

HEADER = open('cdna_kernels/%s.s.ref' % NAME).read().split('; Override launch')[0]

def kd(name, nv, ns):
    acc = (nv + 3) // 4 * 4
    return """.amdhsa_kernel %s
  .amdhsa_next_free_vgpr %d
  .amdhsa_next_free_sgpr %d
  .amdhsa_accum_offset %d
  .amdhsa_group_segment_fixed_size 0
  .amdhsa_kernarg_size 88
  .amdhsa_user_sgpr_count 2
  .amdhsa_user_sgpr_kernarg_segment_ptr 1
  .amdhsa_system_sgpr_workgroup_id_x 1
.end_amdhsa_kernel
""" % (name, nv, ns, acc)

def build(kernels, path):
    a = Asm()
    launches, kds = [], []
    for name, fn, grid, block, lds in kernels:
        start = len(a.ins)
        a(".globl %s" % name)
        a(".type %s,@function" % name)
        fn(a, name)
        mv, ms = a.max_regs(start)
        launches.append("; @launch kernel=%s grid=(%d,1,1) block=(%d,1,1) lds=%d" % (name, grid, block, lds))
        kds.append(".p2align 6\n" + kd(name, mv + 1, ms + 1))
        print(name, "vgpr", mv + 1, "sgpr", ms + 1, "instrs", len(a.ins) - start, file=sys.stderr)
    for b in a.check_edges()[:10]:
        print("EDGE HAZARD", b, file=sys.stderr)
    for b in a.check_waits()[:10]:
        print("WAIT?", b, file=sys.stderr)
    txt = HEADER + "\n".join(launches) + "\n" + '.amdgcn_target "amdgcn-amd-amdhsa--gfx950"\n.text\n' + a.text() + '.section .rodata,"a"\n' + "".join(kds)
    open(path, "w").write(txt)

if __name__ == "__main__":
    ks = [("k1_kernel", k1.gen_k1, 256, 512, k1.K1_LDS)]
    try:
        import k2
        ks.append(("k2_kernel", k2.gen_k2, 256, 256, k2.K2_LDS))
        import k3
        ks.append(("k3_kernel", k3.gen_k3, 256, 256, k3.K3_LDS))
    except ImportError as e:
        print(e, file=sys.stderr)
    build(ks, sys.argv[1] if len(sys.argv) > 1 else 'cdna_kernels/%s.s' % NAME)
```

```python
from asmlib import *
from common import *

LOG2E = 1.4426950408889634
GC1 = -2.0 * 0.7978845608028654 * LOG2E
GC2 = GC1 * 0.044715

UNIT = 16384
NUNITS = 9
LDS_CS = NUNITS * UNIT
K1_LDS = LDS_CS + 2048

X0, M0, E0, FR, HOLD, PK, T0 = 96, 80, 64, 48, 40, 36, 28
NEGMU, RSTD, RL, K1c, K2c, IRSTD = 27, 26, 25, 24, 23, 22
ZSUM, ZSQ, CS, XSUM, XSQ = 20, 21, 19, 18, 17
vLaneB, vBa, vBt, vBt2 = 16, 15, 14, 13
vW1a, vW1b, vSt0, vSt1, vCsW, vCsR = 12, 11, 10, 9, 8, 7
vLaneX, vXa, vXt = 6, 5, 4
vXd, vW0a, vW0b = 64, 68, 69
sX, sW0, sW1, sWS, sDBG = 4, 8, 12, 16, 20
sRb, sCg, sW, sR, sC = 24, 25, 26, 27, 28
sXoff, sW0off, sW1off, sW1step, sW1wrap = 29, 30, 31, 32, 33
sRd, sWr, sT0, sW4k, sW2k = 34, 35, 36, 37, 38
sOnes, sA, sB, sCc, sOut, sLine, sIsZ2, sType, sOne = 39, 40, 41, 42, 43, 44, 45, 46, 47
sOut1, sL1, sZ2w, sT1, sT2, sOut0 = 64, 65, 66, 67, 68, 69
sP = 48


import os
STAMP = os.environ.get("STAMP", "0") == "1"
WS_STAMP = 0x1800000
EXP = os.environ.get("EXP", "").split(",")


def stamp(a, i):
    if STAMP:
        a("s_memtime s[%d:%d]" % (72 + 2 * i, 73 + 2 * i))


def stamp_dump(a, n, srdn, wreg, base):
    if not STAMP:
        return
    a("s_waitcnt lgkmcnt(0)")
    a("s_lshl_b32 s%d, s2, 3" % sT0)
    a("s_add_u32 s%d, s%d, s%d" % (sT0, sT0, wreg))
    a("s_lshl_b32 s%d, s%d, 6" % (sT0, sT0))
    a("s_add_u32 s%d, s%d, 0x%x" % (sT0, sT0, base))
    a("s_mov_b32 s%d, 0x4000000" % (srdn + 2))
    a("v_mov_b32 v1, 0")
    a("s_mov_b64 exec, 1")
    for i in range(n):
        a("v_mov_b32 v2, s%d" % (72 + 2 * i))
        a("buffer_store_dword v2, v1, s[%d:%d], s%d offen offset:%d" % (srdn, srdn + 3, sT0, 4 * i))
    a("s_mov_b64 exec, -1")


class LdsQ:
    def __init__(self, a, init=()):
        self.a = a
        self.q = list(init)

    def issue(self, text, tag):
        self.a(text)
        self.q.append(tag)

    def wait(self, tag):
        if tag not in self.q:
            return
        last = max(i for i, t in enumerate(self.q) if t == tag)
        n = len(self.q) - 1 - last
        assert n <= 15
        self.a("s_waitcnt lgkmcnt(%d)" % n)
        self.q = self.q[last + 1:]


def srd(a, d, plo, nbytes):
    a("s_mov_b32 s%d, s%d" % (d, plo))
    a("s_and_b32 s%d, s%d, 0xffff" % (d + 1, plo + 1))
    a("s_mov_b32 s%d, 0x%x" % (d + 2, nbytes))
    a("s_mov_b32 s%d, 0x20000" % (d + 3))


def csel(a, d, t, f):
    a("s_mov_b32 s%d, %s" % (d, f))
    a("s_cselect_b32 s%d, %s, s%d" % (d, t, d))


def frag_reads(q, j, addr_state):
    a = q.a
    jj, b = j >> 1, j & 1
    if jj == 0:
        ar = vBa
    else:
        ar = vBt if (jj & 1) else vBt2
        if b == 0:
            a("v_xor_b32 v%d, 0x%x, v%d" % (ar, jj * 4096, vBa))
    d = FR + 4 * (j & 3)
    op = "ds_read_b64" if "notr" in EXP else "ds_read_b64_tr_b16"
    if "nolds" in EXP:
        q.q += ["f%d" % j] * 2
        return
    q.issue("%s v[%d:%d], v%d offset:%d" % (op, d, d + 1, ar, b * 2048), "f%d" % j)
    q.issue("%s v[%d:%d], v%d offset:%d" % (op, d + 2, d + 3, ar, b * 2048 + 512), "f%d" % j)


def gelu_ops(regs, outs):
    seqs = []
    for e, (t, p) in zip(regs, outs):
        seqs.append([
            "v_mul_f32 v%d, v%d, v%d" % (t, e, e),
            "v_fma_f32 v%d, v%d, v%d, v%d" % (p, t, K2c, K1c),
            "v_mul_f32 v%d, v%d, v%d" % (p, p, e),
            "v_exp_f32 v%d, v%d" % (p, p),
            "v_fma_f32 v%d, v%d, v%d, v%d" % (p, p, IRSTD, IRSTD),
            "v_rcp_f32 v%d, v%d" % (p, p),
            "v_mul_f32 v%d, v%d, v%d" % (t, e, p),
        ])
    return [s[i] for i in range(7) for s in seqs]


def phi_ops(regs, outs):
    seqs = []
    for e, (t, p) in zip(regs, outs):
        seqs.append([
            "v_mul_f32 v%d, v%d, v%d" % (p, e, RL),
            "v_exp_f32 v%d, v%d clamp" % (p, p),
            "v_fma_f32 v%d, v%d, v%d, s%d" % (t, e, RSTD, sCc),
            "v_max_f32 v%d, s%d, v%d" % (t, sA, t),
            "v_fma_f32 v%d, v%d, s%d, v%d" % (t, p, sB, t),
        ])
    return [s[i] for i in range(5) for s in seqs]


def epi_quad(typ, qd):
    regs = [E0 + 4 * qd + i for i in range(4)]
    outs = [(T0 + 2 * i, T0 + 2 * i + 1) for i in range(4)]
    ops = gelu_ops(regs, outs) if typ == "G" else phi_ops(regs, outs)
    o = PK + 2 * (qd & 1)
    ops.append("v_cvt_pk_bf16_f32 v%d, v%d, v%d" % (o, outs[0][0], outs[1][0]))
    ops.append("v_cvt_pk_bf16_f32 v%d, v%d, v%d" % (o + 1, outs[2][0], outs[3][0]))
    return ops


def epi_out(a, typ, half):
    vst = vSt0 if half == 0 else vSt1
    st = "buffer_store_dwordx4 v[%d:%d], v%d, s[%d:%d], s%d offen sc1" % (PK, PK + 3, vst, sWS, sWS + 3, sOut)
    if "nost" in EXP:
        st = "s_nop 0"
    if "nosc1" in EXP:
        st = st.replace(" sc1", "")
    if typ == "P":
        a(st)
        return
    lz, le = a.label("Lz2"), a.label("Le")
    a("s_cmp_eq_u32 s%d, 1" % sIsZ2)
    a("s_cbranch_scc1 %s" % lz)
    a(st)
    a("s_branch %s" % le)
    a(lz + ":")
    for i in range(4):
        a("v_mov_b32 v%d, v%d" % (HOLD + 4 * half + i, PK + i))
        a("v_dot2c_f32_bf16 v%d, s%d, v%d" % (ZSUM, sOnes, PK + i))
        a("v_dot2c_f32_bf16 v%d, v%d, v%d" % (ZSQ, PK + i, PK + i))
    if half == 1:
        a("v_mov_b32 v%d, v%d" % (T0, ZSUM))
        a("v_mov_b32 v%d, v%d" % (T0 + 1, ZSQ))
        a("v_permlane32_swap_b32 v%d, v%d" % (ZSUM, T0))
        a("v_permlane32_swap_b32 v%d, v%d" % (ZSQ, T0 + 1))
        a("v_add_f32 v%d, v%d, v%d" % (ZSUM, ZSUM, T0))
        a("v_add_f32 v%d, v%d, v%d" % (ZSQ, ZSQ, T0 + 1))
        a("v_and_b32 v%d, 31, v0" % T0)
        a("v_lshlrev_b32 v%d, 8, v%d" % (T0, T0))
        a("s_mov_b32 exec_hi, 0")
        a("buffer_store_dwordx2 v[%d:%d], v%d, s[%d:%d], s%d offen sc1" % (ZSUM, ZSQ, T0, sWS, sWS + 3, sZ2w))
        a("s_mov_b64 exec, -1")
        a("s_mov_b32 s%d, 0" % sIsZ2)
    a("s_nop 2")
    a(le + ":")


def dma_b(a, va, vb, srdn, soff):
    a("s_add_u32 m0, s%d, s%d" % (sWr, sW2k))
    a("buffer_load_dwordx4 v%d, s[%d:%d], s%d offen lds" % (va, srdn, srdn + 3, soff))
    a("buffer_load_dwordx4 v%d, s[%d:%d], s%d offen offset:1024 lds" % (vb, srdn, srdn + 3, soff))


def adv_ring(a, s):
    a("s_add_u32 s%d, s%d, %d" % (s, s, UNIT))
    a("s_cmp_eq_u32 s%d, %d" % (s, NUNITS * UNIT))
    a("s_cselect_b32 s%d, 0, s%d" % (s, s))


def dma_n(a, n):
    dma_b(a, vW1a, vW1b, sW1, sW1off)
    adv_ring(a, sWr)
    a("s_add_u32 s%d, s%d, s%d" % (sW1off, sW1off, sW1wrap if n % 5 == 4 else sW1step))


def dma_xstep(a, i):
    base = (i % 3) * 3 * UNIT
    a("s_add_u32 m0, s%d, %d" % (sW4k, base))
    for t in range(4):
        a("buffer_load_dwordx4 v%d, s[%d:%d], s%d offen offset:%d lds" % (vXd + t, sX, sX + 3, sXoff, 1024 * t))
    a("s_add_u32 m0, s%d, %d" % (sW2k, base + 2 * UNIT))
    a("buffer_load_dwordx4 v%d, s[%d:%d], s%d offen lds" % (vW0a, sW0, sW0 + 3, sW0off))
    a("buffer_load_dwordx4 v%d, s[%d:%d], s%d offen offset:1024 lds" % (vW0b, sW0, sW0 + 3, sW0off))
    a("s_add_u32 s%d, s%d, 256" % (sXoff, sXoff))
    a("s_add_u32 s%d, s%d, %d" % (sW0off, sW0off, 128 * 3456))


def mfma(a, i, j, first, last):
    x = X0 + 32 * i + 4 * j
    f = FR + 4 * (j & 3)
    d = E0 if last else M0
    c = "0" if first else "v[%d:%d]" % (M0, M0 + 15)
    a("v_mfma_f32_32x32x16_bf16 v[%d:%d], v[%d:%d], v[%d:%d], %s" % (d, d + 15, f, f + 3, x, x + 3, c))


def cs_dots(j):
    f = FR + 4 * (j & 3)
    if "nocs" in EXP:
        return []
    return ["v_dot2c_f32_bf16 v%d, s%d, v%d" % (CS, sOnes, f + i) for i in range(4)]


def spread(n_items, n_slots):
    base, rem = divmod(n_items, n_slots)
    return [base + (1 if i < rem else 0) for i in range(n_slots)]


def next_base(a):
    adv_ring(a, sRd)
    a("v_add_u32 v%d, s%d, v%d" % (vBa, sRd, vLaneB))


def step_core(a, q, i, fill, xphase, pre_ext=None, lump=None):
    last_piece = i == 4
    nslots = 7 if lump else 8
    cnt = spread(len(fill), nslots) + [0] * (8 - nslots)
    pos = 0
    for j in range(8):
        if last_piece and j == 7:
            if pre_ext:
                pre_ext()
            q.wait("csr")
            a("v_add_f32 v%d, v%d, v%d" % (PK, PK, PK + 1))
            a("v_add_f32 v%d, v%d, v%d" % (PK + 2, PK + 2, PK + 3))
            a("v_add_f32 v%d, v%d, v%d" % (PK, PK, PK + 2))
            a("v_mfma_f32_32x32x2_f32 v[%d:%d], v%d, v%d, v[%d:%d]" % (M0, M0 + 15, PK, NEGMU, M0, M0 + 15))
        if xphase:
            q.wait("x%d" % j)
        q.wait("f%d" % j)
        mfma(a, i, j, first=(i == 0 and j == 0), last=(last_piece and j == 7))
        if j < 2:
            if i == 0 and j == 0:
                a("v_mov_b32 v%d, 0" % CS)
            for t in cs_dots(j):
                a(t)
        jn = j + 3
        if jn < 8:
            frag_reads(q, jn, None)
        elif not xphase or last_piece:
            if jn == 8:
                next_base(a)
            frag_reads(q, jn - 8, None)
        if last_piece and j == 1:
            q.issue("ds_write_b32 v%d, v%d" % (vCsW, CS), "csw")
        if last_piece and j == 3:
            q.wait("csw")
            a("s_barrier")
            q.issue("ds_read_b128 v[%d:%d], v%d" % (PK, PK + 3, vCsR), "csr")
        for t in fill[pos:pos + cnt[j]]:
            a(t)
        pos += cnt[j]
        if lump and j == 6:
            lump()
    assert pos == len(fill)


def body(a, typ, lab_next):
    q = LdsQ(a, ["f0", "f0", "f1", "f1", "f2", "f2"])
    for i in range(5):
        if "novm" not in EXP:
            a("s_waitcnt vmcnt(%d)" % (6 if i == 2 else 8))
        if "nobar" not in EXP:
            a("s_barrier")
        if "nodma" not in EXP:
            dma_n(a, i + 1)
        if i == 3:
            a("s_cmp_eq_u32 s%d, 2" % sLine)
            a("s_cselect_b32 s%d, 0x40000000, s%d" % (sW1off, sW1off))
        if i == 2:
            lf = a.label("Lf")
            a("s_cmp_lg_u32 s%d, s%d" % (sLine, sL1))
            a("s_cbranch_scc1 %s" % lf)
            a("v_mov_b32 v%d, 1" % T0)
            a("v_mov_b32 v%d, 0" % (T0 + 1))
            a("s_mov_b64 exec, 1")
            a("buffer_store_byte v%d, v%d, s[%d:%d], s%d offen sc1" % (T0, T0 + 1, sDBG, sDBG + 3, sT2))
            a("s_mov_b64 exec, -1")
            a(lf + ":")
        if i < 4:
            fill = epi_quad(typ, i)
            if "noepi" in EXP:
                fill = []
            lump = (lambda h=i >> 1: epi_out(a, typ, h)) if (i & 1) else None
            if i == 0:
                fill = ["s_nop 0"] + fill
        else:
            fill, lump = [], None
        step_core(a, q, i, fill, False, lump=lump)
    assert q.q == ["f0", "f0", "f1", "f1", "f2", "f2"], q.q
    a("s_branch %s" % lab_next)


def tail(a, typ):
    a("s_nop 11")
    for qd in range(4):
        for t in epi_quad(typ, qd):
            a(t)
        if qd & 1:
            epi_out(a, typ, qd >> 1)


def gen_k1(a, label):
    a(".p2align 8")
    a(label + ":")
    end = "K1_end"
    a("s_cmp_ge_u32 s2, 256")
    a("s_cbranch_scc1 %s" % end)
    stamp(a, 0)
    a("s_load_dwordx4 s[48:51], s[0:1], %d" % KA_X)
    a("s_load_dwordx2 s[52:53], s[0:1], %d" % KA_WO)
    a("s_load_dwordx2 s[54:55], s[0:1], %d" % KA_WIN)
    a("s_load_dwordx2 s[56:57], s[0:1], %d" % KA_WOUT)
    a("s_load_dwordx4 s[60:63], s[0:1], %d" % KA_DBG)
    a("s_and_b32 s%d, s2, 1" % sRb)
    a("s_lshl_b32 s%d, s%d, 3" % (sRb, sRb))
    a("s_lshr_b32 s%d, s2, 5" % sT0)
    a("s_add_u32 s%d, s%d, s%d" % (sRb, sRb, sT0))
    a("s_bfe_u32 s%d, s2, 0x20001" % sCg)
    a("s_lshl_b32 s%d, s%d, 2" % (sCg, sCg))
    a("s_bfe_u32 s%d, s2, 0x20003" % sT0)
    a("s_add_u32 s%d, s%d, s%d" % (sCg, sCg, sT0))
    a("v_lshrrev_b32 v1, 6, v0")
    a("v_and_b32 v0, 63, v0")
    a("v_readfirstlane_b32 s%d, v1" % sW)
    a("s_and_b32 s%d, s%d, 3" % (sR, sW))
    a("s_lshr_b32 s%d, s%d, 2" % (sC, sW))
    a("s_lshl_b32 s%d, s%d, 12" % (sW4k, sW))
    a("s_lshl_b32 s%d, s%d, 11" % (sW2k, sW))
    a("s_cmp_eq_u32 s%d, 15" % sCg)
    a("s_cbranch_scc1 K1_side")
    a("v_lshrrev_b32 v1, 4, v0")
    a("v_and_b32 v2, 15, v0")
    a("s_lshl_b32 s%d, s%d, 4" % (sT0, sW))
    a("v_add_u32 v3, s%d, v1" % sT0)
    a("v_mul_u32_u24 v3, 1280, v3")
    for t in range(4):
        a("v_add_u32 v%d, %d, v1" % (vXt, 4 * t))
        a("v_xor_b32 v%d, v%d, v2" % (vXt, vXt))
        a("v_lshl_add_u32 v%d, v%d, 4, v3" % (vXd + t, vXt))
        if t:
            a("v_add_u32 v%d, %d, v%d" % (vXd + t, 4 * t * 1280 - 1024 * t, vXd + t))
    a("v_lshrrev_b32 v3, 3, v0")
    a("v_add_u32 v3, s%d, v3" % sT0)
    a("v_and_b32 v1, 1, v1")
    a("v_lshlrev_b32 v1, 2, v1")
    a("v_and_b32 v2, 7, v0")
    a("v_xor_b32 v2, v1, v2")
    a("v_lshlrev_b32 v2, 4, v2")
    a("v_mul_u32_u24 v%d, 3456, v3" % vW0a)
    a("v_add_u32 v%d, v%d, v2" % (vW0a, vW0a))
    a("v_add_u32 v%d, %d, v%d" % (vW0b, 8 * 3456 - 1024, vW0a))
    a("s_cmp_lt_u32 s%d, 10" % sCg)
    csel(a, sT1, "3840", "3456")
    a("s_cselect_b32 s%d, 0, 1" % sType)
    a("v_mul_u32_u24 v%d, s%d, v3" % (vW1a, sT1))
    a("v_add_u32 v%d, v%d, v2" % (vW1a, vW1a))
    a("s_lshl_b32 s%d, s%d, 3" % (sT0, sT1))
    a("s_sub_u32 s%d, s%d, 1024" % (sT0, sT0))
    a("v_add_u32 v%d, s%d, v%d" % (vW1b, sT0, vW1a))
    a("s_lshl_b32 s%d, s%d, 7" % (sW1step, sT1))
    a("s_lshl_b32 s%d, s%d, 2" % (sT0, sW1step))
    a("s_sub_u32 s%d, 128, s%d" % (sW1wrap, sT0))
    a("s_mul_i32 s%d, s%d, %d" % (sXoff, sRb, 128 * 1280))
    a("s_add_u32 s%d, s%d, 13" % (sT0, sCg))
    a("s_cmp_eq_u32 s%d, 14" % sCg)
    a("s_cselect_b32 s%d, 12, s%d" % (sT0, sT0))
    a("s_cselect_b32 s%d, 1, 0" % sOne)
    a("s_lshl_b32 s%d, s%d, 7" % (sW0off, sT0))
    a("s_lshl_b32 s%d, s%d, 1" % (sT0, sT0))
    a("s_add_u32 s%d, s%d, s%d" % (sT0, sT0, sC))
    a("s_cmp_ge_u32 s%d, 27" % sT0)
    a("s_cselect_b32 s%d, 1, 0" % sIsZ2)
    a("s_mov_b32 s%d, s%d" % (sOut0 + 1, sIsZ2))
    a("s_lshl_b32 s%d, s%d, 2" % (sT2, sRb))
    a("s_add_u32 s%d, s%d, s%d" % (sT2, sT2, sR))
    a("s_mul_i32 s%d, s%d, %d" % (sOut, sT2, NG_Z))
    a("s_lshl_b32 s%d, s%d, 1" % (sOut1, sT0))
    a("s_add_u32 s%d, s%d, s%d" % (sOut, sOut, sOut1))
    a("s_lshl_b32 s%d, s%d, 10" % (sOut, sOut))
    a("s_add_u32 s%d, s%d, 0x%x" % (sOut, sOut, WS_Z))
    a("s_mov_b32 s%d, s%d" % (sOut0, sOut))
    a("s_lshl_b32 s%d, s%d, 13" % (sZ2w, sT2))
    a("s_lshl_b32 s%d, s%d, 3" % (sT0, sT0))
    a("s_add_u32 s%d, s%d, s%d" % (sZ2w, sZ2w, sT0))
    a("s_add_u32 s%d, s%d, 0x%x" % (sZ2w, sZ2w, WS_ST2 - 27 * 8))
    a("s_mul_i32 s%d, s%d, 3" % (sT0, sCg))
    a("s_sub_u32 s%d, s%d, 30" % (sT1, sT0))
    a("s_cmp_lt_u32 s%d, 10" % sCg)
    a("s_cselect_b32 s%d, s%d, s%d" % (sT0, sT0, sT1))
    csel(a, sT1, str(NG_QKV), str(NG_Z))
    csel(a, sA, hex(WS_QKV), hex(WS_Z))
    a("s_lshl_b32 s%d, s%d, 7" % (sW1off, sT0))
    a("s_mov_b32 s%d, s%d" % (sOut0 + 2, sT0))
    a("s_mul_i32 s%d, s%d, s%d" % (sOut1, sT2, sT1))
    a("s_lshl_b32 s%d, s%d, 2" % (sT0, sT0))
    a("s_add_u32 s%d, s%d, s%d" % (sOut1, sOut1, sT0))
    a("s_lshl_b32 s%d, s%d, 1" % (sT0, sC))
    a("s_add_u32 s%d, s%d, s%d" % (sOut1, sOut1, sT0))
    a("s_lshl_b32 s%d, s%d, 10" % (sOut1, sOut1))
    a("s_add_u32 s%d, s%d, s%d" % (sOut1, sOut1, sA))
    a("s_cmp_eq_u32 s%d, 1" % sOne)
    a("s_cselect_b32 s%d, 0x40000000, s%d" % (sW1off, sW1off))
    a("s_waitcnt lgkmcnt(0)")
    srd(a, sX, 48, S * D * 2)
    srd(a, sW0, 54, D * F * 2)
    a("s_cmp_lt_u32 s%d, 10" % sCg)
    a("s_cselect_b32 s%d, s50, s54" % sW1)
    a("s_cselect_b32 s%d, s51, s55" % (sW1 + 1))
    csel(a, sW1 + 2, hex(D * 3 * D * 2), hex(D * F * 2))
    a("s_and_b32 s%d, s%d, 0xffff" % (sW1 + 1, sW1 + 1))
    a("s_mov_b32 s%d, 0x20000" % (sW1 + 3))
    for i in range(3):
        dma_xstep(a, i)
    srd(a, sWS, 62, WS_END)
    srd(a, sDBG, 60, 256)
    a("v_lshrrev_b32 v1, 5, v0")
    a("v_bfe_u32 v2, v0, 2, 2")
    a("v_lshl_add_u32 v2, v1, 3, v2")
    a("v_lshlrev_b32 v%d, 7, v2" % vLaneB)
    a("v_bfe_u32 v2, v0, 4, 1")
    a("v_lshlrev_b32 v2, 1, v2")
    a("v_bfe_u32 v3, v0, 1, 1")
    a("v_add_u32 v2, v2, v3")
    a("s_lshl_b32 s%d, s%d, 2" % (sT0, sC))
    a("v_add_u32 v2, s%d, v2" % sT0)
    a("v_bfe_u32 v3, v0, 3, 1")
    a("v_lshlrev_b32 v3, 2, v3")
    a("v_xor_b32 v2, v2, v3")
    a("v_lshl_add_u32 v%d, v2, 4, v%d" % (vLaneB, vLaneB))
    a("v_and_b32 v2, 1, v0")
    a("v_lshl_add_u32 v%d, v2, 3, v%d" % (vLaneB, vLaneB))
    a("s_lshl_b32 s%d, s%d, 12" % (sT0, sR))
    a("v_add_u32 v%d, s%d, v%d" % (vLaneB, sT0, vLaneB))
    a("v_and_b32 v2, 31, v0")
    a("s_lshl_b32 s%d, s%d, 5" % (sT0, sR))
    a("v_add_u32 v3, s%d, v2" % sT0)
    a("v_lshlrev_b32 v%d, 8, v3" % vLaneX)
    a("v_and_b32 v3, 15, v0")
    a("v_xor_b32 v3, v3, v1")
    a("s_lshl_b32 s%d, s%d, 2" % (sT0, sR))
    a("v_xor_b32 v3, s%d, v3" % sT0)
    a("v_lshl_add_u32 v%d, v3, 4, v%d" % (vLaneX, vLaneX))
    a("v_lshlrev_b32 v3, 2, v1")
    a("v_xor_b32 v3, v3, v0")
    a("v_lshlrev_b32 v%d, 4, v3" % vSt0)
    a("v_xor_b32 v%d, 0x80, v%d" % (vSt1, vSt0))
    a("v_add_u32 v%d, 1024, v%d" % (vSt1, vSt1))
    a("s_lshl_b32 s%d, s%d, 10" % (sT0, sC))
    a("s_add_u32 s%d, s%d, %d" % (sT0, sT0, LDS_CS))
    a("v_lshlrev_b32 v%d, 4, v0" % vCsR)
    a("v_add_u32 v%d, s%d, v%d" % (vCsR, sT0, vCsR))
    a("s_lshl_b32 s%d, s%d, 2" % (sT0, sR))
    a("v_add_u32 v%d, s%d, v%d" % (vCsW, sT0, vCsR))
    a("s_mov_b32 s%d, 0x3f803f80" % sOnes)
    for r_ in (XSUM, XSQ, ZSUM, ZSQ):
        a("v_mov_b32 v%d, 0" % r_)
    a("s_mov_b32 s%d, %d" % (sWr, 6 * UNIT))
    a("s_mov_b32 s%d, %d" % (sRd, 5 * UNIT))
    a("s_lshl_b32 s%d, s%d, 4" % (sT2, sRb))
    a("s_add_u32 s%d, s%d, s%d" % (sT2, sT2, sCg))
    a("s_cmp_eq_u32 s%d, 0" % sW)
    a("s_cselect_b32 s%d, 2, 99" % sL1)
    q = LdsQ(a)
    stamp(a, 1)
    for i in range(5):
        base = (i % 3) * 3 * UNIT
        a("s_waitcnt vmcnt(%d)" % [12, 6, 6, 6, 4][i])
        a("s_barrier")
        stamp(a, 2 + i)
        if i in (1, 2):
            dma_xstep(a, i + 2)
        elif i == 3:
            for n in range(3):
                dma_n(a, n)
        elif i == 4:
            for n in range(3, 6):
                dma_n(a, n)
        a("v_add_u32 v%d, %d, v%d" % (vXa, base, vLaneX))
        a("v_add_u32 v%d, %d, v%d" % (vBa, base + 2 * UNIT, vLaneB))
        for j in range(8):
            x = X0 + 32 * i + 4 * j
            if j == 0:
                ar = vXa
            else:
                ar = vXt if j & 1 else 3
                a("v_xor_b32 v%d, %d, v%d" % (ar, j * 32, vXa))
            q.issue("ds_read_b128 v[%d:%d], v%d" % (x, x + 3, ar), "x%d" % j)
            if j < 3:
                frag_reads(q, j, None)
        fill = []
        for j in range(8):
            x = X0 + 32 * i + 4 * j
            for t in range(4):
                fill.append("v_dot2c_f32_bf16 v%d, s%d, v%d" % (XSUM, sOnes, x + t))
                fill.append("v_dot2c_f32_bf16 v%d, v%d, v%d" % (XSQ, x + t, x + t))
        pre = None
        if i == 4:
            lastf = fill[56:]
            fill = fill[:56] + ["s_nop 0"] * 8

            def pre(lastf=lastf):
                q.wait("x7")
                for t in lastf:
                    a(t)
                a("v_mov_b32 v%d, v%d" % (T0, XSUM))
                a("v_mov_b32 v%d, v%d" % (T0 + 1, XSQ))
                a("v_permlane32_swap_b32 v%d, v%d" % (XSUM, T0))
                a("v_permlane32_swap_b32 v%d, v%d" % (XSQ, T0 + 1))
                a("v_add_f32 v%d, v%d, v%d" % (XSUM, XSUM, T0))
                a("v_add_f32 v%d, v%d, v%d" % (XSQ, XSQ, T0 + 1))
                a("v_mul_f32 v%d, %s, v%d" % (NEGMU, fhex(-1.0 / D), XSUM))
                a("v_mul_f32 v%d, %s, v%d" % (XSQ, fhex(1.0 / D), XSQ))
                a("v_fma_f32 v%d, -v%d, v%d, v%d" % (XSQ, NEGMU, NEGMU, XSQ))
                a("v_max_f32 v%d, 0, v%d" % (XSQ, XSQ))
                a("v_add_f32 v%d, %s, v%d" % (XSQ, fhex(1e-5), XSQ))
                a("v_rsq_f32 v%d, v%d" % (RSTD, XSQ))
                a("v_sqrt_f32 v%d, v%d" % (IRSTD, XSQ))
                a("v_mul_f32 v%d, %s, v%d" % (RL, fhex(LOG2E), RSTD))
                a("v_mul_f32 v%d, %s, v%d" % (K1c, fhex(GC1), RSTD))
                a("v_mul_f32 v%d, v%d, v%d" % (K2c, RSTD, RSTD))
                a("v_mul_f32 v%d, v%d, v%d" % (K2c, K2c, RSTD))
                a("v_mul_f32 v%d, %s, v%d" % (K2c, fhex(GC2), K2c))
            fill = [t for t in fill[:56]]
            step_core(a, q, i, fill, True, pre_ext=pre, lump=lambda: None)
        else:
            step_core(a, q, i, fill, True)
    assert q.q == ["f0", "f0", "f1", "f1", "f2", "f2"], q.q
    a("s_mov_b32 s%d, 1" % sLine)
    stamp(a, 7)
    a("s_cmp_eq_u32 s%d, 1" % sOne)
    a("s_cbranch_scc1 K1_tailG")
    a("K1_bodyG:")
    body(a, "G", "K1_next")
    a("K1_bodyP:")
    body(a, "P", "K1_next")
    a("K1_next:")
    if STAMP:
        a("s_mov_b32 s88, s90")
        a("s_mov_b32 s90, s92")
    stamp(a, 10)
    a("s_mov_b32 s%d, s%d" % (sOut, sOut1))
    a("s_add_u32 s%d, s%d, 4096" % (sOut1, sOut1))
    a("s_cmp_ge_u32 s%d, 20" % (sOut0 + 2))
    csel(a, sA, "0xff800000", fhex(1e-6))
    a("s_cselect_b32 s%d, 0, 1.0" % sB)
    a("s_cselect_b32 s%d, 0, %s" % (sCc, fhex(1e-6)))
    a("s_add_u32 s%d, s%d, 1" % (sOut0 + 2, sOut0 + 2))
    a("s_add_u32 s%d, s%d, 1" % (sLine, sLine))
    a("s_cmp_eq_u32 s%d, 4" % sLine)
    a("s_cbranch_scc1 K1_tails")
    a("s_cmp_eq_u32 s%d, 1" % sType)
    a("s_cbranch_scc1 K1_bodyG")
    a("s_branch K1_bodyP")
    a("K1_tails:")
    a("s_cmp_eq_u32 s%d, 1" % sType)
    a("s_cbranch_scc1 K1_tailG")
    tail(a, "P")
    a("s_branch K1_fin")
    a("K1_tailG:")
    tail(a, "G")
    a("K1_fin:")
    stamp(a, 11)
    a("s_waitcnt lgkmcnt(0)")
    a("s_cmp_eq_u32 s%d, 1" % sOne)
    a("s_cbranch_scc1 %s" % end)
    a("s_cmp_lg_u32 s%d, 0" % sW)
    a("s_cbranch_scc1 K1_polled")
    a("s_lshl_b32 s%d, s%d, 4" % (sT0, sRb))
    a("v_mov_b32 v1, 0")
    a("K1_poll:")
    a("buffer_load_dwordx4 v[%d:%d], v1, s[%d:%d], s%d offen sc1" % (T0, T0 + 3, sDBG, sDBG + 3, sT0))
    a("s_waitcnt vmcnt(0)")
    a("v_and_b32 v%d, v%d, v%d" % (T0, T0, T0 + 1))
    a("v_or_b32 v%d, 0x01010000, v%d" % (T0 + 3, T0 + 3))
    a("v_and_b32 v%d, v%d, v%d" % (T0 + 2, T0 + 2, T0 + 3))
    a("v_and_b32 v%d, v%d, v%d" % (T0, T0, T0 + 2))
    a("v_readfirstlane_b32 s%d, v%d" % (sT1, T0))
    a("s_cmp_eq_u32 s%d, 0x01010101" % sT1)
    a("s_cbranch_scc1 K1_polled")
    a("s_sleep 2")
    a("s_branch K1_poll")
    a("K1_polled:")
    a("s_barrier")
    stamp(a, 12)
    a("s_cmp_eq_u32 s%d, 0" % (sOut0 + 1))
    a("s_cbranch_scc1 %s" % end)
    a("v_and_b32 v1, 31, v0")
    a("v_lshlrev_b32 v1, 8, v1")
    a("v_lshrrev_b32 v2, 5, v0")
    a("v_mul_u32_u24 v2, 112, v2")
    a("v_add_u32 v1, v1, v2")
    a("s_and_b32 s%d, s%d, 0xffffff00" % (sT0, sZ2w))
    for t in range(7):
        a("buffer_load_dwordx4 v[%d:%d], v1, s[%d:%d], s%d offen offset:%d sc1" % (
            X0 + 4 * t, X0 + 4 * t + 3, sWS, sWS + 3, sT0, 16 * t))
    for t in range(8):
        a("v_lshlrev_b32 v%d, 16, v%d" % (E0 + 2 * t, HOLD + t))
        a("v_and_b32 v%d, 0xffff0000, v%d" % (E0 + 2 * t + 1, HOLD + t))
    a("s_waitcnt vmcnt(0)")
    for t in range(1, 13):
        a("v_add_f32 v%d, v%d, v%d" % (X0, X0, X0 + 2 * t))
        a("v_add_f32 v%d, v%d, v%d" % (X0 + 1, X0 + 1, X0 + 2 * t + 1))
    a("s_mov_b32 exec_hi, 0")
    a("v_add_f32 v%d, v%d, v%d" % (X0, X0, X0 + 26))
    a("v_add_f32 v%d, v%d, v%d" % (X0 + 1, X0 + 1, X0 + 27))
    a("s_mov_b64 exec, -1")
    a("v_mov_b32 v%d, v%d" % (T0, X0))
    a("v_mov_b32 v%d, v%d" % (T0 + 1, X0 + 1))
    a("v_permlane32_swap_b32 v%d, v%d" % (X0, T0))
    a("v_permlane32_swap_b32 v%d, v%d" % (X0 + 1, T0 + 1))
    a("v_add_f32 v%d, v%d, v%d" % (X0, X0, T0))
    a("v_add_f32 v%d, v%d, v%d" % (X0 + 1, X0 + 1, T0 + 1))
    a("v_mul_f32 v%d, %s, v%d" % (X0, fhex(-1.0 / FH), X0))
    a("v_mul_f32 v%d, %s, v%d" % (X0 + 1, fhex(1.0 / FH), X0 + 1))
    a("v_fma_f32 v%d, -v%d, v%d, v%d" % (X0 + 1, X0, X0, X0 + 1))
    a("v_max_f32 v%d, 0, v%d" % (X0 + 1, X0 + 1))
    a("v_add_f32 v%d, %s, v%d" % (X0 + 1, fhex(1e-5), X0 + 1))
    a("v_rsq_f32 v%d, v%d" % (X0 + 1, X0 + 1))
    for t in range(16):
        a("v_add_f32 v%d, v%d, v%d" % (E0 + t, E0 + t, X0))
    for t in range(16):
        a("v_mul_f32 v%d, v%d, v%d" % (E0 + t, E0 + t, X0 + 1))
    for t in range(8):
        a("v_cvt_pk_bf16_f32 v%d, v%d, v%d" % (HOLD + t, E0 + 2 * t, E0 + 2 * t + 1))
    a("buffer_store_dwordx4 v[%d:%d], v%d, s[%d:%d], s%d offen sc1" % (HOLD, HOLD + 3, vSt0, sWS, sWS + 3, sOut0))
    a("buffer_store_dwordx4 v[%d:%d], v%d, s[%d:%d], s%d offen sc1" % (HOLD + 4, HOLD + 7, vSt1, sWS, sWS + 3, sOut0))
    stamp(a, 13)
    if STAMP:
        a("s_waitcnt vmcnt(0)")
    stamp(a, 14)
    stamp_dump(a, 15, sWS, sW, WS_STAMP)
    a("s_endpgm")

    a("K1_side:")
    a("s_waitcnt lgkmcnt(0)")
    srd(a, sX, 52, D * D * 2)
    srd(a, sW0, 56, FH * D * 2)
    srd(a, sWS, 62, WS_END)
    a("s_cmp_lt_u32 s%d, 4" % sRb)
    a("s_cselect_b32 s%d, s52, s56" % sW1)
    a("s_cselect_b32 s%d, s53, s57" % (sW1 + 1))
    csel(a, sW1 + 2, hex(D * D * 2), hex(FH * D * 2))
    a("s_cselect_b32 s%d, 16, -4" % sT1)
    a("s_and_b32 s%d, s%d, 0xffff" % (sW1 + 1, sW1 + 1))
    a("s_mov_b32 s%d, 0x20000" % (sW1 + 3))
    a("v_lshrrev_b32 v1, 3, v0")
    a("s_lshl_b32 s%d, s%d, 3" % (sT0, sR))
    a("v_add_u32 v2, s%d, v1" % sT0)
    a("v_mul_u32_u24 v2, 1280, v2")
    a("v_and_b32 v3, 7, v0")
    a("v_lshl_add_u32 v2, v3, 4, v2")
    a("s_mul_i32 s%d, s%d, 640" % (sT0, sC))
    a("v_add_u32 v2, s%d, v2" % sT0)
    a("s_mul_i32 s%d, s%d, %d" % (sXoff, sRb, 32 * 1280))
    a("s_add_u32 s%d, s%d, s%d" % (sT1, sRb, sT1))
    a("s_mul_i32 s%d, s%d, %d" % (sW1off, sT1, 32 * 1280))
    a("s_add_u32 s%d, s%d, %d" % (sW0off, sXoff, 12 * 32 * 1280))
    for n, (sd, so) in enumerate(((sX, sXoff), (sW1, sW1off), (sW0, sW0off))):
        for t in range(5):
            d = 32 + 20 * n + 4 * t
            a("buffer_load_dwordx4 v[%d:%d], v2, s[%d:%d], s%d offen offset:%d" % (d, d + 3, sd, sd + 3, so, 128 * t))
    a("v_and_b32 v4, 1, v0")
    a("v_xor_b32 v5, s%d, v4" % sR)
    a("v_lshl_add_u32 v5, v5, 3, v1")
    a("v_lshlrev_b32 v5, 4, v5")
    a("v_lshl_add_u32 v5, v4, 9, v5")
    a("v_lshrrev_b32 v3, 1, v3")
    a("v_lshl_add_u32 v5, v3, 10, v5")
    for t in range(4):
        a("v_mov_b32 v%d, 0" % (8 + t))
    a("v_lshlrev_b32 v6, 4, v0")
    a("s_mul_i32 s%d, s%d, 6" % (sT0, sRb))
    a("s_add_u32 s%d, s%d, s%d" % (sT0, sT0, sW))
    a("s_lshl_b32 s%d, s%d, 10" % (sT0, sT0))
    a("s_add_u32 s%d, s%d, 0x%x" % (sT0, sT0, WS_KV))
    a("s_cmp_ge_u32 s%d, 6" % sW)
    a("s_cbranch_scc1 K1_noz")
    a("buffer_store_dwordx4 v[8:11], v6, s[%d:%d], s%d offen sc1" % (sWS, sWS + 3, sT0))
    a("K1_noz:")
    a("s_mul_i32 s%d, s%d, 40" % (sT0, sRb))
    a("s_mul_i32 s%d, s%d, 20" % (sT1, sC))
    a("s_add_u32 s%d, s%d, s%d" % (sT0, sT0, sT1))
    a("s_lshl_b32 s%d, s%d, 10" % (sT0, sT0))
    a("s_add_u32 s%d, s%d, 0x%x" % (sT0, sT0, WS_B3))
    a("s_waitcnt vmcnt(0)")
    for n in range(3):
        if n == 2:
            a("s_cmp_eq_u32 s%d, 15" % sRb)
            a("s_cbranch_scc1 %s" % end)
        for t in range(5):
            d = 32 + 20 * n + 4 * t
            a("s_add_u32 s%d, s%d, %d" % (sT1, sT0, (n * 16 * 40 + 4 * t) * 1024))
            a("buffer_store_dwordx4 v[%d:%d], v5, s[%d:%d], s%d offen sc1" % (d, d + 3, sWS, sWS + 3, sT1))
    a(end + ":")
    a("s_endpgm")
```

```python
from asmlib import *
from common import *
from k1 import LdsQ, srd, csel, stamp, stamp_dump, STAMP, WS_STAMP, EXP
import k1

STG = 22528
NST = 5
SIDE = NST * STG
K2_LDS = SIDE + 4 * 8192

ACC = 224
FA = (128, 176)
Z1R = 112
DO = 80
KVF = 48
PQR = 36
T = 24
vAd0, vAd1, vL16, vLA, vLB0, vA, vB0, vB1, vAt = 8, 9, 10, 11, 12, 13, 14, 15, 16
vBias, vPoll, vZa, vZb = 19, 20, 21, 22
sA, sWS, sBS = 4, 16, 8
sI, sJ, sW, sRR, sCC = 24, 25, 26, 27, 28
sAoff, sBoff, sRd, sWr, sIt, sHook = 29, 30, 31, 32, 33, 34
sT0, sT1, sT2, sT3 = 36, 37, 38, 39
sMA, sMB, sHd, sCnt, sKv, sOdd = 40, 41, 42, 43, 44, 45
sMask = 35
assert k1.sT0 == sT0


def dma_stage(a):
    L = []
    L.append("s_add_u32 m0, s%d, s%d" % (sWr, sMA))
    L.append("buffer_load_dwordx4 v%d, s[%d:%d], s%d offen lds" % (vAd0, sA, sA + 3, sAoff))
    L.append("buffer_load_dwordx4 v%d, s[%d:%d], s%d offen offset:1024 lds" % (vAd1, sA, sA + 3, sAoff))
    L.append("s_add_u32 m0, s%d, s%d" % (sWr, sMB))
    for t in range(3):
        L.append("buffer_load_dwordx4 v%d, s[%d:%d], s%d offen offset:%d lds" % (vL16, sWS, sWS + 3, sBoff, 1024 * t))
    lab = a.label("Lsk")
    L.append("s_cbranch_vccnz %s\nbuffer_load_dwordx4 v%d, s[%d:%d], s%d offen offset:3072 lds\n%s:" % (
        lab, vL16, sWS, sWS + 3, sBoff, lab))
    L.append("s_add_u32 s%d, s%d, 128" % (sAoff, sAoff))
    L.append("s_add_u32 s%d, s%d, %d" % (sBoff, sBoff, 2 * NG_Z * 1024))
    L.append("s_add_u32 s%d, s%d, %d\ns_cmp_eq_u32 s%d, %d\ns_cselect_b32 s%d, 0, s%d" % (
        sWr, sWr, STG, sWr, NST * STG, sWr, sWr))
    return L


def read_stage(fs):
    L = []
    L.append("v_add_u32 v%d, s%d, v%d" % (vA, sRd, vLA))
    L.append("v_add_u32 v%d, s%d, v%d" % (vB0, sRd, vLB0))
    L.append("v_xor_b32 v%d, 64, v%d" % (vB1, vB0))
    for k in range(4):
        if k:
            L.append("v_xor_b32 v%d, %d, v%d" % (vAt + k - 1, 32 * k, vA))
        d = fs + 4 * k
        L.append("ds_read_b128 v[%d:%d], v%d" % (d, d + 3, vA if k == 0 else vAt + k - 1))
        for pr in range(2):
            d = fs + 16 + 8 * k + 4 * pr
            off = 8192 + (k >> 1) * 7168 + pr * 2048 + (k & 1) * 256
            L.append("ds_read_b64_tr_b16 v[%d:%d], v%d offset:%d" % (d, d + 1, vB0, off))
            L.append("ds_read_b64_tr_b16 v[%d:%d], v%d offset:%d" % (d + 2, d + 3, vB1, off))
    L.append("s_add_u32 s%d, s%d, %d\ns_cmp_eq_u32 s%d, %d\ns_cselect_b32 s%d, 0, s%d" % (
        sRd, sRd, STG, sRd, NST * STG, sRd, sRd))
    return L


def stage(a, cur, nxt):
    lr = a.label("Lrx")
    a("s_bitcmp1_b32 s%d, s%d" % (sMask, sIt))
    a("s_cbranch_scc1 %s" % lr)
    a("s_waitcnt vmcnt(15)")
    a(lr + ":")
    a("s_waitcnt vmcnt(27) lgkmcnt(0)")
    a("s_barrier")
    rd = read_stage(nxt)
    dm = dma_stage(a)
    nr = k1.spread(len(rd), 7) + [0]
    nd = k1.spread(len(dm), 8)
    pr_, pd_ = 0, 0
    for n in range(8):
        k, pr = n >> 1, n & 1
        fb = cur + 16 + 8 * k + 4 * pr
        fa = cur + 4 * k
        acc = ACC + 16 * pr
        a("v_mfma_f32_32x32x16_bf16 v[%d:%d], v[%d:%d], v[%d:%d], v[%d:%d]" % (
            acc, acc + 15, fb, fb + 3, fa, fa + 3, acc, acc + 15))
        for t in rd[pr_:pr_ + nr[n]]:
            a(t)
        pr_ += nr[n]
        for t in dm[pd_:pd_ + nd[n]]:
            a(t)
        pd_ += nd[n]


def quad_addr(a, dst, vq, swz, t0, t1):
    a("v_and_b32 v%d, 1, v%d" % (t0, vq))
    if swz:
        a("v_bfe_u32 v%d, v%d, 2, 1" % (t1, vq))
        a("v_lshl_add_u32 v%d, v%d, 1, v%d" % (t1, t1, t0))
        a("v_lshlrev_b32 v%d, 2, v%d" % (t1, t1))
        a("v_xor_b32 v%d, v%d, v2" % (t1, t1))
        a("v_lshl_add_u32 v%d, v%d, 5, v%d" % (t0, t0, t1))
    else:
        a("v_lshl_add_u32 v%d, v%d, 5, v2" % (t0, t0))
    a("v_lshlrev_b32 v%d, 4, v%d" % (t0, t0))
    a("v_bfe_u32 v%d, v%d, 1, 1" % (t1, vq))
    a("v_lshl_add_u32 v%d, v%d, 3, v%d" % (t0, t1, t0))
    a("v_lshrrev_b32 v%d, 2, v%d" % (t1, vq))
    a("v_lshl_add_u32 v%d, v%d, 10, v%d" % (dst, t1, t0))


def gen_k2(a, label):
    a(".p2align 8")
    a(label + ":")
    end = "K2_end"
    a("s_cmp_ge_u32 s2, 256")
    a("s_cbranch_scc1 %s" % end)
    stamp(a, 0)
    a("s_load_dwordx4 s[48:51], s[0:1], %d" % KA_WSP)
    a("s_load_dwordx2 s[52:53], s[0:1], %d" % KA_WS)
    a("s_bfe_u32 s%d, s2, 0x20001" % sI)
    a("s_lshl_b32 s%d, s%d, 3" % (sI, sI))
    a("s_lshr_b32 s%d, s2, 5" % sT0)
    a("s_add_u32 s%d, s%d, s%d" % (sI, sI, sT0))
    a("s_and_b32 s%d, s2, 1" % sJ)
    a("s_lshl_b32 s%d, s%d, 2" % (sJ, sJ))
    a("s_bfe_u32 s%d, s2, 0x20003" % sT0)
    a("s_add_u32 s%d, s%d, s%d" % (sJ, sJ, sT0))
    a("v_lshrrev_b32 v1, 6, v0")
    a("v_and_b32 v0, 63, v0")
    a("v_readfirstlane_b32 s%d, v1" % sW)
    a("v_lshlrev_b32 v%d, 4, v0" % vL16)
    a("s_and_b32 s%d, s%d, 1" % (sRR, sW))
    a("s_lshr_b32 s%d, s%d, 1" % (sCC, sW))
    a("s_lshl_b32 s%d, s%d, 2" % (sHd, sJ))
    a("s_add_u32 s%d, s%d, s%d" % (sHd, sHd, sW))
    a("s_mul_i32 s%d, s%d, %d" % (sT0, sI, 2 * NG_QKV))
    a("s_mul_i32 s%d, s%d, 5" % (sT1, sJ))
    a("s_add_u32 s%d, s%d, s%d" % (sT0, sT0, sT1))
    a("s_add_u32 s%d, s%d, s%d" % (sT0, sT0, sW))
    a("s_lshl_b32 s%d, s%d, 10" % (sT0, sT0))
    a("s_add_u32 s%d, s%d, %d" % (sT0, sT0, WS_QKV + 40 * 1024))
    a("s_lshl_b32 s%d, s%d, 13" % (sT2, sW))
    a("s_add_u32 s%d, s%d, %d" % (sT2, sT2, SIDE))
    a("v_lshrrev_b32 v1, 3, v0")
    a("s_lshl_b32 s%d, s%d, 4" % (sT1, sW))
    a("v_add_u32 v1, s%d, v1" % sT1)
    a("v_lshlrev_b32 v1, 12, v1")
    a("v_lshrrev_b32 v2, 4, v0")
    a("v_and_b32 v3, 7, v0")
    a("v_xor_b32 v4, v2, v3")
    a("v_lshl_add_u32 v%d, v4, 4, v1" % vAd0)
    a("v_xor_b32 v4, 4, v4")
    a("v_lshl_add_u32 v%d, v4, 4, v1" % vAd1)
    a("v_add_u32 v%d, %d, v%d" % (vAd1, 8 * 4096 - 1024, vAd1))
    a("s_lshl_b32 s%d, s%d, 18" % (sAoff, sI))
    a("s_lshl_b32 s%d, s%d, 11" % (sMA, sW))
    a("s_mul_i32 s%d, s%d, 7" % (sMB, sCC))
    a("s_lshl_b32 s%d, s%d, 2" % (sT1, sRR))
    a("s_add_u32 s%d, s%d, s%d" % (sMB, sMB, sT1))
    a("s_lshl_b32 s%d, s%d, 10" % (sMB, sMB))
    a("s_add_u32 s%d, s%d, 8192" % (sMB, sMB))
    a("s_mul_i32 s%d, s%d, %d" % (sBoff, sCC, NG_Z))
    a("s_add_u32 s%d, s%d, s%d" % (sBoff, sBoff, sT1))
    a("s_mul_i32 s%d, s%d, 7" % (sT1, sJ))
    a("s_add_u32 s%d, s%d, s%d" % (sBoff, sBoff, sT1))
    a("s_lshl_b32 s%d, s%d, 10" % (sBoff, sBoff))
    a("s_add_u32 s%d, s%d, %d" % (sBoff, sBoff, WS_Z + 54 * 1024))
    a("s_mov_b32 s46, s%d" % sRR)
    a("s_mov_b32 s47, 0")
    a("s_mov_b64 vcc, s[46:47]")
    a("s_mov_b32 s%d, 0xf03" % sMask)
    a("s_mov_b32 s%d, 0" % sWr)
    a("s_mov_b32 s%d, 0" % sRd)
    a("s_waitcnt lgkmcnt(0)")
    srd(a, sWS, 52, WS_END)
    srd(a, sA, 48, S * S * 2)
    for n in range(4):
        a("s_add_u32 m0, s%d, %d" % (sT2, 2048 * n))
        a("s_add_u32 s%d, s%d, %d" % (sT1, sT0, ((n & 1) * NG_QKV + (n >> 1) * 40) * 1024))
        a("buffer_load_dwordx4 v%d, s[%d:%d], s%d offen lds" % (vL16, sWS, sWS + 3, sT1))
        a("buffer_load_dwordx4 v%d, s[%d:%d], s%d offen offset:1024 lds" % (vL16, sWS, sWS + 3, sT1))
    for s_ in range(2):
        for t in dma_stage(a):
            a(t)
    srd(a, sBS, 50, S * 2)
    a("v_lshrrev_b32 v1, 5, v0")
    a("v_and_b32 v2, 31, v0")
    a("s_lshl_b32 s%d, s%d, 5" % (sT1, sRR))
    a("v_add_u32 v3, s%d, v2" % sT1)
    a("v_lshlrev_b32 v%d, 7, v3" % vLA)
    a("v_bfe_u32 v3, v0, 1, 3")
    a("v_xor_b32 v3, v3, v1")
    a("v_lshl_add_u32 v%d, v3, 4, v%d" % (vLA, vLA))
    a("v_bfe_u32 v3, v0, 2, 2")
    a("v_lshl_add_u32 v3, v1, 3, v3")
    a("v_and_b32 v4, 1, v0")
    a("v_bfe_u32 v5, v0, 4, 1")
    a("s_add_u32 s%d, s%d, s%d" % (sT1, sJ, sCC))
    a("v_add_u32 v6, s%d, v5" % sT1)
    a("v_and_b32 v6, 1, v6")
    a("v_lshl_add_u32 v6, v6, 1, v4")
    a("v_lshlrev_b32 v6, 2, v6")
    a("v_xor_b32 v6, v6, v3")
    a("v_lshl_add_u32 v6, v4, 5, v6")
    a("v_lshlrev_b32 v6, 4, v6")
    a("v_bfe_u32 v7, v0, 1, 1")
    a("v_lshl_add_u32 v6, v7, 3, v6")
    a("v_lshl_add_u32 v6, v5, 10, v6")
    a("s_mul_i32 s%d, s%d, 3072" % (sT1, sCC))
    a("v_add_u32 v%d, s%d, v6" % (vLB0, sT1))
    a("v_and_b32 v6, 3, v0")
    a("v_lshl_add_u32 v6, v5, 2, v6")
    a("v_min_u32 v6, 4, v6")
    a("v_add_u32 v6, s%d, v6" % sW)
    a("v_and_b32 v4, 1, v6")
    a("v_lshrrev_b32 v5, 2, v6")
    a("s_add_u32 s%d, s%d, s%d" % (sT1, sJ, sW))
    a("v_add_u32 v7, s%d, v5" % sT1)
    a("v_and_b32 v7, 1, v7")
    a("v_lshl_add_u32 v7, v7, 1, v4")
    a("v_lshlrev_b32 v7, 2, v7")
    a("v_xor_b32 v7, v7, v3")
    a("v_lshl_add_u32 v7, v4, 5, v7")
    a("v_lshlrev_b32 v7, 4, v7")
    a("v_bfe_u32 v4, v6, 1, 1")
    a("v_lshl_add_u32 v7, v4, 3, v7")
    a("v_lshl_add_u32 v7, v5, 10, v7")
    a("v_add_u32 v%d, s%d, v7" % (T, sT2))
    a("v_xor_b32 v%d, 64, v%d" % (T + 1, T))
    a("v_cmp_eq_u32 s[46:47], 20, v2")
    a("v_mov_b32 v%d, 0x3f803f80" % (T + 2))
    a("v_lshlrev_b32 v%d, 9, v1" % (T + 3))
    a("v_lshl_add_u32 v%d, v2, 2, v%d" % (T + 3, T + 3))
    a("s_mul_i32 s%d, s%d, 2560" % (sKv, sHd))
    a("s_add_u32 s%d, s%d, 0x%x" % (sKv, sKv, WS_KV))
    a("s_lshl_b32 s%d, s%d, 8" % (sCnt, sJ))
    a("s_add_u32 s%d, s%d, 0x%x" % (sCnt, sCnt, WS_CNT))
    for p in range(32):
        a("v_mov_b32 v%d, 0" % (ACC + p))
    stamp(a, 1)
    a("s_waitcnt vmcnt(10)")
    for m in range(2):
        for k in range(4):
            d = KVF + 16 * m + 4 * k
            off = m * 4096 + (k >> 1) * 2048 + (k & 1) * 256
            a("ds_read_b64_tr_b16 v[%d:%d], v%d offset:%d" % (d, d + 1, T, off))
            a("ds_read_b64_tr_b16 v[%d:%d], v%d offset:%d" % (d + 2, d + 3, T + 1, off))
        if m == 0:
            for t in dma_stage(a):
                a(t)
    for s_ in range(2):
        for t in dma_stage(a):
            a(t)
    a("s_waitcnt lgkmcnt(0)")
    for p in range(16):
        a("v_cndmask_b32 v%d, v%d, v%d, s[46:47]" % (KVF + 16 + p, KVF + 16 + p, T + 2))
    for k in range(4):
        a("v_mfma_f32_32x32x16_bf16 v[%d:%d], v[%d:%d], v[%d:%d], %s" % (
            DO, DO + 15, KVF + 4 * k, KVF + 4 * k + 3, KVF + 16 + 4 * k, KVF + 19 + 4 * k,
            "0" if k == 0 else "v[%d:%d]" % (DO, DO + 15)))
    a("s_waitcnt vmcnt(20)")
    a("s_barrier")
    stamp(a, 2)
    for t in read_stage(FA[0]):
        a(t)
    a("s_mov_b32 exec_lo, 0x1fffff")
    a("s_mov_b32 exec_hi, 0x1fffff")
    for r in range(12):
        if r == 8:
            a("s_mov_b32 exec_hi, 0")
        a("buffer_atomic_add_f32 v%d, v%d, s[%d:%d], s%d offen offset:%d" % (
            DO + r, T + 3, sWS, sWS + 3, sKv, (r >> 2) * 1024 + (r & 3) * 128))
    a("s_mov_b64 exec, -1")
    a("s_mov_b32 s%d, 0" % sIt)
    a("s_mov_b32 s%d, 3" % sHook)
    stamp(a, 3)
    a("K2_loop:")
    stage(a, FA[0], FA[1])
    a("s_cmp_eq_u32 s%d, 13" % sIt)
    a("s_cselect_b32 s%d, 0x40000000, s%d" % (sAoff, sAoff))
    a("s_cselect_b32 s%d, 0x40000000, s%d" % (sBoff, sBoff))
    stage(a, FA[1], FA[0])
    a("s_add_u32 s%d, s%d, 1" % (sIt, sIt))
    a("s_cmp_eq_u32 s%d, s%d" % (sIt, sHook))
    a("s_cbranch_scc0 K2_loop")
    a("s_cmp_eq_u32 s%d, 16" % sIt)
    a("s_cbranch_scc1 K2_epi")
    a("s_cmp_eq_u32 s%d, 8" % sIt)
    a("s_cbranch_scc1 K2_h8")
    a("s_cmp_eq_u32 s%d, 10" % sIt)
    a("s_cbranch_scc1 K2_h10")
    a("s_cmp_eq_u32 s%d, 12" % sIt)
    a("s_cbranch_scc1 K2_h12")
    stamp(a, 4)
    a("s_mov_b32 s%d, 8" % sHook)
    a("s_cmp_lg_u32 s%d, 0" % sW)
    a("s_cbranch_scc1 K2_loop")
    a("v_mov_b32 v%d, 1" % T)
    a("v_mov_b32 v%d, 0" % (T + 1))
    a("s_mov_b64 exec, 1")
    a("buffer_atomic_add v%d, v%d, s[%d:%d], s%d offen sc1" % (T, T + 1, sWS, sWS + 3, sCnt))
    a("s_mov_b64 exec, -1")
    a("s_branch K2_loop")
    a("K2_h8:")
    stamp(a, 5)
    a("s_mov_b32 s%d, 10" % sHook)
    a("v_mov_b32 v%d, 0" % T)
    a("buffer_load_dword v%d, v%d, s[%d:%d], s%d offen sc1" % (vPoll, T, sWS, sWS + 3, sCnt))
    a("s_mul_i32 s%d, s%d, 5" % (sT0, sHd))
    a("v_lshlrev_b32 v%d, 1, v1" % (T + 1))
    a("v_add_u32 v%d, s%d, v%d" % (T + 1, sT0, T + 1))
    a("s_mul_i32 s%d, s%d, %d" % (sT1, sI, 2 * NG_QKV * 1024))
    a("s_add_u32 s%d, s%d, %d" % (sT2, sT1, NG_QKV * 1024))
    for n in range(3):
        if n == 1:
            a("v_add_u32 v%d, 1, v%d" % (T + 1, T + 1))
        if n == 2:
            a("s_add_u32 s%d, s%d, 4" % (sT0, sT0))
            a("v_mov_b32 v%d, s%d" % (T + 1, sT0))
        quad_addr(a, T + 2, T + 1, True, T + 4, T + 5)
        for sb in range(2):
            d = PQR + 6 * sb + 2 * n
            a("buffer_load_dwordx2 v[%d:%d], v%d, s[%d:%d], s%d offen" % (d, d + 1, T + 2, sWS, sWS + 3, sT1 if sb == 0 else sT2))
    a("v_lshlrev_b32 v%d, 2, v1" % T)
    a("v_xor_b32 v%d, v%d, v0" % (T, T))
    a("v_lshlrev_b32 v%d, 4, v%d" % (T, T))
    a("s_add_u32 s%d, s%d, s%d" % (sT0, sJ, sCC))
    a("s_and_b32 s%d, s%d, 1" % (sT0, sT0))
    a("s_lshl_b32 s%d, s%d, 7" % (sT0, sT0))
    a("v_xor_b32 v%d, s%d, v%d" % (vZa, sT0, T))
    a("v_xor_b32 v%d, 0x80, v%d" % (vZb, vZa))
    a("s_lshl_b32 s%d, s%d, 1" % (sT3, sI))
    a("s_add_u32 s%d, s%d, s%d" % (sT3, sT3, sRR))
    a("s_mul_i32 s%d, s%d, 7" % (sT0, sJ))
    a("s_mul_i32 s%d, s%d, 3" % (sT1, sCC))
    a("s_add_u32 s%d, s%d, s%d" % (sOdd, sT0, sT1))
    a("s_mul_i32 s%d, s%d, %d" % (sT0, sT3, NG_Z))
    a("s_add_u32 s%d, s%d, s%d" % (sT0, sT0, sOdd))
    a("s_lshl_b32 s%d, s%d, 10" % (sT0, sT0))
    a("s_add_u32 s%d, s%d, 0x%x" % (sT0, sT0, WS_Z))
    for n in range(4):
        a("buffer_load_dwordx4 v[%d:%d], v%d, s[%d:%d], s%d offen offset:%d" % (
            Z1R + 4 * n, Z1R + 4 * n + 3, vZb if n & 1 else vZa, sWS, sWS + 3, sT0, 1024 * n))
    a("v_lshlrev_b32 v%d, 1, v2" % T)
    a("s_lshl_b32 s%d, s%d, 6" % (sT0, sT3))
    a("buffer_load_ushort v%d, v%d, s[%d:%d], s%d offen" % (vBias, T, sBS, sBS + 3, sT0))
    a("s_branch K2_loop")
    a("K2_h10:")
    stamp(a, 6)
    a("s_mov_b32 s%d, 12" % sHook)
    a("s_waitcnt vmcnt(20)")
    a("v_mov_b32 v%d, 0" % T)
    a("K2_chk:")
    a("v_readfirstlane_b32 s%d, v%d" % (sT0, vPoll))
    a("s_cmp_eq_u32 s%d, 32" % sT0)
    a("s_cbranch_scc1 K2_ok")
    a("s_sleep 4")
    a("buffer_load_dword v%d, v%d, s[%d:%d], s%d offen sc1" % (vPoll, T, sWS, sWS + 3, sCnt))
    a("s_waitcnt vmcnt(0)")
    a("s_branch K2_chk")
    a("K2_ok:")
    a("v_cmp_eq_u32 s[46:47], 24, v2")
    a("v_cndmask_b32 v%d, v2, 20, s[46:47]" % (T + 1))
    a("v_lshlrev_b32 v%d, 2, v%d" % (T + 1, T + 1))
    a("v_lshl_add_u32 v%d, v1, 10, v%d" % (T + 2, T + 1))
    a("v_lshl_add_u32 v%d, v1, 30, v%d" % (T + 1, T + 1))
    for n in range(8):
        a("buffer_load_dword v%d, v%d, s[%d:%d], s%d offen offset:%d sc1" % (KVF + n, T + 2, sWS, sWS + 3, sKv, 128 * n))
    for n in range(4):
        a("buffer_load_dword v%d, v%d, s[%d:%d], s%d offen offset:%d sc1" % (KVF + 8 + n, T + 1, sWS, sWS + 3, sKv, 2048 + 128 * n))
    a("s_branch K2_loop")
    a("K2_h12:")
    stamp(a, 7)
    a("s_mov_b32 s%d, 16" % sHook)
    a("s_waitcnt vmcnt(20)")
    for n in range(6):
        a("v_cvt_pk_bf16_f32 v%d, v%d, v%d" % (KVF + 16 + n, KVF + 2 * n, KVF + 2 * n + 1))
    for sb in range(2):
        d, p = DO + 16 * sb, PQR + 6 * sb
        a("v_mfma_f32_32x32x16_bf16 v[%d:%d], v[%d:%d], v[%d:%d], 0" % (d, d + 15, KVF + 16, KVF + 19, p, p + 3))
        a("v_mfma_f32_32x32x8_bf16 v[%d:%d], v[%d:%d], v[%d:%d], v[%d:%d]" % (d, d + 15, KVF + 20, KVF + 21, p + 4, p + 5, d, d + 15))
    a("s_mul_i32 s%d, s%d, 5" % (sT0, sHd))
    a("v_add_u32 v%d, s%d, v1" % (T + 1, sT0))
    quad_addr(a, T + 6, T + 1, False, T + 4, T + 5)
    a("v_add_u32 v%d, 2, v%d" % (T + 1, T + 1))
    quad_addr(a, T + 7, T + 1, False, T + 4, T + 5)
    a("s_add_u32 s%d, s%d, 4" % (sT0, sT0))
    a("v_mov_b32 v%d, s%d" % (T + 1, sT0))
    quad_addr(a, T + 8, T + 1, False, T + 4, T + 5)
    a("v_lshl_add_u32 v%d, v1, 30, v%d" % (T + 8, T + 8))
    a("s_mul_i32 s%d, s%d, %d" % (sT1, sI, 2 * NG_A3 * 1024))
    a("s_add_u32 s%d, s%d, 0x%x" % (sT1, sT1, WS_A3))
    a("s_add_u32 s%d, s%d, %d" % (sT2, sT1, NG_A3 * 1024))
    a("v_cmp_eq_u32 s[46:47], 1, v1")
    for sb in range(2):
        d = DO + 16 * sb
        a("v_cndmask_b32 v%d, v%d, v%d, s[46:47]" % (T, d + 12, d + 8))
        a("v_add_f32 v%d, %s, v%d" % (T, fhex(1e-6), T))
        a("v_rcp_f32 v%d, v%d" % (T, T))
        for r in range(12):
            a("v_mul_f32 v%d, v%d, v%d" % (d + r, d + r, T))
        for n in range(6):
            a("v_cvt_pk_bf16_f32 v%d, v%d, v%d" % (KVF + 8 * sb + n, d + 2 * n, d + 2 * n + 1))
        for n in range(3):
            p = KVF + 8 * sb + 2 * n
            a("buffer_store_dwordx2 v[%d:%d], v%d, s[%d:%d], s%d offen sc1" % (p, p + 1, T + 6 + n, sWS, sWS + 3, sT1 if sb == 0 else sT2))
    a("s_branch K2_loop")
    a("K2_epi:")
    stamp(a, 8)
    a("v_lshlrev_b32 v%d, 16, v%d" % (vBias, vBias))
    a("s_mul_i32 s%d, s%d, %d" % (sT0, sT3, NG_A3))
    a("s_add_u32 s%d, s%d, s%d" % (sT0, sT0, sOdd))
    a("s_lshl_b32 s%d, s%d, 10" % (sT0, sT0))
    a("s_add_u32 s%d, s%d, %d" % (sT0, sT0, WS_A3 + 40 * 1024))
    for n in range(4):
        if n == 2:
            a("s_cmp_eq_u32 s%d, 52" % sOdd)
            a("s_cbranch_scc1 K2_done")
        acc = ACC + 8 * n
        for p in range(4):
            z = Z1R + 4 * n + p
            a("v_lshlrev_b32 v%d, 16, v%d" % (T, z))
            a("v_and_b32 v%d, 0xffff0000, v%d" % (T + 1, z))
            a("v_add_f32 v%d, v%d, v%d" % (acc + 2 * p, acc + 2 * p, vBias))
            a("v_add_f32 v%d, v%d, v%d" % (acc + 2 * p + 1, acc + 2 * p + 1, vBias))
            a("v_mul_f32 v%d, v%d, v%d" % (T, T, acc + 2 * p))
            a("v_mul_f32 v%d, v%d, v%d" % (T + 1, T + 1, acc + 2 * p + 1))
            a("v_cvt_pk_bf16_f32 v%d, v%d, v%d" % (z, T, T + 1))
        a("buffer_store_dwordx4 v[%d:%d], v%d, s[%d:%d], s%d offen offset:%d sc1" % (
            Z1R + 4 * n, Z1R + 4 * n + 3, vL16, sWS, sWS + 3, sT0, 1024 * n))
    a("K2_done:")
    stamp(a, 9)
    if STAMP:
        a("s_waitcnt vmcnt(0)")
    stamp(a, 10)
    stamp_dump(a, 11, sWS, sW, WS_STAMP + 0x20000)
    a(end + ":")
    a("s_endpgm")
```

```python
from asmlib import *
from common import *
from k1 import LdsQ, srd, csel, stamp, stamp_dump, STAMP, WS_STAMP, EXP
import k1

STG = 18432
NST = 8
K3_LDS = NST * STG

ACC = 104
FA = (24, 64)
XR = 128
vL16, vLA, vLB0, vA, vB0, vB1, vO = 8, 9, 10, 11, 12, 13, 14
T = 16
sA3, sB3, sX, sO, sWS = 4, 8, 12, 20, 16
sI, sJ, sW, sRR, sCC = 24, 25, 26, 27, 28
sAoff, sBoff, sRd, sWr, sIt = 29, 30, 31, 32, 33
sT0, sT1, sT2 = 36, 37, 38
sMA, sMB = 40, 41


def dma_stage(a):
    L = []
    L.append("s_add_u32 m0, s%d, s%d" % (sWr, sMA))
    for t in range(2):
        L.append("buffer_load_dwordx4 v%d, s[%d:%d], s%d offen offset:%d lds" % (vL16, sA3, sA3 + 3, sAoff, 1024 * t))
    L.append("s_add_u32 m0, s%d, s%d" % (sWr, sMB))
    for t in range(2):
        L.append("buffer_load_dwordx4 v%d, s[%d:%d], s%d offen offset:%d lds" % (vL16, sB3, sB3 + 3, sBoff, 1024 * t))
    lab = a.label("Lsk")
    L.append("s_cbranch_vccnz %s\nbuffer_load_dwordx4 v%d, s[%d:%d], s%d offen offset:2048 lds\n%s:" % (
        lab, vL16, sB3, sB3 + 3, sBoff, lab))
    L.append("s_add_u32 s%d, s%d, 4096" % (sAoff, sAoff))
    L.append("s_add_u32 s%d, s%d, %d" % (sBoff, sBoff, 80 * 1024))
    L.append("s_add_u32 s%d, s%d, %d\ns_cmp_eq_u32 s%d, %d\ns_cselect_b32 s%d, 0, s%d" % (
        sWr, sWr, STG, sWr, NST * STG, sWr, sWr))
    return L


def read_stage(fs):
    L = []
    L.append("v_add_u32 v%d, s%d, v%d" % (vA, sRd, vLA))
    L.append("v_add_u32 v%d, s%d, v%d" % (vB0, sRd, vLB0))
    L.append("v_xor_b32 v%d, 0x80, v%d" % (vB1, vB0))
    for k in range(2):
        for rt in range(2):
            d = fs + 8 * k + 4 * rt
            L.append("ds_read_b128 v[%d:%d], v%d offset:%d" % (d, d + 3, vA, k * 2048 + rt * 256))
        for ct in range(3):
            d = fs + 16 + 12 * k + 4 * ct
            off = 8192 + k * 5120 + ct * 1024
            L.append("ds_read_b64_tr_b16 v[%d:%d], v%d offset:%d" % (d, d + 1, vB0, off))
            L.append("ds_read_b64_tr_b16 v[%d:%d], v%d offset:%d" % (d + 2, d + 3, vB1, off))
    L.append("s_add_u32 s%d, s%d, %d\ns_cmp_eq_u32 s%d, %d\ns_cselect_b32 s%d, 0, s%d" % (
        sRd, sRd, STG, sRd, NST * STG, sRd, sRd))
    return L


def stage(a, cur, nxt):
    a("s_waitcnt vmcnt(%d) lgkmcnt(0)" % (4 * (NST - 2)))
    a("s_barrier")
    rd = read_stage(nxt)
    dm = dma_stage(a)
    nr = k1.spread(len(rd), 10) + [0, 0]
    nd = k1.spread(len(dm), 12)
    pr_, pd_ = 0, 0
    n = 0
    for k in range(2):
        for ct in range(3):
            for rt in range(2):
                fb = cur + 16 + 12 * k + 4 * ct
                fa = cur + 8 * k + 4 * rt
                acc = ACC + 12 * rt + 4 * ct
                a("v_mfma_f32_16x16x32_bf16 v[%d:%d], v[%d:%d], v[%d:%d], v[%d:%d]" % (
                    acc, acc + 3, fb, fb + 3, fa, fa + 3, acc, acc + 3))
                for t in rd[pr_:pr_ + nr[n]]:
                    a(t)
                pr_ += nr[n]
                for t in dm[pd_:pd_ + nd[n]]:
                    a(t)
                pd_ += nd[n]
                n += 1


def srd_off(a, d, plo, off, nbytes):
    a("s_add_u32 s%d, s%d, 0x%x" % (d, plo, off))
    a("s_addc_u32 s%d, s%d, 0" % (d + 1, plo + 1))
    a("s_and_b32 s%d, s%d, 0xffff" % (d + 1, d + 1))
    a("s_mov_b32 s%d, 0x%x" % (d + 2, nbytes))
    a("s_mov_b32 s%d, 0x20000" % (d + 3))


def gen_k3(a, label):
    a(".p2align 8")
    a(label + ":")
    end = "K3_end"
    a("s_cmp_ge_u32 s2, 256")
    a("s_cbranch_scc1 %s" % end)
    stamp(a, 0)
    a("s_load_dwordx2 s[48:49], s[0:1], %d" % KA_X)
    a("s_load_dwordx2 s[50:51], s[0:1], %d" % KA_OUT)
    a("s_load_dwordx2 s[52:53], s[0:1], %d" % KA_WS)
    a("s_bfe_u32 s%d, s2, 0x20001" % sI)
    a("s_lshl_b32 s%d, s%d, 3" % (sI, sI))
    a("s_lshr_b32 s%d, s2, 5" % sT0)
    a("s_add_u32 s%d, s%d, s%d" % (sI, sI, sT0))
    a("s_and_b32 s%d, s2, 1" % sJ)
    a("s_lshl_b32 s%d, s%d, 2" % (sJ, sJ))
    a("s_bfe_u32 s%d, s2, 0x20003" % sT0)
    a("s_add_u32 s%d, s%d, s%d" % (sJ, sJ, sT0))
    a("v_lshrrev_b32 v1, 6, v0")
    a("v_and_b32 v0, 63, v0")
    a("v_readfirstlane_b32 s%d, v1" % sW)
    a("v_lshlrev_b32 v%d, 4, v0" % vL16)
    a("s_and_b32 s%d, s%d, 1" % (sRR, sW))
    a("s_lshr_b32 s%d, s%d, 1" % (sCC, sW))
    a("s_lshl_b32 s%d, s%d, 1" % (sT0, sI))
    a("s_add_u32 s%d, s%d, s%d" % (sT0, sT0, sCC))
    a("s_mul_i32 s%d, s%d, %d" % (sAoff, sT0, NG_A3))
    a("s_lshl_b32 s%d, s%d, 1" % (sT0, sRR))
    a("s_add_u32 s%d, s%d, s%d" % (sAoff, sAoff, sT0))
    a("s_lshl_b32 s%d, s%d, 10" % (sAoff, sAoff))
    a("s_lshl_b32 s%d, s%d, 11" % (sMA, sW))
    a("s_mul_i32 s%d, s%d, 3" % (sT0, sRR))
    a("s_mul_i32 s%d, s%d, 40" % (sBoff, sCC))
    a("s_add_u32 s%d, s%d, s%d" % (sBoff, sBoff, sT0))
    a("s_mul_i32 s%d, s%d, 5" % (sT1, sJ))
    a("s_add_u32 s%d, s%d, s%d" % (sBoff, sBoff, sT1))
    a("s_lshl_b32 s%d, s%d, 10" % (sBoff, sBoff))
    a("s_mul_i32 s%d, s%d, 5" % (sMB, sCC))
    a("s_add_u32 s%d, s%d, s%d" % (sMB, sMB, sT0))
    a("s_lshl_b32 s%d, s%d, 10" % (sMB, sMB))
    a("s_add_u32 s%d, s%d, 8192" % (sMB, sMB))
    a("s_mov_b32 s46, s%d" % sRR)
    a("s_mov_b32 s47, 0")
    a("s_mov_b64 vcc, s[46:47]")
    a("s_mov_b32 s%d, 0" % sWr)
    a("s_mov_b32 s%d, 0" % sRd)
    a("s_waitcnt lgkmcnt(0)")
    srd_off(a, sA3, 52, WS_A3, 64 * NG_A3 * 1024)
    srd_off(a, sB3, 52, WS_B3, 47 * 40 * 1024)
    for s_ in range(3):
        for t in dma_stage(a):
            a(t)
    srd(a, sX, 48, S * D * 2)
    srd(a, sO, 50, S * D * 2)
    if STAMP:
        srd(a, sWS, 52, WS_END)
    a("v_lshrrev_b32 v1, 4, v0")
    a("v_and_b32 v2, 15, v0")
    a("v_and_b32 v3, 1, v1")
    a("v_lshrrev_b32 v4, 1, v1")
    a("v_lshl_add_u32 v5, v3, 5, v2")
    a("v_lshlrev_b32 v5, 4, v5")
    a("v_lshl_add_u32 v5, v4, 10, v5")
    a("s_lshl_b32 s%d, s%d, 12" % (sT0, sRR))
    a("v_add_u32 v%d, s%d, v5" % (vLA, sT0))
    a("v_lshrrev_b32 v5, 2, v2")
    a("v_lshl_add_u32 v5, v3, 2, v5")
    a("v_lshl_add_u32 v5, v4, 4, v5")
    a("v_bfe_u32 v6, v0, 1, 1")
    a("v_mul_u32_u24 v6, 40, v6")
    a("v_add_u32 v5, v5, v6")
    a("v_lshlrev_b32 v5, 4, v5")
    a("v_and_b32 v6, 1, v0")
    a("v_lshl_add_u32 v5, v6, 3, v5")
    a("s_lshl_b32 s%d, s%d, 11" % (sT0, sCC))
    a("v_add_u32 v%d, s%d, v5" % (vLB0, sT0))
    a("v_mul_u32_u24 v%d, 1280, v2" % vO)
    a("v_lshl_add_u32 v%d, v1, 3, v%d" % (vO, vO))
    a("s_lshl_b32 s%d, s%d, 1" % (sT0, sI))
    a("s_add_u32 s%d, s%d, s%d" % (sT0, sT0, sRR))
    a("s_mul_i32 s%d, s%d, %d" % (sT1, sT0, 32 * 1280))
    a("s_mul_i32 s%d, s%d, 160" % (sT0, sJ))
    a("s_add_u32 s%d, s%d, s%d" % (sT1, sT1, sT0))
    a("s_lshl_b32 s%d, s%d, 6" % (sT0, sCC))
    a("s_add_u32 s%d, s%d, s%d" % (sT1, sT1, sT0))
    a("s_add_u32 s%d, s%d, %d" % (sT2, sT1, 16 * 1280))
    for rt in range(2):
        for ct in range(3):
            d = XR + 6 * rt + 2 * ct
            a("buffer_load_dwordx2 v[%d:%d], v%d, s[%d:%d], s%d offen offset:%d" % (d, d + 1, vO, sX, sX + 3, sT1 if rt == 0 else sT2, 32 * ct))
    for p in range(24):
        a("v_mov_b32 v%d, 0" % (ACC + p))
    stamp(a, 1)
    a("s_waitcnt vmcnt(14)")
    a("s_barrier")
    stamp(a, 2)
    for t in read_stage(FA[0]):
        a(t)
    for s_ in range(3, NST):
        for t in dma_stage(a):
            a(t)
    a("s_mov_b32 s%d, 0" % sIt)
    stamp(a, 3)
    a("K3_loop:")
    a("s_cmp_eq_u32 s%d, 8" % sIt)
    a("s_cselect_b32 s%d, 0x40000000, s%d" % (sAoff, sAoff))
    stage(a, FA[0], FA[1])
    stage(a, FA[1], FA[0])
    a("s_add_u32 s%d, s%d, 1" % (sIt, sIt))
    a("s_cmp_eq_u32 s%d, 12" % sIt)
    a("s_cbranch_scc0 K3_loop")
    stamp(a, 4)
    a("s_nop 4")
    for rt in range(2):
        for ct in range(3):
            acc = ACC + 12 * rt + 4 * ct
            x = XR + 6 * rt + 2 * ct
            for p in range(2):
                a("v_lshlrev_b32 v%d, 16, v%d" % (T, x + p))
                a("v_and_b32 v%d, 0xffff0000, v%d" % (T + 1, x + p))
                a("v_add_f32 v%d, v%d, v%d" % (T, T, acc + 2 * p))
                a("v_add_f32 v%d, v%d, v%d" % (T + 1, T + 1, acc + 2 * p + 1))
                a("v_cvt_pk_bf16_f32 v%d, v%d, v%d" % (x + p, T, T + 1))
            a("buffer_store_dwordx2 v[%d:%d], v%d, s[%d:%d], s%d offen offset:%d" % (x, x + 1, vO, sO, sO + 3, sT1 if rt == 0 else sT2, 32 * ct))
    stamp(a, 5)
    if STAMP:
        a("s_waitcnt vmcnt(0)")
    stamp(a, 6)
    stamp_dump(a, 7, sWS, sW, WS_STAMP + 0x40000)
    a(end + ":")
    a("s_endpgm")
```

```python
import gen, k1, k2, k3
def empty(a, label):
    a(".p2align 8"); a(label + ":"); a("v_mov_b32 v0, 0"); a("s_mov_b32 s3, 0"); a("s_endpgm")
K1=("k1_kernel", k1.gen_k1, 256, 512, k1.K1_LDS); K2=("k2_kernel", k2.gen_k2, 256, 256, k2.K2_LDS); K3=("k3_kernel", k3.gen_k3, 256, 256, k3.K3_LDS)
E=("e_kernel", empty, 256, 256, 0)
def mk(path, order):
    gen.build([K1,K2,K3,E], path)
    t=open(path).read().split("\n")
    L={l.split("kernel=")[1].split()[0]: l for l in t if l.startswith("; @launch")}
    first=[i for i,l in enumerate(t) if l.startswith("; @launch")][0]
    t=[l for l in t if not l.startswith("; @launch")]
    t[first:first]=[L[o+"_kernel"] for o in order]
    open(path,"w").write("\n".join(t))
mk("p1.s", ["k1","k2","k3","e"])
mk("p2.s", ["e","k1","k2","k3"])
mk("p3.s", ["k1","k2","k3","e","e","e","e"])
mk("p4.s", ["k1","k2","k3","k3","e"])
mk("p5.s", ["k1","k1","k2","k3","e"])
```

```python
import re
import struct

TRANS = ("v_exp_f32", "v_log_f32", "v_rcp_f32", "v_rsq_f32", "v_sqrt_f32", "v_sin_f32", "v_cos_f32")


def f2u(x):
    return struct.unpack("<I", struct.pack("<f", x))[0]


def fhex(x):
    return "0x%08x" % f2u(x)


def vr(a, n=1):
    return "v%d" % a if n == 1 else "v[%d:%d]" % (a, a + n - 1)


def sr(a, n=1):
    return "s%d" % a if n == 1 else "s[%d:%d]" % (a, a + n - 1)


_REG = re.compile(r"^(-|abs\(|-abs\()?([vsa])(?:(\d+)|\[(\d+):(\d+)\])\)?$")


def regs_of(op):
    op = op.strip()
    if op == "vcc":
        return {("s", 106), ("s", 107)}
    if op == "exec":
        return {("s", 126), ("s", 127)}
    if op == "m0":
        return {("s", 124)}
    m = _REG.match(op)
    if not m:
        return set()
    k = m.group(2)
    if m.group(3) is not None:
        return {(k, int(m.group(3)))}
    return {(k, i) for i in range(int(m.group(4)), int(m.group(5)) + 1)}


class Ins:
    __slots__ = ("text", "op", "ops", "mods", "wr", "rd", "kind", "passes", "srcc", "srcab", "label", "target")

    def __init__(self, text):
        self.text = text
        self.label = None
        self.target = None
        self.wr = set()
        self.rd = set()
        self.srcc = set()
        self.srcab = set()
        self.passes = 0
        t = text.split(";")[0].strip()
        if t.endswith(":"):
            self.kind = "label"
            self.label = t[:-1]
            self.op = ""
            self.ops = []
            self.mods = ""
            return
        if t.startswith(".") or not t:
            self.kind = "dir"
            self.op = ""
            self.ops = []
            self.mods = ""
            return
        parts = t.split(None, 1)
        self.op = op = parts[0]
        rest = parts[1] if len(parts) > 1 else ""
        raw = [x.strip() for x in rest.split(",")] if rest else []
        self.mods = ""
        if raw:
            lp = raw[-1].split(None, 1)
            raw[-1] = lp[0] if lp else ""
            self.mods = lp[1] if len(lp) > 1 else ""
        self.ops = ops = raw
        R = [regs_of(o) for o in ops]
        allr = set().union(*R) if R else set()
        if op.startswith("v_mfma"):
            self.kind = "mfma"
            self.wr = R[0]
            self.srcab = R[1] | R[2]
            self.srcc = R[3]
            self.rd = self.srcab | self.srcc
            if "32x32x2_f32" in op:
                self.passes = 16
                self.kind = "sgemm"
            elif "16x16x4_f32" in op:
                self.passes = 8
                self.kind = "sgemm"
            elif "4x4x4" in op:
                self.passes = 2
            elif "32x32" in op:
                self.passes = 8
            else:
                self.passes = 4
        elif op.startswith("v_cmp"):
            self.kind = "valu"
            self.wr = R[0]
            self.rd = set().union(*R[1:])
        elif op.startswith("v_"):
            self.kind = "valu"
            self.wr = set(R[0])
            self.rd = set().union(*R[1:]) if len(R) > 1 else set()
            if op.startswith(("v_fmac", "v_dot2c", "v_pk_fmac")):
                self.rd |= R[0]
            if op.startswith("v_permlane") or op.startswith("v_swap"):
                self.rd |= R[0]
                self.wr |= R[1]
            if op.startswith(("v_add_co", "v_sub_co", "v_addc_co")):
                self.wr |= R[1]
                self.rd = set().union(*R[2:])
            if op.startswith("v_cndmask") and len(ops) == 3:
                self.rd |= regs_of("vcc")
            if "_dpp" in op or "row_" in self.mods or "quad_perm" in self.mods:
                self.rd |= R[0]
            if op == "v_nop":
                self.kind = "other"
        elif op.startswith("ds_read") or op.startswith("ds_bpermute") or op.startswith("ds_swizzle") or op.startswith("ds_permute"):
            self.kind = "ds"
            self.wr = R[0]
            self.rd = set().union(*R[1:])
        elif op.startswith("ds_"):
            self.kind = "ds"
            self.rd = allr
        elif op.startswith(("buffer_load", "global_load")):
            self.kind = "vmem"
            if " lds" in (" " + self.mods) or "_lds_" in op:
                self.rd = allr | regs_of("m0")
                self.kind = "vmem_lds"
            else:
                self.wr = R[0]
                self.rd = set().union(*R[1:])
        elif op.startswith(("buffer_store", "global_store", "buffer_atomic", "global_atomic")):
            self.kind = "vmem"
            self.rd = allr
            if "atomic" in op and "sc0" in self.mods:
                self.wr = R[0]
        elif op.startswith(("buffer_wbl2", "buffer_inv")):
            self.kind = "vmem"
        elif op.startswith(("s_load", "s_buffer_load", "s_memtime", "s_memrealtime")):
            self.kind = "smem"
            self.wr = R[0]
            self.rd = set().union(*R[1:]) if len(R) > 1 else set()
        elif op.startswith(("s_branch", "s_cbranch")):
            self.kind = "branch"
            self.target = ops[0]
        elif op.startswith(("s_cmp", "s_bitcmp", "s_waitcnt", "s_barrier", "s_nop", "s_endpgm", "s_sleep", "s_setprio")):
            self.kind = "salu"
            self.rd = allr
        elif op.startswith("s_"):
            self.kind = "salu"
            self.wr = set(R[0]) if R else set()
            self.rd = set().union(*R[1:]) if len(R) > 1 else set()
            if "saveexec" in op:
                self.wr |= regs_of("exec")
        else:
            raise ValueError("unknown instruction: " + text)

    def states(self):
        if self.kind in ("label", "dir"):
            return 0
        if self.op == "s_nop":
            return int(self.ops[0], 0) + 1
        return 1


def need_between(p, c):
    n = 0
    pk, ck = p.kind, c.kind
    cmf = ck in ("mfma", "sgemm")
    if pk == "valu":
        vw = {r for r in p.wr if r[0] in "va"}
        sw = {r for r in p.wr if r[0] == "s"}
        if cmf and vw & c.rd:
            n = max(n, 2)
        if p.op.startswith(TRANS) and ck == "valu" and not c.op.startswith(TRANS) and vw & c.rd:
            n = max(n, 1)
        if p.op.startswith(TRANS) and ck in ("vmem", "ds", "vmem_lds") and vw & c.rd:
            n = max(n, 1)
        if sw:
            if ck == "valu" and sw & c.rd:
                n = max(n, 4 if c.op.startswith(("v_readlane", "v_writelane")) else 2)
            if ck in ("vmem", "vmem_lds") and sw & c.rd:
                n = max(n, 5)
            if ck in ("salu", "branch", "smem") and (sw & c.rd or (ck == "branch" and "vcc" in c.op)):
                n = max(n, 1)
        if ck == "valu" and vw & c.rd:
            if c.op.startswith(("v_readfirstlane", "v_readlane")):
                n = max(n, 1)
            if c.op.startswith("v_permlane") or "_dpp" in c.op or "row_" in c.mods or "quad_perm" in c.mods:
                n = max(n, 2)
            if "sdwa" in p.op or "op_sel" in p.mods:
                n = max(n, 1)
        if p.op.startswith("v_dot"):
            if vw & (c.rd | c.wr):
                same = c.op == p.op
                if same and not (vw & set().union(*[regs_of(o) for o in c.ops[1:3]])):
                    pass
                else:
                    n = max(n, 3)
    elif pk in ("mfma", "sgemm"):
        xdl = pk == "mfma"
        tab_rw = {2: 5, 4: 8, 8: 12, 16: 20} if xdl else {4: 6, 8: 10, 16: 18}
        if cmf:
            if p.wr & c.srcab:
                n = max(n, tab_rw[p.passes])
            if p.wr & c.srcc:
                if p.wr == c.srcc and pk == ck and p.passes == c.passes:
                    if p.passes == 2:
                        n = max(n, 2)
                elif xdl:
                    n = max(n, {2: 4, 4: 6, 8: 10, 16: 18}[p.passes])
                elif ck == "sgemm":
                    n = max(n, {4: 4, 8: 8, 16: 16}[p.passes])
            elif p.wr & c.wr:
                n = max(n, tab_rw[p.passes])
        elif ck in ("valu", "vmem", "ds", "vmem_lds"):
            if p.wr & (c.rd | c.wr):
                n = max(n, tab_rw[p.passes])
            if xdl and ck == "valu" and p.srcc & c.wr:
                n = max(n, {2: 1, 4: 3, 8: 7, 16: 15}[p.passes])
    elif pk == "salu":
        if ("s", 124) in p.wr and ck == "vmem_lds":
            n = max(n, 1)
    elif pk == "vmem":
        if ("store" in p.op or "atomic" in p.op) and ("x4" in p.op or "x3" in p.op):
            data = regs_of(p.ops[0]) if p.op.startswith("buffer") else regs_of(p.ops[1])
            if data & c.wr:
                n = max(n, 2 if ck == "valu" else 1)
    return n


class Asm:
    def __init__(self):
        self.ins = []
        self.uid = 0

    def __call__(self, text):
        for line in text.split("\n"):
            line = line.strip()
            if not line:
                continue
            if line.startswith(";"):
                i = Ins(".")
                i.text = line
                self.ins.append(i)
                continue
            i = Ins(line)
            if i.kind not in ("label", "dir"):
                need = self._need(self.ins, i)
                if need > 0:
                    while need > 0:
                        k = min(need, 16)
                        self.ins.append(Ins("s_nop %d" % (k - 1)))
                        need -= k
            self.ins.append(i)

    @staticmethod
    def _need(prev, c):
        dist = 0
        need = 0
        for p in reversed(prev):
            if p.kind in ("label", "dir"):
                continue
            if p.op in ("s_branch", "s_endpgm"):
                break
            if dist >= 20:
                break
            nb = need_between(p, c)
            if nb > dist:
                need = max(need, nb - dist)
            dist += p.states()
        return need

    def label(self, base="L"):
        self.uid += 1
        return "%s_%d" % (base, self.uid)

    def check_edges(self):
        idx = {i.label: n for n, i in enumerate(self.ins) if i.kind == "label"}
        bad = []
        for n, b in enumerate(self.ins):
            if b.kind != "branch":
                continue
            t = idx[b.target]
            prev = []
            for p in reversed(self.ins[: n + 1]):
                if p is not b and p.op in ("s_branch", "s_endpgm"):
                    break
                prev.append(p)
                if len(prev) > 40:
                    break
            prev.reverse()
            seq = [p for p in prev if p.kind not in ("label", "dir")]
            seq = [Ins("s_nop 0") if p.kind == "branch" else p for p in seq]
            cnt = 0
            for c in self.ins[t:]:
                if c.kind in ("label", "dir"):
                    continue
                need = self._need(seq, c)
                if need > 0:
                    bad.append((b.text, c.text, need))
                if c.op in ("s_branch", "s_endpgm"):
                    break
                seq.append(Ins("s_nop 0") if c.kind == "branch" else c)
                cnt += 1
                if cnt > 22:
                    break
        return bad

    def check_waits(self):
        bad = []
        lg = []
        vm = []
        for i in self.ins:
            if i.kind in ("label", "dir"):
                continue
            if i.op in ("s_endpgm", "s_branch"):
                lg, vm = [], []
                continue
            if i.op == "s_waitcnt":
                txt = " ".join(i.ops) + " " + i.mods
                m = re.search(r"lgkmcnt\((\d+)\)", txt)
                if m:
                    n = int(m.group(1))
                    if n == 0:
                        lg = []
                    else:
                        ds = [e for e in lg if e[0] == "ds"]
                        ds = ds[-n:] if n < len(ds) else ds
                        lg = [e for e in lg if e[0] == "smem"] + ds
                m = re.search(r"vmcnt\((\d+)\)", txt)
                if m:
                    n = int(m.group(1))
                    vm = [] if n == 0 else (vm[-n:] if n < len(vm) else vm)
                continue
            touched = i.rd | i.wr
            for k, regs in lg:
                if regs & touched:
                    bad.append(("lgkm", i.text))
                    break
            for regs in vm:
                if regs & touched:
                    bad.append(("vm", i.text))
                    break
            if i.kind == "ds":
                lg.append(("ds", set(i.wr)))
            elif i.kind == "smem" and not i.op.startswith("s_mem"):
                lg.append(("smem", set(i.wr)))
            elif i.kind in ("vmem", "vmem_lds"):
                vm.append(set(i.wr))
        return bad

    def text(self):
        out = []
        for i in self.ins:
            if i.kind == "label" or i.text.startswith(".") or i.text.startswith(";"):
                out.append(i.text)
            else:
                out.append("  " + i.text)
        return "\n".join(out) + "\n"

    def max_regs(self, start=0):
        mv = ms = -1
        for i in self.ins[start:]:
            for k, n in i.rd | i.wr:
                if k == "v":
                    mv = max(mv, n)
                elif k == "s" and n < 102:
                    ms = max(ms, n)
        return mv, ms
```

```python
import sys
from asmlib import *
from common import *
import k1

HEADER = open('cdna_kernels/%s.s.ref' % NAME).read().split('; Override launch')[0]

def kd(name, nv, ns):
    acc = (nv + 3) // 4 * 4
    return """.amdhsa_kernel %s
  .amdhsa_next_free_vgpr %d
  .amdhsa_next_free_sgpr %d
  .amdhsa_accum_offset %d
  .amdhsa_group_segment_fixed_size 0
  .amdhsa_kernarg_size 88
  .amdhsa_user_sgpr_count 2
  .amdhsa_user_sgpr_kernarg_segment_ptr 1
  .amdhsa_system_sgpr_workgroup_id_x 1
.end_amdhsa_kernel
""" % (name, nv, ns, acc)

def build(kernels, path):
    a = Asm()
    launches, kds = [], []
    for name, fn, grid, block, lds in kernels:
        start = len(a.ins)
        a(".globl %s" % name)
        a(".type %s,@function" % name)
        fn(a, name)
        mv, ms = a.max_regs(start)
        launches.append("; @launch kernel=%s grid=(%d,1,1) block=(%d,1,1) lds=%d" % (name, grid, block, lds))
        kds.append(".p2align 6\n" + kd(name, mv + 1, ms + 1))
        print(name, "vgpr", mv + 1, "sgpr", ms + 1, "instrs", len(a.ins) - start, file=sys.stderr)
    a("CODE_END:")
    for b in a.check_edges()[:10]:
        print("EDGE HAZARD", b, file=sys.stderr)
    for b in a.check_waits()[:10]:
        print("WAIT?", b, file=sys.stderr)
    txt = HEADER + "\n".join(launches) + "\n" + '.amdgcn_target "amdgcn-amd-amdhsa--gfx950"\n.text\n' + a.text() + '.section .rodata,"a"\n' + "".join(kds)
    open(path, "w").write(txt)

if __name__ == "__main__":
    ks = [("k1_kernel", k1.gen_k1, 256, 512, k1.K1_LDS)]
    build(ks, sys.argv[1] if len(sys.argv) > 1 else 'cdna_kernels/%s.s' % NAME)
```

```python
import os
from asmlib import *
from common import *

LOG2E = 1.4426950408889634
GC1 = -2.0 * 0.7978845608028654 * LOG2E
GC2 = GC1 * 0.044715

REG = 81920
CH = 20480
K1_LDS = 2 * REG

X0, M0, E0, FR, HOLD, PK, T0 = 96, 80, 64, 48, 40, 36, 28
SEL, CSA = 24, 20
NEGMU, RSTD, RL, K1c, K2c, IRSTD = 19, 18, 17, 16, 15, 14
ZSUM, ZSQ = 12, 13
vA = 8
vW1a, vW1b, vSt0, vSt1, vCsR, vCsW = 7, 6, 5, 4, 3, 2
vXA, vXd0, vXd1, vW0a, vW0b = 40, 44, 45, 46, 47
XS, XQ, XQ2 = 36, 28, 32
sX, sW0, sW1, sWS, sDBG = 4, 8, 12, 16, 20
sRb, sCg, sW, sR, sC = 24, 25, 26, 27, 28
sXoff, sW0off, sW1off, sW1step, sW1wrap = 29, 30, 31, 32, 33
sDelta, sWb, sT0, sXb, sReady = 34, 35, 36, 37, 38
sOnes, sA, sB, sCc, sOut, sLine, sIsZ2, sType, sOne = 39, 40, 41, 42, 43, 44, 45, 46, 47
sOut1, sL1, sZ2w, sT1, sT2, sOut0, sZ2keep, sLg = 64, 65, 66, 67, 68, 69, 70, 71

STAMP = os.environ.get("STAMP", "0") in ("1", "2")
STOP = "s_memrealtime" if os.environ.get("STAMP") == "2" else "s_memtime"
WS_STAMP = 0x1800000
EXP = os.environ.get("EXP", "").split(",")


def stamp(a, i):
    if STAMP:
        a("%s s[%d:%d]" % (STOP, 72 + 2 * i, 73 + 2 * i))


def stamp_dump(a, n, srdn, wreg, base):
    if not STAMP:
        return
    a("s_waitcnt lgkmcnt(0)")
    a("s_lshl_b32 s%d, s2, 3" % sT0)
    a("s_add_u32 s%d, s%d, s%d" % (sT0, sT0, wreg))
    a("s_lshl_b32 s%d, s%d, 6" % (sT0, sT0))
    a("s_add_u32 s%d, s%d, 0x%x" % (sT0, sT0, base))
    a("s_mov_b32 s%d, 0x4000000" % (srdn + 2))
    a("v_mov_b32 v1, 0")
    a("s_mov_b64 exec, 1")
    for i in range(n):
        a("v_mov_b32 v2, s%d" % (72 + 2 * i))
        a("buffer_store_dword v2, v1, s[%d:%d], s%d offen offset:%d" % (srdn, srdn + 3, sT0, 4 * i))
    a("s_mov_b64 exec, -1")


class LdsQ:
    def __init__(self, a, init=()):
        self.a = a
        self.q = list(init)

    def issue(self, text, tag):
        self.a(text)
        self.q.append(tag)

    def wait(self, *tags):
        idx = [i for i, t in enumerate(self.q) if t in tags]
        if not idx:
            return
        last = max(idx)
        n = len(self.q) - 1 - last
        assert n <= 15
        self.a("s_waitcnt lgkmcnt(%d)" % n)
        self.q = self.q[last + 1:]


def srd(a, d, plo, nbytes):
    a("s_mov_b32 s%d, s%d" % (d, plo))
    a("s_and_b32 s%d, s%d, 0xffff" % (d + 1, plo + 1))
    a("s_mov_b32 s%d, 0x%x" % (d + 2, nbytes))
    a("s_mov_b32 s%d, 0x20000" % (d + 3))


def csel(a, d, t, f):
    a("s_mov_b32 s%d, %s" % (d, f))
    a("s_cselect_b32 s%d, %s, s%d" % (d, t, d))


def spread(n_items, n_slots):
    base, rem = divmod(n_items, n_slots)
    return [base + (1 if i < rem else 0) for i in range(n_slots)]


def frag_reads(q, pos, j):
    d = FR + 4 * (j & 3)
    off = pos * 4096 + (j >> 2) * 2048
    q.issue("ds_read_b64_tr_b16 v[%d:%d], v%d offset:%d" % (d, d + 1, vA + (j & 3), off), "f%d" % j)
    q.issue("ds_read_b64_tr_b16 v[%d:%d], v%d offset:%d" % (d + 2, d + 3, vA + (j & 3), off + 512), "f%d" % j)


def skew(seqs, d):
    if "noskew" in EXP:
        d = 0
    items = sorted((i + d * n, n, op) for n, s in enumerate(seqs) for i, op in enumerate(s))
    return [op for _, _, op in items]


def gelu_ops(regs, outs):
    seqs = []
    for e, (t, p) in zip(regs, outs):
        seqs.append([
            "v_mul_f32 v%d, v%d, v%d" % (t, e, e),
            "v_fma_f32 v%d, v%d, v%d, v%d" % (p, t, K2c, K1c),
            "v_mul_f32 v%d, v%d, v%d" % (p, p, e),
            "v_exp_f32 v%d, v%d" % (p, p),
            "v_fma_f32 v%d, v%d, v%d, v%d" % (p, p, IRSTD, IRSTD),
            "v_rcp_f32 v%d, v%d" % (p, p),
            "v_mul_f32 v%d, v%d, v%d" % (t, e, p),
        ])
    return skew(seqs, 2)


def phi_ops(regs, outs):
    seqs = []
    for e, (t, p) in zip(regs, outs):
        seqs.append([
            "v_mul_f32 v%d, v%d, v%d" % (p, e, RL),
            "v_exp_f32 v%d, v%d clamp" % (p, p),
            "v_fma_f32 v%d, v%d, v%d, s%d" % (t, e, RSTD, sCc),
            "v_max_f32 v%d, s%d, v%d" % (t, sA, t),
            "v_fma_f32 v%d, v%d, s%d, v%d" % (t, p, sB, t),
        ])
    return skew(seqs, 1)


def epi_quad(typ, qd):
    regs = [E0 + 4 * qd + i for i in range(4)]
    outs = [(T0 + 2 * i, T0 + 2 * i + 1) for i in range(4)]
    ops = gelu_ops(regs, outs) if typ == "G" else phi_ops(regs, outs)
    o = PK + 2 * (qd & 1)
    ops.append("v_cvt_pk_bf16_f32 v%d, v%d, v%d" % (o, outs[0][0], outs[1][0]))
    ops.append("v_cvt_pk_bf16_f32 v%d, v%d, v%d" % (o + 1, outs[2][0], outs[3][0]))
    return ops


RARE = []


def rare(a, cond_branch, fn):
    lr, lb = a.label("Lrare"), a.label("Lback")
    a("%s %s" % (cond_branch, lr))
    RARE.append((lr, lb, fn))
    return lb


def flush_rare(a):
    for lr, lb, fn in RARE:
        a(lr + ":")
        fn(lb)
        a("s_branch %s" % lb)
    del RARE[:]


def epi_out(a, typ, half, z2ok=True):
    vst = vSt0 if half == 0 else vSt1
    st = "buffer_store_dwordx4 v[%d:%d], v%d, s[%d:%d], s%d offen sc1" % (PK, PK + 3, vst, sWS, sWS + 3, sOut)
    if "nost" in EXP:
        st = "s_nop 0"
    if typ == "P" or not z2ok:
        a(st)
        return

    def z2blk(lb):
        for i in range(4):
            a("v_mov_b32 v%d, v%d" % (HOLD + 4 * half + i, PK + i))
            a("v_dot2c_f32_bf16 v%d, s%d, v%d" % (ZSUM, sOnes, PK + i))
            a("v_dot2c_f32_bf16 v%d, v%d, v%d" % (ZSQ, PK + i, PK + i))
        if half == 1:
            a("v_mov_b32 v%d, v%d" % (T0, ZSUM))
            a("v_mov_b32 v%d, v%d" % (T0 + 1, ZSQ))
            a("v_permlane32_swap_b32 v%d, v%d" % (ZSUM, T0))
            a("v_permlane32_swap_b32 v%d, v%d" % (ZSQ, T0 + 1))
            a("v_add_f32 v%d, v%d, v%d" % (ZSUM, ZSUM, T0))
            a("v_add_f32 v%d, v%d, v%d" % (ZSQ, ZSQ, T0 + 1))
            a("v_lshlrev_b32 v%d, 3, v0" % T0)
            a("s_mov_b32 exec_hi, 0")
            a("buffer_store_dwordx2 v[%d:%d], v%d, s[%d:%d], s%d offen sc1" % (ZSUM, ZSQ, T0, sWS, sWS + 3, sZ2w))
            a("s_mov_b64 exec, -1")
            a("s_mov_b32 s%d, 0" % sIsZ2)
        a("s_nop 2")
    a("s_cmp_eq_u32 s%d, 1" % sIsZ2)
    lb = rare(a, "s_cbranch_scc1", z2blk)
    a(st)
    a(lb + ":")


def dma_unit(pos):
    return [
        "s_add_u32 m0, s%d, %d" % (sWb, pos * 4096),
        "buffer_load_dwordx4 v%d, s[%d:%d], s%d offen lds" % (vW1a, sW1, sW1 + 3, sW1off),
        "buffer_load_dwordx4 v%d, s[%d:%d], s%d offen offset:1024 lds" % (vW1b, sW1, sW1 + 3, sW1off),
        "s_add_u32 s%d, s%d, s%d" % (sW1off, sW1off, sW1wrap if pos == 4 else sW1step),
    ]


def dma_x(hp):
    return [
        "s_add_u32 m0, s%d, %d" % (sXb, (hp % 5) * 4096),
        "buffer_load_dwordx4 v%d, s[%d:%d], s%d offen lds" % (vXd0, sX, sX + 3, sXoff),
        "buffer_load_dwordx4 v%d, s[%d:%d], s%d offen offset:1024 lds" % (vXd1, sX, sX + 3, sXoff),
        "s_add_u32 s%d, s%d, 128" % (sXoff, sXoff),
    ]


def dma_b0(i):
    return [
        "s_add_u32 m0, s%d, %d" % (sWb, i * 4096 - REG),
        "buffer_load_dwordx4 v%d, s[%d:%d], s%d offen lds" % (vW0a, sW0, sW0 + 3, sW0off),
        "buffer_load_dwordx4 v%d, s[%d:%d], s%d offen offset:1024 lds" % (vW0b, sW0, sW0 + 3, sW0off),
        "s_add_u32 s%d, s%d, %d" % (sW0off, sW0off, 128 * 3456),
    ]


def mfma(a, i, j):
    x = X0 + 32 * i + 4 * j
    f = FR + 4 * (j & 3)
    d = E0 if (i == 4 and j == 7) else M0
    c = "0" if (i == 0 and j == 0) else "v[%d:%d]" % (M0, M0 + 15)
    a("v_mfma_f32_32x32x16_bf16 v[%d:%d], v[%d:%d], v[%d:%d], %s" % (d, d + 15, f, f + 3, x, x + 3, c))


def cs_mfma(a, i, j):
    f = FR + 4 * (j & 3)
    c = "0" if (i == 0 and j == 0) else "v[%d:%d]" % (CSA, CSA + 3)
    a("v_mfma_f32_16x16x32_bf16 v[%d:%d], v[%d:%d], v[%d:%d], %s" % (CSA, CSA + 3, SEL, SEL + 3, f, f + 3, c))


def ext_mfma(a, q):
    q.wait("csr")
    a("v_add_f32 v%d, v%d, v%d" % (PK, PK, PK + 1))
    a("v_add_f32 v%d, v%d, v%d" % (PK + 2, PK + 2, PK + 3))
    a("v_add_f32 v%d, v%d, v%d" % (PK, PK, PK + 2))
    a("v_add_u32 v%d, s%d, v%d" % (vCsR, sDelta, vCsR))
    a("v_mfma_f32_32x32x2_f32 v[%d:%d], v%d, v%d, v[%d:%d]" % (E0, E0 + 15, PK, NEGMU, E0, E0 + 15))


def poll_issue(a):
    a("s_lshl_b32 s%d, s%d, 4" % (sT0, sRb))
    a("v_mov_b32 v1, 0")
    a("buffer_load_dwordx4 v[%d:%d], v1, s[%d:%d], s%d offen sc1" % (X0 + 28, X0 + 31, sDBG, sDBG + 3, sT0))


def poll_test(a):
    p = X0 + 28
    a("v_and_b32 v%d, v%d, v%d" % (p, p, p + 1))
    a("v_or_b32 v%d, 0x01010000, v%d" % (p + 3, p + 3))
    a("v_and_b32 v%d, v%d, v%d" % (p + 2, p + 2, p + 3))
    a("v_and_b32 v%d, v%d, v%d" % (p, p, p + 2))
    a("v_readfirstlane_b32 s%d, v%d" % (sT1, p))
    a("s_cmp_eq_u32 s%d, 0x01010101" % sT1)


def stat_loads(a):
    a("v_and_b32 v1, 31, v0")
    a("v_lshlrev_b32 v1, 3, v1")
    a("v_lshrrev_b32 v%d, 5, v0" % (X0 + 28))
    a("v_mul_u32_u24 v%d, %d, v%d" % (X0 + 28, 14 * 256, X0 + 28))
    a("v_add_u32 v1, v1, v%d" % (X0 + 28))
    a("s_and_b32 s%d, s%d, 0xffffe000" % (sT0, sZ2w))
    for t in range(14):
        a("buffer_load_dwordx2 v[%d:%d], v1, s[%d:%d], s%d offen offset:%d sc1" % (
            X0 + 2 * t, X0 + 2 * t + 1, sWS, sWS + 3, sT0, 256 * t))


INQ2 = ["f0", "f0", "csw", "f1", "f1", "f2", "f2"]


def next_line_ops():
    return [
        "s_mov_b32 s%d, s%d" % (sOut, sOut1),
        "s_add_u32 s%d, s%d, 4096" % (sOut1, sOut1),
        "s_sub_u32 s%d, s%d, s%d" % (sWb, sWb, sDelta),
        "s_cmp_ge_u32 s%d, 20\ns_mov_b32 s%d, %s\ns_cselect_b32 s%d, 0xff800000, s%d\ns_cselect_b32 s%d, 0, 1.0\ns_cselect_b32 s%d, 0, %s" % (
            sLg, sA, fhex(1e-6), sA, sA, sB, sCc, fhex(1e-6)),
        "s_add_u32 s%d, s%d, 1" % (sLg, sLg),
        "s_add_u32 s%d, s%d, 1" % (sLine, sLine),
    ]


def body(a, typ):
    q = LdsQ(a, INQ2)
    for i in range(5):
        q.wait("csw")
        a("s_waitcnt vmcnt(6)")
        a("s_barrier")
        du = dma_unit(i)
        fill = epi_quad(typ, i - 1) if i else []
        lump = (lambda h=(i - 1) >> 1: epi_out(a, typ, h)) if i in (2, 4) else None
        nslots = 7 if lump else 8
        cnt = spread(len(fill), nslots) + [0] * (8 - nslots)
        pos = 0
        for j in range(8):
            q.wait("f%d" % j)
            mfma(a, i, j)
            if i == 0 and j == 0:
                q.issue("ds_read_b128 v[%d:%d], v%d" % (PK, PK + 3, vCsR), "csr")
            if i == 4 and j == 6:
                q.issue("ds_write_b32 v%d, v%d" % (vCsW, CSA), "csw")
                a("v_add_u32 v%d, s%d, v%d" % (vCsW, sDelta, vCsW))
            jn = j + 3
            if jn < 8:
                frag_reads(q, i, jn)
            else:
                frag_reads(q, (i + 1) % 5, jn - 8)
            if i == 4 and 1 <= j <= 4:
                t = (j + 3) & 3
                a("v_add_u32 v%d, s%d, v%d" % (vA + t, sDelta, vA + t))
            if i == 0 and j == 3:
                ext_mfma(a, q)
                a("s_sub_u32 s%d, 0, s%d" % (sDelta, sDelta))
            if j == 0 and i in (1, 4):
                def pblk(lb, i=i):
                    if i == 1:
                        poll_issue(a)
                    else:
                        poll_test(a)
                        a("s_cbranch_scc0 %s" % lb)
                        stat_loads(a)
                        a("s_mov_b32 s%d, 1" % sReady)
                a("s_cmp_eq_u32 s%d, s%d" % (sLine, sZ2keep))
                a(rare(a, "s_cbranch_scc1", pblk) + ":")
            if j == 0:
                a(du[0])
            for t in fill[pos:pos + cnt[j]]:
                a(t)
            pos += cnt[j]
            if j == 0:
                a(du[1])
            if j == 4:
                a(du[2])
                a(du[3])
                if i == 4:
                    a("s_cmp_eq_u32 s%d, 2" % sLine)
                    a("s_cselect_b32 s%d, 0x40000000, s%d" % (sW1off, sW1off))
            if lump and j == 6:
                lump()
            if (j & 3) == 0:
                cs_mfma(a, i, j)
            if j == 1 and i == 3:
                def fblk(lb):
                    a("v_mov_b32 v1, 1")
                    a("s_mov_b64 exec, 1")
                    a("buffer_store_byte v1, v0, s[%d:%d], s%d offen sc1" % (sDBG, sDBG + 3, sT2))
                    a("s_mov_b64 exec, -1")
                a("s_cmp_eq_u32 s%d, s%d" % (sLine, sL1))
                a(rare(a, "s_cbranch_scc1", fblk) + ":")
            if i == 4 and j == 7:
                for t in next_line_ops():
                    a(t)
        assert pos == len(fill)
    assert q.q == INQ2, q.q
    if STAMP:
        a("s_mov_b32 s88, s90")
        a("s_mov_b32 s90, s92")
    stamp(a, 10)


def z2_finalize(a):
    H = M0
    lab = a.label("Lrdy")
    lp = a.label("Lpoll")
    a("s_cmp_eq_u32 s%d, 1" % sReady)
    a("s_cbranch_scc1 %s" % lab)
    a(lp + ":")
    poll_issue(a)
    a("s_waitcnt vmcnt(0)")
    poll_test(a)
    a("s_cbranch_scc0 %s" % lp)
    stat_loads(a)
    a("s_waitcnt vmcnt(0)")
    a(lab + ":")
    for t in range(8):
        a("v_lshlrev_b32 v%d, 16, v%d" % (H + 2 * t, HOLD + t))
        a("v_and_b32 v%d, 0xffff0000, v%d" % (H + 2 * t + 1, HOLD + t))
    a("s_waitcnt vmcnt(3)")
    stamp(a, 11)
    a("s_mov_b32 exec_hi, 0")
    a("v_add_f32 v%d, v%d, v%d" % (X0, X0, X0 + 26))
    a("v_add_f32 v%d, v%d, v%d" % (X0 + 1, X0 + 1, X0 + 27))
    a("s_mov_b64 exec, -1")
    for t in (12, 6, 5, 4, 3, 2, 1):
        pass
    for t in range(1, 7):
        a("v_add_f32 v%d, v%d, v%d" % (X0 + 2 * t, X0 + 2 * t, X0 + 2 * t + 12))
        a("v_add_f32 v%d, v%d, v%d" % (X0 + 2 * t + 1, X0 + 2 * t + 1, X0 + 2 * t + 13))
    for t in range(1, 4):
        a("v_add_f32 v%d, v%d, v%d" % (X0 + 2 * t, X0 + 2 * t, X0 + 2 * t + 6))
        a("v_add_f32 v%d, v%d, v%d" % (X0 + 2 * t + 1, X0 + 2 * t + 1, X0 + 2 * t + 7))
    for (d, s_) in ((0, 1), (2, 3), (0, 2)):
        a("v_add_f32 v%d, v%d, v%d" % (X0 + 2 * d, X0 + 2 * d, X0 + 2 * s_))
        a("v_add_f32 v%d, v%d, v%d" % (X0 + 2 * d + 1, X0 + 2 * d + 1, X0 + 2 * s_ + 1))
    a("v_mov_b32 v%d, v%d" % (T0, X0))
    a("v_mov_b32 v%d, v%d" % (T0 + 1, X0 + 1))
    a("v_permlane32_swap_b32 v%d, v%d" % (X0, T0))
    a("v_permlane32_swap_b32 v%d, v%d" % (X0 + 1, T0 + 1))
    a("v_add_f32 v%d, v%d, v%d" % (X0, X0, T0))
    a("v_add_f32 v%d, v%d, v%d" % (X0 + 1, X0 + 1, T0 + 1))
    a("v_mul_f32 v%d, %s, v%d" % (X0, fhex(-1.0 / FH), X0))
    a("v_mul_f32 v%d, %s, v%d" % (X0 + 1, fhex(1.0 / FH), X0 + 1))
    a("v_fma_f32 v%d, -v%d, v%d, v%d" % (X0 + 1, X0, X0, X0 + 1))
    a("v_max_f32 v%d, 0, v%d" % (X0 + 1, X0 + 1))
    a("v_add_f32 v%d, %s, v%d" % (X0 + 1, fhex(1e-5), X0 + 1))
    a("v_rsq_f32 v%d, v%d" % (X0 + 1, X0 + 1))
    for t in range(16):
        a("v_add_f32 v%d, v%d, v%d" % (H + t, H + t, X0))
    for hf in range(2):
        for t in range(8 * hf, 8 * hf + 8):
            a("v_mul_f32 v%d, v%d, v%d" % (H + t, H + t, X0 + 1))
        for t in range(4 * hf, 4 * hf + 4):
            a("v_cvt_pk_bf16_f32 v%d, v%d, v%d" % (HOLD + t, H + 2 * t, H + 2 * t + 1))
        a("buffer_store_dwordx4 v[%d:%d], v%d, s[%d:%d], s%d offen sc1" % (
            HOLD + 4 * hf, HOLD + 4 * hf + 3, vSt1 if hf else vSt0, sWS, sWS + 3, sOut0))


def tail_common(a):
    q = LdsQ(a, INQ2)
    q.wait("csw")
    a("s_barrier")
    q.issue("ds_read_b128 v[%d:%d], v%d" % (PK, PK + 3, vCsR), "csr")
    ext_mfma(a, q)
    a("s_cmp_eq_u32 s%d, 0" % sZ2keep)
    a("s_cbranch_scc1 K1_noz2")
    z2_finalize(a)
    a("K1_noz2:")
    stamp(a, 12)
    a("s_nop 15")


def tail(a, typ):
    for qd in range(4):
        for t in epi_quad(typ, qd):
            a(t)
        if qd & 1:
            epi_out(a, typ, qd >> 1, z2ok=False)
    stamp(a, 13)
    if STAMP:
        a("s_waitcnt vmcnt(0)")
    stamp(a, 14)
    stamp_dump(a, 15, sWS, sW, WS_STAMP)
    a("s_endpgm")


def gen_k1(a, label):
    a(".p2align 8")
    a(label + ":")
    end = "K1_end"
    a("s_cmp_ge_u32 s2, 256")
    a("s_cbranch_scc1 %s" % end)
    stamp(a, 0)
    a("s_load_dwordx4 s[48:51], s[0:1], %d" % KA_X)
    a("s_load_dwordx2 s[54:55], s[0:1], %d" % KA_WIN)
    a("s_load_dwordx2 s[52:53], s[0:1], %d" % KA_WO)
    a("s_load_dwordx2 s[56:57], s[0:1], %d" % KA_WOUT)
    a("s_load_dwordx2 s[58:59], s[0:1], %d" % KA_WSP)
    a("s_load_dwordx4 s[60:63], s[0:1], %d" % KA_DBG)
    a("v_lshrrev_b32 v1, 6, v0")
    a("v_and_b32 v0, 63, v0")
    a("v_readfirstlane_b32 s%d, v1" % sW)
    a("s_and_b32 s%d, s2, 1" % sRb)
    a("s_lshl_b32 s%d, s%d, 3" % (sRb, sRb))
    a("s_lshr_b32 s%d, s2, 5" % sT0)
    a("s_add_u32 s%d, s%d, s%d" % (sRb, sRb, sT0))
    a("s_bfe_u32 s%d, s2, 0x20001" % sCg)
    a("s_lshl_b32 s%d, s%d, 2" % (sCg, sCg))
    a("s_bfe_u32 s%d, s2, 0x20003" % sT0)
    a("s_add_u32 s%d, s%d, s%d" % (sCg, sCg, sT0))
    a("s_and_b32 s%d, s%d, 3" % (sR, sW))
    a("s_lshr_b32 s%d, s%d, 2" % (sC, sW))
    a("s_cmp_eq_u32 s%d, 15" % sCg)
    a("s_cbranch_scc1 K1_side")
    a("v_lshrrev_b32 v3, 3, v0")
    a("s_lshl_b32 s%d, s%d, 4" % (sT0, sW))
    a("v_add_u32 v3, s%d, v3" % sT0)
    a("v_lshrrev_b32 v1, 4, v0")
    a("v_and_b32 v2, 7, v0")
    a("v_xor_b32 v4, v1, v2")
    a("v_mul_u32_u24 v5, 1280, v3")
    a("v_lshl_add_u32 v%d, v4, 4, v5" % vXd0)
    a("v_xor_b32 v4, 4, v4")
    a("v_lshl_add_u32 v%d, v4, 4, v5" % vXd1)
    a("v_add_u32 v%d, %d, v%d" % (vXd1, 8 * 1280 - 1024, vXd1))
    a("v_and_b32 v1, 1, v1")
    a("v_lshlrev_b32 v1, 2, v1")
    a("v_xor_b32 v2, v1, v2")
    a("v_lshlrev_b32 v2, 4, v2")
    a("v_mul_u32_u24 v%d, 3456, v3" % vW0a)
    a("v_add_u32 v%d, v%d, v2" % (vW0a, vW0a))
    a("v_add_u32 v%d, %d, v%d" % (vW0b, 8 * 3456 - 1024, vW0a))
    a("s_mul_i32 s%d, s%d, %d" % (sXoff, sRb, 128 * 1280))
    a("s_add_u32 s%d, s%d, 13" % (sLg, sCg))
    a("s_cmp_eq_u32 s%d, 14" % sCg)
    a("s_cselect_b32 s%d, 12, s%d" % (sLg, sLg))
    a("s_cselect_b32 s%d, 1, 0" % sOne)
    a("s_lshl_b32 s%d, s%d, 7" % (sW0off, sLg))
    a("s_mul_i32 s%d, s%d, %d" % (sWb, sR, CH))
    a("s_lshl_b32 s%d, s%d, 11" % (sT0, sC))
    a("s_add_u32 s%d, s%d, s%d" % (sWb, sWb, sT0))
    a("s_add_u32 s%d, s%d, %d" % (sWb, sWb, REG))
    a("s_lshr_b32 s%d, s%d, 1" % (sT0, sW))
    a("s_mul_i32 s%d, s%d, %d" % (sXb, sT0, CH))
    a("s_and_b32 s%d, s%d, 1" % (sT0, sW))
    a("s_lshl_b32 s%d, s%d, 11" % (sT0, sT0))
    a("s_add_u32 s%d, s%d, s%d" % (sXb, sXb, sT0))
    a("s_add_u32 s%d, s%d, %d" % (sXb, sXb, REG))
    a("s_waitcnt lgkmcnt(0)")
    srd(a, sX, 48, S * D * 2)
    srd(a, sW0, 54, D * F * 2)
    for L in (dma_x(0), dma_b0(0), dma_x(1)):
        for t in L:
            a(t)
    stamp(a, 1)
    a("v_mov_b32 v%d, v3" % (E0 + 8))
    a("v_mov_b32 v%d, v2" % (E0 + 9))
    e = E0
    a("s_xor_b32 s%d, s%d, s%d" % (sT1, sR, sC))
    a("v_lshrrev_b32 v1, 5, v0")
    a("v_and_b32 v%d, 31, v0" % (e + 1))
    a("v_lshlrev_b32 v%d, 7, v%d" % (e + 1, e + 1))
    a("v_bfe_u32 v%d, v0, 1, 3" % (e + 2))
    a("v_xor_b32 v%d, v%d, v1" % (e + 2, e + 2))
    a("s_lshl_b32 s%d, s%d, 1" % (sT0, sT1))
    a("v_xor_b32 v%d, s%d, v%d" % (e + 2, sT0, e + 2))
    a("v_lshl_add_u32 v%d, v%d, 4, v%d" % (e + 1, e + 2, e + 1))
    a("s_mul_i32 s%d, s%d, %d" % (sT0, sR, CH))
    a("s_add_u32 s%d, s%d, %d" % (sT0, sT0, REG))
    a("v_add_u32 v%d, s%d, v%d" % (vXA, sT0, e + 1))
    for t in range(1, 4):
        a("v_xor_b32 v%d, %d, v%d" % (vXA + t, 32 * t, vXA))
    a("v_bfe_u32 v%d, v0, 2, 2" % e)
    a("v_lshl_add_u32 v%d, v1, 3, v%d" % (e, e))
    a("v_lshlrev_b32 v%d, 7, v%d" % (e, e))
    a("v_bfe_u32 v%d, v0, 4, 1" % (e + 1))
    a("v_lshlrev_b32 v%d, 1, v%d" % (e + 1, e + 1))
    a("v_bfe_u32 v%d, v0, 1, 1" % (e + 2))
    a("v_add_u32 v%d, v%d, v%d" % (e + 1, e + 1, e + 2))
    a("s_lshl_b32 s%d, s%d, 2" % (sT0, sC))
    a("v_add_u32 v%d, s%d, v%d" % (e + 1, sT0, e + 1))
    a("v_bfe_u32 v%d, v0, 3, 1" % (e + 2))
    a("v_lshlrev_b32 v%d, 2, v%d" % (e + 2, e + 2))
    a("v_xor_b32 v%d, v%d, v%d" % (e + 1, e + 1, e + 2))
    a("v_lshl_add_u32 v%d, v%d, 4, v%d" % (e, e + 1, e))
    a("v_and_b32 v%d, 1, v0" % (e + 1))
    a("v_lshl_add_u32 v%d, v%d, 3, v%d" % (e, e + 1, e))
    for t in range(4):
        a("s_xor_b32 s%d, s%d, %d" % (sT0, sT1, t))
        a("s_mul_i32 s%d, s%d, %d" % (sT0, sT0, CH))
        a("v_add_u32 v%d, s%d, v%d" % (vA + t, sT0, e))
    for L in (dma_x(2), dma_b0(1)):
        for t in L:
            a(t)
    a("s_mov_b32 s%d, 0x3f803f80" % sOnes)
    a("v_lshrrev_b32 v%d, 4, v0" % (e + 1))
    a("v_bfe_u32 v%d, v0, 2, 2" % (e + 2))
    a("v_cmp_eq_u32 vcc, v%d, v%d" % (e + 1, e + 2))
    a("v_mov_b32 v%d, s%d" % (e + 1, sOnes))
    for t in range(4):
        a("v_cndmask_b32 v%d, 0, v%d, vcc" % (SEL + t, e + 1))

    class Rec:
        def __init__(self):
            self.L = []

        def __call__(self, t):
            self.L.append(t)
    r1 = Rec()
    r1("s_cmp_lt_u32 s%d, 10" % sCg)
    csel(r1, sT1, "3840", "3456")
    r1("s_cselect_b32 s%d, 0, 1" % sType)
    r1("s_cselect_b32 s%d, s50, s54" % sW1)
    r1("s_cselect_b32 s%d, s51, s55" % (sW1 + 1))
    csel(r1, sW1 + 2, hex(D * 3 * D * 2), hex(D * F * 2))
    late = ["\n".join(r1.L)]
    r = Rec()
    r("s_and_b32 s%d, s%d, 0xffff" % (sW1 + 1, sW1 + 1))
    r("s_mov_b32 s%d, 0x20000" % (sW1 + 3))
    r("v_mul_u32_u24 v%d, s%d, v%d" % (vW1a, sT1, E0 + 8))
    r("v_add_u32 v%d, v%d, v%d" % (vW1a, vW1a, E0 + 9))
    r("s_lshl_b32 s%d, s%d, 3" % (sT0, sT1))
    r("s_sub_u32 s%d, s%d, 1024" % (sT0, sT0))
    r("v_add_u32 v%d, s%d, v%d" % (vW1b, sT0, vW1a))
    r("s_lshl_b32 s%d, s%d, 7" % (sW1step, sT1))
    r("s_lshl_b32 s%d, s%d, 2" % (sT0, sW1step))
    r("s_sub_u32 s%d, 128, s%d" % (sW1wrap, sT0))
    r("s_lshl_b32 s%d, s%d, 1" % (sT0, sLg))
    r("s_add_u32 s%d, s%d, s%d" % (sT0, sT0, sC))
    r("s_cmp_ge_u32 s%d, 27\ns_cselect_b32 s%d, 1, 0\ns_cselect_b32 s%d, 3, 0" % (sT0, sIsZ2, sZ2keep))
    r("s_lshl_b32 s%d, s%d, 2" % (sT2, sRb))
    r("s_add_u32 s%d, s%d, s%d" % (sT2, sT2, sR))
    r("s_mul_i32 s%d, s%d, %d" % (sOut, sT2, NG_Z))
    r("s_lshl_b32 s%d, s%d, 1" % (sOut1, sT0))
    r("s_add_u32 s%d, s%d, s%d" % (sOut, sOut, sOut1))
    r("s_lshl_b32 s%d, s%d, 10" % (sOut, sOut))
    r("s_add_u32 s%d, s%d, 0x%x" % (sOut, sOut, WS_Z))
    r("s_mov_b32 s%d, s%d" % (sOut0, sOut))
    r("s_lshl_b32 s%d, s%d, 13" % (sZ2w, sT2))
    r("s_lshl_b32 s%d, s%d, 8" % (sT0, sT0))
    r("s_add_u32 s%d, s%d, s%d" % (sZ2w, sZ2w, sT0))
    r("s_add_u32 s%d, s%d, 0x%x" % (sZ2w, sZ2w, WS_ST2 - 27 * 256))
    r("s_mul_i32 s%d, s%d, 3" % (sT0, sCg))
    r("s_sub_u32 s%d, s%d, 30" % (sT1, sT0))
    late += r.L
    r1 = Rec()
    r1("s_cmp_lt_u32 s%d, 10" % sCg)
    r1("s_cselect_b32 s%d, s%d, s%d" % (sLg, sT0, sT1))
    csel(r1, sT1, str(NG_QKV), str(NG_Z))
    csel(r1, sA, hex(WS_QKV), hex(WS_Z))
    late.append("\n".join(r1.L))
    r = Rec()
    r("s_lshl_b32 s%d, s%d, 7" % (sW1off, sLg))
    r("s_mul_i32 s%d, s%d, s%d" % (sOut1, sT2, sT1))
    r("s_lshl_b32 s%d, s%d, 2" % (sT0, sLg))
    r("s_add_u32 s%d, s%d, s%d" % (sOut1, sOut1, sT0))
    r("s_lshl_b32 s%d, s%d, 1" % (sT0, sC))
    r("s_add_u32 s%d, s%d, s%d" % (sOut1, sOut1, sT0))
    r("s_lshl_b32 s%d, s%d, 10" % (sOut1, sOut1))
    r("s_add_u32 s%d, s%d, s%d" % (sOut1, sOut1, sA))
    r("s_cmp_eq_u32 s%d, 1\ns_cselect_b32 s%d, 0x40000000, s%d" % (sOne, sW1off, sW1off))
    srd(r, sWS, 62, WS_END)
    srd(r, sDBG, 60, 256)
    r("v_lshlrev_b32 v%d, 2, v1" % (e + 1))
    r("v_xor_b32 v%d, v%d, v0" % (e + 1, e + 1))
    r("v_lshlrev_b32 v%d, 4, v%d" % (vSt0, e + 1))
    r("v_xor_b32 v%d, 0x80, v%d" % (vSt1, vSt0))
    r("v_add_u32 v%d, 1024, v%d" % (vSt1, vSt1))
    r("s_lshl_b32 s%d, s%d, 10" % (sT0, sC))
    r("s_add_u32 s%d, s%d, %d" % (sT0, sT0, 3 * 4096))
    r("v_lshlrev_b32 v%d, 4, v0" % vCsR)
    r("v_add_u32 v%d, s%d, v%d" % (vCsR, sT0, vCsR))
    r("s_lshl_b32 s%d, s%d, 2" % (sT0, sR))
    r("v_add_u32 v%d, s%d, v%d" % (vCsW, sT0, vCsR))
    r("v_mov_b32 v%d, 0" % ZSUM)
    r("v_mov_b32 v%d, 0" % ZSQ)
    r("s_mov_b32 s%d, %d" % (sDelta, REG))
    r("s_mov_b32 s%d, 0" % sReady)
    r("s_lshl_b32 s%d, s%d, 4" % (sT2, sRb))
    r("s_add_u32 s%d, s%d, s%d" % (sT2, sT2, sCg))
    r("s_cmp_eq_u32 s%d, 0\ns_cselect_b32 s%d, 2, 99" % (sW, sL1))
    late += r.L
    nlate = spread(len(late), 16) + [0] * 24

    seq = ["x0", "b0", "x1", "x2", "b1"]
    plan = {-1: ["x3", "x4"], 0: ["b2", "x5"], 1: ["x6"], 2: ["b3", "x7"], 3: ["x8"], 4: ["b4", "x9"],
            5: ["u0"], 6: ["u1"], 7: ["u2"], 8: ["u3"], 9: ["u4"]}
    q = LdsQ(a)

    def dma_list(it):
        return dma_x(int(it[1:])) if it[0] == "x" else dma_b0(int(it[1:])) if it[0] == "b" else dma_unit(int(it[1:]))

    def xread(hp, t):
        x = X0 + 16 * hp + 4 * t
        q.issue("ds_read_b128 v[%d:%d], v%d offset:%d" % (x, x + 3, vXA + t, (hp % 5) * 4096), "x%d" % hp)

    def stats(x, first):
        def c(r_):
            return "0" if first else "v[%d:%d]" % (r_, r_ + 3)
        a("v_mfma_f32_4x4x4_16b_bf16 v[%d:%d], v[%d:%d], v[%d:%d], %s" % (XQ, XQ + 3, x, x + 1, x, x + 1, c(XQ)))
        a("v_mfma_f32_4x4x4_16b_bf16 v[%d:%d], v[%d:%d], v[%d:%d], %s" % (XQ2, XQ2 + 3, x + 2, x + 3, x + 2, x + 3, c(XQ2)))
        a("v_mfma_f32_16x16x32_bf16 v[%d:%d], v[%d:%d], v[%d:%d], %s" % (XS, XS + 3, SEL, SEL + 3, x, x + 3, c(XS)))

    def vmwait(need):
        last = max(seq.index(n) for n in need)
        a("s_waitcnt vmcnt(%d)" % (2 * (len(seq) - 1 - last)))

    vmwait(["x0", "b0"])
    a("s_barrier")
    stamp(a, 2)
    for t in range(4):
        xread(0, t)
    for j in range(3):
        frag_reads(q, 0, j)
    for it in plan[-1]:
        for t in dma_list(it):
            a(t)
        seq.append(it)
    lp = 0
    for h in range(10):
        i, hh = h >> 1, h & 1
        need = []
        if h < 9:
            need.append("x%d" % (h + 1))
        if hh == 1:
            need.append("b%d" % (i + 1) if i < 4 else "u0")
        q.wait("x%d" % h)
        vmwait(need)
        a("s_barrier")
        if h in (2, 4, 6, 8):
            stamp(a, 2 + i)
        dl = []
        for it in plan[h]:
            dl.append(dma_list(it))
            seq.append(it)
        if h == 9:
            stats(X0 + 16 * h, False)
            stats(X0 + 16 * h + 8, False)
        for t in range(4):
            j = 4 * hh + t
            x = X0 + 32 * i + 4 * j
            q.wait("f%d" % j)
            mfma(a, i, j)
            if h == 9 and t == 2:
                q.issue("ds_write_b32 v%d, v%d" % (vCsW, CSA), "csw")
                a("v_add_u32 v%d, s%d, v%d" % (vCsW, sDelta, vCsW))
            jn = j + 3
            if jn < 8:
                frag_reads(q, i, jn)
            else:
                frag_reads(q, (i + 1) % 5, jn - 8)
            if i == 4 and 1 <= j <= 4:
                tt = (j + 3) & 3
                a("v_add_u32 v%d, s%d, v%d" % (vA + tt, sDelta, vA + tt))
            if h < 9 and t < 2:
                xread(h + 1, 2 * t)
                xread(h + 1, 2 * t + 1)
            n, half = t >> 1, t & 1
            if len(dl) == 1:
                n, half = 0, (0 if t == 0 else 1 if t == 2 else None)
            if half == 0:
                a(dl[n][0])
                a(dl[n][1])
            elif half == 1:
                a(dl[n][2])
                a(dl[n][3])
            for tx in late[lp:lp + nlate[4 * h + t]]:
                a(tx)
            lp += nlate[4 * h + t]
            if t == 0:
                cs_mfma(a, i, j)
            if h < 9 and (t & 1) == 0:
                stats(x, h == 0 and t == 0)
            if h == 9 and t == 0:
                a("v_and_b32 v1, 3, v0")
                for tt in range(4):
                    a("v_add_f32 v%d, v%d, v%d" % (XQ + tt, XQ + tt, XQ2 + tt))
                for tt in range(1, 4):
                    a("v_cmp_eq_u32 s[52:53], %d, v1" % tt)
                    a("v_cndmask_b32 v%d, v%d, v%d, s[52:53]" % (XQ, XQ, XQ + tt))
                a("v_mov_b32 v%d, v%d" % (XQ + 1, XS))
                a("s_lshl_b32 s%d, s%d, 9" % (sT0, sW))
                a("s_add_u32 s%d, s%d, %d" % (sT0, sT0, CH + 3 * 4096))
                a("v_lshlrev_b32 v1, 3, v0")
                a("v_add_u32 v1, s%d, v1" % sT0)
                q.issue("ds_write_b64 v1, v[%d:%d]" % (XQ, XQ + 1), "stw")
                a("v_xor_b32 v1, 0x800, v1")
            if h == 9 and t == 1:
                q.wait("stw")
                a("s_barrier")
                q.issue("ds_read_b64 v[%d:%d], v1" % (XQ + 2, XQ + 3), "str")
    assert lp == len(late)
    q.wait("str")
    assert q.q == INQ2[2:], q.q
    sq, sm, t0, t1 = XQ, XQ + 1, XQ + 2, XQ + 3
    a("v_add_f32 v%d, v%d, v%d" % (sq, sq, t0))
    a("v_add_f32 v%d, v%d, v%d" % (sm, sm, t1))
    a("v_mov_b32 v%d, v%d" % (t0, sq))
    a("v_mov_b32 v%d, v%d" % (t1, sm))
    a("v_permlane32_swap_b32 v%d, v%d" % (sq, t0))
    a("v_permlane32_swap_b32 v%d, v%d" % (sm, t1))
    a("v_add_f32 v%d, v%d, v%d" % (sq, sq, t0))
    a("v_add_f32 v%d, v%d, v%d" % (sm, sm, t1))
    a("v_mul_f32 v%d, %s, v%d" % (NEGMU, fhex(-1.0 / D), sm))
    a("v_mul_f32 v%d, %s, v%d" % (sq, fhex(1.0 / D), sq))
    a("v_fma_f32 v%d, -v%d, v%d, v%d" % (sq, NEGMU, NEGMU, sq))
    a("v_max_f32 v%d, 0, v%d" % (sq, sq))
    a("v_add_f32 v%d, %s, v%d" % (sq, fhex(1e-5), sq))
    a("v_rsq_f32 v%d, v%d" % (RSTD, sq))
    a("v_sqrt_f32 v%d, v%d" % (IRSTD, sq))
    a("v_mul_f32 v%d, %s, v%d" % (RL, fhex(LOG2E), RSTD))
    a("v_mul_f32 v%d, %s, v%d" % (K1c, fhex(GC1), RSTD))
    a("v_mul_f32 v%d, v%d, v%d" % (K2c, RSTD, RSTD))
    a("v_mul_f32 v%d, v%d, v%d" % (K2c, K2c, RSTD))
    a("v_mul_f32 v%d, %s, v%d" % (K2c, fhex(GC2), K2c))
    a("s_mov_b32 s%d, 1" % sLine)
    stamp(a, 7)
    a("s_cmp_eq_u32 s%d, 1" % sOne)
    a("s_cbranch_scc1 K1_tail")
    a("s_sub_u32 s%d, s%d, s%d" % (sWb, sWb, sDelta))
    a("K1_bodyG:")
    body(a, "G")
    a("s_cmp_eq_u32 s%d, 4" % sLine)
    a("s_cbranch_scc1 K1_tail")
    a("s_cmp_eq_u32 s%d, 1" % sType)
    a("s_cbranch_scc1 K1_bodyG")
    a("K1_bodyP:")
    body(a, "P")
    a("s_cmp_eq_u32 s%d, 4" % sLine)
    a("s_cbranch_scc0 K1_bodyP")
    a("K1_tail:")
    tail_common(a)
    a("s_cmp_eq_u32 s%d, 1" % sType)
    a("s_cbranch_scc1 K1_tailG")
    tail(a, "P")
    a("K1_tailG:")
    tail(a, "G")
    flush_rare(a)

    a("K1_side:")
    a("s_waitcnt lgkmcnt(0)")
    srd(a, sX, 52, D * D * 2)
    srd(a, sW0, 56, FH * D * 2)
    srd(a, sWS, 62, WS_END)
    a("s_cmp_lt_u32 s%d, 4" % sRb)
    a("s_cselect_b32 s%d, s52, s56" % sW1)
    a("s_cselect_b32 s%d, s53, s57" % (sW1 + 1))
    csel(a, sW1 + 2, hex(D * D * 2), hex(FH * D * 2))
    a("s_cselect_b32 s%d, 16, -4" % sT1)
    a("s_and_b32 s%d, s%d, 0xffff" % (sW1 + 1, sW1 + 1))
    a("s_mov_b32 s%d, 0x20000" % (sW1 + 3))
    a("v_lshrrev_b32 v1, 3, v0")
    a("s_lshl_b32 s%d, s%d, 3" % (sT0, sR))
    a("v_add_u32 v2, s%d, v1" % sT0)
    a("v_mul_u32_u24 v2, 1280, v2")
    a("v_and_b32 v3, 7, v0")
    a("v_lshl_add_u32 v2, v3, 4, v2")
    a("s_mul_i32 s%d, s%d, 640" % (sT0, sC))
    a("v_add_u32 v2, s%d, v2" % sT0)
    a("s_mul_i32 s%d, s%d, %d" % (sXoff, sRb, 32 * 1280))
    a("s_add_u32 s%d, s%d, s%d" % (sT1, sRb, sT1))
    a("s_mul_i32 s%d, s%d, %d" % (sW1off, sT1, 32 * 1280))
    a("s_add_u32 s%d, s%d, %d" % (sW0off, sXoff, 12 * 32 * 1280))
    for n, (sd, so) in enumerate(((sX, sXoff), (sW1, sW1off), (sW0, sW0off))):
        for t in range(5):
            d = 32 + 20 * n + 4 * t
            a("buffer_load_dwordx4 v[%d:%d], v2, s[%d:%d], s%d offen offset:%d" % (d, d + 3, sd, sd + 3, so, 128 * t))
    a("v_and_b32 v4, 1, v0")
    a("v_xor_b32 v5, s%d, v4" % sR)
    a("v_lshl_add_u32 v5, v5, 3, v1")
    a("v_lshlrev_b32 v5, 4, v5")
    a("v_lshl_add_u32 v5, v4, 9, v5")
    a("v_lshrrev_b32 v3, 1, v3")
    a("v_lshl_add_u32 v5, v3, 10, v5")
    for t in range(4):
        a("v_mov_b32 v%d, 0" % (8 + t))
    a("v_lshlrev_b32 v6, 4, v0")
    a("s_mul_i32 s%d, s%d, 6" % (sT0, sRb))
    a("s_add_u32 s%d, s%d, s%d" % (sT0, sT0, sW))
    a("s_lshl_b32 s%d, s%d, 10" % (sT0, sT0))
    a("s_add_u32 s%d, s%d, 0x%x" % (sT0, sT0, WS_KV))
    a("s_cmp_ge_u32 s%d, 6" % sW)
    a("s_cbranch_scc1 K1_noz")
    a("buffer_store_dwordx4 v[8:11], v6, s[%d:%d], s%d offen sc1" % (sWS, sWS + 3, sT0))
    a("K1_noz:")
    a("s_mul_i32 s%d, s%d, 40" % (sT0, sRb))
    a("s_mul_i32 s%d, s%d, 20" % (sT1, sC))
    a("s_add_u32 s%d, s%d, s%d" % (sT0, sT0, sT1))
    a("s_lshl_b32 s%d, s%d, 10" % (sT0, sT0))
    a("s_add_u32 s%d, s%d, 0x%x" % (sT0, sT0, WS_B3))
    a("s_waitcnt vmcnt(0)")
    for n in range(3):
        if n == 2:
            a("s_cmp_eq_u32 s%d, 15" % sRb)
            a("s_cbranch_scc1 %s" % end)
        for t in range(5):
            d = 32 + 20 * n + 4 * t
            a("s_add_u32 s%d, s%d, %d" % (sT1, sT0, (n * 16 * 40 + 4 * t) * 1024))
            a("buffer_store_dwordx4 v[%d:%d], v5, s[%d:%d], s%d offen sc1" % (d, d + 3, sWS, sWS + 3, sT1))
    a(end + ":")
    a("s_endpgm")
```

```python
from asmlib import *
from common import *
from k1 import srd, csel, stamp, stamp_dump, STAMP, WS_STAMP, EXP, spread
import k1

STG = 22528
NST = 7
SIDE = 5 * STG
K23_LDS = NST * STG
assert SIDE + 4 * 8192 <= K23_LDS
CNT_KV = WS_CNT
CNT_O = WS_CNT + 4096
CNT_U = WS_CNT + 8192

ACC = 224
FA = (128, 176)
Z1R = 112
DO = 80
ACB = 80
KVF = 48
XR = 36
FRA, FRB = 0.6, 0.6
H_SIG = 4
LH = [11, 14, 17, 22]
PO = (25, 27)
PU = (37, 39)
PQR = 36
T = 24
vL16, vLA, vLB0, vA, vB0, vB1, vAt = 10, 11, 12, 13, 14, 15, 16
vBias, vPoll, vZa, vZb, vO = 19, 20, 21, 22, 23
vLA3, vLB3 = 8, 9
vAd0, vAd1 = 8, 9
sA, sBS, sX, sWS, sO = 4, 8, 12, 16, 20
sA3, sB3 = 8, 12
sI, sJ, sW, sRR, sCC = 24, 25, 26, 27, 28
sAoff, sBoff, sRd, sWr, sIt, sHook = 29, 30, 31, 32, 33, 34
sT0, sT1, sT2, sT3 = 36, 37, 38, 39
sMA, sMB, sHd, sCnt, sKv, sOdd = 40, 41, 42, 43, 44, 45
sA3off, sB3off, sMB3, sCntI = 56, 57, 58, 59
sXo0, sXo1 = 60, 61
sWk, sKvW, sCntW = 64, 65, 66
assert k1.sT0 == sT0


def ring(s):
    return "s_add_u32 s%d, s%d, %d\ns_cmp_eq_u32 s%d, %d\ns_cselect_b32 s%d, 0, s%d" % (s, s, STG, s, NST * STG, s, s)


def dma_A(a):
    a("s_add_u32 m0, s%d, s%d" % (sWr, sMA))
    a("buffer_load_dwordx4 v%d, s[%d:%d], s%d offen lds" % (vAd0, sA, sA + 3, sAoff))
    a("buffer_load_dwordx4 v%d, s[%d:%d], s%d offen offset:1024 lds" % (vAd1, sA, sA + 3, sAoff))
    a("s_add_u32 m0, s%d, s%d" % (sWr, sMB))
    for t in range(3):
        a("buffer_load_dwordx4 v%d, s[%d:%d], s%d offen offset:%d lds" % (vL16, sWS, sWS + 3, sBoff, 1024 * t))
    lab = a.label("Lsk")
    a("s_cbranch_vccnz %s" % lab)
    a("buffer_load_dwordx4 v%d, s[%d:%d], s%d offen offset:3072 lds" % (vL16, sWS, sWS + 3, sBoff))
    a(lab + ":")
    a("s_add_u32 s%d, s%d, 128" % (sAoff, sAoff))
    a("s_add_u32 s%d, s%d, %d" % (sBoff, sBoff, 2 * NG_Z * 1024))
    a(ring(sWr))


def dma_B(a):
    a("s_add_u32 m0, s%d, s%d" % (sWr, sMB3))
    for t in range(2):
        a("buffer_load_dwordx4 v%d, s[%d:%d], s%d offen offset:%d lds" % (vL16, sB3, sB3 + 3, sB3off, 1024 * t))
    lab = a.label("Lsk")
    a("s_cbranch_vccnz %s" % lab)
    a("buffer_load_dwordx4 v%d, s[%d:%d], s%d offen offset:2048 lds" % (vL16, sB3, sB3 + 3, sB3off))
    a(lab + ":")
    a("s_add_u32 m0, s%d, s%d" % (sWr, sMA))
    for t in range(2):
        a("buffer_load_dwordx4 v%d, s[%d:%d], s%d offen offset:%d sc1 lds" % (vL16, sA3, sA3 + 3, sA3off, 1024 * t))
    a("s_add_u32 s%d, s%d, 4096" % (sA3off, sA3off))
    a("s_add_u32 s%d, s%d, %d" % (sB3off, sB3off, 80 * 1024))
    a(ring(sWr))


def read_A(fs):
    L = []
    L.append("v_add_u32 v%d, s%d, v%d" % (vA, sRd, vLA))
    L.append("v_add_u32 v%d, s%d, v%d" % (vB0, sRd, vLB0))
    L.append("v_xor_b32 v%d, 64, v%d" % (vB1, vB0))
    for k in range(4):
        if k:
            L.append("v_xor_b32 v%d, %d, v%d" % (vAt + k - 1, 32 * k, vA))
        d = fs + 4 * k
        L.append("ds_read_b128 v[%d:%d], v%d" % (d, d + 3, vA if k == 0 else vAt + k - 1))
        for pr in range(2):
            d = fs + 16 + 8 * k + 4 * pr
            off = 8192 + (k >> 1) * 7168 + pr * 2048 + (k & 1) * 256
            L.append("ds_read_b64_tr_b16 v[%d:%d], v%d offset:%d" % (d, d + 1, vB0, off))
            L.append("ds_read_b64_tr_b16 v[%d:%d], v%d offset:%d" % (d + 2, d + 3, vB1, off))
    L.append(ring(sRd))
    return L


def read_B(fs):
    L = []
    L.append("v_add_u32 v%d, s%d, v%d" % (vA, sRd, vLA3))
    L.append("v_add_u32 v%d, s%d, v%d" % (vB0, sRd, vLB3))
    L.append("v_xor_b32 v%d, 0x80, v%d" % (vB1, vB0))
    for k in range(2):
        for rt in range(2):
            d = fs + 8 * k + 4 * rt
            L.append("ds_read_b128 v[%d:%d], v%d offset:%d" % (d, d + 3, vA, k * 2048 + rt * 256))
        for ct in range(3):
            d = fs + 16 + 12 * k + 4 * ct
            off = 8192 + k * 5120 + ct * 1024
            L.append("ds_read_b64_tr_b16 v[%d:%d], v%d offset:%d" % (d, d + 1, vB0, off))
            L.append("ds_read_b64_tr_b16 v[%d:%d], v%d offset:%d" % (d + 2, d + 3, vB1, off))
    L.append(ring(sRd))
    return L


def mf_A(cur):
    L = []
    for n in range(8):
        k, pr = n >> 1, n & 1
        fb, fa, acc = cur + 16 + 8 * k + 4 * pr, cur + 4 * k, ACC + 16 * pr
        L.append("v_mfma_f32_32x32x16_bf16 v[%d:%d], v[%d:%d], v[%d:%d], v[%d:%d]" % (
            acc, acc + 15, fb, fb + 3, fa, fa + 3, acc, acc + 15))
    return L


def mf_B(cur):
    L = []
    for k in range(2):
        for ct in range(3):
            for rt in range(2):
                fb, fa, acc = cur + 16 + 12 * k + 4 * ct, cur + 8 * k + 4 * rt, ACB + 12 * rt + 4 * ct
                L.append("v_mfma_f32_16x16x32_bf16 v[%d:%d], v[%d:%d], v[%d:%d], v[%d:%d]" % (
                    acc, acc + 3, fb, fb + 3, fa, fa + 3, acc, acc + 3))
    return L


def cstage(a, mf, rd, frac, barrier=True):
    a("s_waitcnt lgkmcnt(0)")
    if barrier:
        a("s_barrier")
    ns = max(1, int(len(mf) * frac))
    nr = spread(len(rd), ns) + [0] * (len(mf) - ns)
    p = 0
    for n, m in enumerate(mf):
        a(m)
        for t in rd[p:p + nr[n]]:
            a(t)
        p += nr[n]


def quad_addr(a, dst, vq, swz, t0, t1):
    a("v_and_b32 v%d, 1, v%d" % (t0, vq))
    if swz:
        a("v_bfe_u32 v%d, v%d, 2, 1" % (t1, vq))
        a("v_lshl_add_u32 v%d, v%d, 1, v%d" % (t1, t1, t0))
        a("v_lshlrev_b32 v%d, 2, v%d" % (t1, t1))
        a("v_xor_b32 v%d, v%d, v2" % (t1, t1))
        a("v_lshl_add_u32 v%d, v%d, 5, v%d" % (t0, t0, t1))
    else:
        a("v_lshl_add_u32 v%d, v%d, 5, v2" % (t0, t0))
    a("v_lshlrev_b32 v%d, 4, v%d" % (t0, t0))
    a("v_bfe_u32 v%d, v%d, 1, 1" % (t1, vq))
    a("v_lshl_add_u32 v%d, v%d, 3, v%d" % (t0, t1, t0))
    a("v_lshrrev_b32 v%d, 2, v%d" % (t1, vq))
    a("v_lshl_add_u32 v%d, v%d, 10, v%d" % (dst, t1, t0))


def srd_off(a, d, plo, off, nbytes):
    a("s_add_u32 s%d, s%d, 0x%x" % (d, plo, off))
    a("s_addc_u32 s%d, s%d, 0" % (d + 1, plo + 1))
    a("s_and_b32 s%d, s%d, 0xffff" % (d + 1, d + 1))
    a("s_mov_b32 s%d, 0x%x" % (d + 2, nbytes))
    a("s_mov_b32 s%d, 0x20000" % (d + 3))


def signal(a, scnt, off=0, n=0):
    a("s_waitcnt vmcnt(%d)" % n)
    a("v_mov_b32 v%d, 1" % T)
    a("v_mov_b32 v%d, 0" % (T + 1))
    a("s_mov_b64 exec, 1")
    a("buffer_atomic_add v%d, v%d, s[%d:%d], s%d offen offset:%d sc1" % (T, T + 1, sWS, sWS + 3, scnt, off))
    a("s_mov_b64 exec, -1")


def poll_issue(a, scnt, off=0):
    a("v_mov_b32 v%d, 0" % T)
    a("buffer_load_dword v%d, v%d, s[%d:%d], s%d offen offset:%d sc1" % (vPoll, T, sWS, sWS + 3, scnt, off))


def poll_check(a, scnt, off=0, target=32, n=0):
    l0, l1 = a.label("Lchk"), a.label("Lok")
    a("s_waitcnt vmcnt(%d)" % n)
    a(l0 + ":")
    a("v_readfirstlane_b32 s%d, v%d" % (sT0, vPoll))
    a("s_cmp_eq_u32 s%d, %d" % (sT0, target))
    a("s_cbranch_scc1 %s" % l1)
    poll_issue(a, scnt, off)
    a("s_waitcnt vmcnt(0)")
    a("s_branch %s" % l0)
    a(l1 + ":")


def gen_k23(a, label):
    a(".p2align 8")
    a(label + ":")
    end = "K2_end"
    a("s_cmp_ge_u32 s2, 256")
    a("s_cbranch_scc1 %s" % end)
    stamp(a, 0)
    a("s_load_dwordx4 s[48:51], s[0:1], %d" % KA_WSP)
    a("s_load_dwordx2 s[52:53], s[0:1], %d" % KA_WS)
    a("s_load_dwordx2 s[54:55], s[0:1], %d" % KA_X)
    a("s_load_dwordx2 s[62:63], s[0:1], %d" % KA_OUT)
    a("v_lshrrev_b32 v1, 6, v0")
    a("v_and_b32 v0, 63, v0")
    a("v_readfirstlane_b32 s%d, v1" % sW)
    a("v_lshlrev_b32 v%d, 4, v0" % vL16)
    a("s_bfe_u32 s%d, s2, 0x20001" % sI)
    a("s_lshl_b32 s%d, s%d, 3" % (sI, sI))
    a("s_lshr_b32 s%d, s2, 5" % sT0)
    a("s_add_u32 s%d, s%d, s%d" % (sI, sI, sT0))
    a("s_and_b32 s%d, s2, 1" % sJ)
    a("s_lshl_b32 s%d, s%d, 2" % (sJ, sJ))
    a("s_bfe_u32 s%d, s2, 0x20003" % sT0)
    a("s_add_u32 s%d, s%d, s%d" % (sJ, sJ, sT0))
    a("s_and_b32 s%d, s%d, 1" % (sRR, sW))
    a("s_bfe_u32 s%d, s%d, 0x10001" % (sCC, sW))
    a("s_cmp_ge_u32 s%d, 4" % sW)
    a("s_cbranch_scc1 K2_loader")

    a("s_lshl_b32 s%d, s%d, 2" % (sHd, sJ))
    a("s_add_u32 s%d, s%d, s%d" % (sHd, sHd, sW))
    a("s_and_b32 s%d, s%d, 3" % (sWk, sI))
    a("s_andn2_b32 s%d, s%d, 3" % (sT0, sI))
    a("s_add_u32 s%d, s%d, s%d" % (sT0, sT0, sW))
    a("s_mul_i32 s%d, s%d, %d" % (sT0, sT0, 2 * NG_QKV))
    a("s_mul_i32 s%d, s%d, 5" % (sT1, sJ))
    a("s_add_u32 s%d, s%d, s%d" % (sT0, sT0, sT1))
    a("s_add_u32 s%d, s%d, s%d" % (sT0, sT0, sWk))
    a("s_lshl_b32 s%d, s%d, 10" % (sT0, sT0))
    a("s_add_u32 s%d, s%d, %d" % (sT0, sT0, WS_QKV + 40 * 1024))
    a("s_lshl_b32 s%d, s%d, 13" % (sT2, sW))
    a("s_add_u32 s%d, s%d, %d" % (sT2, sT2, SIDE))
    a("s_mov_b32 s%d, 0" % sRd)
    a("s_waitcnt lgkmcnt(0)")
    srd(a, sWS, 52, WS_END)
    for n in range(4):
        a("s_add_u32 m0, s%d, %d" % (sT2, 2048 * n))
        a("s_add_u32 s%d, s%d, %d" % (sT1, sT0, ((n & 1) * NG_QKV + (n >> 1) * 40) * 1024))
        a("buffer_load_dwordx4 v%d, s[%d:%d], s%d offen lds" % (vL16, sWS, sWS + 3, sT1))
        a("buffer_load_dwordx4 v%d, s[%d:%d], s%d offen offset:1024 lds" % (vL16, sWS, sWS + 3, sT1))
    srd(a, sBS, 50, S * 2)
    srd(a, sX, 54, S * D * 2)
    srd(a, sO, 62, S * D * 2)
    a("v_lshrrev_b32 v1, 4, v0")
    a("v_and_b32 v2, 15, v0")
    a("v_and_b32 v3, 1, v1")
    a("v_lshrrev_b32 v4, 1, v1")
    a("v_lshl_add_u32 v5, v3, 5, v2")
    a("v_lshlrev_b32 v5, 4, v5")
    a("v_lshl_add_u32 v5, v4, 10, v5")
    a("s_lshl_b32 s%d, s%d, 12" % (sT0, sRR))
    a("v_add_u32 v%d, s%d, v5" % (vLA3, sT0))
    a("v_lshrrev_b32 v5, 2, v2")
    a("v_lshl_add_u32 v5, v3, 2, v5")
    a("v_lshl_add_u32 v5, v4, 4, v5")
    a("v_bfe_u32 v6, v0, 1, 1")
    a("v_mul_u32_u24 v6, 40, v6")
    a("v_add_u32 v5, v5, v6")
    a("v_lshlrev_b32 v5, 4, v5")
    a("v_and_b32 v6, 1, v0")
    a("v_lshl_add_u32 v5, v6, 3, v5")
    a("s_lshl_b32 s%d, s%d, 11" % (sT0, sCC))
    a("v_add_u32 v%d, s%d, v5" % (vLB3, sT0))
    a("v_mul_u32_u24 v%d, 1280, v2" % vO)
    a("v_lshl_add_u32 v%d, v1, 3, v%d" % (vO, vO))
    a("s_lshl_b32 s%d, s%d, 1" % (sT3, sI))
    a("s_add_u32 s%d, s%d, s%d" % (sT3, sT3, sRR))
    a("s_mul_i32 s%d, s%d, %d" % (sXo0, sT3, 32 * 1280))
    a("s_mul_i32 s%d, s%d, 160" % (sT0, sJ))
    a("s_add_u32 s%d, s%d, s%d" % (sXo0, sXo0, sT0))
    a("s_lshl_b32 s%d, s%d, 6" % (sT0, sCC))
    a("s_add_u32 s%d, s%d, s%d" % (sXo0, sXo0, sT0))
    a("s_add_u32 s%d, s%d, %d" % (sXo1, sXo0, 16 * 1280))
    a("v_lshrrev_b32 v1, 5, v0")
    a("v_and_b32 v2, 31, v0")
    a("s_lshl_b32 s%d, s%d, 5" % (sT1, sRR))
    a("v_add_u32 v3, s%d, v2" % sT1)
    a("v_lshlrev_b32 v%d, 7, v3" % vLA)
    a("v_bfe_u32 v3, v0, 1, 3")
    a("v_xor_b32 v3, v3, v1")
    a("v_lshl_add_u32 v%d, v3, 4, v%d" % (vLA, vLA))
    a("v_bfe_u32 v3, v0, 2, 2")
    a("v_lshl_add_u32 v3, v1, 3, v3")
    a("v_and_b32 v4, 1, v0")
    a("v_bfe_u32 v5, v0, 4, 1")
    a("s_add_u32 s%d, s%d, s%d" % (sT1, sJ, sCC))
    a("v_add_u32 v6, s%d, v5" % sT1)
    a("v_and_b32 v6, 1, v6")
    a("v_lshl_add_u32 v6, v6, 1, v4")
    a("v_lshlrev_b32 v6, 2, v6")
    a("v_xor_b32 v6, v6, v3")
    a("v_lshl_add_u32 v6, v4, 5, v6")
    a("v_lshlrev_b32 v6, 4, v6")
    a("v_bfe_u32 v7, v0, 1, 1")
    a("v_lshl_add_u32 v6, v7, 3, v6")
    a("v_lshl_add_u32 v6, v5, 10, v6")
    a("s_mul_i32 s%d, s%d, 3072" % (sT1, sCC))
    a("v_add_u32 v%d, s%d, v6" % (vLB0, sT1))
    a("v_and_b32 v6, 3, v0")
    a("v_lshl_add_u32 v6, v5, 2, v6")
    a("v_min_u32 v6, 4, v6")
    a("v_add_u32 v6, s%d, v6" % sWk)
    a("v_and_b32 v4, 1, v6")
    a("v_lshrrev_b32 v5, 2, v6")
    a("s_add_u32 s%d, s%d, s%d" % (sT1, sJ, sWk))
    a("v_add_u32 v7, s%d, v5" % sT1)
    a("v_and_b32 v7, 1, v7")
    a("v_lshl_add_u32 v7, v7, 1, v4")
    a("v_lshlrev_b32 v7, 2, v7")
    a("v_xor_b32 v7, v7, v3")
    a("v_lshl_add_u32 v7, v4, 5, v7")
    a("v_lshlrev_b32 v7, 4, v7")
    a("v_bfe_u32 v4, v6, 1, 1")
    a("v_lshl_add_u32 v7, v4, 3, v7")
    a("v_lshl_add_u32 v7, v5, 10, v7")
    a("v_add_u32 v%d, s%d, v7" % (T, sT2))
    a("v_xor_b32 v%d, 64, v%d" % (T + 1, T))
    a("v_cmp_eq_u32 s[46:47], 20, v2")
    a("v_mov_b32 v%d, 0x3f803f80" % (T + 2))
    a("v_lshlrev_b32 v%d, 9, v1" % (T + 3))
    a("v_lshl_add_u32 v%d, v2, 2, v%d" % (T + 3, T + 3))
    a("s_mul_i32 s%d, s%d, 2560" % (sKv, sHd))
    a("s_add_u32 s%d, s%d, 0x%x" % (sKv, sKv, WS_KV))
    a("s_lshl_b32 s%d, s%d, 7" % (sCnt, sHd))
    a("s_add_u32 s%d, s%d, 0x%x" % (sCnt, sCnt, CNT_KV))
    a("s_lshl_b32 s%d, s%d, 2" % (sT0, sJ))
    a("s_add_u32 s%d, s%d, s%d" % (sT0, sT0, sWk))
    a("s_mul_i32 s%d, s%d, 2560" % (sKvW, sT0))
    a("s_lshl_b32 s%d, s%d, 10" % (sT1, sW))
    a("s_add_u32 s%d, s%d, s%d" % (sKvW, sKvW, sT1))
    a("s_add_u32 s%d, s%d, 0x%x" % (sKvW, sKvW, WS_KV))
    a("s_lshl_b32 s%d, s%d, 7" % (sCntW, sT0))
    a("s_add_u32 s%d, s%d, 0x%x" % (sCntW, sCntW, CNT_KV))
    a("v_add_u32 v%d, s%d, v%d" % (T + 4, sT2, vL16))
    a("s_add_u32 s%d, s%d, %d" % (sT1, sT1, SIDE))
    a("v_add_u32 v%d, s%d, v%d" % (T + 5, sT1, vL16))
    a("s_lshl_b32 s%d, s%d, 7" % (sCntI, sI))
    a("s_add_u32 s%d, s%d, 0x%x" % (sCntI, sCntI, CNT_O))
    for p in range(32):
        a("v_mov_b32 v%d, 0" % (ACC + p))
    stamp(a, 1)
    a("s_waitcnt vmcnt(0)")
    for m in range(2):
        for k in range(4):
            d = KVF + 16 * m + 4 * k
            off = m * 4096 + (k >> 1) * 2048 + (k & 1) * 256
            a("ds_read_b64_tr_b16 v[%d:%d], v%d offset:%d" % (d, d + 1, T, off))
            a("ds_read_b64_tr_b16 v[%d:%d], v%d offset:%d" % (d + 2, d + 3, T + 1, off))
    a("s_waitcnt lgkmcnt(0)")
    for p in range(16):
        a("v_cndmask_b32 v%d, v%d, v%d, s[46:47]" % (KVF + 16 + p, KVF + 16 + p, T + 2))
    for k in range(4):
        a("v_mfma_f32_32x32x16_bf16 v[%d:%d], v[%d:%d], v[%d:%d], %s" % (
            DO, DO + 15, KVF + 4 * k, KVF + 4 * k + 3, KVF + 16 + 4 * k, KVF + 19 + 4 * k,
            "0" if k == 0 else "v[%d:%d]" % (DO, DO + 15)))
    for q in range(3):
        a("ds_write_b128 v%d, v[%d:%d] offset:%d" % (T + 4, DO + 4 * q, DO + 4 * q + 3, 1024 * q))
    a("s_waitcnt lgkmcnt(0)")
    a("s_barrier")
    stamp(a, 2)
    for q in range(4):
        a("ds_read_b128 v[%d:%d], v%d offset:%d" % (KVF + 4 * q, KVF + 4 * q + 3, T + 5, 8192 * q))
    for t in read_A(FA[0]):
        a(t)
    a("s_cmp_eq_u32 s%d, 3" % sW)
    a("s_cbranch_scc1 K2_noat")
    a("s_waitcnt lgkmcnt(15)")
    for r in range(4):
        a("v_add_f32 v%d, v%d, v%d" % (KVF + r, KVF + r, KVF + 4 + r))
        a("v_add_f32 v%d, v%d, v%d" % (KVF + 8 + r, KVF + 8 + r, KVF + 12 + r))
    for r in range(4):
        a("v_add_f32 v%d, v%d, v%d" % (KVF + r, KVF + r, KVF + 8 + r))
    a("s_cmp_eq_u32 s%d, 2" % sW)
    a("s_cselect_b32 exec_hi, 0, 0x1fffff")
    a("s_mov_b32 exec_lo, 0x1fffff")
    for r in range(4):
        a("buffer_atomic_add_f32 v%d, v%d, s[%d:%d], s%d offen offset:%d" % (
            KVF + r, T + 3, sWS, sWS + 3, sKvW, r * 128))
    a("s_mov_b64 exec, -1")
    a("K2_noat:")
    a("v_lshlrev_b32 v%d, 2, v1" % T)
    a("v_xor_b32 v%d, v%d, v0" % (T, T))
    a("v_lshlrev_b32 v%d, 4, v%d" % (T, T))
    a("s_add_u32 s%d, s%d, s%d" % (sT0, sJ, sCC))
    a("s_and_b32 s%d, s%d, 1" % (sT0, sT0))
    a("s_lshl_b32 s%d, s%d, 7" % (sT0, sT0))
    a("v_xor_b32 v%d, s%d, v%d" % (vZa, sT0, T))
    a("v_xor_b32 v%d, 0x80, v%d" % (vZb, vZa))
    a("s_mul_i32 s%d, s%d, 7" % (sT0, sJ))
    a("s_mul_i32 s%d, s%d, 3" % (sT1, sCC))
    a("s_add_u32 s%d, s%d, s%d" % (sOdd, sT0, sT1))
    a("s_mul_i32 s%d, s%d, %d" % (sT2, sT3, NG_Z))
    a("s_add_u32 s%d, s%d, s%d" % (sT2, sT2, sOdd))
    a("s_lshl_b32 s%d, s%d, 10" % (sT2, sT2))
    a("s_add_u32 s%d, s%d, 0x%x" % (sT2, sT2, WS_Z))
    for p in range(24):
        a("v_mov_b32 v%d, 0" % (ACB + p))
    a("s_mov_b32 s%d, 0" % sIt)
    a("s_mov_b32 s%d, %d" % (sHook, H_SIG))
    stamp(a, 3)
    a("K2_loop:")
    cstage(a, mf_A(FA[0]), read_A(FA[1]), FRA)
    cstage(a, mf_A(FA[1]), read_A(FA[0]), FRA)
    a("s_add_u32 s%d, s%d, 1" % (sIt, sIt))
    a("s_cmp_eq_u32 s%d, s%d" % (sIt, sHook))
    a("s_cbranch_scc0 K2_loop")
    a("s_cmp_eq_u32 s%d, 15" % sIt)
    a("s_cbranch_scc1 K2_h7")
    a("s_mov_b32 s%d, 15" % sHook)
    stamp(a, 4)
    a("s_cmp_eq_u32 s%d, 3" % sW)
    a("s_cbranch_scc1 K2_nosig")
    signal(a, sCntW)
    a("K2_nosig:")
    stamp(a, 5)
    for n in range(4):
        a("buffer_load_dwordx4 v[%d:%d], v%d, s[%d:%d], s%d offen offset:%d" % (
            Z1R + 4 * n, Z1R + 4 * n + 3, vZb if n & 1 else vZa, sWS, sWS + 3, sT2, 1024 * n))
    a("v_lshlrev_b32 v%d, 1, v2" % (T + 2))
    a("s_lshl_b32 s%d, s%d, 6" % (sT0, sT3))
    a("buffer_load_ushort v%d, v%d, s[%d:%d], s%d offen" % (vBias, T + 2, sBS, sBS + 3, sT0))
    for rt in range(2):
        for ct in range(3):
            d = XR + 6 * rt + 2 * ct
            a("buffer_load_dwordx2 v[%d:%d], v%d, s[%d:%d], s%d offen offset:%d" % (d, d + 1, vO, sX, sX + 3, sXo0 if rt == 0 else sXo1, 32 * ct))
    a("s_branch K2_loop")
    a("K2_h7:")
    cstage(a, mf_A(FA[0]), read_A(FA[1]), FRA)
    cstage(a, mf_A(FA[1]), read_B(FA[0]), FRA)
    stamp(a, 8)
    a("s_waitcnt vmcnt(0)")
    a("v_lshlrev_b32 v%d, 16, v%d" % (vBias, vBias))
    a("s_mul_i32 s%d, s%d, %d" % (sT0, sT3, NG_A3))
    a("s_add_u32 s%d, s%d, s%d" % (sT0, sT0, sOdd))
    a("s_lshl_b32 s%d, s%d, 10" % (sT0, sT0))
    a("s_add_u32 s%d, s%d, %d" % (sT0, sT0, WS_A3 + 40 * 1024))
    for n in range(4):
        if n == 2:
            a("s_cmp_eq_u32 s%d, 52" % sOdd)
            a("s_cbranch_scc1 K2_done")
        acc = ACC + 8 * n
        for p in range(4):
            z = Z1R + 4 * n + p
            t = T + 2 * (p & 1)
            a("v_lshlrev_b32 v%d, 16, v%d" % (t, z))
            a("v_and_b32 v%d, 0xffff0000, v%d" % (t + 1, z))
            a("v_add_f32 v%d, v%d, v%d" % (acc + 2 * p, acc + 2 * p, vBias))
            a("v_add_f32 v%d, v%d, v%d" % (acc + 2 * p + 1, acc + 2 * p + 1, vBias))
            a("v_mul_f32 v%d, v%d, v%d" % (t, t, acc + 2 * p))
            a("v_mul_f32 v%d, v%d, v%d" % (t + 1, t + 1, acc + 2 * p + 1))
            a("v_cvt_pk_bf16_f32 v%d, v%d, v%d" % (z, t, t + 1))
        a("buffer_store_dwordx4 v[%d:%d], v%d, s[%d:%d], s%d offen offset:%d sc1" % (
            Z1R + 4 * n, Z1R + 4 * n + 3, vL16, sWS, sWS + 3, sT0, 1024 * n))
    a("K2_done:")
    stamp(a, 9)
    cstage(a, mf_B(FA[0]), read_B(FA[1]), FRB)
    cstage(a, mf_B(FA[1]), read_B(FA[0]), FRB)
    cstage(a, mf_B(FA[0]), read_B(FA[1]), FRB)
    stamp(a, 10)
    a("s_add_u32 s%d, s%d, %d" % (sCntI, sCntI, CNT_U - CNT_O))
    signal(a, sCntI)
    stamp(a, 11)
    cstage(a, mf_B(FA[1]), read_B(FA[0]), FRB)
    a("s_mov_b32 s%d, 0" % sIt)
    a("K3_loop:")
    cstage(a, mf_B(FA[0]), read_B(FA[1]), FRB)
    cstage(a, mf_B(FA[1]), read_B(FA[0]), FRB)
    a("s_add_u32 s%d, s%d, 1" % (sIt, sIt))
    a("s_cmp_eq_u32 s%d, 10" % sIt)
    a("s_cbranch_scc0 K3_loop")
    stamp(a, 12)
    a("s_nop 4")
    for rt in range(2):
        for ct in range(3):
            acc = ACB + 12 * rt + 4 * ct
            x = XR + 6 * rt + 2 * ct
            for p in range(2):
                t = T + 2 * p
                a("v_lshlrev_b32 v%d, 16, v%d" % (t, x + p))
                a("v_and_b32 v%d, 0xffff0000, v%d" % (t + 1, x + p))
                a("v_add_f32 v%d, v%d, v%d" % (t, t, acc + 2 * p))
                a("v_add_f32 v%d, v%d, v%d" % (t + 1, t + 1, acc + 2 * p + 1))
                a("v_cvt_pk_bf16_f32 v%d, v%d, v%d" % (x + p, t, t + 1))
            a("buffer_store_dwordx2 v[%d:%d], v%d, s[%d:%d], s%d offen offset:%d" % (x, x + 1, vO, sO, sO + 3, sXo0 if rt == 0 else sXo1, 32 * ct))
    stamp(a, 13)
    if STAMP:
        a("s_waitcnt vmcnt(0)")
    stamp(a, 14)
    stamp_dump(a, 15, sWS, sW, WS_STAMP + 0x20000)
    a("s_endpgm")

    a("K2_loader:")
    a("s_and_b32 s%d, s%d, 3" % (sW, sW))
    a("v_lshrrev_b32 v1, 3, v0")
    a("s_lshl_b32 s%d, s%d, 4" % (sT1, sW))
    a("v_add_u32 v1, s%d, v1" % sT1)
    a("v_lshlrev_b32 v1, 12, v1")
    a("v_lshrrev_b32 v2, 4, v0")
    a("v_and_b32 v3, 7, v0")
    a("v_xor_b32 v4, v2, v3")
    a("v_lshl_add_u32 v%d, v4, 4, v1" % vAd0)
    a("v_xor_b32 v4, 4, v4")
    a("v_lshl_add_u32 v%d, v4, 4, v1" % vAd1)
    a("v_add_u32 v%d, %d, v%d" % (vAd1, 8 * 4096 - 1024, vAd1))
    a("s_lshl_b32 s%d, s%d, 18" % (sAoff, sI))
    a("s_lshl_b32 s%d, s%d, 11" % (sMA, sW))
    a("s_mul_i32 s%d, s%d, 7" % (sMB, sCC))
    a("s_lshl_b32 s%d, s%d, 2" % (sT1, sRR))
    a("s_add_u32 s%d, s%d, s%d" % (sMB, sMB, sT1))
    a("s_lshl_b32 s%d, s%d, 10" % (sMB, sMB))
    a("s_add_u32 s%d, s%d, 8192" % (sMB, sMB))
    a("s_mul_i32 s%d, s%d, %d" % (sBoff, sCC, NG_Z))
    a("s_add_u32 s%d, s%d, s%d" % (sBoff, sBoff, sT1))
    a("s_mul_i32 s%d, s%d, 7" % (sT1, sJ))
    a("s_add_u32 s%d, s%d, s%d" % (sBoff, sBoff, sT1))
    a("s_lshl_b32 s%d, s%d, 10" % (sBoff, sBoff))
    a("s_add_u32 s%d, s%d, %d" % (sBoff, sBoff, WS_Z + 54 * 1024))
    a("s_mov_b32 s46, s%d" % sRR)
    a("s_mov_b32 s47, 0")
    a("s_mov_b64 vcc, s[46:47]")
    a("s_mov_b32 s%d, 0" % sWr)
    a("s_mov_b32 s%d, 0" % sIt)
    a("s_waitcnt lgkmcnt(0)")
    srd(a, sWS, 52, WS_END)
    srd(a, sA, 48, S * S * 2)
    a("KL_pre:")
    dma_A(a)
    a("s_add_u32 s%d, s%d, 1" % (sIt, sIt))
    a("s_cmp_eq_u32 s%d, 3" % sIt)
    a("s_cbranch_scc0 KL_pre")
    srd_off(a, sA3, 52, WS_A3, 64 * NG_A3 * 1024)
    srd_off(a, sB3, 52, WS_B3, 47 * 40 * 1024)
    a("s_lshl_b32 s%d, s%d, 1" % (sT0, sI))
    a("s_add_u32 s%d, s%d, s%d" % (sT0, sT0, sCC))
    a("s_mul_i32 s%d, s%d, %d" % (sA3off, sT0, NG_A3))
    a("s_lshl_b32 s%d, s%d, 1" % (sT0, sRR))
    a("s_add_u32 s%d, s%d, s%d" % (sA3off, sA3off, sT0))
    a("s_lshl_b32 s%d, s%d, 10" % (sA3off, sA3off))
    a("s_mul_i32 s%d, s%d, 3" % (sT0, sRR))
    a("s_mul_i32 s%d, s%d, 40" % (sB3off, sCC))
    a("s_add_u32 s%d, s%d, s%d" % (sB3off, sB3off, sT0))
    a("s_mul_i32 s%d, s%d, 5" % (sT1, sJ))
    a("s_add_u32 s%d, s%d, s%d" % (sB3off, sB3off, sT1))
    a("s_lshl_b32 s%d, s%d, 10" % (sB3off, sB3off))
    a("s_mul_i32 s%d, s%d, 5" % (sMB3, sCC))
    a("s_add_u32 s%d, s%d, s%d" % (sMB3, sMB3, sT0))
    a("s_lshl_b32 s%d, s%d, 10" % (sMB3, sMB3))
    a("s_add_u32 s%d, s%d, 8192" % (sMB3, sMB3))
    a("s_waitcnt vmcnt(10)")
    a("s_barrier")
    dma_A(a)
    dma_A(a)
    a("s_waitcnt vmcnt(15)")
    a("s_barrier")
    dma_A(a)
    dma_A(a)
    a("s_waitcnt vmcnt(20)")
    a("s_barrier")
    dma_A(a)
    dma_A(a)
    a("v_lshrrev_b32 v1, 5, v0")
    a("v_and_b32 v2, 31, v0")
    a("s_lshl_b32 s%d, s%d, 2" % (sHd, sJ))
    a("s_add_u32 s%d, s%d, s%d" % (sHd, sHd, sW))
    a("s_mul_i32 s%d, s%d, 2560" % (sKv, sHd))
    a("s_add_u32 s%d, s%d, 0x%x" % (sKv, sKv, WS_KV))
    a("s_lshl_b32 s%d, s%d, 7" % (sCnt, sHd))
    a("s_add_u32 s%d, s%d, 0x%x" % (sCnt, sCnt, CNT_KV))
    a("s_lshl_b32 s%d, s%d, 7" % (sCntI, sI))
    a("s_add_u32 s%d, s%d, 0x%x" % (sCntI, sCntI, CNT_O))
    a("s_mov_b32 s%d, 2" % sIt)

    def runA(upto):
        lab = a.label("KL_A")
        a(lab + ":")
        a("s_waitcnt vmcnt(25)")
        a("s_barrier")
        dma_A(a)
        a("s_add_u32 s%d, s%d, 1" % (sIt, sIt))
        a("s_cmp_eq_u32 s%d, %d" % (sIt, upto))
        a("s_cbranch_scc0 %s" % lab)

    runA(6)
    a("s_mul_i32 s%d, s%d, 5" % (sT0, sHd))
    a("v_lshlrev_b32 v%d, 1, v1" % (T + 1))
    a("v_add_u32 v%d, s%d, v%d" % (T + 1, sT0, T + 1))
    a("s_mul_i32 s%d, s%d, %d" % (sT1, sI, 2 * NG_QKV * 1024))
    a("s_add_u32 s%d, s%d, %d" % (sT2, sT1, NG_QKV * 1024))
    for n in range(3):
        if n == 1:
            a("v_add_u32 v%d, 1, v%d" % (T + 1, T + 1))
        if n == 2:
            a("s_add_u32 s%d, s%d, 4" % (sT0, sT0))
            a("v_mov_b32 v%d, s%d" % (T + 1, sT0))
        quad_addr(a, T + 2, T + 1, True, T + 4, T + 5)
        for sb in range(2):
            d = PQR + 6 * sb + 2 * n
            a("buffer_load_dwordx2 v[%d:%d], v%d, s[%d:%d], s%d offen" % (d, d + 1, T + 2, sWS, sWS + 3, sT1 if sb == 0 else sT2))
    a("s_mul_i32 s%d, s%d, 5" % (sT0, sHd))
    a("v_add_u32 v%d, s%d, v1" % (T + 3, sT0))
    quad_addr(a, T + 6, T + 3, False, T + 4, T + 5)
    a("v_add_u32 v%d, 2, v%d" % (T + 3, T + 3))
    quad_addr(a, T + 7, T + 3, False, T + 4, T + 5)
    a("s_add_u32 s%d, s%d, 4" % (sT0, sT0))
    a("v_mov_b32 v%d, s%d" % (T + 3, sT0))
    quad_addr(a, T + 8, T + 3, False, T + 4, T + 5)
    a("v_lshl_add_u32 v%d, v1, 30, v%d" % (T + 8, T + 8))
    a("v_cmp_eq_u32 s[46:47], 24, v2")
    a("v_cndmask_b32 v%d, v2, 20, s[46:47]" % (T + 9))
    a("v_lshlrev_b32 v%d, 2, v%d" % (T + 9, T + 9))
    a("v_lshl_add_u32 v%d, v1, 10, v%d" % (T + 10, T + 9))
    a("v_lshl_add_u32 v%d, v1, 30, v%d" % (T + 9, T + 9))
    runA(LH[0])
    poll_issue(a, sCnt)
    runA(LH[1])
    stamp(a, 1)
    poll_check(a, sCnt, target=24, n=5 * (LH[1] - LH[0]))
    stamp(a, 2)
    for n in range(8):
        a("buffer_load_dword v%d, v%d, s[%d:%d], s%d offen offset:%d sc1" % (KVF + n, T + 10, sWS, sWS + 3, sKv, 128 * n))
    for n in range(4):
        a("buffer_load_dword v%d, v%d, s[%d:%d], s%d offen offset:%d sc1" % (KVF + 8 + n, T + 9, sWS, sWS + 3, sKv, 2048 + 128 * n))
    runA(LH[2])
    stamp(a, 3)
    a("s_mul_i32 s%d, s%d, %d" % (sT1, sI, 2 * NG_A3 * 1024))
    a("s_add_u32 s%d, s%d, 0x%x" % (sT1, sT1, WS_A3))
    a("s_add_u32 s%d, s%d, %d" % (sT2, sT1, NG_A3 * 1024))
    a("v_cmp_eq_u32 s[46:47], 1, v1")
    a("s_waitcnt vmcnt(%d)" % (5 * (LH[2] - LH[1])))
    for n in range(6):
        a("v_cvt_pk_bf16_f32 v%d, v%d, v%d" % (KVF + 16 + n, KVF + 2 * n, KVF + 2 * n + 1))
    for sb in range(2):
        d, p = DO + 16 * sb, PQR + 6 * sb
        a("v_mfma_f32_32x32x16_bf16 v[%d:%d], v[%d:%d], v[%d:%d], 0" % (d, d + 15, KVF + 16, KVF + 19, p, p + 3))
        a("v_mfma_f32_32x32x8_bf16 v[%d:%d], v[%d:%d], v[%d:%d], v[%d:%d]" % (d, d + 15, KVF + 20, KVF + 21, p + 4, p + 5, d, d + 15))
    for sb in range(2):
        d = DO + 16 * sb
        a("v_cndmask_b32 v%d, v%d, v%d, s[46:47]" % (T, d + 12, d + 8))
        a("v_add_f32 v%d, %s, v%d" % (T, fhex(1e-6), T))
        a("v_rcp_f32 v%d, v%d" % (T, T))
        for r in range(12):
            a("v_mul_f32 v%d, v%d, v%d" % (d + r, d + r, T))
        for n in range(6):
            a("v_cvt_pk_bf16_f32 v%d, v%d, v%d" % (KVF + 8 * sb + n, d + 2 * n, d + 2 * n + 1))
        for n in range(3):
            p = KVF + 8 * sb + 2 * n
            a("buffer_store_dwordx2 v[%d:%d], v%d, s[%d:%d], s%d offen sc1" % (p, p + 1, T + 6 + n, sWS, sWS + 3, sT1 if sb == 0 else sT2))
    stamp(a, 4)
    runA(LH[3])
    stamp(a, 5)
    signal(a, sCntI, n=5 * (LH[3] - LH[2]))
    stamp(a, 6)
    runA(25)
    Q = []
    for st in range(26, 32):
        Q += [("S", st)] * 5

    def younger(pred):
        idx = [n for n, t in enumerate(Q) if pred(t)]
        return len(Q) - 1 - max(idx) if idx else 63

    def dB3(st):
        a("s_add_u32 m0, s%d, %d" % (sMB3, (st % NST) * STG))
        for t in range(2):
            a("buffer_load_dwordx4 v%d, s[%d:%d], s%d offen offset:%d lds" % (vL16, sB3, sB3 + 3, sB3off, 1024 * t))
        lab = a.label("Lsk")
        a("s_cbranch_vccnz %s" % lab)
        a("buffer_load_dwordx4 v%d, s[%d:%d], s%d offen offset:2048 lds" % (vL16, sB3, sB3 + 3, sB3off))
        a(lab + ":")
        a("s_add_u32 s%d, s%d, %d" % (sB3off, sB3off, 80 * 1024))
        Q.extend([("S", st)] * 2)

    def dA3(st):
        if st == 55:
            a("s_cmp_eq_u32 s%d, 1" % sRR)
            a("s_cselect_b32 s%d, 0x40000000, s%d" % (sA3off, sA3off))
        a("s_add_u32 m0, s%d, %d" % (sMA, (st % NST) * STG))
        for t in range(2):
            a("buffer_load_dwordx4 v%d, s[%d:%d], s%d offen offset:%d sc1 lds" % (vL16, sA3, sA3 + 3, sA3off, 1024 * t))
        a("s_add_u32 s%d, s%d, 4096" % (sA3off, sA3off))
        Q.extend([("S", st)] * 2)

    nextA = 32
    for b in range(25, 55):
        a("s_waitcnt vmcnt(%d)" % min(63, younger(lambda t: t == ("S", b + 1))))
        a("s_barrier")
        if b in (PO[0], PU[0]):
            if b == PU[0]:
                a("s_add_u32 s%d, s%d, %d" % (sCntI, sCntI, CNT_U - CNT_O))
            poll_issue(a, sCntI)
            Q.append(("P", b))
        if b in (PO[1], PU[1]):
            stamp(a, 7 if b == PO[1] else 9)
            poll_check(a, sCntI, n=younger(lambda t: t[0] == "P"))
            stamp(a, 8 if b == PO[1] else 10)
        lim = min(b + 5, 55)
        if b < PO[1]:
            lim = 31
        elif b < PU[1]:
            lim = min(lim, 41)
        while nextA <= lim:
            dA3(nextA)
            nextA += 1
        if b + 7 <= 55:
            dB3(b + 7)
    stamp(a, 11)
    if STAMP:
        a("s_add_u32 s%d, s%d, 4" % (sW, sW))
    stamp_dump(a, 12, sWS, sW, WS_STAMP + 0x20000)
    a(end + ":")
    a("s_endpgm")
```

```python
import sys, os
from asmlib import *
from common import *
import k1, gen
from k1 import *

NREP = int(os.environ.get("NREP", "4"))
def mk(variant):
    def fn(a, label):
        a(".p2align 8"); a(label + ":")
        a("s_load_dwordx2 s[62:63], s[0:1], %d" % KA_WS)
        a("v_lshrrev_b32 v1, 6, v0"); a("v_and_b32 v0, 63, v0"); a("v_readfirstlane_b32 s%d, v1" % sW)
        for r in range(2, 256): a("v_mov_b32 v%d, 0" % r) if "zero" in variant else a("v_mov_b32 v%d, 0x3f8%05x" % (r, (r * 7919) & 0xfffff))
        a("s_and_b32 s%d, s%d, 3" % (sR, sW)); a("s_lshr_b32 s%d, s%d, 2" % (sC, sW))
        e = E0
        a("v_lshrrev_b32 v1, 5, v0"); a("v_bfe_u32 v%d, v0, 2, 2" % e); a("v_lshl_add_u32 v%d, v1, 3, v%d" % (e, e)); a("v_lshlrev_b32 v%d, 7, v%d" % (e, e))
        a("v_bfe_u32 v%d, v0, 4, 1" % (e + 1)); a("v_lshlrev_b32 v%d, 1, v%d" % (e + 1, e + 1)); a("v_bfe_u32 v%d, v0, 1, 1" % (e + 2)); a("v_add_u32 v%d, v%d, v%d" % (e + 1, e + 1, e + 2))
        a("s_lshl_b32 s%d, s%d, 2" % (sT0, sC)); a("v_add_u32 v%d, s%d, v%d" % (e + 1, sT0, e + 1)); a("v_bfe_u32 v%d, v0, 3, 1" % (e + 2)); a("v_lshlrev_b32 v%d, 2, v%d" % (e + 2, e + 2))
        a("v_xor_b32 v%d, v%d, v%d" % (e + 1, e + 1, e + 2)); a("v_lshl_add_u32 v%d, v%d, 4, v%d" % (e, e + 1, e)); a("v_and_b32 v%d, 1, v0" % (e + 1)); a("v_lshl_add_u32 v%d, v%d, 3, v%d" % (e, e + 1, e))
        for t in range(4):
            a("s_xor_b32 s%d, s%d, %d" % (sT0, sR, t)); a("s_mul_i32 s%d, s%d, %d" % (sT0, sT0, CH)); a("v_add_u32 v%d, s%d, v%d" % (vA + t, sT0, e))
        a("s_waitcnt lgkmcnt(0)")
        srd(a, sWS, 62, 0x1000000)
        a("s_mov_b32 s%d, 0" % sA); a("s_mov_b32 s%d, 0" % sB); a("s_mov_b32 s%d, 0" % sCc)
        a("v_lshlrev_b32 v%d, 4, v0" % vW1a)
        a("s_lshl_b32 s%d, s%d, 11" % (sW1off, sW)); a("s_add_u32 s%d, s%d, 0x100000" % (sW1off, sW1off))
        a("s_mul_i32 s%d, s%d, %d" % (sWb, sR, CH)); a("s_lshl_b32 s%d, s%d, 11" % (sT0, sC)); a("s_add_u32 s%d, s%d, s%d" % (sWb, sWb, sT0)); a("s_add_u32 s%d, s%d, %d" % (sWb, sWb, REG))
        if "oob" in variant: a("s_mov_b32 s%d, 0x40000000" % sW1off)
        a("s_lshl_b32 s%d, s%d, 16" % (sT0, sW)); a("s_add_u32 s%d, s%d, 0x200000" % (sT0, sT0))
        for r in range(48, 256, 4):
            a("buffer_load_dwordx4 v[%d:%d], v%d, s[%d:%d], s%d offen" % (r, r + 3, vW1a, sWS, sWS + 3, sT0)); a("s_add_u32 s%d, s%d, 1024" % (sT0, sT0))
        a("s_mul_i32 s%d, s%d, 20480" % (sT1, sW))
        for n in range(20):
            a("s_add_u32 m0, s%d, %d" % (sT1, n * 1024)); a("buffer_load_dwordx4 v%d, s[%d:%d], s%d offen lds" % (vW1a, sWS, sWS + 3, sT0)); a("s_add_u32 s%d, s%d, 1024" % (sT0, sT0))
        a("s_waitcnt vmcnt(0)"); a("s_barrier")
        for r in range(M0, M0 + 16): a("v_mov_b32 v%d, 0" % r)
        a("s_mov_b32 s%d, 0" % sLine)
        q = LdsQ(a)
        for j in range(3): frag_reads(q, 0, j)
        a("s_barrier")
        a("s_memtime s[72:73]")
        a("s_memrealtime s[76:77]")
        a(label + "_L:")
        typ = "P" if "phi" in variant else "G"
        for rep in range(1):
            for i in range(5):
                if "bar" in variant: a("s_barrier")
                fill = epi_quad(typ, i & 3) if "epi" in variant else []
                if "indep" in variant: fill = ["v_add_f32 v28, v29, v30"] * 22 + ["v_exp_f32 v31, v32"] * 8; fill = [fill[(n * 11) % 30] for n in range(30)]
                cnt = spread(len(fill), 8); pos = 0
                for j in range(8):
                    if "w2" in variant:
                        if (j & 1) == 0: q.wait("f%d" % j, "f%d" % (j + 1))
                    else: q.wait("f%d" % j)
                    x = X0 + 32 * i + 4 * j; f = FR + 4 * (j & 3)
                    if "fixop" in variant: x, f = 96, 100
                    if "m16" in variant:
                        for u in range(2):
                            m = M0 + 8 * (j & 1) + 4 * u; xx = X0 + (x - X0 + 4 * u * 11) % 160
                            a("v_mfma_f32_16x16x32_bf16 v[%d:%d], v[%d:%d], v[%d:%d], v[%d:%d]" % (m, m + 3, f, f + 3, xx, xx + 3, m, m + 3))
                    elif "nomf" not in variant:
                        a("v_mfma_f32_32x32x16_bf16 v[%d:%d], v[%d:%d], v[%d:%d], v[%d:%d]" % (M0, M0 + 15, f, f + 3, x, x + 3, M0, M0 + 15))
                    jn = j + 3
                    if "nolds" in variant: q.q += ["f%d" % (jn & 7)] * 2
                    elif "halflds" in variant and (j & 1): q.q += ["f%d" % (jn & 7)] * 2
                    else: frag_reads(q, i if jn < 8 else (i + 1) % 5, jn & 7)
                    for t in fill[pos:pos + cnt[j]]: a(t)
                    pos += cnt[j]
                    dsl = {"d01": (0, 0), "d04": (0, 4), "d15": (1, 5), "d23": (2,3)}
                    for kx, (p0, p1) in dsl.items():
                        if kx in variant:
                            if j == p0:
                                a("s_add_u32 m0, s%d, %d" % (sWb, i * 4096))
                                a("buffer_load_dwordx4 v%d, s[%d:%d], s%d offen lds" % (vW1a, sWS, sWS + 3, sW1off))
                            if j == p1:
                                a("buffer_load_dwordx4 v%d, s[%d:%d], s%d offen offset:1024 lds" % (vW1a, sWS, sWS + 3, sW1off))
                                a("s_add_u32 s%d, s%d, 16384" % (sW1off, sW1off))
                    if "cs" in variant and (j & 3) == 0: cs_mfma(a, 1, j)
        a("s_add_u32 s%d, s%d, 1" % (sLine, sLine)); a("s_cmp_lt_u32 s%d, %d" % (sLine, NREP)); a("s_cbranch_scc1 %s_L" % label)
        a("s_waitcnt lgkmcnt(0)"); a("s_nop 15"); a("s_barrier")
        a("s_memtime s[74:75]")
        a("s_memrealtime s[78:79]")
        a("s_waitcnt lgkmcnt(0)")
        a("s_sub_u32 s74, s74, s72"); a("s_sub_u32 s78, s78, s76")
        a("v_mov_b32 v2, s74"); a("v_mov_b32 v3, s78"); a("v_mov_b32 v1, 0"); a("s_lshl_b32 s%d, s2, 3" % sT0); a("s_mov_b64 exec, 1")
        a("buffer_store_dwordx2 v[2:3], v1, s[%d:%d], s%d offen" % (sWS, sWS + 3, sT0))
        a("s_endpgm")
    return fn
V = ["nolds", "none", "halflds", "m16,nolds", "m16", "m16,halflds", "epi", "epi,cs,bar", "epi,m16", "nomf,epi"]
V1 = ["epi,cs,bar", "epi,cs,bar,d01", "epi,cs,bar,d04", "epi,cs,bar,d15", "epi,cs,bar,d23", "epi,cs,bar,d15,oob", "d15", "epi,cs,bar,w2", "epi,cs,bar,d15,w2", "epi,phi,cs,bar,d15,w2", "epi,cs,d15"]
V0 = ["none", "epi", "epi,phi", "indep", "epi,fixop", "epi,zero", "epi,cs", "epi,bar", "epi,cs,bar", "cs", "bar"]
gen.build([("m%d_kernel" % n, mk(v.split(",")), 256, 512, K1_LDS) for n, v in enumerate(V)], "mb.s")
open("mb.txt", "w").write("\n".join(V))
```

```python
import os
from asmlib import *
from common import *

LOG2E = 1.4426950408889634
GC1 = -2.0 * 0.7978845608028654 * LOG2E
GC2 = GC1 * 0.044715

REG = 81920
CH = 20480
K1_LDS = 2 * REG

X0, M0, E0, FR, HOLD, PK, T0 = 96, 80, 64, 48, 40, 36, 28
SEL, CSA = 24, 20
NEGMU, RSTD, RL, K1c, K2c, IRSTD = 19, 18, 17, 16, 15, 14
ZSUM, ZSQ = 12, 13
vA = 8
vW1a, vW1b, vSt0, vSt1, vCsR, vCsW = 7, 6, 5, 4, 3, 2
vXA, vXd0, vXd1, vW0a, vW0b = 40, 44, 45, 46, 47
XS, XQ, XQ2 = 36, 28, 32
sX, sW0, sW1, sWS, sDBG = 4, 8, 12, 16, 20
sRb, sCg, sW, sR, sC = 24, 25, 26, 27, 28
sXoff, sW0off, sW1off, sUstep, sUoff = 29, 30, 31, 32, 33
sWu, sOut2, sZok, sL0 = 52, 3, 56, 57
vUa, vUb = 74, 75
sDelta, sWb, sT0, sXb, sReady = 34, 35, 36, 37, 38
sOnes, sA, sB, sCc, sOut, sLine, sIsZ2, sType, sOne = 39, 40, 41, 42, 43, 44, 45, 46, 47
sOut1, sL1, sZ2w, sT1, sT2, sOut0, sZ2keep, sLg = 64, 65, 66, 67, 68, 69, 70, 71

STAMP = os.environ.get("STAMP", "0") in ("1", "2")
STOP = "s_memrealtime" if os.environ.get("STAMP") == "2" else "s_memtime"
WS_STAMP = 0x1800000
EXP = os.environ.get("EXP", "").split(",")


def stamp(a, i):
    if STAMP:
        a("%s s[%d:%d]" % (STOP, 72 + 2 * i, 73 + 2 * i))


def stamp_dump(a, n, srdn, wreg, base):
    if not STAMP:
        return
    a("s_waitcnt lgkmcnt(0)")
    a("s_lshl_b32 s%d, s2, 3" % sT0)
    a("s_add_u32 s%d, s%d, s%d" % (sT0, sT0, wreg))
    a("s_lshl_b32 s%d, s%d, 6" % (sT0, sT0))
    a("s_add_u32 s%d, s%d, 0x%x" % (sT0, sT0, base))
    a("s_mov_b32 s%d, 0x4000000" % (srdn + 2))
    a("v_mov_b32 v1, 0")
    a("s_mov_b64 exec, 1")
    for i in range(n):
        a("v_mov_b32 v2, s%d" % (72 + 2 * i))
        a("buffer_store_dword v2, v1, s[%d:%d], s%d offen offset:%d" % (srdn, srdn + 3, sT0, 4 * i))
    a("s_mov_b64 exec, -1")


class LdsQ:
    def __init__(self, a, init=()):
        self.a = a
        self.q = list(init)

    def issue(self, text, tag):
        self.a(text)
        self.q.append(tag)

    def wait(self, *tags):
        idx = [i for i, t in enumerate(self.q) if t in tags]
        if not idx:
            return
        last = max(idx)
        n = len(self.q) - 1 - last
        assert n <= 15
        self.a("s_waitcnt lgkmcnt(%d)" % n)
        self.q = self.q[last + 1:]


def srd(a, d, plo, nbytes):
    a("s_mov_b32 s%d, s%d" % (d, plo))
    a("s_and_b32 s%d, s%d, 0xffff" % (d + 1, plo + 1))
    a("s_mov_b32 s%d, 0x%x" % (d + 2, nbytes))
    a("s_mov_b32 s%d, 0x20000" % (d + 3))


def csel(a, d, t, f):
    a("s_mov_b32 s%d, %s" % (d, f))
    a("s_cselect_b32 s%d, %s, s%d" % (d, t, d))


def spread(n_items, n_slots):
    base, rem = divmod(n_items, n_slots)
    return [base + (1 if i < rem else 0) for i in range(n_slots)]


def frag_reads(q, pos, j):
    d = FR + 4 * (j & 3)
    off = pos * 4096 + (j >> 2) * 2048
    q.issue("ds_read_b64_tr_b16 v[%d:%d], v%d offset:%d" % (d, d + 1, vA + (j & 3), off), "f%d" % j)
    q.issue("ds_read_b64_tr_b16 v[%d:%d], v%d offset:%d" % (d + 2, d + 3, vA + (j & 3), off + 512), "f%d" % j)


def skew(seqs, d):
    if "noskew" in EXP:
        d = 0
    items = sorted((i + d * n, n, op) for n, s in enumerate(seqs) for i, op in enumerate(s))
    return [op for _, _, op in items]


def gelu_ops(regs, outs):
    seqs = []
    for e, (t, p) in zip(regs, outs):
        seqs.append([
            "v_mul_f32 v%d, v%d, v%d" % (t, e, e),
            "v_fma_f32 v%d, v%d, v%d, v%d" % (p, t, K2c, K1c),
            "v_mul_f32 v%d, v%d, v%d" % (p, p, e),
            "v_exp_f32 v%d, v%d" % (p, p),
            "v_fma_f32 v%d, v%d, v%d, v%d" % (p, p, IRSTD, IRSTD),
            "v_rcp_f32 v%d, v%d" % (p, p),
            "v_mul_f32 v%d, v%d, v%d" % (t, e, p),
        ])
    return skew(seqs, 2)


def phi_ops(regs, outs):
    seqs = []
    for e, (t, p) in zip(regs, outs):
        seqs.append([
            "v_mul_f32 v%d, v%d, v%d" % (p, e, RL),
            "v_exp_f32 v%d, v%d clamp" % (p, p),
            "v_fma_f32 v%d, v%d, v%d, s%d" % (t, e, RSTD, sCc),
            "v_max_f32 v%d, s%d, v%d" % (t, sA, t),
            "v_fma_f32 v%d, v%d, s%d, v%d" % (t, p, sB, t),
        ])
    return skew(seqs, 1)


def epi_quad(typ, qd):
    regs = [E0 + 4 * qd + i for i in range(4)]
    outs = [(T0 + 2 * i, T0 + 2 * i + 1) for i in range(4)]
    ops = gelu_ops(regs, outs) if typ == "G" else phi_ops(regs, outs)
    o = PK + 2 * (qd & 1)
    ops.append("v_cvt_pk_bf16_f32 v%d, v%d, v%d" % (o, outs[0][0], outs[1][0]))
    ops.append("v_cvt_pk_bf16_f32 v%d, v%d, v%d" % (o + 1, outs[2][0], outs[3][0]))
    return ops


RARE = []


def rare(a, cond_branch, fn):
    lr, lb = a.label("Lrare"), a.label("Lback")
    a("%s %s" % (cond_branch, lr))
    RARE.append((lr, lb, fn))
    return lb


def flush_rare(a):
    for lr, lb, fn in RARE:
        a(lr + ":")
        fn(lb)
        a("s_branch %s" % lb)
    del RARE[:]


def epi_out(a, typ, half, z2ok=True):
    vst = vSt0 if half == 0 else vSt1
    st = "buffer_store_dwordx4 v[%d:%d], v%d, s[%d:%d], s%d offen sc1" % (PK, PK + 3, vst, sWS, sWS + 3, sOut)
    if "nost" in EXP:
        st = "s_nop 0"
    if typ == "P" or not z2ok:
        a(st)
        return

    def z2blk(lb):
        for i in range(4):
            a("v_mov_b32 v%d, v%d" % (HOLD + 4 * half + i, PK + i))
            a("v_dot2c_f32_bf16 v%d, s%d, v%d" % (ZSUM, sOnes, PK + i))
            a("v_dot2c_f32_bf16 v%d, v%d, v%d" % (ZSQ, PK + i, PK + i))
        if half == 1:
            a("v_mov_b32 v%d, v%d" % (T0, ZSUM))
            a("v_mov_b32 v%d, v%d" % (T0 + 1, ZSQ))
            a("v_permlane32_swap_b32 v%d, v%d" % (ZSUM, T0))
            a("v_permlane32_swap_b32 v%d, v%d" % (ZSQ, T0 + 1))
            a("v_add_f32 v%d, v%d, v%d" % (ZSUM, ZSUM, T0))
            a("v_add_f32 v%d, v%d, v%d" % (ZSQ, ZSQ, T0 + 1))
            a("s_lshl_b32 s%d, s%d, 9" % (sT0, sW))
            a("s_add_u32 s%d, s%d, %d" % (sT0, sT0, REG + CH + 3 * 4096))
            a("v_lshlrev_b32 v%d, 3, v0" % T0)
            a("v_add_u32 v%d, s%d, v%d" % (T0, sT0, T0))
            a("ds_write_b64 v%d, v[%d:%d]" % (T0, ZSUM, ZSQ))
            a("s_waitcnt lgkmcnt(0)")
            a("s_mov_b32 s%d, 0" % sIsZ2)
        a("s_nop 2")
    a("s_cmp_eq_u32 s%d, 1" % sIsZ2)
    lb = rare(a, "s_cbranch_scc1", z2blk)
    a(st)
    a(lb + ":")


def dma_unit(pos):
    return [
        "s_add_u32 m0, s%d, %d" % (sWb, pos * 4096),
        "buffer_load_dwordx4 v%d, s[%d:%d], s%d offen lds" % (vW1a, sW1, sW1 + 3, sW1off),
        "buffer_load_dwordx4 v%d, s[%d:%d], s%d offen offset:1024 lds" % (vW1b, sW1, sW1 + 3, sW1off),
        "s_add_u32 s%d, s%d, %d" % (sW1off, sW1off, (128 - 4 * 128 * 3840) & 0xffffffff if pos == 4 else 128 * 3840),
    ]


def dma_u(pos):
    return [
        "s_add_u32 m0, s%d, %d" % (sWb, pos * 4096),
        "buffer_load_dwordx4 v%d, s[%d:%d], s%d offen lds" % (vUa, sWu, sWu + 3, sUoff),
        "buffer_load_dwordx4 v%d, s[%d:%d], s%d offen offset:1024 lds" % (vUb, sWu, sWu + 3, sUoff),
        "s_add_u32 s%d, s%d, s%d" % (sUoff, sUoff, sUstep),
    ]


def dma_x(hp):
    return [
        "s_add_u32 m0, s%d, %d" % (sXb, (hp % 5) * 4096),
        "buffer_load_dwordx4 v%d, s[%d:%d], s%d offen lds" % (vXd0, sX, sX + 3, sXoff),
        "buffer_load_dwordx4 v%d, s[%d:%d], s%d offen offset:1024 lds" % (vXd1, sX, sX + 3, sXoff),
        "s_add_u32 s%d, s%d, 128" % (sXoff, sXoff),
    ]


def dma_b0(i):
    return [
        "s_add_u32 m0, s%d, %d" % (sWb, i * 4096 - REG),
        "buffer_load_dwordx4 v%d, s[%d:%d], s%d offen lds" % (vW0a, sW0, sW0 + 3, sW0off),
        "buffer_load_dwordx4 v%d, s[%d:%d], s%d offen offset:1024 lds" % (vW0b, sW0, sW0 + 3, sW0off),
        "s_add_u32 s%d, s%d, %d" % (sW0off, sW0off, 128 * 3456),
    ]


def mfma(a, i, j):
    x = X0 + 32 * i + 4 * j
    f = FR + 4 * (j & 3)
    d = E0 if (i == 4 and j == 7) else M0
    c = "0" if (i == 0 and j == 0) else "v[%d:%d]" % (M0, M0 + 15)
    a("v_mfma_f32_32x32x16_bf16 v[%d:%d], v[%d:%d], v[%d:%d], %s" % (d, d + 15, f, f + 3, x, x + 3, c))


def cs_mfma(a, i, j):
    f = FR + 4 * (j & 3)
    c = "0" if (i == 0 and j == 0) else "v[%d:%d]" % (CSA, CSA + 3)
    a("v_mfma_f32_16x16x32_bf16 v[%d:%d], v[%d:%d], v[%d:%d], %s" % (CSA, CSA + 3, SEL, SEL + 3, f, f + 3, c))


def ext_mfma(a, q):
    q.wait("csr")
    a("v_add_f32 v%d, v%d, v%d" % (PK, PK, PK + 1))
    a("v_add_f32 v%d, v%d, v%d" % (PK + 2, PK + 2, PK + 3))
    a("v_add_f32 v%d, v%d, v%d" % (PK, PK, PK + 2))
    a("v_add_u32 v%d, s%d, v%d" % (vCsR, sDelta, vCsR))
    a("v_mfma_f32_32x32x2_f32 v[%d:%d], v%d, v%d, v[%d:%d]" % (E0, E0 + 15, PK, NEGMU, E0, E0 + 15))


PL = X0
ST = X0 + 4
vPf = 1
N15 = int(os.environ.get("N15", "3"))
N14 = int(os.environ.get("N14", "2"))
PFREST = 65536 - 128 * 64 * (N15 + N14)
PFL = -(-PFREST // (1792 * 2))


def poll_issue(a):
    a("buffer_load_dword v%d, off, s[%d:%d], s%d sc1" % (PL, sWS, sWS + 3, sT2))


def poll_test(a):
    a("v_readfirstlane_b32 s%d, v%d" % (sT1, PL))
    a("s_cmp_eq_u32 s%d, 14" % sT1)


def stat_addr(a):
    v = X0 + 32
    a("v_and_b32 v%d, 31, v0" % v)
    a("v_lshlrev_b32 v%d, 3, v%d" % (v, v))
    a("v_lshrrev_b32 v%d, 5, v0" % (v + 1))
    a("v_mul_u32_u24 v%d, %d, v%d" % (v + 1, 7 * 256, v + 1))
    a("v_add_u32 v%d, v%d, v%d" % (v, v, v + 1))
    a("s_and_b32 s%d, s%d, 0xfffff000" % (sT0, sZ2w))


def stat_load(a, t):
    a("buffer_load_dwordx2 v[%d:%d], v%d, s[%d:%d], s%d offen offset:%d sc1" % (
        ST + 2 * t, ST + 2 * t + 1, X0 + 32, sWS, sWS + 3, sT0, 256 * t))


INQ2 = ["f0", "f0", "csw", "f1", "f1", "f2", "f2"]


def next_line_ops():
    return [
        "s_mov_b32 s%d, s%d" % (sOut, sOut1),
        "s_mov_b32 s%d, s%d" % (sOut1, sOut2),
        "s_add_u32 s%d, s%d, 4096" % (sOut2, sOut2),
        "s_sub_u32 s%d, s%d, s%d" % (sWb, sWb, sDelta),
        "s_cmp_ge_u32 s%d, 20\ns_mov_b32 s%d, %s\ns_cselect_b32 s%d, 0xff800000, s%d\ns_cselect_b32 s%d, 0, 1.0\ns_cselect_b32 s%d, 0, %s" % (
            sLg, sA, fhex(1e-6), sA, sA, sB, sCc, fhex(1e-6)),
        "s_add_u32 s%d, s%d, 1" % (sLg, sLg),
        "s_add_u32 s%d, s%d, 1" % (sLine, sLine),
    ]


def body(a, typ, last=False):
    q = LdsQ(a, INQ2)
    for i in range(5):
        q.wait("csw")
        if "st2" in EXP and not last and i == 3:
            stamp(a, 7)
        if not last:
            a("s_waitcnt vmcnt(%d)" % [6, 6, 6, 5, 7][i])
        elif i < 3:
            a("s_waitcnt vmcnt(%d)" % [7, 6, 3][i])
        if "st2" in EXP and not last and i == 3:
            stamp(a, 1)
        a("s_barrier")
        if "st2" in EXP and not last:
            stamp(a, 2 + i)
        du = dma_unit(i)
        fill = epi_quad(typ, i - 1) if i else []
        lump = (lambda h=(i - 1) >> 1: epi_out(a, typ, h)) if i in (2, 4) else None
        nslots = 7 if lump else 8
        cnt = spread(len(fill), nslots) + [0] * (8 - nslots)
        pos = 0
        for j in range(8):
            q.wait("f%d" % j)
            mfma(a, i, j)
            if i == 0 and j == 0:
                q.issue("ds_read_b128 v[%d:%d], v%d" % (PK, PK + 3, vCsR), "csr")
            if i == 4 and j == 6:
                q.issue("ds_write_b32 v%d, v%d" % (vCsW, CSA), "csw")
                a("v_add_u32 v%d, s%d, v%d" % (vCsW, sDelta, vCsW))
            jn = j + 3
            if jn < 8:
                frag_reads(q, i, jn)
            elif last and i == 4:
                q.q += ["f%d" % (jn - 8)] * 0
            else:
                frag_reads(q, (i + 1) % 5, jn - 8)
            if i == 4 and 1 <= j <= 4 and not last:
                t = (j + 3) & 3
                a("v_add_u32 v%d, s%d, v%d" % (vA + t, sDelta, vA + t))
            if i == 0 and j == 3:
                ext_mfma(a, q)
                a("s_sub_u32 s%d, 0, s%d" % (sDelta, sDelta))
            if last:
                if i == 0 and j == 5:
                    a("s_lshl_b32 s%d, s%d, 26" % (sT1, sW))
                    a("s_add_u32 s%d, s%d, s%d" % (sT0, sT2, sT1))
                    a("buffer_load_dword v%d, off, s[%d:%d], s%d sc1" % (PL, sWS, sWS + 3, sT0))
                if i == 2 and j == 4:
                    p = PL
                    a("s_lshl_b32 s%d, s%d, 2" % (sT1, sW))
                    a("v_mov_b32 v%d, s%d" % (X0 + 34, sT1))
                    a("s_waitcnt vmcnt(0)")
                    q.issue("ds_write_b32 v%d, v%d" % (X0 + 34, p), "csw")
                    a("v_mov_b32 v%d, 0" % (X0 + 35))
                if i == 3 and j == 0:
                    q.issue("ds_read_b32 v%d, v%d" % (PL, X0 + 35), "rdy")
                    stat_addr(a)
                if i == 3 and j == 1:
                    q.wait("rdy")
                    poll_test(a)
                    a("s_cselect_b32 s%d, 1, 0" % sReady)
                    a("s_cselect_b32 s%d, s%d, 0x40000000" % (sT0, sT0))
                if i == 3 and j >= 1:
                    stat_load(a, j - 1)
            else:
                if j == 0:
                    a(du[0])
            for t in fill[pos:pos + cnt[j]]:
                a(t)
            pos += cnt[j]
            if not last:
                if j == 0:
                    if i == 3:
                        a("buffer_load_dword v%d, s[%d:%d], s%d offen lds" % (vPf, sX, sX + 3, sXoff))
                        a("s_add_u32 s%d, s%d, %d" % (sXoff, sXoff, 1792 * PFL * 128))
                    a(du[1])
                if j == 4:
                    a(du[2])
                    a(du[3])
            if lump and j == 6:
                lump()
            if (j & 3) == 0:
                cs_mfma(a, i, j)
            if j == 1 and i == 0 and not last:
                def sblk(lb):
                    a("s_lshl_b32 s%d, s%d, 9" % (sT0, sW))
                    a("s_add_u32 s%d, s%d, %d" % (sT0, sT0, REG + CH + 3 * 4096 + 2048))
                    a("v_lshlrev_b32 v%d, 3, v0" % T0)
                    a("v_add_u32 v%d, s%d, v%d" % (T0 + 1, sT0, T0))
                    a("ds_read_b64 v[%d:%d], v%d" % (T0 + 2, T0 + 3, T0 + 1))
                    a("s_waitcnt lgkmcnt(0)")
                    a("v_add_f32 v%d, v%d, v%d" % (ZSUM, ZSUM, T0 + 2))
                    a("v_add_f32 v%d, v%d, v%d" % (ZSQ, ZSQ, T0 + 3))
                    a("s_mov_b32 exec_hi, 0")
                    a("buffer_store_dwordx2 v[%d:%d], v%d, s[%d:%d], s%d offen sc1" % (ZSUM, ZSQ, T0, sWS, sWS + 3, sZ2w))
                    a("s_mov_b64 exec, -1")
                a("s_cmp_eq_u32 s%d, s%d" % (sLine, sL0))
                a(rare(a, "s_cbranch_scc1", sblk) + ":")
            if j == 1 and i == 3 and not last:
                def fblk(lb):
                    l0, l1 = a.label("Lz0"), a.label("Lz1")
                    a("s_waitcnt lgkmcnt(0)")
                    if "st2" in EXP:
                        a("s_add_u32 s74, s72, s%d" % sZok)
                        stamp(a, 7)
                    a(l0 + ":")
                    a("s_cmp_eq_u32 s%d, 1" % sZok)
                    a("s_cbranch_scc1 %s" % l1)
                    a("s_lshl_b32 s%d, s%d, 2" % (sT0, sRb))
                    a("buffer_load_dword v%d, off, s[%d:%d], s%d sc1" % (ZSQ, sDBG, sDBG + 3, sT0))
                    a("s_waitcnt vmcnt(0)")
                    a("v_readfirstlane_b32 s%d, v%d" % (sZok, ZSQ))
                    a("s_branch %s" % l0)
                    a(l1 + ":")
                    a("v_mov_b32 v%d, 1" % ZSUM)
                    a("s_mov_b64 exec, 1")
                    a("buffer_atomic_add v%d, off, s[%d:%d], s%d sc1" % (ZSUM, sWS, sWS + 3, sT2))
                    a("s_mov_b64 exec, -1")
                    if "st2" in EXP:
                        stamp(a, 2)
                a("s_cmp_eq_u32 s%d, s%d" % (sLine, sL1))
                a(rare(a, "s_cbranch_scc1", fblk) + ":")
            if i == 4 and j == 7:
                for t in next_line_ops():
                    a(t)
        assert pos == len(fill)
    assert q.q == (["csw"] if last else INQ2), q.q
    if STAMP:
        a("s_mov_b32 s88, s90")
        a("s_mov_b32 s90, s92")
    stamp(a, 10)


def z2_finalize(a):
    H = M0
    lab = a.label("Lrdy")
    lp = a.label("Lpoll")
    a("s_cmp_eq_u32 s%d, 1" % sReady)
    a("s_cbranch_scc1 %s" % lab)
    a(lp + ":")
    a("s_sleep 8")
    poll_issue(a)
    a("s_waitcnt vmcnt(0)")
    poll_test(a)
    a("s_cbranch_scc0 %s" % lp)
    stat_addr(a)
    for t in range(7):
        stat_load(a, t)
    a("s_waitcnt vmcnt(0)")
    a(lab + ":")
    for t in range(8):
        a("v_lshlrev_b32 v%d, 16, v%d" % (H + 2 * t, HOLD + t))
        a("v_and_b32 v%d, 0xffff0000, v%d" % (H + 2 * t + 1, HOLD + t))
    a("s_waitcnt vmcnt(1)")
    stamp(a, 11)
    for (d, s_) in ((0, 4), (1, 5), (2, 6), (0, 3), (1, 2), (0, 1)):
        a("v_add_f32 v%d, v%d, v%d" % (ST + 2 * d, ST + 2 * d, ST + 2 * s_))
        a("v_add_f32 v%d, v%d, v%d" % (ST + 2 * d + 1, ST + 2 * d + 1, ST + 2 * s_ + 1))
    a("v_mov_b32 v%d, v%d" % (T0, ST))
    a("v_mov_b32 v%d, v%d" % (T0 + 1, ST + 1))
    a("v_permlane32_swap_b32 v%d, v%d" % (ST, T0))
    a("v_permlane32_swap_b32 v%d, v%d" % (ST + 1, T0 + 1))
    a("v_add_f32 v%d, v%d, v%d" % (ST, ST, T0))
    a("v_add_f32 v%d, v%d, v%d" % (ST + 1, ST + 1, T0 + 1))
    a("v_mul_f32 v%d, %s, v%d" % (ST, fhex(-1.0 / FH), ST))
    a("v_mul_f32 v%d, %s, v%d" % (ST + 1, fhex(1.0 / FH), ST + 1))
    a("v_fma_f32 v%d, -v%d, v%d, v%d" % (ST + 1, ST, ST, ST + 1))
    a("v_max_f32 v%d, 0, v%d" % (ST + 1, ST + 1))
    a("v_add_f32 v%d, %s, v%d" % (ST + 1, fhex(1e-5), ST + 1))
    a("v_rsq_f32 v%d, v%d" % (ST + 1, ST + 1))
    for t in range(16):
        a("v_add_f32 v%d, v%d, v%d" % (H + t, H + t, ST))
    for hf in range(2):
        for t in range(8 * hf, 8 * hf + 8):
            a("v_mul_f32 v%d, v%d, v%d" % (H + t, H + t, ST + 1))
        for t in range(4 * hf, 4 * hf + 4):
            a("v_cvt_pk_bf16_f32 v%d, v%d, v%d" % (HOLD + t, H + 2 * t, H + 2 * t + 1))
        a("buffer_store_dwordx4 v[%d:%d], v%d, s[%d:%d], s%d offen sc1" % (
            HOLD + 4 * hf, HOLD + 4 * hf + 3, vSt1 if hf else vSt0, sWS, sWS + 3, sOut0))


def tail_common(a):
    q = LdsQ(a)
    a("s_waitcnt lgkmcnt(0)")
    a("s_barrier")
    q.issue("ds_read_b128 v[%d:%d], v%d" % (PK, PK + 3, vCsR), "csr")
    ext_mfma(a, q)
    a("s_cmp_eq_u32 s%d, 0" % sZ2keep)
    a("s_cbranch_scc1 K1_noz2")
    z2_finalize(a)
    a("K1_noz2:")
    stamp(a, 12)
    a("s_nop 15")


def pf_wsp(a, first, n):
    srd(a, sDBG, 58, S * S * 2)
    a("s_lshl_b32 s%d, s%d, 3" % (sT0, sRb))
    a("s_add_u32 s%d, s%d, s%d" % (sT0, sT0, sW))
    a("s_mul_i32 s%d, s%d, %d" % (sT0, sT0, n * 64 * 128))
    a("s_add_u32 s%d, s%d, %d" % (sT0, sT0, first * 128))
    a("v_lshlrev_b32 v99, 7, v0")
    for t in range(n):
        a("buffer_load_dword v%d, v99, s[%d:%d], s%d offen" % (100 + t, sDBG, sDBG + 3, sT0))
        a("s_add_u32 s%d, s%d, 8192" % (sT0, sT0))


def tail(a, typ):
    for qd in range(4):
        for t in epi_quad(typ, qd):
            a(t)
        if qd & 1:
            epi_out(a, typ, qd >> 1, z2ok=False)
    if typ == "G":
        lk = a.label("Lnp")
        a("s_cmp_eq_u32 s%d, 0" % sOne)
        a("s_cbranch_scc1 %s" % lk)
        pf_wsp(a, 128 * N15 * 64, N14)
        a(lk + ":")
    stamp(a, 13)
    if STAMP:
        a("s_waitcnt vmcnt(0)")
    stamp(a, 14)
    stamp_dump(a, 15, sWS, sW, WS_STAMP)
    a("s_endpgm")


def gen_k1(a, label):
    a(".p2align 8")
    a(label + ":")
    end = "K1_end"
    a("s_cmp_ge_u32 s2, 256")
    a("s_cbranch_scc1 %s" % end)
    stamp(a, 0)
    a("s_load_dwordx4 s[48:51], s[0:1], %d" % KA_X)
    a("s_load_dwordx2 s[54:55], s[0:1], %d" % KA_WIN)
    a("s_load_dwordx2 s[52:53], s[0:1], %d" % KA_WO)
    a("s_load_dwordx2 s[56:57], s[0:1], %d" % KA_WOUT)
    a("s_load_dwordx2 s[58:59], s[0:1], %d" % KA_WSP)
    a("s_load_dwordx4 s[60:63], s[0:1], %d" % KA_DBG)
    a("v_lshrrev_b32 v1, 6, v0")
    a("v_and_b32 v0, 63, v0")
    a("v_readfirstlane_b32 s%d, v1" % sW)
    a("s_and_b32 s%d, s2, 1" % sRb)
    a("s_lshl_b32 s%d, s%d, 3" % (sRb, sRb))
    a("s_lshr_b32 s%d, s2, 5" % sT0)
    a("s_add_u32 s%d, s%d, s%d" % (sRb, sRb, sT0))
    a("s_bfe_u32 s%d, s2, 0x20001" % sCg)
    a("s_lshl_b32 s%d, s%d, 2" % (sCg, sCg))
    a("s_bfe_u32 s%d, s2, 0x20003" % sT0)
    a("s_add_u32 s%d, s%d, s%d" % (sCg, sCg, sT0))
    a("s_and_b32 s%d, s%d, 3" % (sR, sW))
    a("s_lshr_b32 s%d, s%d, 2" % (sC, sW))
    a("s_cmp_eq_u32 s%d, 15" % sCg)
    a("s_cbranch_scc1 K1_side")
    a("v_lshrrev_b32 v3, 3, v0")
    a("s_lshl_b32 s%d, s%d, 4" % (sT0, sW))
    a("v_add_u32 v3, s%d, v3" % sT0)
    a("v_lshrrev_b32 v1, 4, v0")
    a("v_and_b32 v2, 7, v0")
    a("v_xor_b32 v4, v1, v2")
    a("v_mul_u32_u24 v5, 1280, v3")
    a("v_lshl_add_u32 v%d, v4, 4, v5" % vXd0)
    a("v_xor_b32 v4, 4, v4")
    a("v_lshl_add_u32 v%d, v4, 4, v5" % vXd1)
    a("v_add_u32 v%d, %d, v%d" % (vXd1, 8 * 1280 - 1024, vXd1))
    a("v_and_b32 v1, 1, v1")
    a("v_lshlrev_b32 v1, 2, v1")
    a("v_xor_b32 v2, v1, v2")
    a("v_lshlrev_b32 v2, 4, v2")
    a("v_mul_u32_u24 v%d, 3456, v3" % vW0a)
    a("v_add_u32 v%d, v%d, v2" % (vW0a, vW0a))
    a("v_add_u32 v%d, %d, v%d" % (vW0b, 8 * 3456 - 1024, vW0a))
    a("s_mul_i32 s%d, s%d, %d" % (sXoff, sRb, 128 * 1280))
    a("s_add_u32 s%d, s%d, 13" % (sLg, sCg))
    a("s_cmp_eq_u32 s%d, 14" % sCg)
    a("s_cselect_b32 s%d, 12, s%d" % (sLg, sLg))
    a("s_cselect_b32 s%d, 1, 0" % sOne)
    a("s_lshl_b32 s%d, s%d, 7" % (sW0off, sLg))
    a("s_mul_i32 s%d, s%d, %d" % (sWb, sR, CH))
    a("s_lshl_b32 s%d, s%d, 11" % (sT0, sC))
    a("s_add_u32 s%d, s%d, s%d" % (sWb, sWb, sT0))
    a("s_add_u32 s%d, s%d, %d" % (sWb, sWb, REG))
    a("s_lshr_b32 s%d, s%d, 1" % (sT0, sW))
    a("s_mul_i32 s%d, s%d, %d" % (sXb, sT0, CH))
    a("s_and_b32 s%d, s%d, 1" % (sT0, sW))
    a("s_lshl_b32 s%d, s%d, 11" % (sT0, sT0))
    a("s_add_u32 s%d, s%d, s%d" % (sXb, sXb, sT0))
    a("s_add_u32 s%d, s%d, %d" % (sXb, sXb, REG))
    a("s_waitcnt lgkmcnt(0)")
    srd(a, sX, 48, S * D * 2)
    srd(a, sW0, 54, D * F * 2)
    for L in (dma_x(0), dma_b0(0)):
        for t in L:
            a(t)
    if "nopf" not in EXP:
        lskip = a.label("Lpf")
        a("s_cmp_eq_u32 s%d, %d" % (sW, 77 if "nocode" in EXP else 7))
        a("s_cbranch_scc1 K1_pfcode")
        if "nopfx" in EXP:
            a("s_branch %s" % lskip)
        a("s_cmp_gt_u32 s%d, 2" % sW)
        a("s_cbranch_scc1 %s" % lskip)
        a("s_cmp_eq_u32 s%d, 2" % sW)
        a("s_cbranch_scc1 K1_pfw0")
        a("s_mul_i32 s%d, s%d, %d" % (sT0, sCg, 86 * 128))
        a("s_mul_i32 s%d, s%d, %d" % (sT1, sW, 43 * 128))
        a("s_add_u32 s%d, s%d, s%d" % (sT0, sT0, sT1))
        a("s_mul_i32 s%d, s%d, %d" % (sT1, sRb, 128 * 1280))
        a("s_add_u32 s%d, s%d, s%d" % (sT0, sT0, sT1))
        a("v_min_u32 v%d, 42, v0" % (E0 + 12))
        a("v_lshlrev_b32 v%d, 7, v%d" % (E0 + 12, E0 + 12))
        a("buffer_load_dword v%d, v%d, s[%d:%d], s%d offen" % (E0 + 13, E0 + 12, sX, sX + 3, sT0))
        a("s_branch %s" % lskip)

        def pfw0(lb):
            a("s_mul_i32 s%d, s%d, %d" % (sT0, sRb, 40 * 3456))
            a("s_lshl_b32 s%d, s%d, 7" % (sT1, sLg))
            a("s_add_u32 s%d, s%d, s%d" % (sT0, sT0, sT1))
            a("v_min_u32 v%d, 39, v0" % (E0 + 12))
            a("v_mul_u32_u24 v%d, 3456, v%d" % (E0 + 12, E0 + 12))
            a("buffer_load_dword v%d, v%d, s[%d:%d], s%d offen" % (E0 + 13, E0 + 12, sW0, sW0 + 3, sT0))

        def pfcode(lb):
            a("s_getpc_b64 s[52:53]")
            a("K1_pc:")
            a("s_sub_u32 s52, s52, K1_pc-%s" % label)
            a("s_subb_u32 s53, s53, 0")
            a("s_bfe_u32 s%d, s2, 0x20003" % sT0)
            a("s_lshl_b32 s%d, s%d, 6" % (sT0, sT0))
            a("v_add_u32 v%d, s%d, v0" % (E0 + 12, sT0))
            a("v_lshlrev_b32 v%d, 7, v%d" % (E0 + 12, E0 + 12))
            a("v_min_u32 v%d, (CODE_END-%s-4), v%d" % (E0 + 12, label, E0 + 12))
            a("global_load_dword v%d, v%d, s[52:53]" % (E0 + 13, E0 + 12))
        a("K1_pfw0:")
        pfw0(None)
        a("s_branch %s" % lskip)
        a("K1_pfcode:")
        pfcode(None)
        a(lskip + ":")
    for t in dma_x(1):
        a(t)
    stamp(a, 1)
    a("v_mov_b32 v%d, v3" % (E0 + 8))
    a("v_mov_b32 v%d, v2" % (E0 + 9))
    e = E0
    a("s_xor_b32 s%d, s%d, s%d" % (sT1, sR, sC))
    a("v_lshrrev_b32 v1, 5, v0")
    a("v_and_b32 v%d, 31, v0" % (e + 1))
    a("v_lshlrev_b32 v%d, 7, v%d" % (e + 1, e + 1))
    a("v_bfe_u32 v%d, v0, 1, 3" % (e + 2))
    a("v_xor_b32 v%d, v%d, v1" % (e + 2, e + 2))
    a("s_lshl_b32 s%d, s%d, 1" % (sT0, sT1))
    a("v_xor_b32 v%d, s%d, v%d" % (e + 2, sT0, e + 2))
    a("v_lshl_add_u32 v%d, v%d, 4, v%d" % (e + 1, e + 2, e + 1))
    a("s_mul_i32 s%d, s%d, %d" % (sT0, sR, CH))
    a("s_add_u32 s%d, s%d, %d" % (sT0, sT0, REG))
    a("v_add_u32 v%d, s%d, v%d" % (vXA, sT0, e + 1))
    for t in range(1, 4):
        a("v_xor_b32 v%d, %d, v%d" % (vXA + t, 32 * t, vXA))
    a("v_bfe_u32 v%d, v0, 2, 2" % e)
    a("v_lshl_add_u32 v%d, v1, 3, v%d" % (e, e))
    a("v_lshlrev_b32 v%d, 7, v%d" % (e, e))
    a("v_bfe_u32 v%d, v0, 4, 1" % (e + 1))
    a("v_lshlrev_b32 v%d, 1, v%d" % (e + 1, e + 1))
    a("v_bfe_u32 v%d, v0, 1, 1" % (e + 2))
    a("v_add_u32 v%d, v%d, v%d" % (e + 1, e + 1, e + 2))
    a("s_lshl_b32 s%d, s%d, 2" % (sT0, sC))
    a("v_add_u32 v%d, s%d, v%d" % (e + 1, sT0, e + 1))
    a("v_bfe_u32 v%d, v0, 3, 1" % (e + 2))
    a("v_lshlrev_b32 v%d, 2, v%d" % (e + 2, e + 2))
    a("v_xor_b32 v%d, v%d, v%d" % (e + 1, e + 1, e + 2))
    a("v_lshl_add_u32 v%d, v%d, 4, v%d" % (e, e + 1, e))
    a("v_and_b32 v%d, 1, v0" % (e + 1))
    a("v_lshl_add_u32 v%d, v%d, 3, v%d" % (e, e + 1, e))
    for t in range(4):
        a("s_xor_b32 s%d, s%d, %d" % (sT0, sT1, t))
        a("s_mul_i32 s%d, s%d, %d" % (sT0, sT0, CH))
        a("v_add_u32 v%d, s%d, v%d" % (vA + t, sT0, e))
    for L in (dma_x(2), dma_b0(1)):
        for t in L:
            a(t)
    a("s_mov_b32 s%d, 0x3f803f80" % sOnes)
    a("v_lshrrev_b32 v%d, 4, v0" % (e + 1))
    a("v_bfe_u32 v%d, v0, 2, 2" % (e + 2))
    a("v_cmp_eq_u32 vcc, v%d, v%d" % (e + 1, e + 2))
    a("v_mov_b32 v%d, s%d" % (e + 1, sOnes))
    for t in range(4):
        a("v_cndmask_b32 v%d, 0, v%d, vcc" % (SEL + t, e + 1))

    class Rec:
        def __init__(self):
            self.L = []

        def __call__(self, t):
            self.L.append(t)
    r = Rec()
    srd(r, sW1, 50, D * 3 * D * 2)
    r("v_mul_u32_u24 v%d, 3840, v%d" % (vW1a, E0 + 8))
    r("v_add_u32 v%d, v%d, v%d" % (vW1a, vW1a, E0 + 9))
    r("v_add_u32 v%d, %d, v%d" % (vW1b, 8 * 3840 - 1024, vW1a))
    r("s_lshl_b32 s%d, s%d, 1" % (sT0, sLg))
    r("s_add_u32 s%d, s%d, s%d" % (sT0, sT0, sC))
    r("s_cmp_ge_u32 s%d, 27\ns_cselect_b32 s%d, 1, 0\ns_cselect_b32 s%d, 3, 0" % (sT0, sIsZ2, sZ2keep))
    r("s_lshl_b32 s%d, s%d, 2" % (sT2, sRb))
    r("s_add_u32 s%d, s%d, s%d" % (sT2, sT2, sR))
    r("s_mul_i32 s%d, s%d, %d" % (sA, sT2, NG_Z * 1024))
    r("s_add_u32 s%d, s%d, 0x%x" % (sA, sA, WS_Z))
    r("s_lshl_b32 s%d, s%d, 11" % (sOut, sT0))
    r("s_add_u32 s%d, s%d, s%d" % (sOut, sOut, sA))
    r("s_mov_b32 s%d, s%d" % (sOut0, sOut))
    r("s_lshl_b32 s%d, s%d, 12" % (sZ2w, sT2))
    r("s_lshl_b32 s%d, s%d, 8" % (sT0, sCg))
    r("s_add_u32 s%d, s%d, s%d" % (sZ2w, sZ2w, sT0))
    r("s_add_u32 s%d, s%d, 0x%x" % (sZ2w, sZ2w, WS_ST2))
    r("s_lshl_b32 s%d, s%d, 1" % (sT0, sCg))
    r("s_mul_i32 s%d, s%d, 3" % (sT1, sCg))
    r("s_sub_u32 s%d, s%d, 11" % (sT1, sT1))
    r("s_cmp_lt_u32 s%d, 12\ns_cselect_b32 s%d, s%d, s%d\ns_cselect_b32 s%d, 1, 0" % (sCg, sLg, sT0, sT1, sType))
    r("s_lshl_b32 s%d, s%d, 7" % (sW1off, sLg))
    r("s_mul_i32 s%d, s%d, %d" % (sOut2, sT2, NG_QKV * 1024))
    r("s_lshl_b32 s%d, s%d, 12" % (sT0, sLg))
    r("s_add_u32 s%d, s%d, s%d" % (sOut2, sOut2, sT0))
    r("s_lshl_b32 s%d, s%d, 11" % (sT1, sC))
    r("s_add_u32 s%d, s%d, s%d" % (sOut2, sOut2, sT1))
    r("s_sub_u32 s%d, s%d, 1" % (sLg, sLg))
    r("s_lshl_b32 s%d, s%d, 12" % (sT0, sCg))
    r("s_add_u32 s%d, s%d, s%d" % (sT0, sT0, sT1))
    r("s_add_u32 s%d, s%d, s%d" % (sT0, sT0, sA))
    r("s_sub_u32 s%d, s%d, 4096" % (sT1, sOut2))
    r1 = Rec()
    r1("s_cmp_lt_u32 s%d, 12" % sCg)
    r1("s_cselect_b32 s%d, s%d, s%d" % (sOut1, sT0, sT1))
    r1("s_cselect_b32 s%d, s%d, s%d" % (sUoff, sCg, sLg))
    csel(r1, sUstep, str(128 * 3456), str(128 * 3840))
    r1("s_cselect_b64 s[%d:%d], s[%d:%d], s[%d:%d]" % (sWu, sWu + 1, sW0, sW0 + 1, sW1, sW1 + 1))
    r1("s_cselect_b32 s%d, s%d, s%d" % (sWu + 2, sW0 + 2, sW1 + 2))
    r1("s_cselect_b64 vcc, -1, 0")
    r("\n".join(r1.L))
    r("s_mov_b32 s%d, 0x20000" % (sWu + 3))
    r("v_cndmask_b32 v%d, v%d, v%d, vcc" % (vUa, vW1a, vW0a))
    r("v_cndmask_b32 v%d, v%d, v%d, vcc" % (vUb, vW1b, vW0b))
    r("s_lshl_b32 s%d, s%d, 7" % (sUoff, sUoff))
    r("s_cmp_eq_u32 s%d, 1\ns_cselect_b32 s%d, 0x40000000, s%d" % (sOne, sUoff, sUoff))
    late = []
    srd(r, sWS, 62, WS_END)
    srd(r, sDBG, 60, 256)
    r("v_lshlrev_b32 v%d, 2, v1" % (e + 1))
    r("v_xor_b32 v%d, v%d, v0" % (e + 1, e + 1))
    r("v_lshlrev_b32 v%d, 4, v%d" % (vSt0, e + 1))
    r("v_xor_b32 v%d, 0x80, v%d" % (vSt1, vSt0))
    r("v_add_u32 v%d, 1024, v%d" % (vSt1, vSt1))
    r("s_lshl_b32 s%d, s%d, 10" % (sT0, sC))
    r("s_add_u32 s%d, s%d, %d" % (sT0, sT0, 3 * 4096))
    r("v_lshlrev_b32 v%d, 4, v0" % vCsR)
    r("v_add_u32 v%d, s%d, v%d" % (vCsR, sT0, vCsR))
    r("s_lshl_b32 s%d, s%d, 2" % (sT0, sR))
    r("v_add_u32 v%d, s%d, v%d" % (vCsW, sT0, vCsR))
    r("v_mov_b32 v%d, 0" % ZSUM)
    r("v_mov_b32 v%d, 0" % ZSQ)
    r("s_mov_b32 s%d, %d" % (sDelta, REG))
    r("s_mov_b32 s%d, 0" % sReady)
    r("s_lshl_b32 s%d, s%d, 10" % (sT2, sRb))
    r("s_add_u32 s%d, s%d, 0x%x" % (sT2, sT2, WS_FL))
    r("s_cmp_eq_u32 s%d, 0\ns_cselect_b32 s%d, 2, 99" % (sW, sL1))
    r("s_cmp_eq_u32 s%d, 0\ns_cselect_b32 s%d, 2, 99" % (sC, sL0))
    late += r.L
    nlate = spread(len(late), 16) + [0] * 24

    seq = ["x0", "b0", "x1", "x2", "b1"]
    plan = {-1: ["x3", "x4"], 0: ["b2", "x5"], 1: ["x6"], 2: ["b3", "x7"], 3: ["x8"], 4: ["b4", "x9"],
            5: ["u0"], 6: ["u1"], 7: ["u2"], 8: ["u3"], 9: ["u4"]}
    q = LdsQ(a)

    def dma_list(it):
        return dma_x(int(it[1:])) if it[0] == "x" else dma_b0(int(it[1:])) if it[0] == "b" else dma_u(int(it[1:]))

    def xread(hp, t):
        x = X0 + 16 * hp + 4 * t
        q.issue("ds_read_b128 v[%d:%d], v%d offset:%d" % (x, x + 3, vXA + t, (hp % 5) * 4096), "x%d" % hp)

    def stats(x, first):
        def c(r_):
            return "0" if first else "v[%d:%d]" % (r_, r_ + 3)
        a("v_mfma_f32_4x4x4_16b_bf16 v[%d:%d], v[%d:%d], v[%d:%d], %s" % (XQ, XQ + 3, x, x + 1, x, x + 1, c(XQ)))
        a("v_mfma_f32_4x4x4_16b_bf16 v[%d:%d], v[%d:%d], v[%d:%d], %s" % (XQ2, XQ2 + 3, x + 2, x + 3, x + 2, x + 3, c(XQ2)))
        a("v_mfma_f32_16x16x32_bf16 v[%d:%d], v[%d:%d], v[%d:%d], %s" % (XS, XS + 3, SEL, SEL + 3, x, x + 3, c(XS)))

    def vmwait(need):
        last = max(seq.index(n) for n in need)
        a("s_waitcnt vmcnt(%d)" % (2 * (len(seq) - 1 - last)))

    vmwait(["x0", "b0"])
    a("s_barrier")
    stamp(a, 2)
    for t in range(4):
        xread(0, t)
    for j in range(3):
        frag_reads(q, 0, j)
    for it in plan[-1]:
        for t in dma_list(it):
            a(t)
        seq.append(it)
    lp = 0
    for h in range(10):
        i, hh = h >> 1, h & 1
        need = []
        if h < 9:
            need.append("x%d" % (h + 1))
        if hh == 1:
            need.append("b%d" % (i + 1) if i < 4 else "u0")
        q.wait("x%d" % h)
        vmwait(need)
        a("s_barrier")
        if h in (2, 4, 6, 8):
            stamp(a, 2 + i)
        dl = []
        for it in plan[h]:
            dl.append(dma_list(it))
            seq.append(it)
        if h == 9:
            stats(X0 + 16 * h, False)
            stats(X0 + 16 * h + 8, False)
        for t in range(4):
            j = 4 * hh + t
            x = X0 + 32 * i + 4 * j
            q.wait("f%d" % j)
            mfma(a, i, j)
            if h == 9 and t == 2:
                q.issue("ds_write_b32 v%d, v%d" % (vCsW, CSA), "csw")
                a("v_add_u32 v%d, s%d, v%d" % (vCsW, sDelta, vCsW))
            jn = j + 3
            if jn < 8:
                frag_reads(q, i, jn)
            else:
                frag_reads(q, (i + 1) % 5, jn - 8)
            if i == 4 and 1 <= j <= 4:
                tt = (j + 3) & 3
                a("v_add_u32 v%d, s%d, v%d" % (vA + tt, sDelta, vA + tt))
            if h < 9 and t < 2:
                xread(h + 1, 2 * t)
                xread(h + 1, 2 * t + 1)
            n, half = t >> 1, t & 1
            if len(dl) == 1:
                n, half = 0, (0 if t == 0 else 1 if t == 2 else None)
            if half == 0:
                a(dl[n][0])
                a(dl[n][1])
            elif half == 1:
                a(dl[n][2])
                a(dl[n][3])
            for tx in late[lp:lp + nlate[4 * h + t]]:
                a(tx)
            lp += nlate[4 * h + t]
            if t == 0:
                cs_mfma(a, i, j)
            if h < 9 and (t & 1) == 0:
                stats(x, h == 0 and t == 0)
            if h == 9 and t == 0:
                a("v_and_b32 v1, 3, v0")
                for tt in range(4):
                    a("v_add_f32 v%d, v%d, v%d" % (XQ + tt, XQ + tt, XQ2 + tt))
                for tt in range(1, 4):
                    a("v_cmp_eq_u32 vcc, %d, v1" % tt)
                    a("v_cndmask_b32 v%d, v%d, v%d, vcc" % (XQ, XQ, XQ + tt))
                a("v_mov_b32 v%d, v%d" % (XQ + 1, XS))
                a("s_lshl_b32 s%d, s%d, 9" % (sT0, sW))
                a("s_add_u32 s%d, s%d, %d" % (sT0, sT0, CH + 3 * 4096))
                a("v_lshlrev_b32 v1, 3, v0")
                a("v_add_u32 v1, s%d, v1" % sT0)
                q.issue("ds_write_b64 v1, v[%d:%d]" % (XQ, XQ + 1), "stw")
                a("v_xor_b32 v1, 0x800, v1")
            if h == 9 and t == 1:
                q.wait("stw")
                a("s_barrier")
                q.issue("ds_read_b64 v[%d:%d], v1" % (XQ + 2, XQ + 3), "str")
    assert lp == len(late)
    q.wait("str")
    assert q.q == INQ2[2:], q.q
    sq, sm, t0, t1 = XQ, XQ + 1, XQ + 2, XQ + 3
    a("v_add_f32 v%d, v%d, v%d" % (sq, sq, t0))
    a("v_add_f32 v%d, v%d, v%d" % (sm, sm, t1))
    a("v_mov_b32 v%d, v%d" % (t0, sq))
    a("v_mov_b32 v%d, v%d" % (t1, sm))
    a("v_permlane32_swap_b32 v%d, v%d" % (sq, t0))
    a("v_permlane32_swap_b32 v%d, v%d" % (sm, t1))
    a("v_add_f32 v%d, v%d, v%d" % (sq, sq, t0))
    a("v_add_f32 v%d, v%d, v%d" % (sm, sm, t1))
    a("v_mul_f32 v%d, %s, v%d" % (NEGMU, fhex(-1.0 / D), sm))
    a("v_mul_f32 v%d, %s, v%d" % (sq, fhex(1.0 / D), sq))
    a("v_fma_f32 v%d, -v%d, v%d, v%d" % (sq, NEGMU, NEGMU, sq))
    a("v_max_f32 v%d, 0, v%d" % (sq, sq))
    a("v_add_f32 v%d, %s, v%d" % (sq, fhex(1e-5), sq))
    a("v_rsq_f32 v%d, v%d" % (RSTD, sq))
    a("v_sqrt_f32 v%d, v%d" % (IRSTD, sq))
    a("v_mul_f32 v%d, %s, v%d" % (RL, fhex(LOG2E), RSTD))
    a("v_mul_f32 v%d, %s, v%d" % (K1c, fhex(GC1), RSTD))
    a("v_mul_f32 v%d, v%d, v%d" % (K2c, RSTD, RSTD))
    a("v_mul_f32 v%d, v%d, v%d" % (K2c, K2c, RSTD))
    a("v_mul_f32 v%d, %s, v%d" % (K2c, fhex(GC2), K2c))
    a("s_mov_b32 s%d, 1" % sLine)
    stamp(a, 7)
    a("s_cmp_eq_u32 s%d, 1" % sOne)
    a("s_cbranch_scc1 K1_tail")
    a("s_sub_u32 s%d, s%d, s%d" % (sWb, sWb, sDelta))
    a("s_lshl_b32 s%d, s%d, 2" % (sT0, sRb))
    a("s_mov_b32 s%d, 0" % sZok)
    a("s_cmp_lg_u32 s%d, 0" % sW)
    a("s_cbranch_scc1 K1_nozl")
    a("s_load_dword s%d, s[60:61], s%d" % (sZok, sT0))
    a("K1_nozl:")
    srd(a, sX, 58, S * S * 2)
    a("s_mul_i32 s%d, s%d, 14" % (sXoff, sRb))
    a("s_add_u32 s%d, s%d, s%d" % (sXoff, sXoff, sCg))
    a("s_lshl_b32 s%d, s%d, 3" % (sXoff, sXoff))
    a("s_add_u32 s%d, s%d, s%d" % (sXoff, sXoff, sW))
    a("s_mul_i32 s%d, s%d, %d" % (sXoff, sXoff, PFL * 128))
    a("s_add_u32 s%d, s%d, %d" % (sXoff, sXoff, (65536 - PFREST) * 128))
    a("v_min_u32 v%d, %d, v0" % (vPf, max(PFL - 1, 0)))
    a("v_lshlrev_b32 v%d, 7, v%d" % (vPf, vPf))
    a("K1_bodyG:")
    body(a, "G")
    a("s_cmp_eq_u32 s%d, 1" % sType)
    a("s_mov_b32 s%d, 0" % sType)
    a("s_cbranch_scc1 K1_bodyG")
    a("s_cmp_eq_u32 s%d, 2" % sLine)
    a("s_cbranch_scc1 K1_bodyP")
    a("K1_bodyL:")
    body(a, "P", last=True)
    a("K1_tail:")
    tail_common(a)
    a("s_cmp_eq_u32 s%d, 1" % sOne)
    a("s_cbranch_scc1 K1_tailG")
    tail(a, "P")
    a("K1_tailG:")
    tail(a, "G")
    a("K1_bodyP:")
    body(a, "P")
    a("s_branch K1_bodyL")
    flush_rare(a)

    a("K1_side:")
    a("s_waitcnt lgkmcnt(0)")
    srd(a, sX, 52, D * D * 2)
    srd(a, sW0, 56, FH * D * 2)
    srd(a, sWS, 62, WS_END)
    a("s_cmp_lg_u32 s%d, 6" % sW)
    a("s_cbranch_scc1 K1_nofl")
    srd(a, sDBG, 60, 256)
    a("v_mov_b32 v8, 0")
    a("v_mov_b32 v9, 1")
    a("v_lshlrev_b32 v6, 2, v0")
    a("s_lshl_b32 s%d, s%d, 10" % (sT0, sRb))
    a("s_add_u32 s%d, s%d, 0x%x" % (sT0, sT0, WS_FL))
    a("buffer_store_dword v8, v6, s[%d:%d], s%d offen sc1" % (sWS, sWS + 3, sT0))
    a("s_lshl_b32 s%d, s%d, 2" % (sT0, sRb))
    a("s_waitcnt vmcnt(0)")
    a("s_mov_b64 exec, 1")
    a("buffer_store_dword v9, off, s[%d:%d], s%d sc1" % (sDBG, sDBG + 3, sT0))
    a("s_mov_b64 exec, -1")
    stamp(a, 1)
    a("K1_nofl:")
    a("s_barrier")
    a("s_cmp_lt_u32 s%d, 4" % sRb)
    a("s_cselect_b32 s%d, s52, s56" % sW1)
    a("s_cselect_b32 s%d, s53, s57" % (sW1 + 1))
    csel(a, sW1 + 2, hex(D * D * 2), hex(FH * D * 2))
    a("s_cselect_b32 s%d, 16, -4" % sT1)
    a("s_and_b32 s%d, s%d, 0xffff" % (sW1 + 1, sW1 + 1))
    a("s_mov_b32 s%d, 0x20000" % (sW1 + 3))
    a("v_lshrrev_b32 v1, 3, v0")
    a("s_lshl_b32 s%d, s%d, 3" % (sT0, sR))
    a("v_add_u32 v2, s%d, v1" % sT0)
    a("v_mul_u32_u24 v2, 1280, v2")
    a("v_and_b32 v3, 7, v0")
    a("v_lshl_add_u32 v2, v3, 4, v2")
    a("s_mul_i32 s%d, s%d, 640" % (sT0, sC))
    a("v_add_u32 v2, s%d, v2" % sT0)
    a("s_mul_i32 s%d, s%d, %d" % (sXoff, sRb, 32 * 1280))
    a("s_add_u32 s%d, s%d, s%d" % (sT1, sRb, sT1))
    a("s_mul_i32 s%d, s%d, %d" % (sW1off, sT1, 32 * 1280))
    a("s_add_u32 s%d, s%d, %d" % (sW0off, sXoff, 12 * 32 * 1280))
    for n, (sd, so) in enumerate(((sX, sXoff), (sW1, sW1off), (sW0, sW0off))):
        for t in range(5):
            d = 32 + 20 * n + 4 * t
            a("buffer_load_dwordx4 v[%d:%d], v2, s[%d:%d], s%d offen offset:%d" % (d, d + 3, sd, sd + 3, so, 128 * t))
    a("v_and_b32 v4, 1, v0")
    a("v_xor_b32 v5, s%d, v4" % sR)
    a("v_lshl_add_u32 v5, v5, 3, v1")
    a("v_lshlrev_b32 v5, 4, v5")
    a("v_lshl_add_u32 v5, v4, 9, v5")
    a("v_lshrrev_b32 v3, 1, v3")
    a("v_lshl_add_u32 v5, v3, 10, v5")
    for t in range(4):
        a("v_mov_b32 v%d, 0" % (8 + t))
    a("v_lshlrev_b32 v6, 4, v0")
    a("s_mul_i32 s%d, s%d, 6" % (sT0, sRb))
    a("s_add_u32 s%d, s%d, s%d" % (sT0, sT0, sW))
    a("s_lshl_b32 s%d, s%d, 10" % (sT0, sT0))
    a("s_add_u32 s%d, s%d, 0x%x" % (sT0, sT0, WS_KV))
    a("s_cmp_ge_u32 s%d, 6" % sW)
    a("s_cbranch_scc1 K1_noz")
    a("buffer_store_dwordx4 v[8:11], v6, s[%d:%d], s%d offen sc1" % (sWS, sWS + 3, sT0))
    a("K1_noz:")
    a("s_mul_i32 s%d, s%d, 40" % (sT0, sRb))
    a("s_mul_i32 s%d, s%d, 20" % (sT1, sC))
    a("s_add_u32 s%d, s%d, s%d" % (sT0, sT0, sT1))
    a("s_lshl_b32 s%d, s%d, 10" % (sT0, sT0))
    a("s_add_u32 s%d, s%d, 0x%x" % (sT2, sT0, WS_B3))
    pf_wsp(a, 0, N15)
    a("s_waitcnt vmcnt(%d)" % N15)
    for n in range(3):
        if n == 2:
            a("s_cmp_eq_u32 s%d, 15" % sRb)
            a("s_cbranch_scc1 K1_pf15")
        for t in range(5):
            d = 32 + 20 * n + 4 * t
            a("s_add_u32 s%d, s%d, %d" % (sT1, sT2, (n * 16 * 40 + 4 * t) * 1024))
            a("buffer_store_dwordx4 v[%d:%d], v5, s[%d:%d], s%d offen sc1" % (d, d + 3, sWS, sWS + 3, sT1))
    a("K1_pf15:")
    stamp(a, 13)
    if STAMP:
        a("s_waitcnt vmcnt(0)")
    stamp(a, 14)
    stamp_dump(a, 15, sWS, sW, WS_STAMP)
    a(end + ":")
    a("s_endpgm")
```

```python
from asmlib import *
from common import *
from k1 import srd, csel, stamp, stamp_dump, STAMP, WS_STAMP, EXP, spread
import k1

STG = 22528
NST = 7
SIDE = 5 * STG
OSC = NST * STG
K23_LDS = OSC + 5120
XSP = 18432
assert SIDE + 4 * 8192 <= OSC
CNT_KV = WS_CNT
CNT_O = WS_CNT + 4096
CNT_U = WS_CNT + 8192

ACC = 224
FA = (128, 176)
Z1R = 112
DO = 80
ACB = 80
KVF = 48
XR = 36
FRA, FRB = 0.6, 0.6
H_SIG = 3
LH = [9, 12, 15, 22]
PO = (25, 27)
PU = (37, 39)
PQR = 36
T = 24
vL16, vLA, vLB0, vA, vB0, vB1, vAt = 10, 11, 12, 13, 14, 15, 16
vBias, vPoll, vZa, vZb, vO = 19, 20, 21, 22, 23
vXl = 20
vLA3, vLB3 = 8, 9
vAd0, vAd1 = 8, 9
vT0, vT1, vT2, vT3, vXd = 11, 12, 13, 14, 15
sA, sBS, sX, sWS, sO = 4, 8, 12, 16, 20
sA3, sB3 = 8, 12
sI, sJ, sW, sRR, sCC = 24, 25, 26, 27, 28
sAoff, sBoff, sRd, sWr, sIt, sHook = 29, 30, 31, 32, 33, 34
sT0, sT1, sT2, sT3 = 36, 37, 38, 39
sMA, sMB, sHd, sCnt, sKv, sOdd = 40, 41, 42, 43, 44, 45
sA3off, sB3off, sMB3, sCntI = 56, 57, 58, 59
sXo0, sXo1 = 60, 61
sWk, sKvW, sCntW = 64, 65, 66
assert k1.sT0 == sT0


def ring(s):
    return "s_add_u32 s%d, s%d, %d\ns_cmp_eq_u32 s%d, %d\ns_cselect_b32 s%d, 0, s%d" % (s, s, STG, s, NST * STG, s, s)


def dma_A(a):
    a("s_add_u32 m0, s%d, s%d" % (sWr, sMA))
    a("buffer_load_dwordx4 v%d, s[%d:%d], s%d offen lds" % (vAd0, sA, sA + 3, sAoff))
    a("buffer_load_dwordx4 v%d, s[%d:%d], s%d offen offset:1024 lds" % (vAd1, sA, sA + 3, sAoff))
    a("s_add_u32 m0, s%d, s%d" % (sWr, sMB))
    for t in range(3):
        a("buffer_load_dwordx4 v%d, s[%d:%d], s%d offen offset:%d lds" % (vL16, sWS, sWS + 3, sBoff, 1024 * t))
    lab = a.label("Lsk")
    a("s_cbranch_vccnz %s" % lab)
    a("buffer_load_dwordx4 v%d, s[%d:%d], s%d offen offset:3072 lds" % (vL16, sWS, sWS + 3, sBoff))
    a(lab + ":")
    a("s_add_u32 s%d, s%d, 128" % (sAoff, sAoff))
    a("s_add_u32 s%d, s%d, %d" % (sBoff, sBoff, 2 * NG_Z * 1024))
    a(ring(sWr))


def dma_B(a):
    a("s_add_u32 m0, s%d, s%d" % (sWr, sMB3))
    for t in range(2):
        a("buffer_load_dwordx4 v%d, s[%d:%d], s%d offen offset:%d lds" % (vL16, sB3, sB3 + 3, sB3off, 1024 * t))
    lab = a.label("Lsk")
    a("s_cbranch_vccnz %s" % lab)
    a("buffer_load_dwordx4 v%d, s[%d:%d], s%d offen offset:2048 lds" % (vL16, sB3, sB3 + 3, sB3off))
    a(lab + ":")
    a("s_add_u32 m0, s%d, s%d" % (sWr, sMA))
    for t in range(2):
        a("buffer_load_dwordx4 v%d, s[%d:%d], s%d offen offset:%d sc1 lds" % (vL16, sA3, sA3 + 3, sA3off, 1024 * t))
    a("s_add_u32 s%d, s%d, 4096" % (sA3off, sA3off))
    a("s_add_u32 s%d, s%d, %d" % (sB3off, sB3off, 80 * 1024))
    a(ring(sWr))


def read_A(fs):
    L = []
    L.append("v_add_u32 v%d, s%d, v%d" % (vA, sRd, vLA))
    L.append("v_add_u32 v%d, s%d, v%d" % (vB0, sRd, vLB0))
    L.append("v_xor_b32 v%d, 64, v%d" % (vB1, vB0))
    for k in range(4):
        if k:
            L.append("v_xor_b32 v%d, %d, v%d" % (vAt + k - 1, 32 * k, vA))
        d = fs + 4 * k
        L.append("ds_read_b128 v[%d:%d], v%d" % (d, d + 3, vA if k == 0 else vAt + k - 1))
        for pr in range(2):
            d = fs + 16 + 8 * k + 4 * pr
            off = 8192 + (k >> 1) * 7168 + pr * 2048 + (k & 1) * 256
            L.append("ds_read_b64_tr_b16 v[%d:%d], v%d offset:%d" % (d, d + 1, vB0, off))
            L.append("ds_read_b64_tr_b16 v[%d:%d], v%d offset:%d" % (d + 2, d + 3, vB1, off))
    L.append(ring(sRd))
    return L


def read_B(fs):
    L = []
    L.append("v_add_u32 v%d, s%d, v%d" % (vA, sRd, vLA3))
    L.append("v_add_u32 v%d, s%d, v%d" % (vB0, sRd, vLB3))
    L.append("v_xor_b32 v%d, 0x80, v%d" % (vB1, vB0))
    for k in range(2):
        for rt in range(2):
            d = fs + 8 * k + 4 * rt
            L.append("ds_read_b128 v[%d:%d], v%d offset:%d" % (d, d + 3, vA, k * 2048 + rt * 256))
        for ct in range(3):
            d = fs + 16 + 12 * k + 4 * ct
            off = 8192 + k * 5120 + ct * 1024
            L.append("ds_read_b64_tr_b16 v[%d:%d], v%d offset:%d" % (d, d + 1, vB0, off))
            L.append("ds_read_b64_tr_b16 v[%d:%d], v%d offset:%d" % (d + 2, d + 3, vB1, off))
    L.append(ring(sRd))
    return L


def mf_A(cur):
    L = []
    for n in range(8):
        k, pr = n >> 1, n & 1
        fb, fa, acc = cur + 16 + 8 * k + 4 * pr, cur + 4 * k, ACC + 16 * pr
        L.append("v_mfma_f32_32x32x16_bf16 v[%d:%d], v[%d:%d], v[%d:%d], v[%d:%d]" % (
            acc, acc + 15, fb, fb + 3, fa, fa + 3, acc, acc + 15))
    return L


def mf_B(cur):
    L = []
    for k in range(2):
        for ct in range(3):
            for rt in range(2):
                fb, fa, acc = cur + 16 + 12 * k + 4 * ct, cur + 8 * k + 4 * rt, ACB + 12 * rt + 4 * ct
                L.append("v_mfma_f32_16x16x32_bf16 v[%d:%d], v[%d:%d], v[%d:%d], v[%d:%d]" % (
                    acc, acc + 3, fb, fb + 3, fa, fa + 3, acc, acc + 3))
    return L


def cstage(a, mf, rd, frac, barrier=True):
    a("s_waitcnt lgkmcnt(0)")
    if barrier:
        a("s_barrier")
    if "nomf" in EXP:
        mf = ["s_nop 0"] * len(mf)
    if "nord" in EXP:
        rd = [t for t in rd if not t.startswith("ds_")]
    ns = max(1, int(len(mf) * frac))
    nr = spread(len(rd), ns) + [0] * (len(mf) - ns)
    p = 0
    for n, m in enumerate(mf):
        a(m)
        for t in rd[p:p + nr[n]]:
            a(t)
        p += nr[n]


def quad_addr(a, dst, vq, swz, t0, t1):
    a("v_and_b32 v%d, 1, v%d" % (t0, vq))
    if swz:
        a("v_bfe_u32 v%d, v%d, 2, 1" % (t1, vq))
        a("v_lshl_add_u32 v%d, v%d, 1, v%d" % (t1, t1, t0))
        a("v_lshlrev_b32 v%d, 2, v%d" % (t1, t1))
        a("v_xor_b32 v%d, v%d, v2" % (t1, t1))
        a("v_lshl_add_u32 v%d, v%d, 5, v%d" % (t0, t0, t1))
    else:
        a("v_lshl_add_u32 v%d, v%d, 5, v2" % (t0, t0))
    a("v_lshlrev_b32 v%d, 4, v%d" % (t0, t0))
    a("v_bfe_u32 v%d, v%d, 1, 1" % (t1, vq))
    a("v_lshl_add_u32 v%d, v%d, 3, v%d" % (t0, t1, t0))
    a("v_lshrrev_b32 v%d, 2, v%d" % (t1, vq))
    a("v_lshl_add_u32 v%d, v%d, 10, v%d" % (dst, t1, t0))


def srd_off(a, d, plo, off, nbytes):
    a("s_add_u32 s%d, s%d, 0x%x" % (d, plo, off))
    a("s_addc_u32 s%d, s%d, 0" % (d + 1, plo + 1))
    a("s_and_b32 s%d, s%d, 0xffff" % (d + 1, d + 1))
    a("s_mov_b32 s%d, 0x%x" % (d + 2, nbytes))
    a("s_mov_b32 s%d, 0x20000" % (d + 3))


def signal(a, scnt, off=0, n=0):
    a("s_waitcnt vmcnt(%d)" % n)
    a("v_mov_b32 v%d, 1" % T)
    a("v_mov_b32 v%d, 0" % (T + 1))
    a("s_mov_b64 exec, 1")
    a("buffer_atomic_add v%d, v%d, s[%d:%d], s%d offen offset:%d sc1" % (T, T + 1, sWS, sWS + 3, scnt, off))
    a("s_mov_b64 exec, -1")


def poll_issue(a, scnt, off=0):
    a("v_mov_b32 v%d, 0" % T)
    a("buffer_load_dword v%d, v%d, s[%d:%d], s%d offen offset:%d sc1" % (vPoll, T, sWS, sWS + 3, scnt, off))


def poll_check(a, scnt, off=0, target=32, n=0):
    l0, l1 = a.label("Lchk"), a.label("Lok")
    a("s_waitcnt vmcnt(%d)" % n)
    a(l0 + ":")
    a("v_readfirstlane_b32 s%d, v%d" % (sT0, vPoll))
    a("s_cmp_eq_u32 s%d, %d" % (sT0, target))
    a("s_cbranch_scc1 %s" % l1)
    poll_issue(a, scnt, off)
    a("s_waitcnt vmcnt(0)")
    a("s_branch %s" % l0)
    a(l1 + ":")


def gen_k23(a, label):
    a(".p2align 8")
    a(label + ":")
    end = "K2_end"
    a("s_cmp_ge_u32 s2, 256")
    a("s_cbranch_scc1 %s" % end)
    stamp(a, 0)
    a("s_load_dwordx4 s[48:51], s[0:1], %d" % KA_WSP)
    a("s_load_dwordx2 s[52:53], s[0:1], %d" % KA_WS)
    a("s_load_dwordx2 s[54:55], s[0:1], %d" % KA_X)
    a("s_load_dwordx2 s[62:63], s[0:1], %d" % KA_OUT)
    a("v_lshrrev_b32 v1, 6, v0")
    a("v_and_b32 v0, 63, v0")
    a("v_readfirstlane_b32 s%d, v1" % sW)
    a("v_lshlrev_b32 v%d, 4, v0" % vL16)
    a("s_bfe_u32 s%d, s2, 0x20001" % sI)
    a("s_lshl_b32 s%d, s%d, 3" % (sI, sI))
    a("s_lshr_b32 s%d, s2, 5" % sT0)
    a("s_add_u32 s%d, s%d, s%d" % (sI, sI, sT0))
    a("s_and_b32 s%d, s2, 1" % sJ)
    a("s_lshl_b32 s%d, s%d, 2" % (sJ, sJ))
    a("s_bfe_u32 s%d, s2, 0x20003" % sT0)
    a("s_add_u32 s%d, s%d, s%d" % (sJ, sJ, sT0))
    a("s_and_b32 s%d, s%d, 1" % (sRR, sW))
    a("s_bfe_u32 s%d, s%d, 0x10001" % (sCC, sW))
    a("s_cmp_ge_u32 s%d, 4" % sW)
    a("s_cbranch_scc1 K2_loader")

    a("s_lshl_b32 s%d, s%d, 2" % (sHd, sJ))
    a("s_add_u32 s%d, s%d, s%d" % (sHd, sHd, sW))
    a("s_and_b32 s%d, s%d, 3" % (sWk, sI))
    a("s_andn2_b32 s%d, s%d, 3" % (sT0, sI))
    a("s_add_u32 s%d, s%d, s%d" % (sT0, sT0, sW))
    a("s_mul_i32 s%d, s%d, %d" % (sT0, sT0, 2 * NG_QKV))
    a("s_mul_i32 s%d, s%d, 5" % (sT1, sJ))
    a("s_add_u32 s%d, s%d, s%d" % (sT0, sT0, sT1))
    a("s_add_u32 s%d, s%d, s%d" % (sT0, sT0, sWk))
    a("s_lshl_b32 s%d, s%d, 10" % (sT0, sT0))
    a("s_add_u32 s%d, s%d, %d" % (sT0, sT0, WS_QKV + 40 * 1024))
    a("s_lshl_b32 s%d, s%d, 13" % (sT2, sW))
    a("s_add_u32 s%d, s%d, %d" % (sT2, sT2, SIDE))
    a("s_mov_b32 s%d, 0" % sRd)
    a("s_waitcnt lgkmcnt(0)")
    srd(a, sWS, 52, WS_END)
    for n in range(4):
        a("s_add_u32 m0, s%d, %d" % (sT2, 2048 * n))
        a("s_add_u32 s%d, s%d, %d" % (sT1, sT0, ((n & 1) * NG_QKV + (n >> 1) * 40) * 1024))
        a("buffer_load_dwordx4 v%d, s[%d:%d], s%d offen lds" % (vL16, sWS, sWS + 3, sT1))
        a("buffer_load_dwordx4 v%d, s[%d:%d], s%d offen offset:1024 lds" % (vL16, sWS, sWS + 3, sT1))
    srd(a, sBS, 50, S * 2)
    srd(a, sO, 62, S * D * 2)
    a("v_lshrrev_b32 v1, 4, v0")
    a("v_and_b32 v2, 15, v0")
    a("v_and_b32 v3, 1, v1")
    a("v_lshrrev_b32 v4, 1, v1")
    a("v_lshl_add_u32 v5, v3, 5, v2")
    a("v_lshlrev_b32 v5, 4, v5")
    a("v_lshl_add_u32 v5, v4, 10, v5")
    a("s_lshl_b32 s%d, s%d, 12" % (sT0, sRR))
    a("v_add_u32 v%d, s%d, v5" % (vLA3, sT0))
    a("v_lshrrev_b32 v5, 2, v2")
    a("v_lshl_add_u32 v5, v3, 2, v5")
    a("v_lshl_add_u32 v5, v4, 4, v5")
    a("v_bfe_u32 v6, v0, 1, 1")
    a("v_mul_u32_u24 v6, 40, v6")
    a("v_add_u32 v5, v5, v6")
    a("v_lshlrev_b32 v5, 4, v5")
    a("v_and_b32 v6, 1, v0")
    a("v_lshl_add_u32 v5, v6, 3, v5")
    a("s_lshl_b32 s%d, s%d, 11" % (sT0, sCC))
    a("v_add_u32 v%d, s%d, v5" % (vLB3, sT0))
    a("v_mul_u32_u24 v%d, 160, v2" % vXl)
    a("v_lshl_add_u32 v%d, v1, 3, v%d" % (vXl, vXl))
    a("s_mul_i32 s%d, s%d, %d" % (sT0, sRR, 2 * STG))
    a("s_lshl_b32 s%d, s%d, 6" % (sT1, sCC))
    a("s_add_u32 s%d, s%d, s%d" % (sT0, sT0, sT1))
    a("s_add_u32 s%d, s%d, %d" % (sT0, sT0, XSP))
    a("v_add_u32 v%d, s%d, v%d" % (vXl, sT0, vXl))
    a("v_mul_u32_u24 v%d, 1280, v2" % vO)
    a("v_lshl_add_u32 v%d, v1, 3, v%d" % (vO, vO))
    a("s_lshl_b32 s%d, s%d, 1" % (sT3, sI))
    a("s_add_u32 s%d, s%d, s%d" % (sT3, sT3, sRR))
    a("s_mul_i32 s%d, s%d, %d" % (sXo0, sT3, 32 * 1280))
    a("s_mul_i32 s%d, s%d, 160" % (sT0, sJ))
    a("s_add_u32 s%d, s%d, s%d" % (sXo0, sXo0, sT0))
    a("s_lshl_b32 s%d, s%d, 6" % (sT0, sCC))
    a("s_add_u32 s%d, s%d, s%d" % (sXo0, sXo0, sT0))
    a("s_add_u32 s%d, s%d, %d" % (sXo1, sXo0, 16 * 1280))
    a("v_lshrrev_b32 v1, 5, v0")
    a("v_and_b32 v2, 31, v0")
    a("s_lshl_b32 s%d, s%d, 5" % (sT1, sRR))
    a("v_add_u32 v3, s%d, v2" % sT1)
    a("v_lshlrev_b32 v%d, 7, v3" % vLA)
    a("v_bfe_u32 v3, v0, 1, 3")
    a("v_xor_b32 v3, v3, v1")
    a("v_lshl_add_u32 v%d, v3, 4, v%d" % (vLA, vLA))
    a("v_bfe_u32 v3, v0, 2, 2")
    a("v_lshl_add_u32 v3, v1, 3, v3")
    a("v_and_b32 v4, 1, v0")
    a("v_bfe_u32 v5, v0, 4, 1")
    a("s_add_u32 s%d, s%d, s%d" % (sT1, sJ, sCC))
    a("v_add_u32 v6, s%d, v5" % sT1)
    a("v_and_b32 v6, 1, v6")
    a("v_lshl_add_u32 v6, v6, 1, v4")
    a("v_lshlrev_b32 v6, 2, v6")
    a("v_xor_b32 v6, v6, v3")
    a("v_lshl_add_u32 v6, v4, 5, v6")
    a("v_lshlrev_b32 v6, 4, v6")
    a("v_bfe_u32 v7, v0, 1, 1")
    a("v_lshl_add_u32 v6, v7, 3, v6")
    a("v_lshl_add_u32 v6, v5, 10, v6")
    a("s_mul_i32 s%d, s%d, 3072" % (sT1, sCC))
    a("v_add_u32 v%d, s%d, v6" % (vLB0, sT1))
    a("v_and_b32 v6, 3, v0")
    a("v_lshl_add_u32 v6, v5, 2, v6")
    a("v_min_u32 v6, 4, v6")
    a("v_add_u32 v6, s%d, v6" % sWk)
    a("v_and_b32 v4, 1, v6")
    a("v_lshrrev_b32 v5, 2, v6")
    a("s_add_u32 s%d, s%d, s%d" % (sT1, sJ, sWk))
    a("v_add_u32 v7, s%d, v5" % sT1)
    a("v_and_b32 v7, 1, v7")
    a("v_lshl_add_u32 v7, v7, 1, v4")
    a("v_lshlrev_b32 v7, 2, v7")
    a("v_xor_b32 v7, v7, v3")
    a("v_lshl_add_u32 v7, v4, 5, v7")
    a("v_lshlrev_b32 v7, 4, v7")
    a("v_bfe_u32 v4, v6, 1, 1")
    a("v_lshl_add_u32 v7, v4, 3, v7")
    a("v_lshl_add_u32 v7, v5, 10, v7")
    a("v_add_u32 v%d, s%d, v7" % (T, sT2))
    a("v_xor_b32 v%d, 64, v%d" % (T + 1, T))
    a("v_cmp_eq_u32 s[46:47], 20, v2")
    a("v_mov_b32 v%d, 0x3f803f80" % (T + 2))
    a("v_lshlrev_b32 v%d, 9, v1" % (T + 3))
    a("v_lshl_add_u32 v%d, v2, 2, v%d" % (T + 3, T + 3))
    a("s_mul_i32 s%d, s%d, 2560" % (sKv, sHd))
    a("s_add_u32 s%d, s%d, 0x%x" % (sKv, sKv, WS_KV))
    a("s_lshl_b32 s%d, s%d, 7" % (sCnt, sHd))
    a("s_add_u32 s%d, s%d, 0x%x" % (sCnt, sCnt, CNT_KV))
    a("s_lshl_b32 s%d, s%d, 2" % (sT0, sJ))
    a("s_add_u32 s%d, s%d, s%d" % (sT0, sT0, sWk))
    a("s_mul_i32 s%d, s%d, 2560" % (sKvW, sT0))
    a("s_lshl_b32 s%d, s%d, 10" % (sT1, sW))
    a("s_add_u32 s%d, s%d, s%d" % (sKvW, sKvW, sT1))
    a("s_add_u32 s%d, s%d, 0x%x" % (sKvW, sKvW, WS_KV))
    a("s_lshl_b32 s%d, s%d, 7" % (sCntW, sT0))
    a("s_add_u32 s%d, s%d, 0x%x" % (sCntW, sCntW, CNT_KV))
    a("v_add_u32 v%d, s%d, v%d" % (T + 4, sT2, vL16))
    a("s_add_u32 s%d, s%d, %d" % (sT1, sT1, SIDE))
    a("v_add_u32 v%d, s%d, v%d" % (T + 5, sT1, vL16))
    a("s_lshl_b32 s%d, s%d, 7" % (sCntI, sI))
    a("s_add_u32 s%d, s%d, 0x%x" % (sCntI, sCntI, CNT_O))
    for p in range(32):
        a("v_mov_b32 v%d, 0" % (ACC + p))
    stamp(a, 1)
    a("s_waitcnt vmcnt(0)")
    for m in range(2):
        for k in range(4):
            d = KVF + 16 * m + 4 * k
            off = m * 4096 + (k >> 1) * 2048 + (k & 1) * 256
            a("ds_read_b64_tr_b16 v[%d:%d], v%d offset:%d" % (d, d + 1, T, off))
            a("ds_read_b64_tr_b16 v[%d:%d], v%d offset:%d" % (d + 2, d + 3, T + 1, off))
    a("s_waitcnt lgkmcnt(0)")
    for p in range(16):
        a("v_cndmask_b32 v%d, v%d, v%d, s[46:47]" % (KVF + 16 + p, KVF + 16 + p, T + 2))
    for k in range(4):
        a("v_mfma_f32_32x32x16_bf16 v[%d:%d], v[%d:%d], v[%d:%d], %s" % (
            DO, DO + 15, KVF + 4 * k, KVF + 4 * k + 3, KVF + 16 + 4 * k, KVF + 19 + 4 * k,
            "0" if k == 0 else "v[%d:%d]" % (DO, DO + 15)))
    for q in range(3):
        a("ds_write_b128 v%d, v[%d:%d] offset:%d" % (T + 4, DO + 4 * q, DO + 4 * q + 3, 1024 * q))
    a("s_waitcnt lgkmcnt(0)")
    a("s_barrier")
    stamp(a, 2)
    for q in range(4):
        a("ds_read_b128 v[%d:%d], v%d offset:%d" % (KVF + 4 * q, KVF + 4 * q + 3, T + 5, 8192 * q))
    for t in read_A(FA[0]):
        a(t)
    a("s_cmp_eq_u32 s%d, 3" % sW)
    a("s_cbranch_scc1 K2_noat")
    a("s_waitcnt lgkmcnt(15)")
    for r in range(4):
        a("v_add_f32 v%d, v%d, v%d" % (KVF + r, KVF + r, KVF + 4 + r))
        a("v_add_f32 v%d, v%d, v%d" % (KVF + 8 + r, KVF + 8 + r, KVF + 12 + r))
    for r in range(4):
        a("v_add_f32 v%d, v%d, v%d" % (KVF + r, KVF + r, KVF + 8 + r))
    a("s_cmp_eq_u32 s%d, 2" % sW)
    a("s_cselect_b32 exec_hi, 0, 0x1fffff")
    a("s_mov_b32 exec_lo, 0x1fffff")
    for r in range(4):
        a("buffer_atomic_add_f32 v%d, v%d, s[%d:%d], s%d offen offset:%d" % (
            KVF + r, T + 3, sWS, sWS + 3, sKvW, r * 128))
    a("s_mov_b64 exec, -1")
    a("K2_noat:")
    a("v_lshlrev_b32 v%d, 2, v1" % T)
    a("v_xor_b32 v%d, v%d, v0" % (T, T))
    a("v_lshlrev_b32 v%d, 4, v%d" % (T, T))
    a("s_add_u32 s%d, s%d, s%d" % (sT0, sJ, sCC))
    a("s_and_b32 s%d, s%d, 1" % (sT0, sT0))
    a("s_lshl_b32 s%d, s%d, 7" % (sT0, sT0))
    a("v_xor_b32 v%d, s%d, v%d" % (vZa, sT0, T))
    a("v_xor_b32 v%d, 0x80, v%d" % (vZb, vZa))
    a("s_mul_i32 s%d, s%d, 7" % (sT0, sJ))
    a("s_mul_i32 s%d, s%d, 3" % (sT1, sCC))
    a("s_add_u32 s%d, s%d, s%d" % (sOdd, sT0, sT1))
    a("s_mul_i32 s%d, s%d, %d" % (sT2, sT3, NG_Z))
    a("s_add_u32 s%d, s%d, s%d" % (sT2, sT2, sOdd))
    a("s_lshl_b32 s%d, s%d, 10" % (sT2, sT2))
    a("s_add_u32 s%d, s%d, 0x%x" % (sT2, sT2, WS_Z))
    for p in range(24):
        a("v_mov_b32 v%d, 0" % (ACB + p))
    a("s_mov_b32 s%d, 0" % sIt)
    a("s_mov_b32 s%d, %d" % (sHook, H_SIG))
    stamp(a, 3)
    a("K2_loop:")
    cstage(a, mf_A(FA[0]), read_A(FA[1]), FRA)
    cstage(a, mf_A(FA[1]), read_A(FA[0]), FRA)
    a("s_add_u32 s%d, s%d, 1" % (sIt, sIt))
    a("s_cmp_eq_u32 s%d, s%d" % (sIt, sHook))
    a("s_cbranch_scc0 K2_loop")
    a("s_cmp_eq_u32 s%d, 15" % sIt)
    a("s_cbranch_scc1 K2_h7")
    a("s_mov_b32 s%d, 15" % sHook)
    stamp(a, 4)
    a("s_cmp_eq_u32 s%d, 3" % sW)
    a("s_cbranch_scc1 K2_nosig")
    signal(a, sCntW)
    a("K2_nosig:")
    stamp(a, 5)
    if "noex" in EXP:
        a("s_branch K2_loop")
    for n in range(4):
        a("buffer_load_dwordx4 v[%d:%d], v%d, s[%d:%d], s%d offen offset:%d" % (
            Z1R + 4 * n, Z1R + 4 * n + 3, vZb if n & 1 else vZa, sWS, sWS + 3, sT2, 1024 * n))
    a("v_lshlrev_b32 v%d, 1, v2" % (T + 2))
    a("s_lshl_b32 s%d, s%d, 6" % (sT0, sT3))
    a("buffer_load_ushort v%d, v%d, s[%d:%d], s%d offen" % (vBias, T + 2, sBS, sBS + 3, sT0))
    a("s_branch K2_loop")
    a("K2_h7:")
    cstage(a, mf_A(FA[0]), read_A(FA[1]), FRA)
    cstage(a, mf_A(FA[1]), read_B(FA[0]), FRA)
    stamp(a, 8)
    a("s_waitcnt vmcnt(0)")
    a("v_lshlrev_b32 v%d, 16, v%d" % (vBias, vBias))
    a("s_mul_i32 s%d, s%d, %d" % (sT0, sT3, NG_A3))
    a("s_add_u32 s%d, s%d, s%d" % (sT0, sT0, sOdd))
    a("s_lshl_b32 s%d, s%d, 10" % (sT0, sT0))
    a("s_add_u32 s%d, s%d, %d" % (sT0, sT0, WS_A3 + 40 * 1024))
    for n in range(4):
        if n == 2:
            a("s_cmp_eq_u32 s%d, 52" % sOdd)
            a("s_cbranch_scc1 K2_done")
        acc = ACC + 8 * n
        for p in range(4):
            z = Z1R + 4 * n + p
            t = T + 2 * (p & 1)
            a("v_lshlrev_b32 v%d, 16, v%d" % (t, z))
            a("v_and_b32 v%d, 0xffff0000, v%d" % (t + 1, z))
            a("v_add_f32 v%d, v%d, v%d" % (acc + 2 * p, acc + 2 * p, vBias))
            a("v_add_f32 v%d, v%d, v%d" % (acc + 2 * p + 1, acc + 2 * p + 1, vBias))
            a("v_mul_f32 v%d, v%d, v%d" % (t, t, acc + 2 * p))
            a("v_mul_f32 v%d, v%d, v%d" % (t + 1, t + 1, acc + 2 * p + 1))
            a("v_cvt_pk_bf16_f32 v%d, v%d, v%d" % (z, t, t + 1))
        a("buffer_store_dwordx4 v[%d:%d], v%d, s[%d:%d], s%d offen offset:%d sc1" % (
            Z1R + 4 * n, Z1R + 4 * n + 3, vL16, sWS, sWS + 3, sT0, 1024 * n))
    a("K2_done:")
    stamp(a, 9)
    cstage(a, mf_B(FA[0]), read_B(FA[1]), FRB)
    cstage(a, mf_B(FA[1]), read_B(FA[0]), FRB)
    cstage(a, mf_B(FA[0]), read_B(FA[1]), FRB)
    stamp(a, 10)
    a("s_add_u32 s%d, s%d, %d" % (sCntI, sCntI, CNT_U - CNT_O))
    signal(a, sCntI)
    stamp(a, 11)
    cstage(a, mf_B(FA[1]), read_B(FA[0]), FRB)
    a("s_mov_b32 s%d, 0" % sIt)
    a("K3_loop:")
    cstage(a, mf_B(FA[0]), read_B(FA[1]), FRB)
    cstage(a, mf_B(FA[1]), read_B(FA[0]), FRB)
    a("s_add_u32 s%d, s%d, 1" % (sIt, sIt))
    a("s_cmp_eq_u32 s%d, 10" % sIt)
    a("s_cbranch_scc0 K3_loop")
    stamp(a, 12)
    for rt in range(2):
        for ct in range(3):
            x = XR + 6 * rt + 2 * ct
            a("ds_read_b64 v[%d:%d], v%d offset:%d" % (x, x + 1, vXl, rt * STG + 32 * ct))
    a("s_waitcnt lgkmcnt(0)")
    for rt in range(2):
        for ct in range(3):
            acc = ACB + 12 * rt + 4 * ct
            x = XR + 6 * rt + 2 * ct
            for p in range(2):
                t = T + 2 * p
                a("v_lshlrev_b32 v%d, 16, v%d" % (t, x + p))
                a("v_and_b32 v%d, 0xffff0000, v%d" % (t + 1, x + p))
                a("v_add_f32 v%d, v%d, v%d" % (t, t, acc + 2 * p))
                a("v_add_f32 v%d, v%d, v%d" % (t + 1, t + 1, acc + 2 * p + 1))
                a("v_cvt_pk_bf16_f32 v%d, v%d, v%d" % (x + p, t, t + 1))
            a("buffer_store_dwordx2 v[%d:%d], v%d, s[%d:%d], s%d offen offset:%d" % (x, x + 1, vO, sO, sO + 3, sXo0 if rt == 0 else sXo1, 32 * ct))
    stamp(a, 13)
    if STAMP:
        a("s_waitcnt vmcnt(0)")
    stamp(a, 14)
    stamp_dump(a, 15, sWS, sW, WS_STAMP + 0x20000)
    a("s_endpgm")

    a("K2_loader:")
    a("s_and_b32 s%d, s%d, 3" % (sW, sW))
    a("v_lshrrev_b32 v1, 3, v0")
    a("s_lshl_b32 s%d, s%d, 4" % (sT1, sW))
    a("v_add_u32 v1, s%d, v1" % sT1)
    a("v_lshlrev_b32 v1, 12, v1")
    a("v_lshrrev_b32 v2, 4, v0")
    a("v_and_b32 v3, 7, v0")
    a("v_xor_b32 v4, v2, v3")
    a("v_lshl_add_u32 v%d, v4, 4, v1" % vAd0)
    a("v_xor_b32 v4, 4, v4")
    a("v_lshl_add_u32 v%d, v4, 4, v1" % vAd1)
    a("v_add_u32 v%d, %d, v%d" % (vAd1, 8 * 4096 - 1024, vAd1))
    a("s_lshl_b32 s%d, s%d, 18" % (sAoff, sI))
    a("s_lshl_b32 s%d, s%d, 11" % (sMA, sW))
    a("s_mul_i32 s%d, s%d, 7" % (sMB, sCC))
    a("s_lshl_b32 s%d, s%d, 2" % (sT1, sRR))
    a("s_add_u32 s%d, s%d, s%d" % (sMB, sMB, sT1))
    a("s_lshl_b32 s%d, s%d, 10" % (sMB, sMB))
    a("s_add_u32 s%d, s%d, 8192" % (sMB, sMB))
    a("s_mul_i32 s%d, s%d, %d" % (sBoff, sCC, NG_Z))
    a("s_add_u32 s%d, s%d, s%d" % (sBoff, sBoff, sT1))
    a("s_mul_i32 s%d, s%d, 7" % (sT1, sJ))
    a("s_add_u32 s%d, s%d, s%d" % (sBoff, sBoff, sT1))
    a("s_lshl_b32 s%d, s%d, 10" % (sBoff, sBoff))
    a("s_add_u32 s%d, s%d, %d" % (sBoff, sBoff, WS_Z + 54 * 1024))
    a("s_mov_b32 s46, s%d" % sRR)
    a("s_mov_b32 s47, 0")
    a("s_mov_b64 vcc, s[46:47]")
    a("s_mov_b32 s%d, 0" % sWr)
    a("s_mov_b32 s%d, 0" % sIt)
    a("s_waitcnt lgkmcnt(0)")
    srd(a, sWS, 52, WS_END)
    srd(a, sA, 48, S * S * 2)
    a("KL_pre:")
    dma_A(a)
    a("s_add_u32 s%d, s%d, 1" % (sIt, sIt))
    a("s_cmp_eq_u32 s%d, 3" % sIt)
    a("s_cbranch_scc0 KL_pre")
    srd_off(a, sA3, 52, WS_A3, 64 * NG_A3 * 1024)
    srd_off(a, sB3, 52, WS_B3, 47 * 40 * 1024)
    a("s_lshl_b32 s%d, s%d, 1" % (sT0, sI))
    a("s_add_u32 s%d, s%d, s%d" % (sT0, sT0, sCC))
    a("s_mul_i32 s%d, s%d, %d" % (sA3off, sT0, NG_A3))
    a("s_lshl_b32 s%d, s%d, 1" % (sT0, sRR))
    a("s_add_u32 s%d, s%d, s%d" % (sA3off, sA3off, sT0))
    a("s_lshl_b32 s%d, s%d, 10" % (sA3off, sA3off))
    a("s_mul_i32 s%d, s%d, 3" % (sT0, sRR))
    a("s_mul_i32 s%d, s%d, 40" % (sB3off, sCC))
    a("s_add_u32 s%d, s%d, s%d" % (sB3off, sB3off, sT0))
    a("s_mul_i32 s%d, s%d, 5" % (sT1, sJ))
    a("s_add_u32 s%d, s%d, s%d" % (sB3off, sB3off, sT1))
    a("s_lshl_b32 s%d, s%d, 10" % (sB3off, sB3off))
    a("s_mul_i32 s%d, s%d, 5" % (sMB3, sCC))
    a("s_add_u32 s%d, s%d, s%d" % (sMB3, sMB3, sT0))
    a("s_lshl_b32 s%d, s%d, 10" % (sMB3, sMB3))
    a("s_add_u32 s%d, s%d, 8192" % (sMB3, sMB3))
    a("s_waitcnt vmcnt(10)")
    a("s_barrier")
    dma_A(a)
    dma_A(a)
    a("s_waitcnt vmcnt(15)")
    a("s_barrier")
    dma_A(a)
    dma_A(a)
    a("s_waitcnt vmcnt(20)")
    a("s_barrier")
    dma_A(a)
    dma_A(a)
    a("v_lshrrev_b32 v1, 5, v0")
    a("v_and_b32 v2, 31, v0")
    a("s_lshl_b32 s%d, s%d, 2" % (sHd, sJ))
    a("s_add_u32 s%d, s%d, s%d" % (sHd, sHd, sW))
    a("s_mul_i32 s%d, s%d, 2560" % (sKv, sHd))
    a("s_add_u32 s%d, s%d, 0x%x" % (sKv, sKv, WS_KV))
    a("s_lshl_b32 s%d, s%d, 7" % (sCnt, sHd))
    a("s_add_u32 s%d, s%d, 0x%x" % (sCnt, sCnt, CNT_KV))
    a("s_lshl_b32 s%d, s%d, 7" % (sCntI, sI))
    a("s_add_u32 s%d, s%d, 0x%x" % (sCntI, sCntI, CNT_O))
    a("s_mov_b32 s%d, 2" % sIt)

    def runA(upto):
        lab = a.label("KL_A")
        a(lab + ":")
        a("s_waitcnt vmcnt(25)")
        a("s_barrier")
        dma_A(a)
        a("s_add_u32 s%d, s%d, 1" % (sIt, sIt))
        a("s_cmp_eq_u32 s%d, %d" % (sIt, upto))
        a("s_cbranch_scc0 %s" % lab)

    runA(6)
    a("s_mul_i32 s%d, s%d, 5" % (sT0, sHd))
    a("v_lshlrev_b32 v%d, 1, v1" % (T + 1))
    a("v_add_u32 v%d, s%d, v%d" % (T + 1, sT0, T + 1))
    a("s_mul_i32 s%d, s%d, %d" % (sT1, sI, 2 * NG_QKV * 1024))
    a("s_add_u32 s%d, s%d, %d" % (sT2, sT1, NG_QKV * 1024))
    for n in range(3):
        if n == 1:
            a("v_add_u32 v%d, 1, v%d" % (T + 1, T + 1))
        if n == 2:
            a("s_add_u32 s%d, s%d, 4" % (sT0, sT0))
            a("v_mov_b32 v%d, s%d" % (T + 1, sT0))
        quad_addr(a, T + 2, T + 1, True, T + 4, T + 5)
        for sb in range(2):
            d = PQR + 6 * sb + 2 * n
            if "noex" not in EXP:
                a("buffer_load_dwordx2 v[%d:%d], v%d, s[%d:%d], s%d offen" % (d, d + 1, T + 2, sWS, sWS + 3, sT1 if sb == 0 else sT2))
    a("s_mul_i32 s%d, s%d, 5" % (sT0, sW))
    a("v_add_u32 v%d, s%d, v1" % (T + 3, sT0))
    quad_addr(a, T + 6, T + 3, False, T + 4, T + 5)
    a("v_add_u32 v%d, 2, v%d" % (T + 3, T + 3))
    quad_addr(a, T + 7, T + 3, False, T + 4, T + 5)
    a("s_add_u32 s%d, s%d, 4" % (sT0, sT0))
    a("v_mov_b32 v%d, s%d" % (T + 3, sT0))
    quad_addr(a, T + 8, T + 3, False, T + 4, T + 5)
    for n in range(3):
        a("v_add_u32 v%d, %d, v%d" % (T + 6 + n, OSC, T + 6 + n))
    a("s_lshl_b32 s%d, s%d, 10" % (sT0, sW))
    a("v_add_u32 v%d, s%d, v%d" % (vT0, sT0, vL16))
    a("s_lshl_b32 s%d, s%d, 8" % (sT0, sW))
    a("s_add_u32 s%d, s%d, 4096" % (sT0, sT0))
    a("v_add_u32 v%d, s%d, v%d" % (vT1, sT0, vL16))
    a("v_add_u32 v%d, %d, v%d" % (vT2, OSC, vT0))
    a("v_add_u32 v%d, %d, v%d" % (vT3, OSC, vT1))
    for t in range(3):
        a("v_add_u32 v%d, %d, v0" % (T + 3, 64 * t))
        a("v_min_u32 v%d, 159, v%d" % (T + 3, T + 3))
        a("v_mul_u32_u24 v%d, 205, v%d" % (T + 4, T + 3))
        a("v_lshrrev_b32 v%d, 11, v%d" % (T + 4, T + 4))
        a("v_mul_u32_u24 v%d, %d, v%d" % (T + 4, 1280 - 160, T + 4))
        a("v_lshl_add_u32 v%d, v%d, 4, v%d" % (vXd + t, T + 3, T + 4))
        if t:
            a("v_subrev_u32 v%d, %d, v%d" % (vXd + t, 1024 * t, vXd + t))
    srd(a, sO, 54, S * D * 2)
    a("s_lshl_b32 s%d, s%d, 2" % (sT0, sI))
    a("s_add_u32 s%d, s%d, s%d" % (sT0, sT0, sW))
    a("s_mul_i32 s%d, s%d, %d" % (sXo0, sT0, 16 * 1280))
    a("s_mul_i32 s%d, s%d, 160" % (sT0, sJ))
    a("s_add_u32 s%d, s%d, s%d" % (sXo0, sXo0, sT0))
    a("s_mul_i32 s%d, s%d, %d" % (sXo1, sW, STG))
    a("s_add_u32 s%d, s%d, %d" % (sXo1, sXo1, XSP))
    a("v_cmp_eq_u32 s[46:47], 24, v2")
    a("v_cndmask_b32 v%d, v2, 20, s[46:47]" % (T + 9))
    a("v_lshlrev_b32 v%d, 2, v%d" % (T + 9, T + 9))
    a("v_lshl_add_u32 v%d, v1, 10, v%d" % (T + 10, T + 9))
    a("v_lshl_add_u32 v%d, v1, 30, v%d" % (T + 9, T + 9))
    runA(LH[0])
    poll_issue(a, sCnt)
    runA(LH[1])
    stamp(a, 1)
    poll_check(a, sCnt, target=24, n=5 * (LH[1] - LH[0]))
    stamp(a, 2)
    for n in range(8):
        a("buffer_load_dword v%d, v%d, s[%d:%d], s%d offen offset:%d sc1" % (KVF + n, T + 10, sWS, sWS + 3, sKv, 128 * n))
    for n in range(4):
        a("buffer_load_dword v%d, v%d, s[%d:%d], s%d offen offset:%d sc1" % (KVF + 8 + n, T + 9, sWS, sWS + 3, sKv, 2048 + 128 * n))
    runA(LH[2])
    stamp(a, 3)
    a("s_mul_i32 s%d, s%d, %d" % (sT1, sI, 2 * NG_A3 * 1024))
    a("s_mul_i32 s%d, s%d, 5120" % (sT2, sJ))
    a("s_add_u32 s%d, s%d, s%d" % (sT1, sT1, sT2))
    a("s_add_u32 s%d, s%d, 0x%x" % (sT1, sT1, WS_A3))
    a("s_add_u32 s%d, s%d, %d" % (sT2, sT1, NG_A3 * 1024))
    a("v_cmp_eq_u32 s[46:47], 1, v1")
    a("s_waitcnt vmcnt(%d)" % (5 * (LH[2] - LH[1])))
    for n in range(6):
        a("v_cvt_pk_bf16_f32 v%d, v%d, v%d" % (KVF + 16 + n, KVF + 2 * n, KVF + 2 * n + 1))
    for sb in range(2):
        d, p = DO + 16 * sb, PQR + 6 * sb
        a("v_mfma_f32_32x32x16_bf16 v[%d:%d], v[%d:%d], v[%d:%d], 0" % (d, d + 15, KVF + 16, KVF + 19, p, p + 3))
        a("v_mfma_f32_32x32x8_bf16 v[%d:%d], v[%d:%d], v[%d:%d], v[%d:%d]" % (d, d + 15, KVF + 20, KVF + 21, p + 4, p + 5, d, d + 15))
    for sb in range(2):
        d = DO + 16 * sb
        a("v_cndmask_b32 v%d, v%d, v%d, s[46:47]" % (T, d + 12, d + 8))
        a("v_add_f32 v%d, %s, v%d" % (T, fhex(1e-6), T))
        a("v_rcp_f32 v%d, v%d" % (T, T))
        for r in range(12):
            a("v_mul_f32 v%d, v%d, v%d" % (d + r, d + r, T))
        for n in range(6):
            a("v_cvt_pk_bf16_f32 v%d, v%d, v%d" % (KVF + 8 * sb + n, d + 2 * n, d + 2 * n + 1))
    stamp(a, 4)
    for sb in range(2):
        for n in range(3):
            p = KVF + 8 * sb + 2 * n
            if n == 2:
                a("s_mov_b32 exec_hi, 0")
            a("ds_write_b64 v%d, v[%d:%d]" % (T + 6 + n, p, p + 1))
        a("s_mov_b64 exec, -1")
        a("s_waitcnt lgkmcnt(0)")
        runA(LH[2] + 2 * sb + 1)
        a("ds_read_b128 v[%d:%d], v%d" % (DO, DO + 3, vT2))
        a("s_mov_b64 exec, 0xffff")
        a("ds_read_b128 v[%d:%d], v%d" % (DO + 4, DO + 7, vT3))
        a("s_waitcnt lgkmcnt(0)")
        a("buffer_store_dwordx4 v[%d:%d], v%d, s[%d:%d], s%d offen sc1" % (DO + 4, DO + 7, vT1, sWS, sWS + 3, sT1 if sb == 0 else sT2))
        a("s_mov_b64 exec, -1")
        a("buffer_store_dwordx4 v[%d:%d], v%d, s[%d:%d], s%d offen sc1" % (DO, DO + 3, vT0, sWS, sWS + 3, sT1 if sb == 0 else sT2))
        if sb == 0:
            runA(LH[2] + 2)
    runA(LH[3])
    stamp(a, 5)
    signal(a, sCntI, n=5 * (LH[3] - LH[2] - 3))
    stamp(a, 6)
    runA(25)
    Q = []
    for st in range(26, 32):
        Q += [("S", st)] * 5

    def younger(pred):
        idx = [n for n, t in enumerate(Q) if pred(t)]
        return len(Q) - 1 - max(idx) if idx else 63

    def dB3(st):
        a("s_add_u32 m0, s%d, %d" % (sMB3, (st % NST) * STG))
        for t in range(2):
            a("buffer_load_dwordx4 v%d, s[%d:%d], s%d offen offset:%d lds" % (vL16, sB3, sB3 + 3, sB3off, 1024 * t))
        lab = a.label("Lsk")
        a("s_cbranch_vccnz %s" % lab)
        a("buffer_load_dwordx4 v%d, s[%d:%d], s%d offen offset:2048 lds" % (vL16, sB3, sB3 + 3, sB3off))
        a(lab + ":")
        a("s_add_u32 s%d, s%d, %d" % (sB3off, sB3off, 80 * 1024))
        Q.extend([("S", st)] * 2)

    def dA3(st):
        if st == 55:
            a("s_cmp_eq_u32 s%d, 1" % sRR)
            a("s_cselect_b32 s%d, 0x40000000, s%d" % (sA3off, sA3off))
        a("s_add_u32 m0, s%d, %d" % (sMA, (st % NST) * STG))
        for t in range(2):
            a("buffer_load_dwordx4 v%d, s[%d:%d], s%d offen offset:%d sc1 lds" % (vL16, sA3, sA3 + 3, sA3off, 1024 * t))
        a("s_add_u32 s%d, s%d, 4096" % (sA3off, sA3off))
        Q.extend([("S", st)] * 2)

    nextA = 32
    for b in range(25, 55):
        a("s_waitcnt vmcnt(%d)" % min(63, younger(lambda t: t == ("S", b + 1))))
        a("s_barrier")
        if b in (PO[0], PU[0]):
            if b == PU[0]:
                a("s_add_u32 s%d, s%d, %d" % (sCntI, sCntI, CNT_U - CNT_O))
            poll_issue(a, sCntI)
            Q.append(("P", b))
        if b in (PO[1], PU[1]):
            stamp(a, 7 if b == PO[1] else 9)
            poll_check(a, sCntI, n=younger(lambda t: t[0] == "P"))
            stamp(a, 8 if b == PO[1] else 10)
        lim = min(b + 5, 55)
        if b < PO[1]:
            lim = 31
        elif b < PU[1]:
            lim = min(lim, 41)
        while nextA <= lim:
            dA3(nextA)
            nextA += 1
        if b + 7 <= 55:
            dB3(b + 7)
        if b == PU[0]:
            a("s_mov_b32 m0, s%d" % sXo1)
            for t in range(3):
                a("buffer_load_dwordx4 v%d, s[%d:%d], s%d offen offset:%d lds" % (vXd + t, sO, sO + 3, sXo0, 1024 * t))
            Q.extend([("X", 0)] * 3)
    stamp(a, 11)
    if STAMP:
        a("s_add_u32 s%d, s%d, 4" % (sW, sW))
    stamp_dump(a, 12, sWS, sW, WS_STAMP + 0x20000)
    a(end + ":")
    a("s_endpgm")
```

```python
import sys, os
from asmlib import *
from common import *
import k1, gen
from k1 import *

NREP = int(os.environ.get("NREP", "4"))
def mk(variant):
    def fn(a, label):
        a(".p2align 8"); a(label + ":")
        a("s_load_dwordx2 s[62:63], s[0:1], %d" % KA_WS)
        a("v_lshrrev_b32 v1, 6, v0"); a("v_and_b32 v0, 63, v0"); a("v_readfirstlane_b32 s%d, v1" % sW)
        for r in range(2, 256): a("v_mov_b32 v%d, 0" % r) if "zero" in variant else a("v_mov_b32 v%d, 0x3f8%05x" % (r, (r * 7919) & 0xfffff))
        a("s_and_b32 s%d, s%d, 3" % (sR, sW)); a("s_lshr_b32 s%d, s%d, 2" % (sC, sW))
        e = E0
        a("v_lshrrev_b32 v1, 5, v0"); a("v_bfe_u32 v%d, v0, 2, 2" % e); a("v_lshl_add_u32 v%d, v1, 3, v%d" % (e, e)); a("v_lshlrev_b32 v%d, 7, v%d" % (e, e))
        a("v_bfe_u32 v%d, v0, 4, 1" % (e + 1)); a("v_lshlrev_b32 v%d, 1, v%d" % (e + 1, e + 1)); a("v_bfe_u32 v%d, v0, 1, 1" % (e + 2)); a("v_add_u32 v%d, v%d, v%d" % (e + 1, e + 1, e + 2))
        a("s_lshl_b32 s%d, s%d, 2" % (sT0, sC)); a("v_add_u32 v%d, s%d, v%d" % (e + 1, sT0, e + 1)); a("v_bfe_u32 v%d, v0, 3, 1" % (e + 2)); a("v_lshlrev_b32 v%d, 2, v%d" % (e + 2, e + 2))
        a("v_xor_b32 v%d, v%d, v%d" % (e + 1, e + 1, e + 2)); a("v_lshl_add_u32 v%d, v%d, 4, v%d" % (e, e + 1, e)); a("v_and_b32 v%d, 1, v0" % (e + 1)); a("v_lshl_add_u32 v%d, v%d, 3, v%d" % (e, e + 1, e))
        for t in range(4):
            a("s_xor_b32 s%d, s%d, %d" % (sT0, sR, t)); a("s_mul_i32 s%d, s%d, %d" % (sT0, sT0, CH)); a("v_add_u32 v%d, s%d, v%d" % (vA + t, sT0, e))
        a("s_waitcnt lgkmcnt(0)")
        srd(a, sWS, 62, 0x1000000)
        a("s_mov_b32 s%d, 0" % sA); a("s_mov_b32 s%d, 0" % sB); a("s_mov_b32 s%d, 0" % sCc)
        a("v_lshlrev_b32 v%d, 4, v0" % vW1a)
        a("s_lshl_b32 s%d, s%d, 11" % (sW1off, sW)); a("s_add_u32 s%d, s%d, 0x100000" % (sW1off, sW1off))
        a("s_mul_i32 s%d, s%d, %d" % (sWb, sR, CH)); a("s_lshl_b32 s%d, s%d, 11" % (sT0, sC)); a("s_add_u32 s%d, s%d, s%d" % (sWb, sWb, sT0)); a("s_add_u32 s%d, s%d, %d" % (sWb, sWb, REG))
        if "oob" in variant: a("s_mov_b32 s%d, 0x40000000" % sW1off)
        a("s_lshl_b32 s%d, s%d, 16" % (sT0, sW)); a("s_add_u32 s%d, s%d, 0x200000" % (sT0, sT0))
        for r in range(48, 256, 4):
            a("buffer_load_dwordx4 v[%d:%d], v%d, s[%d:%d], s%d offen" % (r, r + 3, vW1a, sWS, sWS + 3, sT0)); a("s_add_u32 s%d, s%d, 1024" % (sT0, sT0))
        a("s_mul_i32 s%d, s%d, 20480" % (sT1, sW))
        for n in range(20):
            a("s_add_u32 m0, s%d, %d" % (sT1, n * 1024)); a("buffer_load_dwordx4 v%d, s[%d:%d], s%d offen lds" % (vW1a, sWS, sWS + 3, sT0)); a("s_add_u32 s%d, s%d, 1024" % (sT0, sT0))
        a("s_waitcnt vmcnt(0)"); a("s_barrier")
        for r in range(M0, M0 + 16): a("v_mov_b32 v%d, 0" % r)
        a("s_mov_b32 s%d, 0" % sLine)
        q = LdsQ(a)
        for j in range(3): frag_reads(q, 0, j)
        a("s_barrier")
        a("s_memtime s[72:73]")
        a("s_memrealtime s[76:77]")
        a(label + "_L:")
        typ = "P" if "phi" in variant else "G"
        for rep in range(1):
            for i in range(5):
                if "bar" in variant: a("s_barrier")
                fill = epi_quad(typ, i & 3) if "epi" in variant else []
                if "indep" in variant: fill = ["v_add_f32 v28, v29, v30"] * 22 + ["v_exp_f32 v31, v32"] * 8; fill = [fill[(n * 11) % 30] for n in range(30)]
                cnt = spread(len(fill), 8); pos = 0
                for j in range(8):
                    if "w2" in variant:
                        if (j & 1) == 0: q.wait("f%d" % j, "f%d" % (j + 1))
                    else: q.wait("f%d" % j)
                    x = X0 + 32 * i + 4 * j; f = FR + 4 * (j & 3)
                    if "fixop" in variant: x, f = 96, 100
                    if "m16" in variant:
                        for u in range(2):
                            m = M0 + 8 * (j & 1) + 4 * u; xx = X0 + (x - X0 + 4 * u * 11) % 160
                            a("v_mfma_f32_16x16x32_bf16 v[%d:%d], v[%d:%d], v[%d:%d], v[%d:%d]" % (m, m + 3, f, f + 3, xx, xx + 3, m, m + 3))
                    elif "nomf" not in variant:
                        a("v_mfma_f32_32x32x16_bf16 v[%d:%d], v[%d:%d], v[%d:%d], v[%d:%d]" % (M0, M0 + 15, f, f + 3, x, x + 3, M0, M0 + 15))
                    for v_ in variant:
                        if v_.startswith("pad"):
                            n = int(v_[3:])
                            while n > 0:
                                a("s_nop %d" % (min(n, 16) - 1)); n -= 16
                    jn = j + 3
                    if "nolds" in variant: q.q += ["f%d" % (jn & 7)] * 2
                    elif "halflds" in variant and (j & 1): q.q += ["f%d" % (jn & 7)] * 2
                    else: frag_reads(q, i if jn < 8 else (i + 1) % 5, jn & 7)
                    for t in fill[pos:pos + cnt[j]]: a(t)
                    pos += cnt[j]
                    dsl = {"d01": (0, 0), "d04": (0, 4), "d15": (1, 5), "d23": (2,3)}
                    for kx, (p0, p1) in dsl.items():
                        if kx in variant:
                            if j == p0:
                                a("s_add_u32 m0, s%d, %d" % (sWb, i * 4096))
                                a("buffer_load_dwordx4 v%d, s[%d:%d], s%d offen lds" % (vW1a, sWS, sWS + 3, sW1off))
                            if j == p1:
                                a("buffer_load_dwordx4 v%d, s[%d:%d], s%d offen offset:1024 lds" % (vW1a, sWS, sWS + 3, sW1off))
                                a("s_add_u32 s%d, s%d, 16384" % (sW1off, sW1off))
                    if "cs" in variant and (j & 3) == 0: cs_mfma(a, 1, j)
        a("s_add_u32 s%d, s%d, 1" % (sLine, sLine)); a("s_cmp_lt_u32 s%d, %d" % (sLine, NREP)); a("s_cbranch_scc1 %s_L" % label)
        a("s_waitcnt lgkmcnt(0)"); a("s_nop 15"); a("s_barrier")
        a("s_memtime s[74:75]")
        a("s_memrealtime s[78:79]")
        a("s_waitcnt lgkmcnt(0)")
        a("s_sub_u32 s74, s74, s72"); a("s_sub_u32 s78, s78, s76")
        a("v_mov_b32 v2, s74"); a("v_mov_b32 v3, s78"); a("v_mov_b32 v1, 0"); a("s_lshl_b32 s%d, s2, 3" % sT0); a("s_mov_b64 exec, 1")
        a("buffer_store_dwordx2 v[2:3], v1, s[%d:%d], s%d offen" % (sWS, sWS + 3, sT0))
        a("s_endpgm")
    return fn
V = ["nolds", "nolds,pad16", "nolds,pad20", "nolds,pad24", "nolds,pad32", "nolds,pad48", "nolds,pad64", "nolds,nomf,pad16", "m16,nolds,pad24", "m16,nolds,pad32"]
V2 = ["nolds", "none", "halflds", "m16,nolds", "m16", "m16,halflds", "epi", "epi,cs,bar", "epi,m16", "nomf,epi"]
V1 = ["epi,cs,bar", "epi,cs,bar,d01", "epi,cs,bar,d04", "epi,cs,bar,d15", "epi,cs,bar,d23", "epi,cs,bar,d15,oob", "d15", "epi,cs,bar,w2", "epi,cs,bar,d15,w2", "epi,phi,cs,bar,d15,w2", "epi,cs,d15"]
V0 = ["none", "epi", "epi,phi", "indep", "epi,fixop", "epi,zero", "epi,cs", "epi,bar", "epi,cs,bar", "cs", "bar"]
gen.build([("m%d_kernel" % n, mk(v.split(",")), 256, 512, K1_LDS) for n, v in enumerate(V)], "mb.s")
open("mb.txt", "w").write("\n".join(V))
```

```python
import gen, k1, k23
from common import *
from k1 import srd
def empty(a, label):
    a(".p2align 8"); a(label + ":"); a("v_mov_b32 v0, 0"); a("s_mov_b32 s3, 0"); a("s_endpgm")
def tlb(a, label):
    a(".p2align 8"); a(label + ":")
    a("s_load_dwordx16 s[16:31], s[0:1], 0"); a("s_load_dwordx2 s[32:33], s[0:1], 64"); a("s_load_dwordx2 s[34:35], s[0:1], 80")
    a("v_lshlrev_b32 v1, 17, v0"); a("v_lshlrev_b32 v2, 19, v0")
    a("s_waitcnt lgkmcnt(0)")
    for n, (p, sz) in enumerate(((16, S*D*2), (18, D*3*D*2), (20, D*D*2), (24, D*F*2), (26, S*S*2), (28, S*2), (30, FH*D*2), (32, S*D*2))):
        srd(a, 4, p, sz); a("buffer_load_dword v%d, v1, s[4:7], 0 offen" % (4 + n))
    srd(a, 4, 34, WS_END); a("buffer_load_dword v20, v2, s[4:7], 0 offen")
    a("s_waitcnt vmcnt(0)"); a("s_endpgm")
K1=("k1_kernel", k1.gen_k1, 256, 512, k1.K1_LDS); K2=("k23_kernel", k23.gen_k23, 256, 512, k23.K23_LDS)
E=("e_kernel", empty, 256, 64, 0); T=("t_kernel", tlb, 256, 64, 0)
def mk(path, order):
    gen.build([K1,K2,E,T], path)
    t=open(path).read().split("\n")
    L={l.split("kernel=")[1].split()[0]: l for l in t if l.startswith("; @launch")}
    first=[i for i,l in enumerate(t) if l.startswith("; @launch")][0]
    t=[l for l in t if not l.startswith("; @launch")]
    t[first:first]=[L[o+"_kernel"] for o in order]
    open(path,"w").write("\n".join(t))
mk("p1.s", ["e","k1","k23"])
mk("p2.s", ["t","k1","k23"])
mk("p3.s", ["k1","k23","k1","k23"])
mk("p4.s", ["k1","k1","k23"])
mk("p5.s", ["k1","k23","e"])
```

```python
import os
from asmlib import *
from common import *

LOG2E = 1.4426950408889634
GC1 = -2.0 * 0.7978845608028654 * LOG2E
GC2 = GC1 * 0.044715

REG = 81920
CH = 20480
K1_LDS = 2 * REG

X0, M0, E0, FR, HOLD, PK, T0 = 96, 80, 64, 48, 40, 36, 28
SEL, CSA = 24, 20
NEGMU, RSTD, RL, K1c, K2c, IRSTD = 19, 18, 17, 16, 15, 14
ZSUM, ZSQ = 12, 13
vA = 8
vW1a, vW1b, vSt0, vSt1, vCsR, vCsW = 7, 6, 5, 4, 3, 2
vXA, vXd0, vXd1, vW0a, vW0b = 40, 44, 45, 46, 47
XS, XQ, XQ2 = 36, 28, 32
sX, sW0, sW1, sWS, sDBG = 4, 8, 12, 16, 20
sRb, sCg, sW, sR, sC = 24, 25, 26, 27, 28
sXoff, sW0off, sW1off, sUstep, sUoff = 29, 30, 31, 32, 33
sWu, sOut2, sZok, sL0 = 52, 3, 56, 57
sGl = 70
sFl = 65
vUa, vUb = 74, 75
sDelta, sWb, sT0, sXb, sReady = 34, 35, 36, 37, 38
sOnes, sA, sB, sCc, sOut, sLine, sIsZ2, sType, sOne = 39, 40, 41, 42, 43, 44, 45, 46, 47
sOut1, sL1, sZ2w, sT1, sT2, sOut0, sZ2keep, sLg = 64, 65, 66, 67, 68, 69, 70, 71

STAMP = os.environ.get("STAMP", "0") in ("1", "2")
STOP = "s_memrealtime" if os.environ.get("STAMP") == "2" else "s_memtime"
WS_STAMP = 0x1800000
EXP = os.environ.get("EXP", "").split(",")


def stamp(a, i):
    if STAMP:
        a("%s s[%d:%d]" % (STOP, 72 + 2 * i, 73 + 2 * i))


def stamp_dump(a, n, srdn, wreg, base):
    if not STAMP:
        return
    a("s_waitcnt lgkmcnt(0)")
    a("s_lshl_b32 s%d, s2, 3" % sT0)
    a("s_add_u32 s%d, s%d, s%d" % (sT0, sT0, wreg))
    a("s_lshl_b32 s%d, s%d, 6" % (sT0, sT0))
    a("s_add_u32 s%d, s%d, 0x%x" % (sT0, sT0, base))
    a("s_mov_b32 s%d, 0x4000000" % (srdn + 2))
    a("v_mov_b32 v1, 0")
    a("s_mov_b64 exec, 1")
    for i in range(n):
        a("v_mov_b32 v2, s%d" % (72 + 2 * i))
        a("buffer_store_dword v2, v1, s[%d:%d], s%d offen offset:%d" % (srdn, srdn + 3, sT0, 4 * i))
    a("s_mov_b64 exec, -1")


class LdsQ:
    def __init__(self, a, init=()):
        self.a = a
        self.q = list(init)

    def issue(self, text, tag):
        self.a(text)
        self.q.append(tag)

    def wait(self, *tags):
        idx = [i for i, t in enumerate(self.q) if t in tags]
        if not idx:
            return
        last = max(idx)
        n = len(self.q) - 1 - last
        assert n <= 15
        self.a("s_waitcnt lgkmcnt(%d)" % n)
        self.q = self.q[last + 1:]


def srd(a, d, plo, nbytes):
    a("s_mov_b32 s%d, s%d" % (d, plo))
    a("s_and_b32 s%d, s%d, 0xffff" % (d + 1, plo + 1))
    a("s_mov_b32 s%d, 0x%x" % (d + 2, nbytes))
    a("s_mov_b32 s%d, 0x20000" % (d + 3))


def csel(a, d, t, f):
    a("s_mov_b32 s%d, %s" % (d, f))
    a("s_cselect_b32 s%d, %s, s%d" % (d, t, d))


def spread(n_items, n_slots):
    base, rem = divmod(n_items, n_slots)
    return [base + (1 if i < rem else 0) for i in range(n_slots)]


def frag_reads(q, pos, j):
    d = FR + 4 * (j & 3)
    off = pos * 4096 + (j >> 2) * 2048
    q.issue("ds_read_b64_tr_b16 v[%d:%d], v%d offset:%d" % (d, d + 1, vA + (j & 3), off), "f%d" % j)
    q.issue("ds_read_b64_tr_b16 v[%d:%d], v%d offset:%d" % (d + 2, d + 3, vA + (j & 3), off + 512), "f%d" % j)


def skew(seqs, d):
    if "noskew" in EXP:
        d = 0
    items = sorted((i + d * n, n, op) for n, s in enumerate(seqs) for i, op in enumerate(s))
    return [op for _, _, op in items]


def gelu_ops(regs, outs):
    seqs = []
    for e, (t, p) in zip(regs, outs):
        seqs.append([
            "v_mul_f32 v%d, v%d, v%d" % (t, e, e),
            "v_fma_f32 v%d, v%d, v%d, v%d" % (p, t, K2c, K1c),
            "v_mul_f32 v%d, v%d, v%d" % (p, p, e),
            "v_exp_f32 v%d, v%d" % (p, p),
            "v_fma_f32 v%d, v%d, v%d, v%d" % (p, p, IRSTD, IRSTD),
            "v_rcp_f32 v%d, v%d" % (p, p),
            "v_mul_f32 v%d, v%d, v%d" % (t, e, p),
        ])
    return skew(seqs, 2)


def phi_ops(regs, outs):
    seqs = []
    for e, (t, p) in zip(regs, outs):
        seqs.append([
            "v_mul_f32 v%d, v%d, v%d" % (p, e, RL),
            "v_exp_f32 v%d, v%d clamp" % (p, p),
            "v_fma_f32 v%d, v%d, v%d, s%d" % (t, e, RSTD, sCc),
            "v_max_f32 v%d, s%d, v%d" % (t, sA, t),
            "v_fma_f32 v%d, v%d, s%d, v%d" % (t, p, sB, t),
        ])
    return skew(seqs, 1)


def epi_quad(typ, qd):
    regs = [E0 + 4 * qd + i for i in range(4)]
    outs = [(T0 + 2 * i, T0 + 2 * i + 1) for i in range(4)]
    ops = gelu_ops(regs, outs) if typ == "G" else phi_ops(regs, outs)
    o = PK + 2 * (qd & 1)
    ops.append("v_cvt_pk_bf16_f32 v%d, v%d, v%d" % (o, outs[0][0], outs[1][0]))
    ops.append("v_cvt_pk_bf16_f32 v%d, v%d, v%d" % (o + 1, outs[2][0], outs[3][0]))
    return ops


RARE = []


def rare(a, cond_branch, fn):
    lr, lb = a.label("Lrare"), a.label("Lback")
    a("%s %s" % (cond_branch, lr))
    RARE.append((lr, lb, fn))
    return lb


def flush_rare(a):
    for lr, lb, fn in RARE:
        a(lr + ":")
        fn(lb)
        a("s_branch %s" % lb)
    del RARE[:]


def epi_out(a, typ, half, z2=False):
    vst = vSt0 if half == 0 else vSt1
    a("buffer_store_dwordx4 v[%d:%d], v%d, s[%d:%d], s%d offen sc1" % (PK, PK + 3, vst, sWS, sWS + 3, sOut))
    if not z2:
        return
    for i in range(4):
        a("v_mov_b32 v%d, v%d" % (HOLD + 4 * half + i, PK + i))
        a("v_dot2c_f32_bf16 v%d, s%d, v%d" % (ZSUM, sOnes, PK + i))
        a("v_dot2c_f32_bf16 v%d, v%d, v%d" % (ZSQ, PK + i, PK + i))
    if half == 1:
        a("s_lshl_b32 s%d, s%d, 9" % (sT0, sW))
        a("s_add_u32 s%d, s%d, %d" % (sT0, sT0, REG + CH + 2 * 4096))
        a("v_lshlrev_b32 v%d, 3, v0" % (T0 + 2))
        a("v_add_u32 v%d, s%d, v%d" % (T0 + 2, sT0, T0 + 2))
        a("v_mul_f32 v%d, s%d, v%d" % (ZSUM, sIsZ2, ZSUM))
        a("v_mul_f32 v%d, s%d, v%d" % (ZSQ, sIsZ2, ZSQ))
        a("v_mov_b32 v%d, v%d" % (T0, ZSUM))
        a("v_mov_b32 v%d, v%d" % (T0 + 1, ZSQ))
        a("v_permlane32_swap_b32 v%d, v%d" % (ZSUM, T0))
        a("v_permlane32_swap_b32 v%d, v%d" % (ZSQ, T0 + 1))
        a("v_add_f32 v%d, v%d, v%d" % (ZSUM, ZSUM, T0))
        a("v_add_f32 v%d, v%d, v%d" % (ZSQ, ZSQ, T0 + 1))


def dma_unit(pos):
    return [
        "s_add_u32 m0, s%d, %d" % (sWb, pos * 4096),
        "buffer_load_dwordx4 v%d, s[%d:%d], s%d offen lds" % (vW1a, sW1, sW1 + 3, sW1off),
        "buffer_load_dwordx4 v%d, s[%d:%d], s%d offen offset:1024 lds" % (vW1b, sW1, sW1 + 3, sW1off),
        "s_add_u32 s%d, s%d, %d" % (sW1off, sW1off, (128 - 4 * 128 * 3840) & 0xffffffff if pos == 4 else 128 * 3840),
    ]


def dma_u(pos):
    return [
        "s_add_u32 m0, s%d, %d" % (sWb, pos * 4096),
        "buffer_load_dwordx4 v%d, s[%d:%d], s%d offen lds" % (vUa, sWu, sWu + 3, sUoff),
        "buffer_load_dwordx4 v%d, s[%d:%d], s%d offen offset:1024 lds" % (vUb, sWu, sWu + 3, sUoff),
        "s_add_u32 s%d, s%d, s%d" % (sUoff, sUoff, sUstep),
    ]


def dma_x(hp):
    return [
        "s_add_u32 m0, s%d, %d" % (sXb, (hp % 5) * 4096),
        "buffer_load_dwordx4 v%d, s[%d:%d], s%d offen lds" % (vXd0, sX, sX + 3, sXoff),
        "buffer_load_dwordx4 v%d, s[%d:%d], s%d offen offset:1024 lds" % (vXd1, sX, sX + 3, sXoff),
        "s_add_u32 s%d, s%d, 128" % (sXoff, sXoff),
    ]


def dma_b0(i):
    return [
        "s_add_u32 m0, s%d, %d" % (sWb, i * 4096 - REG),
        "buffer_load_dwordx4 v%d, s[%d:%d], s%d offen lds" % (vW0a, sW0, sW0 + 3, sW0off),
        "buffer_load_dwordx4 v%d, s[%d:%d], s%d offen offset:1024 lds" % (vW0b, sW0, sW0 + 3, sW0off),
        "s_add_u32 s%d, s%d, %d" % (sW0off, sW0off, 128 * 3456),
    ]


def mfma(a, i, j):
    x = X0 + 32 * i + 4 * j
    f = FR + 4 * (j & 3)
    d = E0 if (i == 4 and j == 7) else M0
    c = "0" if (i == 0 and j == 0) else "v[%d:%d]" % (M0, M0 + 15)
    a("v_mfma_f32_32x32x16_bf16 v[%d:%d], v[%d:%d], v[%d:%d], %s" % (d, d + 15, f, f + 3, x, x + 3, c))


def cs_mfma(a, i, j):
    f = FR + 4 * (j & 3)
    c = "0" if (i == 0 and j == 0) else "v[%d:%d]" % (CSA, CSA + 3)
    a("v_mfma_f32_16x16x32_bf16 v[%d:%d], v[%d:%d], v[%d:%d], %s" % (CSA, CSA + 3, SEL, SEL + 3, f, f + 3, c))


def ext_mfma(a, q):
    q.wait("csr")
    a("v_add_f32 v%d, v%d, v%d" % (PK, PK, PK + 1))
    a("v_add_f32 v%d, v%d, v%d" % (PK + 2, PK + 2, PK + 3))
    a("v_add_f32 v%d, v%d, v%d" % (PK, PK, PK + 2))
    a("v_add_u32 v%d, s%d, v%d" % (vCsR, sDelta, vCsR))
    a("v_mfma_f32_32x32x2_f32 v[%d:%d], v%d, v%d, v[%d:%d]" % (E0, E0 + 15, PK, NEGMU, E0, E0 + 15))


ST = X0
ZN = X0 + 16
ZT = X0 + 24
vPf = 1
N15 = int(os.environ.get("N15", "6"))
N14 = int(os.environ.get("N14", "0"))
PFREST = 65536 - 128 * 64 * (N15 + N14)
PFL = -(-PFREST // (1792 * 2))
LRDY = 2 * 4096 + 3584


def zok_check(a, tmp):
    l0, l1 = a.label("Lz0"), a.label("Lz1")
    a(l0 + ":")
    a("s_cmp_eq_u32 s%d, 16" % sZok)
    a("s_cbranch_scc1 %s" % l1)
    a("buffer_load_dword v%d, off, s[%d:%d], 0 sc1" % (tmp, sDBG, sDBG + 3))
    a("s_waitcnt vmcnt(0)")
    a("v_readfirstlane_b32 s%d, v%d" % (sZok, tmp))
    a("s_branch %s" % l0)
    a(l1 + ":")


def stat_lane(v):
    return ["v_and_b32 v%d, 31, v0" % v,
            "v_lshlrev_b32 v%d, 3, v%d" % (v, v),
            "v_lshrrev_b32 v%d, 5, v0" % (v + 1),
            "v_mul_u32_u24 v%d, %d, v%d" % (v + 1, 7 * 256, v + 1),
            "v_add_u32 v%d, v%d, v%d" % (v, v, v + 1)]


def valid_ops(t):
    L = ["v_and_b32 v%d, v%d, v%d" % (t, ST + 1, ST + 3),
         "v_and_b32 v%d, v%d, v%d" % (t + 1, ST + 5, ST + 7),
         "v_and_b32 v%d, v%d, v%d" % (t + 2, ST + 9, ST + 11),
         "v_and_b32 v%d, v%d, v%d" % (t, t, ST + 13),
         "v_and_b32 v%d, v%d, v%d" % (t + 1, t + 1, t + 2),
         "v_and_b32 v%d, v%d, v%d" % (t, t, t + 1),
         "v_cmp_gt_i32 vcc, 0, v%d" % t,
         "s_cmp_eq_u64 vcc, -1"]
    return L


def sum_ops():
    L = []
    for (d, s_) in ((0, 4), (1, 5), (2, 6), (0, 3), (1, 2), (0, 1)):
        L.append("v_add_f32 v%d, v%d, v%d" % (ST + 2 * d, ST + 2 * d, ST + 2 * s_))
        L.append("v_add_f32 v%d, v%d, v%d" % (ST + 2 * d + 1, ST + 2 * d + 1, ST + 2 * s_ + 1))
    return L


def norm_ops():
    L = ["v_mov_b32 v%d, v%d" % (ST + 2, ST),
         "v_mov_b32 v%d, v%d" % (ST + 3, ST + 1),
         "v_lshlrev_b32 v%d, 16, v%d" % (ZT, HOLD),
         "v_and_b32 v%d, 0xffff0000, v%d" % (ZT + 1, HOLD),
         "v_permlane32_swap_b32 v%d, v%d" % (ST, ST + 2),
         "v_permlane32_swap_b32 v%d, v%d" % (ST + 1, ST + 3),
         "v_add_f32 v%d, v%d, v%d" % (ST, ST, ST + 2),
         "v_add_f32 v%d, v%d, v%d" % (ST + 1, ST + 1, ST + 3),
         "v_mul_f32 v%d, %s, v%d" % (ST, fhex(-1.0 / FH), ST),
         "v_mul_f32 v%d, %s, v%d" % (ST + 1, fhex(-1.0 / FH), ST + 1),
         "v_fma_f32 v%d, -v%d, v%d, v%d" % (ST + 1, ST, ST, ST + 1),
         "v_max_f32 v%d, 0, v%d" % (ST + 1, ST + 1),
         "v_add_f32 v%d, %s, v%d" % (ST + 1, fhex(1e-5), ST + 1),
         "v_rsq_f32 v%d, v%d" % (ST + 1, ST + 1),
         "v_lshlrev_b32 v%d, 16, v%d" % (ZT + 2, HOLD + 1),
         "v_and_b32 v%d, 0xffff0000, v%d" % (ZT + 3, HOLD + 1)]
    for t in range(8):
        z = ZT + 2 * (t & 3)
        L.append("v_add_f32 v%d, v%d, v%d" % (z, z, ST))
        L.append("v_add_f32 v%d, v%d, v%d" % (z + 1, z + 1, ST))
        if t + 2 < 8:
            z2 = ZT + 2 * ((t + 2) & 3)
            L.append("v_lshlrev_b32 v%d, 16, v%d" % (z2, HOLD + t + 2))
            L.append("v_and_b32 v%d, 0xffff0000, v%d" % (z2 + 1, HOLD + t + 2))
        L.append("v_mul_f32 v%d, v%d, v%d" % (z, z, ST + 1))
        L.append("v_mul_f32 v%d, v%d, v%d" % (z + 1, z + 1, ST + 1))
        L.append("v_cvt_pk_bf16_f32 v%d, v%d, v%d" % (ZN + t, z, z + 1))
    return L


def zn_stores(a, soff):
    a("buffer_store_dwordx4 v[%d:%d], v%d, s[%d:%d], s%d offen sc1" % (ZN, ZN + 3, vSt0, sWS, sWS + 3, soff))
    a("buffer_store_dwordx4 v[%d:%d], v%d, s[%d:%d], s%d offen sc1" % (ZN + 4, ZN + 7, vSt1, sWS, sWS + 3, soff))


def cz_signal(a):
    a("v_mov_b32 v%d, 1" % ZSUM)
    a("s_mov_b64 exec, 1")
    a("buffer_atomic_add v%d, off, s[%d:%d], s%d sc1" % (ZSUM, sWS, sWS + 3, sT2))
    a("s_mov_b64 exec, -1")


INQ2 = ["f0", "f0", "csw", "f1", "f1", "f2", "f2"]


def next_line_ops():
    return [
        "s_mov_b32 s%d, s%d" % (sOut, sOut1),
        "s_mov_b32 s%d, s%d" % (sOut1, sOut2),
        "s_add_u32 s%d, s%d, 4096" % (sOut2, sOut2),
        "s_cmp_ge_u32 s%d, 20\ns_mov_b32 s%d, %s\ns_cselect_b32 s%d, 0xff800000, s%d\ns_cselect_b32 s%d, 0, 1.0\ns_cselect_b32 s%d, 0, %s" % (
            sLg, sA, fhex(1e-6), sA, sA, sB, sCc, fhex(1e-6)),
        "s_add_u32 s%d, s%d, 1" % (sLg, sLg),
        "s_add_u32 s%d, s%d, 1" % (sLine, sLine),
    ]


def body(a, typ, line):
    last = line == 3
    q = LdsQ(a, INQ2)
    allp = []
    for qd in range(4):
        allp += epi_quad(typ, qd)
        if qd & 1:
            allp.append(("out", qd >> 1))
    if not last:
        if line == 1:
            ecnt = [0] * 6 + spread(len(allp), 25) + [0] * 9
        else:
            ecnt = [0] * 6 + spread(len(allp), 33) + [0]
        lfill, p0 = [], 0
        for i in range(5):
            n = sum(ecnt[8 * i:8 * i + 8])
            lfill.append(allp[p0:p0 + n])
            p0 += n
    if last:
        n3 = spread(len(allp), 3)
        lfill = [[], norm_ops(), allp[:n3[0]], allp[n3[0]:n3[0] + n3[1]], allp[n3[0] + n3[1]:]]
        assert ("out", 0) in lfill[3]
    for i in range(5):
        q.wait("csw")
        if not last:
            a("s_waitcnt vmcnt(10)")
        elif i in (0, 4):
            a("s_waitcnt vmcnt(1)")
        a("s_barrier")
        if ("st2" in EXP and line == 2) or ("st1" in EXP and line == 1):
            stamp(a, 2 + i)
        if "st3" in EXP and last:
            stamp(a, 2 + i)
        du = dma_unit((i + 2) % 5)
        lump = None
        hasdma = line == 1 or (line == 2 and i < 3)
        fill = lfill[i]
        if last:
            nslots = 7 if i == 4 else 8
            cnt = spread(len(fill), nslots) + [0] * (8 - nslots)
        else:
            cnt = ecnt[8 * i:8 * i + 8]
        pos = 0
        for j in range(8):
            q.wait("f%d" % j)
            mfma(a, i, j)
            if i == 0 and j == 0:
                q.issue("ds_read_b128 v[%d:%d], v%d" % (PK, PK + 3, vCsR), "csr")
            if i == 4 and j == 6:
                q.issue("ds_write_b32 v%d, v%d" % (vCsW, CSA), "csw")
                a("v_add_u32 v%d, s%d, v%d" % (vCsW, sDelta, vCsW))
            jn = j + 3
            if jn < 8:
                frag_reads(q, i, jn)
            elif not (last and i == 4):
                frag_reads(q, (i + 1) % 5, jn - 8)
            if i == 4 and 1 <= j <= 4 and not last:
                t = (j + 3) & 3
                a("v_add_u32 v%d, s%d, v%d" % (vA + t, sDelta, vA + t))
            if i == 0 and j == 2:
                ext_mfma(a, q)
                a("s_sub_u32 s%d, 0, s%d" % (sDelta, sDelta))
            if last and i == 0:
                if j == 0:
                    for t in stat_lane(T0):
                        a(t)
                    a("s_mul_i32 s%d, s%d, %d" % (sT0, sR, CH))
                    a("s_add_u32 s%d, s%d, 8192" % (sT0, sT0))
                    a("v_add_u32 v%d, s%d, v%d" % (T0, sT0, T0))
                if j <= 3:
                    for t in (2 * j, 2 * j + 1):
                        if t < 7:
                            q.issue("ds_read_b64 v[%d:%d], v%d offset:%d" % (ST + 2 * t, ST + 2 * t + 1, T0, 256 * t), "st")
                if j == 5:
                    q.wait("st")
                    for t in valid_ops(T0 + 2):
                        a(t)
                    a("s_cselect_b32 s%d, 1, 0" % sT0)
                    a("v_mov_b32 v%d, s%d" % (T0 + 2, sT0))
                    a("v_mov_b32 v%d, %d" % (T0 + 3, LRDY))
                    a("s_mov_b64 exec, 1")
                    q.issue("ds_add_u32 v%d, v%d" % (T0 + 3, T0 + 2), "csw")
                    a("s_mov_b64 exec, -1")
                if j >= 6:
                    for t in sum_ops()[6 * (j - 6):6 * (j - 5)]:
                        a(t)
            if last and i == 1:
                if j == 0:
                    q.issue("ds_read_b32 v%d, v%d" % (T0 + 2, T0 + 3), "rdy")
                if j == 4:
                    q.wait("rdy")
                    a("v_readfirstlane_b32 s%d, v%d" % (sT1, T0 + 2))
                    a("s_cmp_eq_u32 s%d, 8" % sT1)
                    a("s_cselect_b32 s%d, 1, 0" % sReady)
                    a("s_cselect_b32 s%d, s%d, 0x40000000" % (sT0, sOut0))
                    a("s_cselect_b32 s%d, s%d, 99" % (sL1, sL1))
            if not last:
                if j == 0 and i == 3 and line == 2:
                    a("s_mov_b32 m0, s%d" % sGl)
                    a("v_lshlrev_b32 v%d, 4, v0" % ZSUM)
                    a("s_and_b32 s%d, s%d, 0xfffff000" % (sT0, sZ2w))
                    a("s_lshl_b32 s%d, s%d, 11" % (sT1, sC))
                    a("s_add_u32 s%d, s%d, s%d" % (sT0, sT0, sT1))
                    a("buffer_load_dwordx4 v%d, s[%d:%d], s%d offen sc1 lds" % (ZSUM, sWS, sWS + 3, sT0))
                if j == 4 and i == 3 and line == 2:
                    a("buffer_load_dwordx4 v%d, s[%d:%d], s%d offen offset:1024 sc1 lds" % (ZSUM, sWS, sWS + 3, sT0))
                if j == 0 and hasdma:
                    a(du[0])
            for t in fill[pos:pos + cnt[j]]:
                if isinstance(t, tuple):
                    epi_out(a, typ, t[1], z2=(line == 1))
                    if line == 1 and t[1] == 1:
                        q.issue("ds_write_b64 v%d, v[%d:%d]" % (T0 + 2, ZSUM, ZSQ), "csw")
                else:
                    a(t)
            pos += cnt[j]
            if last and i == 1 and j == 7:
                zn_stores(a, sT0)
            if hasdma:
                if j == 0:
                    if i == 2 and PFREST > 0:
                        a("buffer_load_dword v%d, s[%d:%d], s%d offen lds" % (vPf, sX, sX + 3, sXoff))
                        a("s_add_u32 s%d, s%d, %d" % (sXoff, sXoff, 1792 * PFL * 128))
                    a(du[1])
                if j == 4:
                    a(du[2])
                    a(du[3])
                    if i == 2:
                        a("s_sub_u32 s%d, s%d, s%d" % (sWb, sWb, sDelta))
            if lump and j == 6:
                lump()
            if (j & 3) == 0:
                cs_mfma(a, i, j)
            if line == 1 and i == 4:
                if j == 0:
                    a("v_xor_b32 v%d, 0x800, v%d" % (T0 + 2, T0 + 2))
                    q.issue("ds_read_b64 v[%d:%d], v%d" % (T0 + 4, T0 + 5, T0 + 2), "zp")
                    a("v_lshlrev_b32 v%d, 3, v0" % T0)
                if j == 2:
                    a("s_waitcnt lgkmcnt(0)")
                    q.q = []
                    a("s_cmp_lg_u32 s%d, 16" % sZok)
                    a(rare(a, "s_cbranch_scc1", lambda lb: zok_check(a, T0 + 6)) + ":")
                    a("v_add_f32 v%d, v%d, v%d" % (ZSUM, ZSUM, T0 + 4))
                    a("v_add_f32 v%d, v%d, v%d" % (ZSQ, ZSQ, T0 + 5))
                    a("v_or_b32 v%d, 0x80000000, v%d" % (ZSQ, ZSQ))
                    a("s_mov_b32 exec_hi, 0")
                    a("buffer_store_dwordx2 v[%d:%d], v%d, s[%d:%d], s%d offen sc1" % (ZSUM, ZSQ, T0, sWS, sWS + 3, sL0))
                    a("s_mov_b64 exec, -1")
            if j == 0 and i == 4 and last:
                a("s_cmp_eq_u32 s%d, 0" % sReady)
                a(rare(a, "s_cbranch_scc1", lambda lb: z2_fetch(a)) + ":")
            if j == 1 and i == 4 and last:
                lsk = a.label("Lns")
                a("s_cmp_lg_u32 s%d, 2" % sL1)
                a("s_cbranch_scc1 %s" % lsk)
                cz_signal(a)
                a(lsk + ":")
            if i == 4 and j == 7:
                for t in next_line_ops():
                    a(t)
        assert pos == len(fill)
    assert q.q == (["csw"] if last else INQ2), q.q
    if STAMP:
        a("s_mov_b32 s88, s90")
        a("s_mov_b32 s90, s92")
    stamp(a, 10)


def z2_fetch(a):
    for t in stat_lane(ZT + 8):
        a(t)
    a("s_and_b32 s%d, s%d, 0xfffff000" % (sT0, sZ2w))
    for t in range(7):
        a("buffer_load_dwordx2 v[%d:%d], v%d, s[%d:%d], s%d offen offset:%d sc1" % (
            ST + 2 * t, ST + 2 * t + 1, ZT + 8, sWS, sWS + 3, sT0, 256 * t))


def z2_slow(a, lb):
    lp, lo = a.label("Lpoll"), a.label("Lok")
    a("s_waitcnt vmcnt(1)")
    a(lp + ":")
    for t in valid_ops(ZT):
        a(t)
    a("s_cbranch_scc1 %s" % lo)
    z2_fetch(a)
    a("s_waitcnt vmcnt(0)")
    a("s_branch %s" % lp)
    a(lo + ":")
    for t in sum_ops() + norm_ops():
        a(t)
    zn_stores(a, sOut0)


def tail_common(a):
    q = LdsQ(a)
    a("s_waitcnt lgkmcnt(0)")
    a("s_barrier")
    q.issue("ds_read_b128 v[%d:%d], v%d" % (PK, PK + 3, vCsR), "csr")
    ext_mfma(a, q)
    stamp(a, 11)
    a("s_cmp_eq_u32 s%d, 0" % sReady)
    a(rare(a, "s_cbranch_scc1", lambda lb: z2_slow(a, lb)) + ":")
    stamp(a, 12)
    a("s_add_u32 s71, s%d, 128" % sT2)
    a("s_mov_b32 s70, s%d" % sZok)
    a("s_mov_b32 s69, s%d" % sReady)
    import p2
    p2.p2_loads(a)
    a("s_nop 9")


def pf_wsp(a, first, n):
    srd(a, sDBG, 58, S * S * 2)
    a("s_lshl_b32 s%d, s%d, 3" % (sT0, sRb))
    a("s_add_u32 s%d, s%d, s%d" % (sT0, sT0, sW))
    a("s_mul_i32 s%d, s%d, %d" % (sT0, sT0, n * 64 * 128))
    a("s_add_u32 s%d, s%d, %d" % (sT0, sT0, first * 128))
    a("v_lshlrev_b32 v99, 7, v0")
    for t in range(n):
        a("buffer_load_dword v%d, v99, s[%d:%d], s%d offen" % (100 + t, sDBG, sDBG + 3, sT0))
        a("s_add_u32 s%d, s%d, 8192" % (sT0, sT0))


def retile(a):
    a("s_waitcnt lgkmcnt(0)")
    srd(a, sX, 44, D * D * 2)
    srd(a, sW0, 46, FH * D * 2)
    a("s_cmp_lt_u32 s%d, 4" % sRb)
    a("s_cselect_b32 s%d, s44, s46" % sW1)
    a("s_cselect_b32 s%d, s45, s47" % (sW1 + 1))
    csel(a, sW1 + 2, hex(D * D * 2), hex(FH * D * 2))
    a("s_cselect_b32 s%d, 16, -4" % sT1)
    a("s_and_b32 s%d, s%d, 0xffff" % (sW1 + 1, sW1 + 1))
    a("s_mov_b32 s%d, 0x20000" % (sW1 + 3))
    a("s_mul_i32 s%d, s%d, 160" % (sT0, sW))
    for t in range(5):
        a("v_add_u32 v100, %d, v0" % (64 * t))
        a("v_mul_u32_u24 v101, 205, v100")
        a("v_lshrrev_b32 v101, 11, v101")
        a("v_mul_u32_u24 v101, %d, v101" % (1280 - 160))
        a("v_lshl_add_u32 v101, v100, 4, v101")
        a("v_add_u32 v%d, s%d, v101" % (104 + t, sT0))
    a("s_mul_i32 s%d, s%d, %d" % (sXoff, sRb, 32 * 1280))
    a("s_add_u32 s%d, s%d, s%d" % (sT1, sRb, sT1))
    a("s_mul_i32 s%d, s%d, %d" % (sW1off, sT1, 32 * 1280))
    a("s_add_u32 s%d, s%d, %d" % (sW0off, sXoff, 12 * 32 * 1280))
    for n, (sd, so) in enumerate(((sX, sXoff), (sW1, sW1off), (sW0, sW0off))):
        for t in range(5):
            d = 112 + 20 * n + 4 * t
            a("buffer_load_dwordx4 v[%d:%d], v%d, s[%d:%d], s%d offen" % (d, d + 3, 104 + t, sd, sd + 3, so))
    a("v_lshlrev_b32 v102, 4, v0")
    a("s_mul_i32 s%d, s%d, 40" % (sT0, sRb))
    a("s_mul_i32 s%d, s%d, 5" % (sT1, sW))
    a("s_add_u32 s%d, s%d, s%d" % (sT0, sT0, sT1))
    a("s_lshl_b32 s%d, s%d, 10" % (sT0, sT0))
    a("s_add_u32 s%d, s%d, 0x%x" % (sT2, sT0, WS_B3))


def retile_store(a):
    for n in range(3):
        if n == 2:
            a("s_cmp_eq_u32 s%d, 15" % sRb)
            a("s_cbranch_scc1 K1_rtd")
        a("s_waitcnt vmcnt(%d)" % 12)
        for t in range(5):
            d = 112 + 20 * n + 4 * t
            a("s_add_u32 s%d, s%d, %d" % (sT1, sT2, (n * 16 * 40 + t) * 1024))
            a("buffer_store_dwordx4 v[%d:%d], v102, s[%d:%d], s%d offen sc1" % (d, d + 3, sWS, sWS + 3, sT1))
    a("K1_rtd:")


def tail(a, typ):
    if typ == "G":
        a("s_load_dwordx2 s[44:45], s[0:1], %d" % KA_WO)
        a("s_load_dwordx2 s[46:47], s[0:1], %d" % KA_WOUT)
        retile(a)
    for qd in range(4):
        for t in epi_quad(typ, qd):
            a(t)
        if qd & 1:
            epi_out(a, typ, qd >> 1)
    if typ == "G":
        retile_store(a)
        if N14:
            pf_wsp(a, 128 * N15 * 64, N14)
        a("s_waitcnt vmcnt(0)")
    stamp(a, 13)
    stamp(a, 14)
    stamp_dump(a, 15, sWS, sW, WS_STAMP)
    if typ == "G":
        a("s_branch P2_entry")


def gen_k1(a, label):
    a(".p2align 8")
    a(label + ":")
    end = "K1_end"
    a("s_cmp_ge_u32 s2, 256")
    a("s_cbranch_scc1 %s" % end)
    stamp(a, 0)
    a("s_load_dwordx4 s[48:51], s[0:1], %d" % KA_X)
    a("s_load_dwordx2 s[54:55], s[0:1], %d" % KA_WIN)
    a("s_load_dwordx2 s[58:59], s[0:1], %d" % KA_WSP)
    a("s_load_dwordx4 s[60:63], s[0:1], %d" % KA_DBG)
    a("v_lshrrev_b32 v1, 6, v0")
    a("v_and_b32 v0, 63, v0")
    a("v_readfirstlane_b32 s%d, v1" % sW)
    a("s_and_b32 s%d, s2, 1" % sRb)
    a("s_lshl_b32 s%d, s%d, 3" % (sRb, sRb))
    a("s_lshr_b32 s%d, s2, 5" % sT0)
    a("s_add_u32 s%d, s%d, s%d" % (sRb, sRb, sT0))
    a("s_bfe_u32 s%d, s2, 0x20001" % sT1)
    a("s_bfe_u32 s%d, s2, 0x20003" % sT0)
    a("s_mul_i32 s%d, s%d, 3" % (sCg, sT1))
    a("s_add_u32 s%d, s%d, s%d" % (sCg, sCg, sT0))
    a("s_add_u32 s%d, s%d, 12" % (sT1, sT1))
    a("s_cmp_eq_u32 s%d, 3" % sT0)
    a("s_cselect_b32 s%d, s%d, s%d" % (sCg, sT1, sCg))
    a("s_and_b32 s%d, s%d, 3" % (sR, sW))
    a("s_lshr_b32 s%d, s%d, 2" % (sC, sW))
    a("s_cmp_eq_u32 s%d, 15" % sCg)
    a("s_cbranch_scc1 K1_side")
    a("v_lshrrev_b32 v3, 3, v0")
    a("s_lshl_b32 s%d, s%d, 4" % (sT0, sW))
    a("v_add_u32 v3, s%d, v3" % sT0)
    a("v_lshrrev_b32 v1, 4, v0")
    a("v_and_b32 v2, 7, v0")
    a("v_xor_b32 v4, v1, v2")
    a("v_mul_u32_u24 v5, 1280, v3")
    a("v_lshl_add_u32 v%d, v4, 4, v5" % vXd0)
    a("v_xor_b32 v4, 4, v4")
    a("v_lshl_add_u32 v%d, v4, 4, v5" % vXd1)
    a("v_add_u32 v%d, %d, v%d" % (vXd1, 8 * 1280 - 1024, vXd1))
    a("v_and_b32 v1, 1, v1")
    a("v_lshlrev_b32 v1, 2, v1")
    a("v_xor_b32 v2, v1, v2")
    a("v_lshlrev_b32 v2, 4, v2")
    a("v_mul_u32_u24 v%d, 3456, v3" % vW0a)
    a("v_add_u32 v%d, v%d, v2" % (vW0a, vW0a))
    a("v_add_u32 v%d, %d, v%d" % (vW0b, 8 * 3456 - 1024, vW0a))
    a("s_mul_i32 s%d, s%d, %d" % (sXoff, sRb, 128 * 1280))
    a("s_add_u32 s%d, s%d, 13" % (sLg, sCg))
    a("s_cmp_eq_u32 s%d, 14" % sCg)
    a("s_cselect_b32 s%d, 12, s%d" % (sLg, sLg))
    a("s_cselect_b32 s%d, 1, 0" % sOne)
    a("s_lshl_b32 s%d, s%d, 7" % (sW0off, sLg))
    a("s_mul_i32 s%d, s%d, %d" % (sWb, sR, CH))
    a("s_lshl_b32 s%d, s%d, 11" % (sT0, sC))
    a("s_add_u32 s%d, s%d, s%d" % (sWb, sWb, sT0))
    a("s_add_u32 s%d, s%d, %d" % (sWb, sWb, REG))
    a("s_lshr_b32 s%d, s%d, 1" % (sT0, sW))
    a("s_mul_i32 s%d, s%d, %d" % (sXb, sT0, CH))
    a("s_and_b32 s%d, s%d, 1" % (sT0, sW))
    a("s_lshl_b32 s%d, s%d, 11" % (sT0, sT0))
    a("s_add_u32 s%d, s%d, s%d" % (sXb, sXb, sT0))
    a("s_add_u32 s%d, s%d, %d" % (sXb, sXb, REG))
    a("s_waitcnt lgkmcnt(0)")
    srd(a, sX, 48, S * D * 2)
    srd(a, sW0, 54, D * F * 2)
    for L in (dma_x(0), dma_b0(0)):
        for t in L:
            a(t)
    if "nopf" not in EXP:
        lskip = a.label("Lpf")
        a("s_cmp_eq_u32 s%d, %d" % (sW, 77 if "nocode" in EXP else 7))
        a("s_cbranch_scc1 K1_pfcode")
        if "nopfx" in EXP:
            a("s_branch %s" % lskip)
        a("s_cmp_gt_u32 s%d, 2" % sW)
        a("s_cbranch_scc1 %s" % lskip)
        a("s_cmp_eq_u32 s%d, 2" % sW)
        a("s_cbranch_scc1 K1_pfw0")
        a("s_mul_i32 s%d, s%d, %d" % (sT0, sCg, 86 * 128))
        a("s_mul_i32 s%d, s%d, %d" % (sT1, sW, 43 * 128))
        a("s_add_u32 s%d, s%d, s%d" % (sT0, sT0, sT1))
        a("s_mul_i32 s%d, s%d, %d" % (sT1, sRb, 128 * 1280))
        a("s_add_u32 s%d, s%d, s%d" % (sT0, sT0, sT1))
        a("v_min_u32 v%d, 42, v0" % (E0 + 12))
        a("v_lshlrev_b32 v%d, 7, v%d" % (E0 + 12, E0 + 12))
        a("buffer_load_dword v%d, v%d, s[%d:%d], s%d offen" % (E0 + 13, E0 + 12, sX, sX + 3, sT0))
        a("s_branch %s" % lskip)

        def pfw0(lb):
            a("s_mul_i32 s%d, s%d, %d" % (sT0, sRb, 40 * 3456))
            a("s_lshl_b32 s%d, s%d, 7" % (sT1, sLg))
            a("s_add_u32 s%d, s%d, s%d" % (sT0, sT0, sT1))
            a("v_min_u32 v%d, 39, v0" % (E0 + 12))
            a("v_mul_u32_u24 v%d, 3456, v%d" % (E0 + 12, E0 + 12))
            a("buffer_load_dword v%d, v%d, s[%d:%d], s%d offen" % (E0 + 13, E0 + 12, sW0, sW0 + 3, sT0))

        def pfcode(lb):
            a("s_getpc_b64 s[52:53]")
            a("K1_pc:")
            a("s_sub_u32 s52, s52, K1_pc-%s" % label)
            a("s_subb_u32 s53, s53, 0")
            a("s_bfe_u32 s%d, s2, 0x30003" % sT0)
            a("s_lshl_b32 s%d, s%d, 6" % (sT0, sT0))
            a("v_add_u32 v%d, s%d, v0" % (E0 + 12, sT0))
            a("v_lshlrev_b32 v%d, 7, v%d" % (E0 + 12, E0 + 12))
            a("v_min_u32 v%d, (CODE_END-%s-4), v%d" % (E0 + 12, label, E0 + 12))
            a("global_load_dword v%d, v%d, s[52:53]" % (E0 + 13, E0 + 12))
        a("K1_pfw0:")
        pfw0(None)
        a("s_branch %s" % lskip)
        a("K1_pfcode:")
        pfcode(None)
        a(lskip + ":")
    for t in dma_x(1):
        a(t)
    stamp(a, 1)
    a("v_mov_b32 v%d, v3" % (E0 + 8))
    a("v_mov_b32 v%d, v2" % (E0 + 9))
    e = E0
    a("s_xor_b32 s%d, s%d, s%d" % (sT1, sR, sC))
    a("v_lshrrev_b32 v1, 5, v0")
    a("v_and_b32 v%d, 31, v0" % (e + 1))
    a("v_lshlrev_b32 v%d, 7, v%d" % (e + 1, e + 1))
    a("v_bfe_u32 v%d, v0, 1, 3" % (e + 2))
    a("v_xor_b32 v%d, v%d, v1" % (e + 2, e + 2))
    a("s_lshl_b32 s%d, s%d, 1" % (sT0, sT1))
    a("v_xor_b32 v%d, s%d, v%d" % (e + 2, sT0, e + 2))
    a("v_lshl_add_u32 v%d, v%d, 4, v%d" % (e + 1, e + 2, e + 1))
    a("s_mul_i32 s%d, s%d, %d" % (sT0, sR, CH))
    a("s_add_u32 s%d, s%d, %d" % (sT0, sT0, REG))
    a("v_add_u32 v%d, s%d, v%d" % (vXA, sT0, e + 1))
    for t in range(1, 4):
        a("v_xor_b32 v%d, %d, v%d" % (vXA + t, 32 * t, vXA))
    a("v_bfe_u32 v%d, v0, 2, 2" % e)
    a("v_lshl_add_u32 v%d, v1, 3, v%d" % (e, e))
    a("v_lshlrev_b32 v%d, 7, v%d" % (e, e))
    a("v_bfe_u32 v%d, v0, 4, 1" % (e + 1))
    a("v_lshlrev_b32 v%d, 1, v%d" % (e + 1, e + 1))
    a("v_bfe_u32 v%d, v0, 1, 1" % (e + 2))
    a("v_add_u32 v%d, v%d, v%d" % (e + 1, e + 1, e + 2))
    a("s_lshl_b32 s%d, s%d, 2" % (sT0, sC))
    a("v_add_u32 v%d, s%d, v%d" % (e + 1, sT0, e + 1))
    a("v_bfe_u32 v%d, v0, 3, 1" % (e + 2))
    a("v_lshlrev_b32 v%d, 2, v%d" % (e + 2, e + 2))
    a("v_xor_b32 v%d, v%d, v%d" % (e + 1, e + 1, e + 2))
    a("v_lshl_add_u32 v%d, v%d, 4, v%d" % (e, e + 1, e))
    a("v_and_b32 v%d, 1, v0" % (e + 1))
    a("v_lshl_add_u32 v%d, v%d, 3, v%d" % (e, e + 1, e))
    for t in range(4):
        a("s_xor_b32 s%d, s%d, %d" % (sT0, sT1, t))
        a("s_mul_i32 s%d, s%d, %d" % (sT0, sT0, CH))
        a("v_add_u32 v%d, s%d, v%d" % (vA + t, sT0, e))
    for L in (dma_x(2), dma_b0(1)):
        for t in L:
            a(t)
    a("s_mov_b32 s%d, 0x3f803f80" % sOnes)
    a("v_lshrrev_b32 v%d, 4, v0" % (e + 1))
    a("v_bfe_u32 v%d, v0, 2, 2" % (e + 2))
    a("v_cmp_eq_u32 vcc, v%d, v%d" % (e + 1, e + 2))
    a("v_mov_b32 v%d, s%d" % (e + 1, sOnes))
    for t in range(4):
        a("v_cndmask_b32 v%d, 0, v%d, vcc" % (SEL + t, e + 1))

    class Rec:
        def __init__(self):
            self.L = []

        def __call__(self, t):
            self.L.append(t)
    r = Rec()
    srd(r, sW1, 50, D * 3 * D * 2)
    r("v_mul_u32_u24 v%d, 3840, v%d" % (vW1a, E0 + 8))
    r("v_add_u32 v%d, v%d, v%d" % (vW1a, vW1a, E0 + 9))
    r("v_add_u32 v%d, %d, v%d" % (vW1b, 8 * 3840 - 1024, vW1a))
    r("s_lshl_b32 s%d, s%d, 1" % (sT0, sLg))
    r("s_add_u32 s%d, s%d, s%d" % (sT0, sT0, sC))
    r("s_cmp_ge_u32 s%d, 27\ns_cselect_b32 s%d, 1.0, 0" % (sT0, sIsZ2))
    r("s_lshl_b32 s%d, s%d, 2" % (sT2, sRb))
    r("s_add_u32 s%d, s%d, s%d" % (sT2, sT2, sR))
    r("s_mul_i32 s%d, s%d, %d" % (sA, sT2, NG_Z * 1024))
    r("s_add_u32 s%d, s%d, 0x%x" % (sA, sA, WS_Z))
    r("s_lshl_b32 s%d, s%d, 11" % (sOut, sT0))
    r("s_add_u32 s%d, s%d, s%d" % (sOut, sOut, sA))
    r("s_cmp_lg_u32 s%d, 0\ns_cselect_b32 s%d, s%d, 0x40000000\ns_cselect_b32 s%d, 0x40000000, s%d" % (sIsZ2, sOut0, sOut, sOut, sOut))
    r("s_sub_u32 s%d, s%d, %d" % (sGl, sWb, REG - 8192))
    r("s_lshl_b32 s%d, s%d, 12" % (sZ2w, sT2))
    r("s_lshl_b32 s%d, s%d, 8" % (sT0, sCg))
    r("s_add_u32 s%d, s%d, s%d" % (sZ2w, sZ2w, sT0))
    r("s_add_u32 s%d, s%d, 0x%x" % (sZ2w, sZ2w, WS_ST2))
    r("s_lshl_b32 s%d, s%d, 1" % (sT0, sCg))
    r("s_mul_i32 s%d, s%d, 3" % (sT1, sCg))
    r("s_sub_u32 s%d, s%d, 11" % (sT1, sT1))
    r("s_cmp_lt_u32 s%d, 12\ns_cselect_b32 s%d, s%d, s%d\ns_cselect_b32 s%d, 1, 0" % (sCg, sLg, sT0, sT1, sType))
    r("s_lshl_b32 s%d, s%d, 7" % (sW1off, sLg))
    r("s_mul_i32 s%d, s%d, %d" % (sOut2, sT2, NG_QKV * 1024))
    r("s_lshl_b32 s%d, s%d, 12" % (sT0, sLg))
    r("s_add_u32 s%d, s%d, s%d" % (sOut2, sOut2, sT0))
    r("s_lshl_b32 s%d, s%d, 11" % (sT1, sC))
    r("s_add_u32 s%d, s%d, s%d" % (sOut2, sOut2, sT1))
    r("s_sub_u32 s%d, s%d, 1" % (sLg, sLg))
    r("s_lshl_b32 s%d, s%d, 12" % (sT0, sCg))
    r("s_add_u32 s%d, s%d, s%d" % (sT0, sT0, sT1))
    r("s_add_u32 s%d, s%d, s%d" % (sT0, sT0, sA))
    r("s_sub_u32 s%d, s%d, 4096" % (sT1, sOut2))
    r1 = Rec()
    r1("s_cmp_lt_u32 s%d, 12" % sCg)
    r1("s_cselect_b32 s%d, s%d, s%d" % (sOut1, sT0, sT1))
    r1("s_cselect_b32 s%d, s%d, s%d" % (sUoff, sCg, sLg))
    csel(r1, sUstep, str(128 * 3456), str(128 * 3840))
    r1("s_cselect_b64 s[%d:%d], s[%d:%d], s[%d:%d]" % (sWu, sWu + 1, sW0, sW0 + 1, sW1, sW1 + 1))
    r1("s_cselect_b32 s%d, s%d, s%d" % (sWu + 2, sW0 + 2, sW1 + 2))
    r1("s_cselect_b64 vcc, -1, 0")
    r("\n".join(r1.L))
    r("s_mov_b32 s%d, 0x20000" % (sWu + 3))
    r("v_cndmask_b32 v%d, v%d, v%d, vcc" % (vUa, vW1a, vW0a))
    r("v_cndmask_b32 v%d, v%d, v%d, vcc" % (vUb, vW1b, vW0b))
    r("s_lshl_b32 s%d, s%d, 7" % (sUoff, sUoff))
    r("s_cmp_eq_u32 s%d, 1\ns_cselect_b32 s%d, 0x40000000, s%d" % (sOne, sUoff, sUoff))
    late = []
    srd(r, sWS, 62, WS_END)
    srd(r, sDBG, 60, 256)
    r("v_lshlrev_b32 v%d, 2, v1" % (e + 1))
    r("v_xor_b32 v%d, v%d, v0" % (e + 1, e + 1))
    r("v_lshlrev_b32 v%d, 4, v%d" % (vSt0, e + 1))
    r("v_xor_b32 v%d, 0x80, v%d" % (vSt1, vSt0))
    r("v_add_u32 v%d, 1024, v%d" % (vSt1, vSt1))
    r("s_lshl_b32 s%d, s%d, 10" % (sT0, sC))
    r("s_add_u32 s%d, s%d, %d" % (sT0, sT0, 3 * 4096))
    r("v_lshlrev_b32 v%d, 4, v0" % vCsR)
    r("v_add_u32 v%d, s%d, v%d" % (vCsR, sT0, vCsR))
    r("s_lshl_b32 s%d, s%d, 2" % (sT0, sR))
    r("v_add_u32 v%d, s%d, v%d" % (vCsW, sT0, vCsR))
    r("v_mov_b32 v%d, 0" % ZSUM)
    r("v_mov_b32 v%d, 0" % ZSQ)
    r("s_mov_b32 s%d, %d" % (sDelta, REG))
    r("s_mov_b32 s%d, s%d" % (sReady, sOne))
    r("s_lshl_b32 s%d, s%d, 10" % (sT2, sRb))
    r("s_add_u32 s%d, s%d, 0x%x" % (sT2, sT2, WS_FL))
    r("s_cmp_eq_u32 s%d, 0\ns_cselect_b32 s%d, 2, 99" % (sW, sL1))
    r("s_cmp_eq_u32 s%d, 0\ns_cselect_b32 s%d, s%d, 0x40000000" % (sC, sL0, sZ2w))
    late += r.L
    nlate = spread(len(late), 16) + [0] * 24

    seq = ["x0", "b0", "x1", "x2", "b1"]
    plan = {-1: ["x3", "x4"], 0: ["b2", "x5"], 1: ["x6"], 2: ["b3", "x7"], 3: ["x8"], 4: ["b4", "x9"],
            5: ["u0"], 6: ["u1"], 7: ["u2"], 8: ["u3"], 9: ["u4"]}
    q = LdsQ(a)

    def dma_list(it):
        return dma_x(int(it[1:])) if it[0] == "x" else dma_b0(int(it[1:])) if it[0] == "b" else dma_u(int(it[1:]))

    def xread(hp, t):
        x = X0 + 16 * hp + 4 * t
        q.issue("ds_read_b128 v[%d:%d], v%d offset:%d" % (x, x + 3, vXA + t, (hp % 5) * 4096), "x%d" % hp)

    def stats(x, first):
        def c(r_):
            return "0" if first else "v[%d:%d]" % (r_, r_ + 3)
        a("v_mfma_f32_4x4x4_16b_bf16 v[%d:%d], v[%d:%d], v[%d:%d], %s" % (XQ, XQ + 3, x, x + 1, x, x + 1, c(XQ)))
        a("v_mfma_f32_4x4x4_16b_bf16 v[%d:%d], v[%d:%d], v[%d:%d], %s" % (XQ2, XQ2 + 3, x + 2, x + 3, x + 2, x + 3, c(XQ2)))
        a("v_mfma_f32_16x16x32_bf16 v[%d:%d], v[%d:%d], v[%d:%d], %s" % (XS, XS + 3, SEL, SEL + 3, x, x + 3, c(XS)))

    def vmwait(need):
        last = max(seq.index(n) for n in need)
        a("s_waitcnt vmcnt(%d)" % (2 * (len(seq) - 1 - last)))

    vmwait(["x0", "b0"])
    a("s_barrier")
    stamp(a, 2)
    for t in range(4):
        xread(0, t)
    for j in range(3):
        frag_reads(q, 0, j)
    for it in plan[-1]:
        for t in dma_list(it):
            a(t)
        seq.append(it)
    lp = 0
    for h in range(10):
        i, hh = h >> 1, h & 1
        need = []
        if h < 9:
            need.append("x%d" % (h + 1))
        if hh == 1:
            need.append("b%d" % (i + 1) if i < 4 else "u0")
        q.wait("x%d" % h)
        vmwait(need)
        a("s_barrier")
        if h in (2, 4, 6, 8):
            stamp(a, 2 + i)
        dl = []
        for it in plan[h]:
            dl.append(dma_list(it))
            seq.append(it)
        if h == 9:
            stats(X0 + 16 * h, False)
            stats(X0 + 16 * h + 8, False)
        for t in range(4):
            j = 4 * hh + t
            x = X0 + 32 * i + 4 * j
            q.wait("f%d" % j)
            mfma(a, i, j)
            if h == 9 and t == 2:
                q.issue("ds_write_b32 v%d, v%d" % (vCsW, CSA), "csw")
                a("v_add_u32 v%d, s%d, v%d" % (vCsW, sDelta, vCsW))
            jn = j + 3
            if jn < 8:
                frag_reads(q, i, jn)
            else:
                frag_reads(q, (i + 1) % 5, jn - 8)
            if i == 4 and 1 <= j <= 4:
                tt = (j + 3) & 3
                a("v_add_u32 v%d, s%d, v%d" % (vA + tt, sDelta, vA + tt))
            if h < 9 and t < 2:
                xread(h + 1, 2 * t)
                xread(h + 1, 2 * t + 1)
            n, half = t >> 1, t & 1
            if len(dl) == 1:
                n, half = 0, (0 if t == 0 else 1 if t == 2 else None)
            if half == 0:
                a(dl[n][0])
                a(dl[n][1])
            elif half == 1:
                a(dl[n][2])
                a(dl[n][3])
            for tx in late[lp:lp + nlate[4 * h + t]]:
                a(tx)
            lp += nlate[4 * h + t]
            if t == 0:
                cs_mfma(a, i, j)
            if h < 9 and (t & 1) == 0:
                stats(x, h == 0 and t == 0)
            if h == 9 and t == 0:
                a("v_and_b32 v1, 3, v0")
                for tt in range(4):
                    a("v_add_f32 v%d, v%d, v%d" % (XQ + tt, XQ + tt, XQ2 + tt))
                for tt in range(1, 4):
                    a("v_cmp_eq_u32 vcc, %d, v1" % tt)
                    a("v_cndmask_b32 v%d, v%d, v%d, vcc" % (XQ, XQ, XQ + tt))
                a("v_mov_b32 v%d, v%d" % (XQ + 1, XS))
                a("s_lshl_b32 s%d, s%d, 9" % (sT0, sW))
                a("s_add_u32 s%d, s%d, %d" % (sT0, sT0, CH + 3 * 4096))
                a("v_lshlrev_b32 v1, 3, v0")
                a("v_add_u32 v1, s%d, v1" % sT0)
                q.issue("ds_write_b64 v1, v[%d:%d]" % (XQ, XQ + 1), "stw")
                a("v_xor_b32 v1, 0x800, v1")
            if h == 9 and t == 1:
                q.wait("stw")
                a("s_barrier")
                q.issue("ds_read_b64 v[%d:%d], v1" % (XQ + 2, XQ + 3), "str")
    assert lp == len(late)
    q.wait("str")
    assert q.q == INQ2[2:], q.q
    sq, sm, t0, t1 = XQ, XQ + 1, XQ + 2, XQ + 3
    a("v_add_f32 v%d, v%d, v%d" % (sq, sq, t0))
    a("v_add_f32 v%d, v%d, v%d" % (sm, sm, t1))
    a("v_mov_b32 v%d, v%d" % (t0, sq))
    a("v_mov_b32 v%d, v%d" % (t1, sm))
    a("v_permlane32_swap_b32 v%d, v%d" % (sq, t0))
    a("v_permlane32_swap_b32 v%d, v%d" % (sm, t1))
    a("v_add_f32 v%d, v%d, v%d" % (sq, sq, t0))
    a("v_add_f32 v%d, v%d, v%d" % (sm, sm, t1))
    a("v_mul_f32 v%d, %s, v%d" % (NEGMU, fhex(-1.0 / D), sm))
    a("v_mul_f32 v%d, %s, v%d" % (sq, fhex(1.0 / D), sq))
    a("v_fma_f32 v%d, -v%d, v%d, v%d" % (sq, NEGMU, NEGMU, sq))
    a("v_max_f32 v%d, 0, v%d" % (sq, sq))
    a("v_add_f32 v%d, %s, v%d" % (sq, fhex(1e-5), sq))
    a("v_rsq_f32 v%d, v%d" % (RSTD, sq))
    a("v_sqrt_f32 v%d, v%d" % (IRSTD, sq))
    a("v_mul_f32 v%d, %s, v%d" % (RL, fhex(LOG2E), RSTD))
    a("v_mul_f32 v%d, %s, v%d" % (K1c, fhex(GC1), RSTD))
    a("v_mul_f32 v%d, v%d, v%d" % (K2c, RSTD, RSTD))
    a("v_mul_f32 v%d, v%d, v%d" % (K2c, K2c, RSTD))
    a("v_mul_f32 v%d, %s, v%d" % (K2c, fhex(GC2), K2c))
    a("s_mov_b32 s%d, 1" % sLine)
    a("s_load_dword s%d, s[60:61], 0" % sZok)
    stamp(a, 7)
    a("s_cmp_eq_u32 s%d, 1" % sOne)
    a("s_cbranch_scc1 K1_tail")
    a("s_sub_u32 s%d, s%d, s%d" % (sWb, sWb, sDelta))
    for t in dma_unit(0) + dma_unit(1):
        a(t)
    srd(a, sX, 58, S * S * 2)
    a("s_mul_i32 s%d, s%d, 14" % (sXoff, sRb))
    a("s_add_u32 s%d, s%d, s%d" % (sXoff, sXoff, sCg))
    a("s_lshl_b32 s%d, s%d, 3" % (sXoff, sXoff))
    a("s_add_u32 s%d, s%d, s%d" % (sXoff, sXoff, sW))
    a("s_mul_i32 s%d, s%d, %d" % (sXoff, sXoff, PFL * 128))
    a("s_add_u32 s%d, s%d, %d" % (sXoff, sXoff, (65536 - PFREST) * 128))
    a("v_min_u32 v%d, %d, v0" % (vPf, max(PFL - 1, 0)))
    a("v_lshlrev_b32 v%d, 7, v%d" % (vPf, vPf))
    body(a, "G", 1)
    a("s_cmp_eq_u32 s%d, 0" % sType)
    a("s_cbranch_scc1 K1_bodyP")
    body(a, "G", 2)
    a("K1_bodyL:")
    body(a, "P", 3)
    a("K1_tail:")
    tail_common(a)
    a("s_cmp_eq_u32 s%d, 1" % sOne)
    a("s_cbranch_scc1 K1_tailG")
    tail(a, "P")
    import p2
    p2.gen_p2(a)
    a("K1_tailG:")
    tail(a, "G")
    a("K1_bodyP:")
    body(a, "P", 2)
    a("s_branch K1_bodyL")
    flush_rare(a)

    a("K1_side:")
    a("s_waitcnt lgkmcnt(0)")
    srd(a, sWS, 62, WS_END)
    srd(a, sDBG, 60, 256)
    for t in range(4):
        a("v_mov_b32 v%d, 0" % (8 + t))
    a("v_mov_b32 v12, 1")
    a("v_lshlrev_b32 v6, 4, v0")
    a("s_lshl_b32 s%d, s%d, 3" % (sT0, sRb))
    a("s_add_u32 s%d, s%d, s%d" % (sT0, sT0, sW))
    a("s_lshl_b32 s%d, s%d, 11" % (sT0, sT0))
    a("s_add_u32 s%d, s%d, 0x%x" % (sT0, sT0, WS_ST2))
    a("buffer_store_dwordx4 v[8:11], v6, s[%d:%d], s%d offen sc1" % (sWS, sWS + 3, sT0))
    a("buffer_store_dwordx4 v[8:11], v6, s[%d:%d], s%d offen offset:1024 sc1" % (sWS, sWS + 3, sT0))
    a("s_mul_i32 s%d, s%d, 6" % (sT0, sRb))
    a("s_add_u32 s%d, s%d, s%d" % (sT0, sT0, sW))
    a("s_lshl_b32 s%d, s%d, 10" % (sT0, sT0))
    a("s_add_u32 s%d, s%d, 0x%x" % (sT0, sT0, WS_KV))
    a("s_lshl_b32 s%d, s%d, 10" % (sT1, sRb))
    a("s_add_u32 s%d, s%d, 0x%x" % (sT1, sT1, WS_FL))
    a("s_cmp_ge_u32 s%d, 6" % sW)
    a("s_cselect_b32 s%d, s%d, s%d" % (sT0, sT1, sT0))
    a("buffer_store_dwordx4 v[8:11], v6, s[%d:%d], s%d offen sc1" % (sWS, sWS + 3, sT0))
    a("s_waitcnt vmcnt(0)")
    a("s_barrier")
    a("s_cmp_lg_u32 s%d, 6" % sW)
    a("s_cbranch_scc1 K1_nofl2")
    a("s_mov_b64 exec, 1")
    a("buffer_atomic_add v12, off, s[%d:%d], 0 sc1" % (sDBG, sDBG + 3))
    a("s_mov_b64 exec, -1")
    stamp(a, 1)
    a("K1_nofl2:")
    a("s_barrier")
    stamp(a, 12)
    pf_wsp(a, 0, N15)
    a("s_mov_b32 s71, 0")
    a("s_mov_b32 s70, 0")
    a("s_mov_b32 s69, 1")
    import p2
    p2.p2_loads(a)
    a("s_waitcnt vmcnt(0)")
    stamp(a, 13)
    stamp(a, 14)
    stamp_dump(a, 15, sWS, sW, WS_STAMP)
    a("s_branch P2_entry")
    a(end + ":")
    a("s_endpgm")
```

```python
from asmlib import *
from common import *
from k1 import srd, csel, stamp, stamp_dump, STAMP, WS_STAMP, EXP, spread
import k1

STG = 22528
NST = 7
SIDE = 5 * STG
NSA = 5
OSC = SIDE + 32768
K23_LDS = NST * STG
XSP = 18432
assert OSC + 10240 <= NST * STG
CNT_KV = WS_CNT
CNT_O = WS_CNT + 4096
CNT_U = WS_CNT + 8192

ACC = 224
FA = (128, 176)
Z1R = 112
DO = 80
ACB = 80
KVF = 48
XR = 36
import os
FRA, FRB = float(os.environ.get("FRA", "0.5")), float(os.environ.get("FRB", "0.35"))
import os
def _t(n, d): return tuple(int(x) for x in os.environ.get(n, d).split(","))
HK = _t("HK", "4,0,6")
PA = _t("PA", "0,3")
PK = _t("PK", "14,17,20,24")
PO = _t("PO", "27,29")
PU = _t("PU", "37,39")
sCall, sZk = 71, 70
PQR = 36
T = 24
vL16, vLA, vLB0, vA, vB0, vB1, vAt = 10, 11, 12, 13, 14, 15, 16
vBias, vPoll, vZa, vZb, vO = 19, 20, 21, 22, 23
vXl = 20
vLA3, vLB3 = 8, 9
vAd0, vAd1 = 8, 9
vT0, vT1, vT2, vT3, vXd = 11, 12, 13, 14, 15
vPz = 18
sA, sBS, sX, sWS, sO = 4, 8, 12, 16, 20
sA3, sB3 = 8, 12
sI, sJ, sW, sRR, sCC = 24, 25, 26, 27, 28
sAoff, sBoff, sRd, sWr, sIt, sHook = 29, 30, 31, 32, 33, 34
sT0, sT1, sT2, sT3 = 36, 37, 38, 39
sMA, sMB, sHd, sCnt, sKv, sOdd = 40, 41, 42, 43, 44, 45
sA3off, sB3off, sMB3, sCntI = 56, 57, 58, 59
sXo0, sXo1 = 60, 61
sWk, sKvW, sCntW = 64, 65, 66
assert k1.sT0 == sT0


def ring(s, n=NST):
    return "s_add_u32 s%d, s%d, %d\ns_cmp_eq_u32 s%d, %d\ns_cselect_b32 s%d, 0, s%d" % (s, s, STG, s, n * STG, s, s)


def slot(st):
    return ((st + 3) % NSA if st < 32 else (st - 32 + 5) % NST) * STG


def read_A(fs):
    L = []
    L.append("v_add_u32 v%d, s%d, v%d" % (vA, sRd, vLA))
    L.append("v_add_u32 v%d, s%d, v%d" % (vB0, sRd, vLB0))
    L.append("v_xor_b32 v%d, 64, v%d" % (vB1, vB0))
    for k in range(4):
        if k:
            L.append("v_xor_b32 v%d, %d, v%d" % (vAt + k - 1, 32 * k, vA))
        d = fs + 4 * k
        L.append("ds_read_b128 v[%d:%d], v%d" % (d, d + 3, vA if k == 0 else vAt + k - 1))
        for pr in range(2):
            d = fs + 16 + 8 * k + 4 * pr
            off = 8192 + (k >> 1) * 7168 + pr * 2048 + (k & 1) * 256
            L.append("ds_read_b64_tr_b16 v[%d:%d], v%d offset:%d" % (d, d + 1, vB0, off))
            L.append("ds_read_b64_tr_b16 v[%d:%d], v%d offset:%d" % (d + 2, d + 3, vB1, off))
    L.append(ring(sRd, NSA))
    return L


def read_B(fs):
    L = []
    L.append("v_add_u32 v%d, s%d, v%d" % (vA, sRd, vLA3))
    L.append("v_add_u32 v%d, s%d, v%d" % (vB0, sRd, vLB3))
    for k in range(2):
        for rt in range(2):
            d = fs + 8 * k + 4 * rt
            L.append("ds_read_b128 v[%d:%d], v%d offset:%d" % (d, d + 3, vA, k * 2048 + rt * 256))
        for ct in range(3):
            d = fs + 16 + 12 * k + 4 * ct
            off = 8192 + k * 5120 + ct * 32
            L.append("ds_read_b64_tr_b16 v[%d:%d], v%d offset:%d" % (d, d + 1, vB0, off))
            L.append("ds_read_b64_tr_b16 v[%d:%d], v%d offset:%d" % (d + 2, d + 3, vB0, off + 1280))
    L.append(ring(sRd))
    return L


def mf_A(cur):
    L = []
    for n in range(8):
        k, pr = n >> 1, n & 1
        fb, fa, acc = cur + 16 + 8 * k + 4 * pr, cur + 4 * k, ACC + 16 * pr
        L.append("v_mfma_f32_32x32x16_bf16 v[%d:%d], v[%d:%d], v[%d:%d], v[%d:%d]" % (
            acc, acc + 15, fb, fb + 3, fa, fa + 3, acc, acc + 15))
    return L


def mf_B(cur):
    L = []
    for k in range(2):
        for ct in range(3):
            for rt in range(2):
                fb, fa, acc = cur + 16 + 12 * k + 4 * ct, cur + 8 * k + 4 * rt, ACB + 12 * rt + 4 * ct
                L.append("v_mfma_f32_16x16x32_bf16 v[%d:%d], v[%d:%d], v[%d:%d], v[%d:%d]" % (
                    acc, acc + 3, fb, fb + 3, fa, fa + 3, acc, acc + 3))
    return L


def cstage(a, mf, rd, frac, barrier=True):
    a("s_waitcnt lgkmcnt(0)")
    if barrier:
        a("s_barrier")
    if "nomf" in EXP:
        mf = ["s_nop 0"] * len(mf)
    if "nord" in EXP:
        rd = [t for t in rd if not t.startswith("ds_")]
    ns = max(1, int(len(mf) * frac))
    nr = spread(len(rd), ns) + [0] * (len(mf) - ns)
    p = 0
    for n, m in enumerate(mf):
        a(m)
        for t in rd[p:p + nr[n]]:
            a(t)
        p += nr[n]


def quad_addr(a, dst, vq, swz, t0, t1):
    a("v_and_b32 v%d, 1, v%d" % (t0, vq))
    if swz:
        a("v_bfe_u32 v%d, v%d, 2, 1" % (t1, vq))
        a("v_lshl_add_u32 v%d, v%d, 1, v%d" % (t1, t1, t0))
        a("v_lshlrev_b32 v%d, 2, v%d" % (t1, t1))
        a("v_xor_b32 v%d, v%d, v2" % (t1, t1))
        a("v_lshl_add_u32 v%d, v%d, 5, v%d" % (t0, t0, t1))
    else:
        a("v_lshl_add_u32 v%d, v%d, 5, v2" % (t0, t0))
    a("v_lshlrev_b32 v%d, 4, v%d" % (t0, t0))
    a("v_bfe_u32 v%d, v%d, 1, 1" % (t1, vq))
    a("v_lshl_add_u32 v%d, v%d, 3, v%d" % (t0, t1, t0))
    a("v_lshrrev_b32 v%d, 2, v%d" % (t1, vq))
    a("v_lshl_add_u32 v%d, v%d, 10, v%d" % (dst, t1, t0))


def srd_off(a, d, plo, off, nbytes):
    a("s_add_u32 s%d, s%d, 0x%x" % (d, plo, off))
    a("s_addc_u32 s%d, s%d, 0" % (d + 1, plo + 1))
    a("s_and_b32 s%d, s%d, 0xffff" % (d + 1, d + 1))
    a("s_mov_b32 s%d, 0x%x" % (d + 2, nbytes))
    a("s_mov_b32 s%d, 0x20000" % (d + 3))


def signal(a, scnt, off=0, n=0):
    a("s_waitcnt vmcnt(%d)" % n)
    a("v_mov_b32 v%d, 1" % T)
    a("v_mov_b32 v%d, 0" % (T + 1))
    a("s_mov_b64 exec, 1")
    a("buffer_atomic_add v%d, v%d, s[%d:%d], s%d offen offset:%d sc1" % (T, T + 1, sWS, sWS + 3, scnt, off))
    a("s_mov_b64 exec, -1")


def poll_issue(a, scnt, off=0):
    a("v_mov_b32 v%d, 0" % T)
    a("buffer_load_dword v%d, v%d, s[%d:%d], s%d offen offset:%d sc1" % (vPoll, T, sWS, sWS + 3, scnt, off))


def poll_check(a, scnt, off=0, target=32, n=0):
    l0, l1 = a.label("Lchk"), a.label("Lok")
    a("s_waitcnt vmcnt(%d)" % n)
    a(l0 + ":")
    a("v_readfirstlane_b32 s%d, v%d" % (sT0, vPoll))
    a("s_cmp_eq_u32 s%d, %d" % (sT0, target))
    a("s_cbranch_scc1 %s" % l1)
    poll_issue(a, scnt, off)
    a("s_waitcnt vmcnt(0)")
    a("s_branch %s" % l0)
    a(l1 + ":")


def p2_loads(a):
    a("s_load_dwordx4 s[48:51], s[0:1], %d" % KA_WSP)
    a("s_load_dwordx2 s[52:53], s[0:1], %d" % KA_WS)
    a("s_load_dwordx2 s[54:55], s[0:1], %d" % KA_X)
    a("s_load_dwordx2 s[62:63], s[0:1], %d" % KA_OUT)


def gen_p2(a):
    a("P2_entry:")
    stamp(a, 0)
    a("v_lshlrev_b32 v%d, 4, v0" % vL16)
    a("s_bfe_u32 s%d, s2, 0x20001" % sI)
    a("s_lshl_b32 s%d, s%d, 3" % (sI, sI))
    a("s_lshr_b32 s%d, s2, 5" % sT0)
    a("s_add_u32 s%d, s%d, s%d" % (sI, sI, sT0))
    a("s_and_b32 s%d, s2, 1" % sJ)
    a("s_lshl_b32 s%d, s%d, 2" % (sJ, sJ))
    a("s_bfe_u32 s%d, s2, 0x20003" % sT0)
    a("s_add_u32 s%d, s%d, s%d" % (sJ, sJ, sT0))
    a("s_and_b32 s%d, s%d, 1" % (sRR, sW))
    a("s_bfe_u32 s%d, s%d, 0x10001" % (sCC, sW))
    a("s_waitcnt lgkmcnt(0)")
    a("s_barrier")
    srd(a, sWS, 52, WS_END)
    a("s_cmp_lt_u32 s%d, 4" % sW)
    a("s_cbranch_scc1 K2_consumer")
    a("K2_loader:")
    a("s_and_b32 s%d, s%d, 3" % (sW, sW))
    a("v_lshrrev_b32 v1, 3, v0")
    a("s_lshl_b32 s%d, s%d, 4" % (sT1, sW))
    a("v_add_u32 v1, s%d, v1" % sT1)
    a("v_lshlrev_b32 v1, 12, v1")
    a("v_lshrrev_b32 v2, 4, v0")
    a("v_and_b32 v3, 7, v0")
    a("v_xor_b32 v4, v2, v3")
    a("v_lshl_add_u32 v%d, v4, 4, v1" % vAd0)
    a("v_xor_b32 v4, 4, v4")
    a("v_lshl_add_u32 v%d, v4, 4, v1" % vAd1)
    a("v_add_u32 v%d, %d, v%d" % (vAd1, 8 * 4096 - 1024, vAd1))
    a("s_lshl_b32 s%d, s%d, 18" % (sAoff, sI))
    a("s_lshl_b32 s%d, s%d, 11" % (sMA, sW))
    a("s_mul_i32 s%d, s%d, 7" % (sMB, sCC))
    a("s_lshl_b32 s%d, s%d, 2" % (sT1, sRR))
    a("s_add_u32 s%d, s%d, s%d" % (sMB, sMB, sT1))
    a("s_lshl_b32 s%d, s%d, 10" % (sMB, sMB))
    a("s_add_u32 s%d, s%d, 8192" % (sMB, sMB))
    a("s_mul_i32 s%d, s%d, %d" % (sBoff, sCC, NG_Z))
    a("s_add_u32 s%d, s%d, s%d" % (sBoff, sBoff, sT1))
    a("s_mul_i32 s%d, s%d, 7" % (sT1, sJ))
    a("s_add_u32 s%d, s%d, s%d" % (sBoff, sBoff, sT1))
    a("s_lshl_b32 s%d, s%d, 10" % (sBoff, sBoff))
    a("s_add_u32 s%d, s%d, %d" % (sBoff, sBoff, WS_Z + 54 * 1024))
    a("s_mov_b32 s46, s%d" % sRR)
    a("s_mov_b32 s47, 0")
    a("s_mov_b64 vcc, s[46:47]")
    srd(a, sA, 48, S * S * 2)
    Q = []

    def younger(pred):
        idx = [n for n, t in enumerate(Q) if pred(t)]
        return min(63, len(Q) - 1 - max(idx)) if idx else 63

    def dAa(st):
        a("s_add_u32 m0, s%d, %d" % (sMA, slot(st)))
        a("buffer_load_dwordx4 v%d, s[%d:%d], s%d offen lds" % (vAd0, sA, sA + 3, sAoff))
        a("buffer_load_dwordx4 v%d, s[%d:%d], s%d offen offset:1024 lds" % (vAd1, sA, sA + 3, sAoff))
        a("s_add_u32 s%d, s%d, 128" % (sAoff, sAoff))
        Q.extend([("S", st)] * 2)

    class NoSc:
        def __call__(self, t):
            a0(t.replace(" sc1 lds", " lds") if "nosc" in EXP else t)
        def label(self, x):
            return a0.label(x)
    a0 = a
    a = NoSc()

    def dAb(st):
        a("s_add_u32 m0, s%d, %d" % (sMB, slot(st)))
        for t in range(3):
            a("buffer_load_dwordx4 v%d, s[%d:%d], s%d offen offset:%d sc1 lds" % (vL16, sWS, sWS + 3, sBoff, 1024 * t))
        lab = a.label("Lsk")
        a("s_cbranch_vccnz %s" % lab)
        a("buffer_load_dwordx4 v%d, s[%d:%d], s%d offen offset:3072 sc1 lds" % (vL16, sWS, sWS + 3, sBoff))
        a(lab + ":")
        a("s_add_u32 s%d, s%d, %d" % (sBoff, sBoff, 2 * NG_Z * 1024))
        Q.extend([("S", st)] * 3)

    def dB3(st):
        a("s_add_u32 m0, s%d, %d" % (sMB3, slot(st)))
        for t in range(2):
            a("buffer_load_dwordx4 v%d, s[%d:%d], s%d offen offset:%d sc1 lds" % (vL16, sB3, sB3 + 3, sB3off, 1024 * t))
        lab = a.label("Lsk")
        a("s_cbranch_vccnz %s" % lab)
        a("buffer_load_dwordx4 v%d, s[%d:%d], s%d offen offset:2048 sc1 lds" % (vL16, sB3, sB3 + 3, sB3off))
        a(lab + ":")
        a("s_add_u32 s%d, s%d, %d" % (sB3off, sB3off, 80 * 1024))
        Q.extend([("S", st)] * 2)

    def dA3(st):
        if st == 55:
            a("s_cmp_eq_u32 s%d, 1" % sRR)
            a("s_cselect_b32 s%d, 0x40000000, s%d" % (sA3off, sA3off))
        a("s_add_u32 m0, s%d, %d" % (sMA, slot(st)))
        for t in range(2):
            a("buffer_load_dwordx4 v%d, s[%d:%d], s%d offen offset:%d sc1 lds" % (vL16, sA3, sA3 + 3, sA3off, 1024 * t))
        a("s_add_u32 s%d, s%d, 4096" % (sA3off, sA3off))
        Q.extend([("S", st)] * 2)

    def vpoll_issue(vaddr, soff):
        a("buffer_load_dword v%d, v%d, s[%d:%d], s%d offen sc1" % (vPoll, vaddr, sWS, sWS + 3, soff))

    def vpoll_check(vaddr, soff, target, n):
        l0, l1 = a.label("Lchk"), a.label("Lok")
        a("s_waitcnt vmcnt(%d)" % n)
        a(l0 + ":")
        a("v_cmp_eq_u32 s[46:47], %d, v%d" % (target, vPoll))
        a("s_cmp_eq_u64 s[46:47], -1")
        a("s_cbranch_scc1 %s" % l1)
        a("s_sleep 2")
        vpoll_issue(vaddr, soff)
        a("s_waitcnt vmcnt(0)")
        a("s_branch %s" % l0)
        a(l1 + ":")

    srd(a, sO, 60, 256)
    l0, l1 = a.label("Lz0"), a.label("Lz1")
    a(l0 + ":")
    a("s_cmp_eq_u32 s%d, 16" % sZk)
    a("s_cbranch_scc1 %s" % l1)
    a("s_sleep 2")
    a("buffer_load_dword v%d, off, s[%d:%d], 0 sc1" % (vPoll, sO, sO + 3))
    a("s_waitcnt vmcnt(0)")
    a("v_readfirstlane_b32 s%d, v%d" % (sZk, vPoll))
    a("s_branch %s" % l0)
    a(l1 + ":")
    a("v_and_b32 v%d, 15, v0" % vPz)
    a("v_lshlrev_b32 v%d, 10, v%d" % (vPz, vPz))
    a("s_mov_b32 s%d, 0x%x" % (sT3, WS_FL))
    vpoll_issue(vPz, sT3)
    Q.append(("P", -2))
    for st in range(NSA):
        dAa(st)
    stamp(a, 1)
    a("s_waitcnt vmcnt(%d)" % younger(lambda t: t[0] == "P"))
    a("s_barrier")
    vpoll_check(vPz, sT3, 14, 63)
    stamp(a, 2)
    for st in range(3):
        dAb(st)
    a("v_and_b32 v%d, 1, v0" % vPz)
    a("v_lshlrev_b32 v%d, 10, v%d" % (vPz, vPz))
    a("s_lshr_b32 s%d, s%d, 2" % (sT3, sI))
    a("s_lshl_b32 s%d, s%d, 11" % (sT3, sT3))
    a("s_add_u32 s%d, s%d, 0x%x" % (sT3, sT3, WS_FL + 128))
    a("s_waitcnt vmcnt(%d)" % younger(lambda t: t == ("S", 0)))
    a("s_barrier")
    for st in range(3, NSA):
        dAb(st)
    srd_off(a, sA3, 52, WS_A3, 64 * NG_A3 * 1024)
    srd_off(a, sB3, 52, WS_B3, 47 * 40 * 1024)
    a("s_lshl_b32 s%d, s%d, 1" % (sT0, sI))
    a("s_add_u32 s%d, s%d, s%d" % (sT0, sT0, sCC))
    a("s_mul_i32 s%d, s%d, %d" % (sA3off, sT0, NG_A3))
    a("s_lshl_b32 s%d, s%d, 1" % (sT0, sRR))
    a("s_add_u32 s%d, s%d, s%d" % (sA3off, sA3off, sT0))
    a("s_lshl_b32 s%d, s%d, 10" % (sA3off, sA3off))
    a("s_mul_i32 s%d, s%d, 3" % (sT0, sRR))
    a("s_mul_i32 s%d, s%d, 40" % (sB3off, sCC))
    a("s_add_u32 s%d, s%d, s%d" % (sB3off, sB3off, sT0))
    a("s_mul_i32 s%d, s%d, 5" % (sT1, sJ))
    a("s_add_u32 s%d, s%d, s%d" % (sB3off, sB3off, sT1))
    a("s_lshl_b32 s%d, s%d, 10" % (sB3off, sB3off))
    a("s_mul_i32 s%d, s%d, 5" % (sMB3, sCC))
    a("s_add_u32 s%d, s%d, s%d" % (sMB3, sMB3, sT0))
    a("s_lshl_b32 s%d, s%d, 10" % (sMB3, sMB3))
    a("s_add_u32 s%d, s%d, 8192" % (sMB3, sMB3))
    a("v_lshrrev_b32 v1, 5, v0")
    a("v_and_b32 v2, 31, v0")
    a("s_lshl_b32 s%d, s%d, 2" % (sHd, sJ))
    a("s_add_u32 s%d, s%d, s%d" % (sHd, sHd, sW))
    a("s_mul_i32 s%d, s%d, 2560" % (sKv, sHd))
    a("s_add_u32 s%d, s%d, 0x%x" % (sKv, sKv, WS_KV))
    a("s_lshl_b32 s%d, s%d, 7" % (sCnt, sHd))
    a("s_add_u32 s%d, s%d, 0x%x" % (sCnt, sCnt, CNT_KV))
    a("s_lshl_b32 s%d, s%d, 7" % (sCntI, sI))
    a("s_add_u32 s%d, s%d, 0x%x" % (sCntI, sCntI, CNT_O))
    a("s_mul_i32 s%d, s%d, 5" % (sT0, sW))
    a("v_add_u32 v%d, s%d, v1" % (T + 3, sT0))
    quad_addr(a, T + 6, T + 3, False, T + 4, T + 5)
    a("v_add_u32 v%d, 2, v%d" % (T + 3, T + 3))
    quad_addr(a, T + 7, T + 3, False, T + 4, T + 5)
    a("s_add_u32 s%d, s%d, 4" % (sT0, sT0))
    a("v_mov_b32 v%d, s%d" % (T + 3, sT0))
    quad_addr(a, T + 8, T + 3, False, T + 4, T + 5)
    for n in range(3):
        a("v_add_u32 v%d, %d, v%d" % (T + 6 + n, OSC, T + 6 + n))
    a("s_lshl_b32 s%d, s%d, 10" % (sT0, sW))
    a("v_add_u32 v%d, s%d, v%d" % (vT0, sT0, vL16))
    a("s_lshl_b32 s%d, s%d, 8" % (sT0, sW))
    a("s_add_u32 s%d, s%d, 4096" % (sT0, sT0))
    a("v_add_u32 v%d, s%d, v%d" % (vT1, sT0, vL16))
    a("v_add_u32 v%d, %d, v%d" % (vT2, OSC, vT0))
    a("v_add_u32 v%d, %d, v%d" % (vT3, OSC, vT1))
    for t in range(3):
        a("v_add_u32 v%d, %d, v0" % (T + 3, 64 * t))
        a("v_min_u32 v%d, 159, v%d" % (T + 3, T + 3))
        a("v_mul_u32_u24 v%d, 205, v%d" % (T + 4, T + 3))
        a("v_lshrrev_b32 v%d, 11, v%d" % (T + 4, T + 4))
        a("v_mul_u32_u24 v%d, %d, v%d" % (T + 4, 1280 - 160, T + 4))
        a("v_lshl_add_u32 v%d, v%d, 4, v%d" % (vXd + t, T + 3, T + 4))
        if t:
            a("v_subrev_u32 v%d, %d, v%d" % (vXd + t, 1024 * t, vXd + t))
    srd(a, sO, 54, S * D * 2)
    a("s_lshl_b32 s%d, s%d, 2" % (sT0, sI))
    a("s_add_u32 s%d, s%d, s%d" % (sT0, sT0, sW))
    a("s_mul_i32 s%d, s%d, %d" % (sXo0, sT0, 16 * 1280))
    a("s_mul_i32 s%d, s%d, 160" % (sT0, sJ))
    a("s_add_u32 s%d, s%d, s%d" % (sXo0, sXo0, sT0))
    a("s_mul_i32 s%d, s%d, %d" % (sXo1, sW, STG))
    a("s_add_u32 s%d, s%d, %d" % (sXo1, sXo1, XSP))
    a("v_cmp_eq_u32 s[46:47], 24, v2")
    a("v_cndmask_b32 v%d, v2, 20, s[46:47]" % (T + 9))
    a("v_lshlrev_b32 v%d, 2, v%d" % (T + 9, T + 9))
    a("v_lshl_add_u32 v%d, v1, 10, v%d" % (T + 10, T + 9))
    a("v_lshl_add_u32 v%d, v1, 30, v%d" % (T + 9, T + 9))
    nextA = 32
    nextB = 32
    for b in range(0, 55):
        need = [("S", b + 1)] if b != 31 else []
        if b == 2 * HK[0] - 1:
            need.append(("SD", 0))
        if need:
            a("s_waitcnt vmcnt(%d)" % younger(lambda t: t in need))
        a("s_barrier")
        if b == PA[0]:
            vpoll_issue(vPz, sT3)
            Q.append(("P", b))
        if b == PA[1]:
            stamp(a, 3)
            vpoll_check(vPz, sT3, 15, younger(lambda t: t[0] == "P"))
            stamp(a, 4)
            a("s_and_b32 s%d, s%d, 3" % (sWk, sI))
            a("s_andn2_b32 s%d, s%d, 3" % (sT0, sI))
            a("s_add_u32 s%d, s%d, s%d" % (sT0, sT0, sW))
            a("s_mul_i32 s%d, s%d, %d" % (sT0, sT0, 2 * NG_QKV))
            a("s_mul_i32 s%d, s%d, 5" % (sT1, sJ))
            a("s_add_u32 s%d, s%d, s%d" % (sT0, sT0, sT1))
            a("s_add_u32 s%d, s%d, s%d" % (sT0, sT0, sWk))
            a("s_lshl_b32 s%d, s%d, 10" % (sT0, sT0))
            a("s_add_u32 s%d, s%d, %d" % (sT0, sT0, WS_QKV + 40 * 1024))
            a("s_lshl_b32 s%d, s%d, 13" % (sT2, sW))
            for n in range(4):
                a("s_add_u32 m0, s%d, %d" % (sT2, SIDE + 2048 * n))
                a("s_add_u32 s%d, s%d, %d" % (sT1, sT0, ((n & 1) * NG_QKV + (n >> 1) * 40) * 1024))
                a("buffer_load_dwordx4 v%d, s[%d:%d], s%d offen sc1 lds" % (vL16, sWS, sWS + 3, sT1))
                a("buffer_load_dwordx4 v%d, s[%d:%d], s%d offen offset:1024 sc1 lds" % (vL16, sWS, sWS + 3, sT1))
            Q.extend([("SD", 0)] * 8)
        if b == PA[1] + 6:
            a("s_mul_i32 s%d, s%d, 5" % (sT0, sHd))
            a("v_lshlrev_b32 v%d, 1, v1" % (T + 1))
            a("v_add_u32 v%d, s%d, v%d" % (T + 1, sT0, T + 1))
            a("s_mul_i32 s%d, s%d, %d" % (sT1, sI, 2 * NG_QKV * 1024))
            a("s_add_u32 s%d, s%d, %d" % (sT2, sT1, NG_QKV * 1024))
            for n in range(3):
                if n == 1:
                    a("v_add_u32 v%d, 1, v%d" % (T + 1, T + 1))
                if n == 2:
                    a("s_add_u32 s%d, s%d, 4" % (sT0, sT0))
                    a("v_mov_b32 v%d, s%d" % (T + 1, sT0))
                quad_addr(a, T + 2, T + 1, True, T + 4, T + 5)
                for sb in range(2):
                    d = PQR + 6 * sb + 2 * n
                    if "noex" not in EXP:
                        a("buffer_load_dwordx2 v[%d:%d], v%d, s[%d:%d], s%d offen sc1" % (d, d + 1, T + 2, sWS, sWS + 3, sT1 if sb == 0 else sT2))
            Q.extend([("PQ", 0)] * 6)
        if b == PK[0]:
            poll_issue(a, sCnt)
            Q.append(("P", b))
        if b == PK[1]:
            stamp(a, 5)
            poll_check(a, sCnt, target=24, n=younger(lambda t: t[0] == "P"))
            stamp(a, 6)
            for n in range(8):
                a("buffer_load_dword v%d, v%d, s[%d:%d], s%d offen offset:%d sc1" % (KVF + n, T + 10, sWS, sWS + 3, sKv, 128 * n))
            for n in range(4):
                a("buffer_load_dword v%d, v%d, s[%d:%d], s%d offen offset:%d sc1" % (KVF + 8 + n, T + 9, sWS, sWS + 3, sKv, 2048 + 128 * n))
            Q.extend([("KV", 0)] * 12)
        if b + NSA <= 31:
            dAa(b + NSA)
            dAb(b + NSA)
        if b == PO[0]:
            poll_issue(a, sCntI)
            Q.append(("P", b))
        if b == PU[0]:
            poll_issue(a, sCntI)
            Q.append(("P", b))
        if b >= 27:
            while nextB <= min(b + 7, 55):
                dB3(nextB)
                nextB += 1
        if b in (PO[1], PU[1]):
            stamp(a, 7 if b == PO[1] else 9)
            poll_check(a, sCntI, n=younger(lambda t: t[0] == "P"))
            stamp(a, 8 if b == PO[1] else 10)
            if b == PO[1]:
                a("s_add_u32 s%d, s%d, %d" % (sCntI, sCntI, CNT_U - CNT_O))
        if b >= PO[1]:
            lim = min(b + 6, 55) if b >= PU[1] else min(b + 6, 41)
            while nextA <= lim:
                dA3(nextA)
                nextA += 1
        if b == 31:
            a("s_waitcnt vmcnt(%d)" % younger(lambda t: t == ("S", 32)))
            a("s_barrier")
        if b == 36:
            a("s_mov_b32 m0, s%d" % sXo1)
            for t in range(3):
                a("buffer_load_dwordx4 v%d, s[%d:%d], s%d offen offset:%d lds" % (vXd + t, sO, sO + 3, sXo0, 1024 * t))
            Q.extend([("X", 0)] * 3)
        if b == PK[2]:
            a("s_mul_i32 s%d, s%d, %d" % (sT1, sI, 2 * NG_A3 * 1024))
            a("s_mul_i32 s%d, s%d, 5120" % (sT2, sJ))
            a("s_add_u32 s%d, s%d, s%d" % (sT1, sT1, sT2))
            a("s_add_u32 s%d, s%d, 0x%x" % (sT1, sT1, WS_A3))
            a("s_add_u32 s%d, s%d, %d" % (sT2, sT1, NG_A3 * 1024))
            a("v_cmp_eq_u32 s[46:47], 1, v1")
            a("s_waitcnt vmcnt(%d)" % younger(lambda t: t[0] == "KV"))
            for n in range(6):
                a("v_cvt_pk_bf16_f32 v%d, v%d, v%d" % (KVF + 16 + n, KVF + 2 * n, KVF + 2 * n + 1))
            for sb in range(2):
                d, p = DO + 16 * sb, PQR + 6 * sb
                a("v_mfma_f32_32x32x16_bf16 v[%d:%d], v[%d:%d], v[%d:%d], 0" % (d, d + 15, KVF + 16, KVF + 19, p, p + 3))
                a("v_mfma_f32_32x32x8_bf16 v[%d:%d], v[%d:%d], v[%d:%d], v[%d:%d]" % (d, d + 15, KVF + 20, KVF + 21, p + 4, p + 5, d, d + 15))
            for sb in range(2):
                d = DO + 16 * sb
                a("v_cndmask_b32 v%d, v%d, v%d, s[46:47]" % (T, d + 12, d + 8))
                a("v_add_f32 v%d, %s, v%d" % (T, fhex(1e-6), T))
                a("v_rcp_f32 v%d, v%d" % (T, T))
                for r in range(12):
                    a("v_mul_f32 v%d, v%d, v%d" % (d + r, d + r, T))
                for n in range(6):
                    a("v_cvt_pk_bf16_f32 v%d, v%d, v%d" % (KVF + 8 * sb + n, d + 2 * n, d + 2 * n + 1))
            for n in range(3):
                if n == 2:
                    a("s_mov_b32 exec_hi, 0")
                for sb in range(2):
                    p = KVF + 8 * sb + 2 * n
                    a("ds_write_b64 v%d, v[%d:%d] offset:%d" % (T + 6 + n, p, p + 1, 5120 * sb))
            a("s_mov_b64 exec, -1")
            a("s_waitcnt lgkmcnt(0)")
        if b == PK[2] + 1:
            for sb in range(2):
                a("ds_read_b128 v[%d:%d], v%d offset:%d" % (DO + 8 * sb, DO + 8 * sb + 3, vT2, 5120 * sb))
            a("s_mov_b64 exec, 0xffff")
            for sb in range(2):
                a("ds_read_b128 v[%d:%d], v%d offset:%d" % (DO + 8 * sb + 4, DO + 8 * sb + 7, vT3, 5120 * sb))
            a("s_waitcnt lgkmcnt(0)")
            for sb in range(2):
                a("buffer_store_dwordx4 v[%d:%d], v%d, s[%d:%d], s%d offen sc1" % (DO + 8 * sb + 4, DO + 8 * sb + 7, vT1, sWS, sWS + 3, sT1 if sb == 0 else sT2))
            a("s_mov_b64 exec, -1")
            for sb in range(2):
                a("buffer_store_dwordx4 v[%d:%d], v%d, s[%d:%d], s%d offen sc1" % (DO + 8 * sb, DO + 8 * sb + 3, vT0, sWS, sWS + 3, sT1 if sb == 0 else sT2))
            Q.extend([("O", 0)] * 4)
        if b == PK[3]:
            signal(a, sCntI, n=younger(lambda t: t[0] == "O"))
            Q.append(("G", 0))
    stamp(a, 11)
    if STAMP:
        a("s_add_u32 s%d, s%d, 4" % (sW, sW))
    stamp_dump(a, 12, sWS, sW, WS_STAMP + 0x20000)
    a("s_endpgm")
    a = a0
    a("K2_consumer:")

    a("s_lshl_b32 s%d, s%d, 2" % (sHd, sJ))
    a("s_add_u32 s%d, s%d, s%d" % (sHd, sHd, sW))
    a("s_and_b32 s%d, s%d, 3" % (sWk, sI))
    a("s_lshl_b32 s%d, s%d, 13" % (sT2, sW))
    a("s_add_u32 s%d, s%d, %d" % (sT2, sT2, SIDE))
    a("s_mov_b32 s%d, %d" % (sRd, slot(0)))
    srd(a, sBS, 50, S * 2)
    srd(a, sO, 62, S * D * 2)
    a("v_lshrrev_b32 v1, 4, v0")
    a("v_and_b32 v2, 15, v0")
    a("v_and_b32 v3, 1, v1")
    a("v_lshrrev_b32 v4, 1, v1")
    a("v_lshl_add_u32 v5, v3, 5, v2")
    a("v_lshlrev_b32 v5, 4, v5")
    a("v_lshl_add_u32 v5, v4, 10, v5")
    a("s_lshl_b32 s%d, s%d, 12" % (sT0, sRR))
    a("v_add_u32 v%d, s%d, v5" % (vLA3, sT0))
    a("v_lshrrev_b32 v5, 2, v2")
    a("v_lshl_add_u32 v5, v3, 2, v5")
    a("v_lshl_add_u32 v5, v4, 4, v5")
    a("v_mul_u32_u24 v5, 160, v5")
    a("v_and_b32 v6, 3, v0")
    a("v_lshl_add_u32 v5, v6, 3, v5")
    a("s_lshl_b32 s%d, s%d, 6" % (sT0, sCC))
    a("v_add_u32 v%d, s%d, v5" % (vLB3, sT0))
    a("v_mul_u32_u24 v%d, 160, v2" % vXl)
    a("v_lshl_add_u32 v%d, v1, 3, v%d" % (vXl, vXl))
    a("s_mul_i32 s%d, s%d, %d" % (sT0, sRR, 2 * STG))
    a("s_lshl_b32 s%d, s%d, 6" % (sT1, sCC))
    a("s_add_u32 s%d, s%d, s%d" % (sT0, sT0, sT1))
    a("s_add_u32 s%d, s%d, %d" % (sT0, sT0, XSP))
    a("v_add_u32 v%d, s%d, v%d" % (vXl, sT0, vXl))
    a("v_mul_u32_u24 v%d, 1280, v2" % vO)
    a("v_lshl_add_u32 v%d, v1, 3, v%d" % (vO, vO))
    a("s_lshl_b32 s%d, s%d, 1" % (sT3, sI))
    a("s_add_u32 s%d, s%d, s%d" % (sT3, sT3, sRR))
    a("s_mul_i32 s%d, s%d, %d" % (sXo0, sT3, 32 * 1280))
    a("s_mul_i32 s%d, s%d, 160" % (sT0, sJ))
    a("s_add_u32 s%d, s%d, s%d" % (sXo0, sXo0, sT0))
    a("s_lshl_b32 s%d, s%d, 6" % (sT0, sCC))
    a("s_add_u32 s%d, s%d, s%d" % (sXo0, sXo0, sT0))
    a("s_add_u32 s%d, s%d, %d" % (sXo1, sXo0, 16 * 1280))
    a("v_lshrrev_b32 v1, 5, v0")
    a("v_and_b32 v2, 31, v0")
    a("s_lshl_b32 s%d, s%d, 5" % (sT1, sRR))
    a("v_add_u32 v3, s%d, v2" % sT1)
    a("v_lshlrev_b32 v%d, 7, v3" % vLA)
    a("v_bfe_u32 v3, v0, 1, 3")
    a("v_xor_b32 v3, v3, v1")
    a("v_lshl_add_u32 v%d, v3, 4, v%d" % (vLA, vLA))
    a("v_bfe_u32 v3, v0, 2, 2")
    a("v_lshl_add_u32 v3, v1, 3, v3")
    a("v_and_b32 v4, 1, v0")
    a("v_bfe_u32 v5, v0, 4, 1")
    a("s_add_u32 s%d, s%d, s%d" % (sT1, sJ, sCC))
    a("v_add_u32 v6, s%d, v5" % sT1)
    a("v_and_b32 v6, 1, v6")
    a("v_lshl_add_u32 v6, v6, 1, v4")
    a("v_lshlrev_b32 v6, 2, v6")
    a("v_xor_b32 v6, v6, v3")
    a("v_lshl_add_u32 v6, v4, 5, v6")
    a("v_lshlrev_b32 v6, 4, v6")
    a("v_bfe_u32 v7, v0, 1, 1")
    a("v_lshl_add_u32 v6, v7, 3, v6")
    a("v_lshl_add_u32 v6, v5, 10, v6")
    a("s_mul_i32 s%d, s%d, 3072" % (sT1, sCC))
    a("v_add_u32 v%d, s%d, v6" % (vLB0, sT1))
    a("v_and_b32 v6, 3, v0")
    a("v_lshl_add_u32 v6, v5, 2, v6")
    a("v_min_u32 v6, 4, v6")
    a("v_add_u32 v6, s%d, v6" % sWk)
    a("v_and_b32 v4, 1, v6")
    a("v_lshrrev_b32 v5, 2, v6")
    a("s_add_u32 s%d, s%d, s%d" % (sT1, sJ, sWk))
    a("v_add_u32 v7, s%d, v5" % sT1)
    a("v_and_b32 v7, 1, v7")
    a("v_lshl_add_u32 v7, v7, 1, v4")
    a("v_lshlrev_b32 v7, 2, v7")
    a("v_xor_b32 v7, v7, v3")
    a("v_lshl_add_u32 v7, v4, 5, v7")
    a("v_lshlrev_b32 v7, 4, v7")
    a("v_bfe_u32 v4, v6, 1, 1")
    a("v_lshl_add_u32 v7, v4, 3, v7")
    a("v_lshl_add_u32 v7, v5, 10, v7")
    a("v_add_u32 v%d, s%d, v7" % (T + 8, sT2))
    a("v_xor_b32 v%d, 64, v%d" % (T + 9, T + 8))
    a("v_cmp_eq_u32 s[46:47], 20, v2")
    a("v_mov_b32 v%d, 0x3f803f80" % (T + 10))
    a("v_lshlrev_b32 v%d, 9, v1" % (T + 3))
    a("v_lshl_add_u32 v%d, v2, 2, v%d" % (T + 3, T + 3))
    a("s_mul_i32 s%d, s%d, 2560" % (sKv, sHd))
    a("s_add_u32 s%d, s%d, 0x%x" % (sKv, sKv, WS_KV))
    a("s_lshl_b32 s%d, s%d, 7" % (sCnt, sHd))
    a("s_add_u32 s%d, s%d, 0x%x" % (sCnt, sCnt, CNT_KV))
    a("s_lshl_b32 s%d, s%d, 2" % (sT0, sJ))
    a("s_add_u32 s%d, s%d, s%d" % (sT0, sT0, sWk))
    a("s_mul_i32 s%d, s%d, 2560" % (sKvW, sT0))
    a("s_lshl_b32 s%d, s%d, 10" % (sT1, sW))
    a("s_add_u32 s%d, s%d, s%d" % (sKvW, sKvW, sT1))
    a("s_add_u32 s%d, s%d, 0x%x" % (sKvW, sKvW, WS_KV))
    a("s_lshl_b32 s%d, s%d, 7" % (sCntW, sT0))
    a("s_add_u32 s%d, s%d, 0x%x" % (sCntW, sCntW, CNT_KV))
    a("v_add_u32 v%d, s%d, v%d" % (T + 4, sT2, vL16))
    a("s_add_u32 s%d, s%d, %d" % (sT1, sT1, SIDE))
    a("v_add_u32 v%d, s%d, v%d" % (T + 5, sT1, vL16))
    a("s_lshl_b32 s%d, s%d, 7" % (sCntI, sI))
    a("s_add_u32 s%d, s%d, 0x%x" % (sCntI, sCntI, CNT_O))
    for p in range(32):
        a("v_mov_b32 v%d, 0" % (ACC + p))
    a("v_lshlrev_b32 v%d, 2, v1" % T)
    a("v_xor_b32 v%d, v%d, v0" % (T, T))
    a("v_lshlrev_b32 v%d, 4, v%d" % (T, T))
    a("s_add_u32 s%d, s%d, s%d" % (sT0, sJ, sCC))
    a("s_and_b32 s%d, s%d, 1" % (sT0, sT0))
    a("s_lshl_b32 s%d, s%d, 7" % (sT0, sT0))
    a("v_xor_b32 v%d, s%d, v%d" % (vZa, sT0, T))
    a("v_xor_b32 v%d, 0x80, v%d" % (vZb, vZa))
    a("s_mul_i32 s%d, s%d, 7" % (sT0, sJ))
    a("s_mul_i32 s%d, s%d, 3" % (sT1, sCC))
    a("s_add_u32 s%d, s%d, s%d" % (sOdd, sT0, sT1))
    a("s_mul_i32 s%d, s%d, %d" % (sT2, sT3, NG_Z))
    a("s_add_u32 s%d, s%d, s%d" % (sT2, sT2, sOdd))
    a("s_lshl_b32 s%d, s%d, 10" % (sT2, sT2))
    a("s_add_u32 s%d, s%d, 0x%x" % (sT2, sT2, WS_Z))
    stamp(a, 1)
    a("s_waitcnt vmcnt(0)")
    a("s_barrier")
    a("s_cmp_lg_u32 s%d, 0" % sW)
    a("s_cbranch_scc1 K2_noall")
    a("s_cmp_eq_u32 s%d, 0" % sCall)
    a("s_cbranch_scc1 K2_noall")
    signal(a, sCall)
    a("s_cmp_eq_u32 s69, 1")
    a("s_cbranch_scc1 K2_noall")
    a("s_sub_u32 s%d, s%d, 128" % (sCall, sCall))
    signal(a, sCall, n=63)
    a("K2_noall:")
    a("s_barrier")
    stamp(a, 2)
    for t in read_A(FA[0]):
        a(t)
    a("s_mov_b32 s%d, 0" % sIt)
    a("s_mov_b32 s%d, %d" % (sHook, HK[0]))
    stamp(a, 3)
    a("K2_loop:")
    cstage(a, mf_A(FA[0]), read_A(FA[1]), FRA)
    a("s_cmp_eq_u32 s%d, %d" % (sIt, HK[0]))
    a("s_cbranch_scc1 K2_h1")
    a("K2_mid:")
    cstage(a, mf_A(FA[1]), read_A(FA[0]), FRA)
    a("s_add_u32 s%d, s%d, 1" % (sIt, sIt))
    a("s_cmp_eq_u32 s%d, s%d" % (sIt, sHook))
    a("s_cbranch_scc0 K2_loop")
    a("s_cmp_eq_u32 s%d, 15" % sIt)
    a("s_cbranch_scc1 K2_h7")
    a("s_cmp_eq_u32 s%d, %d" % (sIt, HK[2]))
    a("s_cbranch_scc1 K2_h2")
    stamp(a, 4)
    a("s_mov_b32 s%d, %d" % (sHook, HK[2]))
    for m in range(2):
        for k in range(4):
            d = KVF + 16 * m + 4 * k
            off = m * 4096 + (k >> 1) * 2048 + (k & 1) * 256
            a("ds_read_b64_tr_b16 v[%d:%d], v%d offset:%d" % (d, d + 1, T + 8, off))
            a("ds_read_b64_tr_b16 v[%d:%d], v%d offset:%d" % (d + 2, d + 3, T + 9, off))
    a("s_waitcnt lgkmcnt(0)")
    for p in range(16):
        a("v_cndmask_b32 v%d, v%d, v%d, s[46:47]" % (KVF + 16 + p, KVF + 16 + p, T + 10))
    for k in range(4):
        a("v_mfma_f32_32x32x16_bf16 v[%d:%d], v[%d:%d], v[%d:%d], %s" % (
            DO, DO + 15, KVF + 4 * k, KVF + 4 * k + 3, KVF + 16 + 4 * k, KVF + 19 + 4 * k,
            "0" if k == 0 else "v[%d:%d]" % (DO, DO + 15)))
    for q in range(3):
        a("ds_write_b128 v%d, v[%d:%d] offset:%d" % (T + 4, DO + 4 * q, DO + 4 * q + 3, 1024 * q))
    a("s_branch K2_loop")
    a("K2_h1:")
    a("s_cmp_eq_u32 s%d, 3" % sW)
    a("s_cbranch_scc1 K2_noat")
    for q in range(4):
        a("ds_read_b128 v[%d:%d], v%d offset:%d" % (KVF + 4 * q, KVF + 4 * q + 3, T + 5, 8192 * q))
    a("s_waitcnt lgkmcnt(0)")
    for r in range(4):
        a("v_add_f32 v%d, v%d, v%d" % (KVF + r, KVF + r, KVF + 4 + r))
        a("v_add_f32 v%d, v%d, v%d" % (KVF + 8 + r, KVF + 8 + r, KVF + 12 + r))
    for r in range(4):
        a("v_add_f32 v%d, v%d, v%d" % (KVF + r, KVF + r, KVF + 8 + r))
    a("s_cmp_eq_u32 s%d, 2" % sW)
    a("s_cselect_b32 exec_hi, 0, 0x1fffff")
    a("s_mov_b32 exec_lo, 0x1fffff")
    for r in range(4):
        a("buffer_atomic_add_f32 v%d, v%d, s[%d:%d], s%d offen offset:%d" % (
            KVF + r, T + 3, sWS, sWS + 3, sKvW, r * 128))
    a("s_mov_b64 exec, -1")
    a("K2_noat:")
    for p in range(24):
        a("v_mov_b32 v%d, 0" % (ACB + p))
    a("s_branch K2_mid")
    a("K2_h2:")
    a("s_mov_b32 s%d, 15" % sHook)
    stamp(a, 5)
    a("s_cmp_eq_u32 s%d, 3" % sW)
    a("s_cbranch_scc1 K2_nosig")
    signal(a, sCntW)
    a("K2_nosig:")
    stamp(a, 6)
    for n in range(4):
        a("buffer_load_dwordx4 v[%d:%d], v%d, s[%d:%d], s%d offen offset:%d sc1" % (
            Z1R + 4 * n, Z1R + 4 * n + 3, vZb if n & 1 else vZa, sWS, sWS + 3, sT2, 1024 * n))
    a("v_lshlrev_b32 v%d, 1, v2" % (T + 2))
    a("s_lshl_b32 s%d, s%d, 6" % (sT0, sT3))
    a("buffer_load_ushort v%d, v%d, s[%d:%d], s%d offen" % (vBias, T + 2, sBS, sBS + 3, sT0))
    a("s_branch K2_loop")
    a("K2_h7:")
    cstage(a, mf_A(FA[0]), read_A(FA[1]), FRA)
    cstage(a, mf_A(FA[1]), [], FRA)
    stamp(a, 8)
    a("s_mov_b32 s%d, %d" % (sRd, slot(32)))
    a("s_waitcnt vmcnt(0)")
    a("v_lshlrev_b32 v%d, 16, v%d" % (vBias, vBias))
    a("s_mul_i32 s%d, s%d, %d" % (sT0, sT3, NG_A3))
    a("s_add_u32 s%d, s%d, s%d" % (sT0, sT0, sOdd))
    a("s_lshl_b32 s%d, s%d, 10" % (sT0, sT0))
    a("s_add_u32 s%d, s%d, %d" % (sT0, sT0, WS_A3 + 40 * 1024))
    for n in range(4):
        if n == 2:
            a("s_cmp_eq_u32 s%d, 52" % sOdd)
            a("s_cbranch_scc1 K2_done")
        acc = ACC + 8 * n
        for p in range(4):
            z = Z1R + 4 * n + p
            t = T + 2 * (p & 1)
            a("v_lshlrev_b32 v%d, 16, v%d" % (t, z))
            a("v_and_b32 v%d, 0xffff0000, v%d" % (t + 1, z))
            a("v_add_f32 v%d, v%d, v%d" % (acc + 2 * p, acc + 2 * p, vBias))
            a("v_add_f32 v%d, v%d, v%d" % (acc + 2 * p + 1, acc + 2 * p + 1, vBias))
            a("v_mul_f32 v%d, v%d, v%d" % (t, t, acc + 2 * p))
            a("v_mul_f32 v%d, v%d, v%d" % (t + 1, t + 1, acc + 2 * p + 1))
            a("v_cvt_pk_bf16_f32 v%d, v%d, v%d" % (z, t, t + 1))
        a("buffer_store_dwordx4 v[%d:%d], v%d, s[%d:%d], s%d offen offset:%d sc1" % (
            Z1R + 4 * n, Z1R + 4 * n + 3, vL16, sWS, sWS + 3, sT0, 1024 * n))
    a("K2_done:")
    stamp(a, 9)
    a("s_add_u32 s%d, s%d, %d" % (sCntI, sCntI, CNT_U - CNT_O))
    a("s_barrier")
    for t in read_B(FA[0]):
        a(t)
    cstage(a, mf_B(FA[0]), read_B(FA[1]), FRB)
    cstage(a, mf_B(FA[1]), read_B(FA[0]), FRB)
    stamp(a, 10)
    signal(a, sCntI)
    stamp(a, 11)
    a("s_mov_b32 s%d, 1" % sIt)
    a("K3_loop:")
    cstage(a, mf_B(FA[0]), read_B(FA[1]), FRB)
    cstage(a, mf_B(FA[1]), read_B(FA[0]), FRB)
    a("s_add_u32 s%d, s%d, 1" % (sIt, sIt))
    a("s_cmp_eq_u32 s%d, 12" % sIt)
    a("s_cbranch_scc0 K3_loop")
    stamp(a, 12)
    for rt in range(2):
        for ct in range(3):
            x = XR + 6 * rt + 2 * ct
            a("ds_read_b64 v[%d:%d], v%d offset:%d" % (x, x + 1, vXl, rt * STG + 32 * ct))
    a("s_waitcnt lgkmcnt(0)")
    for rt in range(2):
        for ct in range(3):
            acc = ACB + 12 * rt + 4 * ct
            x = XR + 6 * rt + 2 * ct
            for p in range(2):
                t = T + 2 * p
                a("v_lshlrev_b32 v%d, 16, v%d" % (t, x + p))
                a("v_and_b32 v%d, 0xffff0000, v%d" % (t + 1, x + p))
                a("v_add_f32 v%d, v%d, v%d" % (t, t, acc + 2 * p))
                a("v_add_f32 v%d, v%d, v%d" % (t + 1, t + 1, acc + 2 * p + 1))
                a("v_cvt_pk_bf16_f32 v%d, v%d, v%d" % (x + p, t, t + 1))
            a("buffer_store_dwordx2 v[%d:%d], v%d, s[%d:%d], s%d offen offset:%d" % (x, x + 1, vO, sO, sO + 3, sXo0 if rt == 0 else sXo1, 32 * ct))
    stamp(a, 13)
    if STAMP:
        a("s_waitcnt vmcnt(0)")
    stamp(a, 14)
    stamp_dump(a, 15, sWS, sW, WS_STAMP + 0x20000)
    a("s_endpgm")
```

```python
import os
from asmlib import *
from common import *

LOG2E = 1.4426950408889634
GC1 = -2.0 * 0.7978845608028654 * LOG2E
GC2 = GC1 * 0.044715

REG = 81920
CH = 20480
K1_LDS = 2 * REG

X0, M0, E0, FR, HOLD, PK, T0 = 96, 80, 64, 48, 40, 36, 28
SEL, CSA = 24, 20
NEGMU, RSTD, RL, K1c, K2c, IRSTD = 19, 18, 17, 16, 15, 14
ZSUM, ZSQ = 12, 13
vA = 8
vW1a, vW1b, vSt0, vSt1, vCsR, vCsW = 7, 6, 5, 4, 3, 2
vXA, vXd0, vXd1, vW0a, vW0b = 40, 44, 45, 46, 47
XS, XQ, XQ2 = 36, 28, 32
sX, sW0, sW1, sWS, sDBG = 4, 8, 12, 16, 20
sRb, sCg, sW, sR, sC = 24, 25, 26, 27, 28
sXoff, sW0off, sW1off, sUstep, sUoff = 29, 30, 31, 32, 33
sWu, sOut2, sZok, sL0 = 52, 3, 56, 57
sGl = 70
sFl = 65
vUa, vUb = 74, 75
sDelta, sWb, sT0, sXb, sReady = 34, 35, 36, 37, 38
sOnes, sA, sB, sCc, sOut, sLine, sIsZ2, sType, sOne = 39, 40, 41, 42, 43, 44, 45, 46, 47
sOut1, sL1, sZ2w, sT1, sT2, sOut0, sZ2keep, sLg = 64, 65, 66, 67, 68, 69, 70, 71

STAMP = os.environ.get("STAMP", "0") in ("1", "2")
STOP = "s_memrealtime" if os.environ.get("STAMP") == "2" else "s_memtime"
WS_STAMP = 0x1800000
EXP = os.environ.get("EXP", "").split(",")


def stamp(a, i):
    if STAMP:
        a("%s s[%d:%d]" % (STOP, 72 + 2 * i, 73 + 2 * i))


def stamp_dump(a, n, srdn, wreg, base):
    if not STAMP:
        return
    if "dbgt" in EXP:
        lab = a.label("Ldb")
        sel = [0, 2, 7, 8, 9, 10, 13] if base == WS_STAMP else [0, 2, 4, 8, 11, 12, 14]
        first = 1 if base == WS_STAMP else 8
        a("s_load_dwordx2 s[%d:%d], s[0:1], %d" % (srdn, srdn + 1, KA_DBG))
        a("s_waitcnt lgkmcnt(0)")
        a("s_and_b32 s%d, s%d, 0xffff" % (srdn + 1, srdn + 1))
        a("s_mov_b32 s%d, 256" % (srdn + 2))
        a("s_mov_b32 s%d, 0x20000" % (srdn + 3))
        a("s_cmp_lg_u32 s%d, 0" % wreg)
        a("s_cbranch_scc1 %s" % lab)
        a("s_mov_b64 exec, 1")
        if base != WS_STAMP:
            a("v_mov_b32 v2, s100")
            a("buffer_atomic_umax v2, off, s[%d:%d], 0 offset:60 sc1" % (srdn, srdn + 3))
        a("s_cmp_lg_u32 s2, 37")
        a("s_cbranch_scc1 %s" % lab)
        for k, i in enumerate(sel):
            a("v_mov_b32 v2, s%d" % (72 + 2 * i))
            a("buffer_store_dword v2, off, s[%d:%d], 0 offset:%d sc1" % (srdn, srdn + 3, 4 * (first + k)))
        a(lab + ":")
        a("s_mov_b64 exec, -1")
        return
    a("s_waitcnt lgkmcnt(0)")
    a("s_lshl_b32 s%d, s2, 3" % sT0)
    a("s_add_u32 s%d, s%d, s%d" % (sT0, sT0, wreg))
    a("s_lshl_b32 s%d, s%d, 6" % (sT0, sT0))
    a("s_add_u32 s%d, s%d, 0x%x" % (sT0, sT0, base))
    a("s_mov_b32 s%d, 0x4000000" % (srdn + 2))
    a("v_mov_b32 v1, 0")
    a("s_mov_b64 exec, 1")
    for i in range(n):
        a("v_mov_b32 v2, s%d" % (72 + 2 * i))
        a("buffer_store_dword v2, v1, s[%d:%d], s%d offen offset:%d" % (srdn, srdn + 3, sT0, 4 * i))
    a("s_mov_b64 exec, -1")


class LdsQ:
    def __init__(self, a, init=()):
        self.a = a
        self.q = list(init)

    def issue(self, text, tag):
        self.a(text)
        self.q.append(tag)

    def wait(self, *tags):
        idx = [i for i, t in enumerate(self.q) if t in tags]
        if not idx:
            return
        last = max(idx)
        n = len(self.q) - 1 - last
        assert n <= 15
        self.a("s_waitcnt lgkmcnt(%d)" % n)
        self.q = self.q[last + 1:]


def srd(a, d, plo, nbytes):
    a("s_mov_b32 s%d, s%d" % (d, plo))
    a("s_and_b32 s%d, s%d, 0xffff" % (d + 1, plo + 1))
    a("s_mov_b32 s%d, 0x%x" % (d + 2, nbytes))
    a("s_mov_b32 s%d, 0x20000" % (d + 3))


def csel(a, d, t, f):
    a("s_mov_b32 s%d, %s" % (d, f))
    a("s_cselect_b32 s%d, %s, s%d" % (d, t, d))


def spread(n_items, n_slots):
    base, rem = divmod(n_items, n_slots)
    return [base + (1 if i < rem else 0) for i in range(n_slots)]


def frag_reads(q, pos, j):
    d = FR + 4 * (j & 3)
    off = pos * 4096 + (j >> 2) * 2048
    q.issue("ds_read_b64_tr_b16 v[%d:%d], v%d offset:%d" % (d, d + 1, vA + (j & 3), off), "f%d" % j)
    q.issue("ds_read_b64_tr_b16 v[%d:%d], v%d offset:%d" % (d + 2, d + 3, vA + (j & 3), off + 512), "f%d" % j)


def skew(seqs, d):
    if "noskew" in EXP:
        d = 0
    items = sorted((i + d * n, n, op) for n, s in enumerate(seqs) for i, op in enumerate(s))
    return [op for _, _, op in items]


def gelu_ops(regs, outs):
    seqs = []
    for e, (t, p) in zip(regs, outs):
        seqs.append([
            "v_mul_f32 v%d, v%d, v%d" % (t, e, e),
            "v_fma_f32 v%d, v%d, v%d, v%d" % (p, t, K2c, K1c),
            "v_mul_f32 v%d, v%d, v%d" % (p, p, e),
            "v_exp_f32 v%d, v%d" % (p, p),
            "v_fma_f32 v%d, v%d, v%d, v%d" % (p, p, IRSTD, IRSTD),
            "v_rcp_f32 v%d, v%d" % (p, p),
            "v_mul_f32 v%d, v%d, v%d" % (t, e, p),
        ])
    return skew(seqs, 2)


def phi_ops(regs, outs):
    seqs = []
    for e, (t, p) in zip(regs, outs):
        seqs.append([
            "v_mul_f32 v%d, v%d, v%d" % (p, e, RL),
            "v_exp_f32 v%d, v%d clamp" % (p, p),
            "v_fma_f32 v%d, v%d, v%d, s%d" % (t, e, RSTD, sCc),
            "v_max_f32 v%d, s%d, v%d" % (t, sA, t),
            "v_fma_f32 v%d, v%d, s%d, v%d" % (t, p, sB, t),
        ])
    return skew(seqs, 1)


def epi_quad(typ, qd):
    regs = [E0 + 4 * qd + i for i in range(4)]
    outs = [(T0 + 2 * i, T0 + 2 * i + 1) for i in range(4)]
    ops = gelu_ops(regs, outs) if typ == "G" else phi_ops(regs, outs)
    o = PK + 2 * (qd & 1)
    ops.append("v_cvt_pk_bf16_f32 v%d, v%d, v%d" % (o, outs[0][0], outs[1][0]))
    ops.append("v_cvt_pk_bf16_f32 v%d, v%d, v%d" % (o + 1, outs[2][0], outs[3][0]))
    return ops


RARE = []


def rare(a, cond_branch, fn):
    lr, lb = a.label("Lrare"), a.label("Lback")
    a("%s %s" % (cond_branch, lr))
    RARE.append((lr, lb, fn))
    return lb


def flush_rare(a):
    for lr, lb, fn in RARE:
        a(lr + ":")
        fn(lb)
        a("s_branch %s" % lb)
    del RARE[:]


def epi_out(a, typ, half, z2=False):
    vst = vSt0 if half == 0 else vSt1
    a("buffer_store_dwordx4 v[%d:%d], v%d, s[%d:%d], s%d offen sc1" % (PK, PK + 3, vst, sWS, sWS + 3, sOut))
    if not z2:
        return
    for i in range(4):
        a("v_mov_b32 v%d, v%d" % (HOLD + 4 * half + i, PK + i))
        a("v_dot2c_f32_bf16 v%d, s%d, v%d" % (ZSUM, sOnes, PK + i))
        a("v_dot2c_f32_bf16 v%d, v%d, v%d" % (ZSQ, PK + i, PK + i))
    if half == 1:
        a("s_lshl_b32 s%d, s%d, 9" % (sT0, sW))
        a("s_add_u32 s%d, s%d, %d" % (sT0, sT0, REG + CH + 2 * 4096))
        a("v_lshlrev_b32 v%d, 3, v0" % (T0 + 2))
        a("v_add_u32 v%d, s%d, v%d" % (T0 + 2, sT0, T0 + 2))
        a("v_mul_f32 v%d, s%d, v%d" % (ZSUM, sIsZ2, ZSUM))
        a("v_mul_f32 v%d, s%d, v%d" % (ZSQ, sIsZ2, ZSQ))
        a("v_mov_b32 v%d, v%d" % (T0, ZSUM))
        a("v_mov_b32 v%d, v%d" % (T0 + 1, ZSQ))
        a("v_permlane32_swap_b32 v%d, v%d" % (ZSUM, T0))
        a("v_permlane32_swap_b32 v%d, v%d" % (ZSQ, T0 + 1))
        a("v_add_f32 v%d, v%d, v%d" % (ZSUM, ZSUM, T0))
        a("v_add_f32 v%d, v%d, v%d" % (ZSQ, ZSQ, T0 + 1))


def dma_unit(pos):
    return [
        "s_add_u32 m0, s%d, %d" % (sWb, pos * 4096),
        "buffer_load_dwordx4 v%d, s[%d:%d], s%d offen lds" % (vW1a, sW1, sW1 + 3, sW1off),
        "buffer_load_dwordx4 v%d, s[%d:%d], s%d offen offset:1024 lds" % (vW1b, sW1, sW1 + 3, sW1off),
        "s_add_u32 s%d, s%d, %d" % (sW1off, sW1off, (128 - 4 * 128 * 3840) & 0xffffffff if pos == 4 else 128 * 3840),
    ]


def dma_u(pos):
    return [
        "s_add_u32 m0, s%d, %d" % (sWb, pos * 4096),
        "buffer_load_dwordx4 v%d, s[%d:%d], s%d offen lds" % (vUa, sWu, sWu + 3, sUoff),
        "buffer_load_dwordx4 v%d, s[%d:%d], s%d offen offset:1024 lds" % (vUb, sWu, sWu + 3, sUoff),
        "s_add_u32 s%d, s%d, s%d" % (sUoff, sUoff, sUstep),
    ]


def dma_x(hp):
    return [
        "s_add_u32 m0, s%d, %d" % (sXb, (hp % 5) * 4096),
        "buffer_load_dwordx4 v%d, s[%d:%d], s%d offen lds" % (vXd0, sX, sX + 3, sXoff),
        "buffer_load_dwordx4 v%d, s[%d:%d], s%d offen offset:1024 lds" % (vXd1, sX, sX + 3, sXoff),
        "s_add_u32 s%d, s%d, 128" % (sXoff, sXoff),
    ]


def dma_b0(i):
    return [
        "s_add_u32 m0, s%d, %d" % (sWb, i * 4096 - REG),
        "buffer_load_dwordx4 v%d, s[%d:%d], s%d offen lds" % (vW0a, sW0, sW0 + 3, sW0off),
        "buffer_load_dwordx4 v%d, s[%d:%d], s%d offen offset:1024 lds" % (vW0b, sW0, sW0 + 3, sW0off),
        "s_add_u32 s%d, s%d, %d" % (sW0off, sW0off, 128 * 3456),
    ]


def mfma(a, i, j):
    x = X0 + 32 * i + 4 * j
    f = FR + 4 * (j & 3)
    d = E0 if (i == 4 and j == 7) else M0
    c = "0" if (i == 0 and j == 0) else "v[%d:%d]" % (M0, M0 + 15)
    a("v_mfma_f32_32x32x16_bf16 v[%d:%d], v[%d:%d], v[%d:%d], %s" % (d, d + 15, f, f + 3, x, x + 3, c))


def cs_mfma(a, i, j):
    f = FR + 4 * (j & 3)
    c = "0" if (i == 0 and j == 0) else "v[%d:%d]" % (CSA, CSA + 3)
    a("v_mfma_f32_16x16x32_bf16 v[%d:%d], v[%d:%d], v[%d:%d], %s" % (CSA, CSA + 3, SEL, SEL + 3, f, f + 3, c))


def ext_mfma(a, q):
    q.wait("csr")
    a("v_add_f32 v%d, v%d, v%d" % (PK, PK, PK + 1))
    a("v_add_f32 v%d, v%d, v%d" % (PK + 2, PK + 2, PK + 3))
    a("v_add_f32 v%d, v%d, v%d" % (PK, PK, PK + 2))
    a("v_add_u32 v%d, s%d, v%d" % (vCsR, sDelta, vCsR))
    a("v_mfma_f32_32x32x2_f32 v[%d:%d], v%d, v%d, v[%d:%d]" % (E0, E0 + 15, PK, NEGMU, E0, E0 + 15))


ST = X0
ZN = X0 + 16
ZT = X0 + 24
vPf = 1
N15 = int(os.environ.get("N15", "6"))
N14 = int(os.environ.get("N14", "0"))
PFREST = 65536 - 128 * 64 * (N15 + N14)
PFL = -(-PFREST // (1792 * 2))
LRDY = 2 * 4096 + 3584


def zok_check(a, tmp):
    l0, l1 = a.label("Lz0"), a.label("Lz1")
    a(l0 + ":")
    a("s_cmp_eq_u32 s%d, 16" % sZok)
    a("s_cbranch_scc1 %s" % l1)
    a("buffer_load_dword v%d, off, s[%d:%d], 0 sc1" % (tmp, sDBG, sDBG + 3))
    a("s_waitcnt vmcnt(0)")
    a("v_readfirstlane_b32 s%d, v%d" % (sZok, tmp))
    a("s_branch %s" % l0)
    a(l1 + ":")


def stat_lane(v):
    return ["v_and_b32 v%d, 31, v0" % v,
            "v_lshlrev_b32 v%d, 3, v%d" % (v, v),
            "v_lshrrev_b32 v%d, 5, v0" % (v + 1),
            "v_mul_u32_u24 v%d, %d, v%d" % (v + 1, 7 * 256, v + 1),
            "v_add_u32 v%d, v%d, v%d" % (v, v, v + 1)]


def valid_ops(t):
    L = ["v_and_b32 v%d, v%d, v%d" % (t, ST + 1, ST + 3),
         "v_and_b32 v%d, v%d, v%d" % (t + 1, ST + 5, ST + 7),
         "v_and_b32 v%d, v%d, v%d" % (t + 2, ST + 9, ST + 11),
         "v_and_b32 v%d, v%d, v%d" % (t, t, ST + 13),
         "v_and_b32 v%d, v%d, v%d" % (t + 1, t + 1, t + 2),
         "v_and_b32 v%d, v%d, v%d" % (t, t, t + 1),
         "v_cmp_gt_i32 vcc, 0, v%d" % t,
         "s_cmp_eq_u64 vcc, -1"]
    return L


def sum_ops():
    L = []
    for (d, s_) in ((0, 4), (1, 5), (2, 6), (0, 3), (1, 2), (0, 1)):
        L.append("v_add_f32 v%d, v%d, v%d" % (ST + 2 * d, ST + 2 * d, ST + 2 * s_))
        L.append("v_add_f32 v%d, v%d, v%d" % (ST + 2 * d + 1, ST + 2 * d + 1, ST + 2 * s_ + 1))
    return L


def norm_ops():
    L = ["v_mov_b32 v%d, v%d" % (ST + 2, ST),
         "v_mov_b32 v%d, v%d" % (ST + 3, ST + 1),
         "v_lshlrev_b32 v%d, 16, v%d" % (ZT, HOLD),
         "v_and_b32 v%d, 0xffff0000, v%d" % (ZT + 1, HOLD),
         "v_permlane32_swap_b32 v%d, v%d" % (ST, ST + 2),
         "v_permlane32_swap_b32 v%d, v%d" % (ST + 1, ST + 3),
         "v_add_f32 v%d, v%d, v%d" % (ST, ST, ST + 2),
         "v_add_f32 v%d, v%d, v%d" % (ST + 1, ST + 1, ST + 3),
         "v_mul_f32 v%d, %s, v%d" % (ST, fhex(-1.0 / FH), ST),
         "v_mul_f32 v%d, %s, v%d" % (ST + 1, fhex(-1.0 / FH), ST + 1),
         "v_fma_f32 v%d, -v%d, v%d, v%d" % (ST + 1, ST, ST, ST + 1),
         "v_max_f32 v%d, 0, v%d" % (ST + 1, ST + 1),
         "v_add_f32 v%d, %s, v%d" % (ST + 1, fhex(1e-5), ST + 1),
         "v_rsq_f32 v%d, v%d" % (ST + 1, ST + 1),
         "v_lshlrev_b32 v%d, 16, v%d" % (ZT + 2, HOLD + 1),
         "v_and_b32 v%d, 0xffff0000, v%d" % (ZT + 3, HOLD + 1)]
    for t in range(8):
        z = ZT + 2 * (t & 3)
        L.append("v_add_f32 v%d, v%d, v%d" % (z, z, ST))
        L.append("v_add_f32 v%d, v%d, v%d" % (z + 1, z + 1, ST))
        if t + 2 < 8:
            z2 = ZT + 2 * ((t + 2) & 3)
            L.append("v_lshlrev_b32 v%d, 16, v%d" % (z2, HOLD + t + 2))
            L.append("v_and_b32 v%d, 0xffff0000, v%d" % (z2 + 1, HOLD + t + 2))
        L.append("v_mul_f32 v%d, v%d, v%d" % (z, z, ST + 1))
        L.append("v_mul_f32 v%d, v%d, v%d" % (z + 1, z + 1, ST + 1))
        L.append("v_cvt_pk_bf16_f32 v%d, v%d, v%d" % (ZN + t, z, z + 1))
    return L


def zn_stores(a, soff):
    a("buffer_store_dwordx4 v[%d:%d], v%d, s[%d:%d], s%d offen sc1" % (ZN, ZN + 3, vSt0, sWS, sWS + 3, soff))
    a("buffer_store_dwordx4 v[%d:%d], v%d, s[%d:%d], s%d offen sc1" % (ZN + 4, ZN + 7, vSt1, sWS, sWS + 3, soff))


def cz_signal(a):
    a("v_mov_b32 v%d, 1" % ZSUM)
    a("s_mov_b64 exec, 1")
    a("buffer_atomic_add v%d, off, s[%d:%d], s%d sc1" % (ZSUM, sWS, sWS + 3, sT2))
    a("s_mov_b64 exec, -1")


INQ2 = ["f0", "f0", "csw", "f1", "f1", "f2", "f2"]


def next_line_ops():
    return [
        "s_mov_b32 s%d, s%d" % (sOut, sOut1),
        "s_mov_b32 s%d, s%d" % (sOut1, sOut2),
        "s_add_u32 s%d, s%d, 4096" % (sOut2, sOut2),
        "s_cmp_ge_u32 s%d, 20\ns_mov_b32 s%d, %s\ns_cselect_b32 s%d, 0xff800000, s%d\ns_cselect_b32 s%d, 0, 1.0\ns_cselect_b32 s%d, 0, %s" % (
            sLg, sA, fhex(1e-6), sA, sA, sB, sCc, fhex(1e-6)),
        "s_add_u32 s%d, s%d, 1" % (sLg, sLg),
        "s_add_u32 s%d, s%d, 1" % (sLine, sLine),
    ]


def body(a, typ, line):
    last = line == 3
    q = LdsQ(a, INQ2)
    allp = []
    for qd in range(4):
        allp += epi_quad(typ, qd)
        if qd & 1:
            allp.append(("out", qd >> 1))
    if not last:
        if line == 1:
            ecnt = [0] * 6 + spread(len(allp), 25) + [0] * 9
        else:
            ecnt = [0] * 6 + spread(len(allp), 33) + [0]
        lfill, p0 = [], 0
        for i in range(5):
            n = sum(ecnt[8 * i:8 * i + 8])
            lfill.append(allp[p0:p0 + n])
            p0 += n
    if last:
        n3 = spread(len(allp), 3)
        lfill = [[], norm_ops(), allp[:n3[0]], allp[n3[0]:n3[0] + n3[1]], allp[n3[0] + n3[1]:]]
        assert ("out", 0) in lfill[3]
    for i in range(5):
        q.wait("csw")
        if not last:
            a("s_waitcnt vmcnt(10)")
        elif i in (0, 4):
            a("s_waitcnt vmcnt(1)")
        a("s_barrier")
        if ("st2" in EXP and line == 2) or ("st1" in EXP and line == 1):
            stamp(a, 2 + i)
        if "st3" in EXP and last:
            stamp(a, 2 + i)
        du = dma_unit((i + 2) % 5)
        lump = None
        hasdma = line == 1 or (line == 2 and i < 3)
        fill = lfill[i]
        if last:
            nslots = 7 if i == 4 else 8
            cnt = spread(len(fill), nslots) + [0] * (8 - nslots)
        else:
            cnt = ecnt[8 * i:8 * i + 8]
        pos = 0
        for j in range(8):
            q.wait("f%d" % j)
            mfma(a, i, j)
            if i == 0 and j == 0:
                q.issue("ds_read_b128 v[%d:%d], v%d" % (PK, PK + 3, vCsR), "csr")
            if i == 4 and j == 6:
                q.issue("ds_write_b32 v%d, v%d" % (vCsW, CSA), "csw")
                a("v_add_u32 v%d, s%d, v%d" % (vCsW, sDelta, vCsW))
            jn = j + 3
            if jn < 8:
                frag_reads(q, i, jn)
            elif not (last and i == 4):
                frag_reads(q, (i + 1) % 5, jn - 8)
            if i == 4 and 1 <= j <= 4 and not last:
                t = (j + 3) & 3
                a("v_add_u32 v%d, s%d, v%d" % (vA + t, sDelta, vA + t))
            if i == 0 and j == 2:
                ext_mfma(a, q)
                a("s_sub_u32 s%d, 0, s%d" % (sDelta, sDelta))
            if last and i == 0:
                if j == 0:
                    for t in stat_lane(T0):
                        a(t)
                    a("s_mul_i32 s%d, s%d, %d" % (sT0, sR, CH))
                    a("s_add_u32 s%d, s%d, 8192" % (sT0, sT0))
                    a("v_add_u32 v%d, s%d, v%d" % (T0, sT0, T0))
                if j <= 3:
                    for t in (2 * j, 2 * j + 1):
                        if t < 7:
                            q.issue("ds_read_b64 v[%d:%d], v%d offset:%d" % (ST + 2 * t, ST + 2 * t + 1, T0, 256 * t), "st")
                if j == 5:
                    q.wait("st")
                    for t in valid_ops(T0 + 2):
                        a(t)
                    a("s_cselect_b32 s%d, 1, 0" % sT0)
                    a("v_mov_b32 v%d, s%d" % (T0 + 2, sT0))
                    a("v_mov_b32 v%d, %d" % (T0 + 3, LRDY))
                    a("s_mov_b64 exec, 1")
                    q.issue("ds_add_u32 v%d, v%d" % (T0 + 3, T0 + 2), "csw")
                    a("s_mov_b64 exec, -1")
                if j >= 6:
                    for t in sum_ops()[6 * (j - 6):6 * (j - 5)]:
                        a(t)
            if last and i == 1:
                if j == 0:
                    q.issue("ds_read_b32 v%d, v%d" % (T0 + 2, T0 + 3), "rdy")
                if j == 4:
                    q.wait("rdy")
                    a("v_readfirstlane_b32 s%d, v%d" % (sT1, T0 + 2))
                    a("s_cmp_eq_u32 s%d, 8" % sT1)
                    a("s_cselect_b32 s%d, 1, 0" % sReady)
                    a("s_cselect_b32 s%d, s%d, 0x40000000" % (sT0, sOut0))
                    a("s_cselect_b32 s%d, s%d, 99" % (sL1, sL1))
            if not last:
                if j == 0 and i == 3 and line == 2:
                    a("s_mov_b32 m0, s%d" % sGl)
                    a("v_lshlrev_b32 v%d, 4, v0" % ZSUM)
                    a("s_and_b32 s%d, s%d, 0xfffff000" % (sT0, sZ2w))
                    a("s_lshl_b32 s%d, s%d, 11" % (sT1, sC))
                    a("s_add_u32 s%d, s%d, s%d" % (sT0, sT0, sT1))
                    a("buffer_load_dwordx4 v%d, s[%d:%d], s%d offen sc1 lds" % (ZSUM, sWS, sWS + 3, sT0))
                if j == 4 and i == 3 and line == 2:
                    a("buffer_load_dwordx4 v%d, s[%d:%d], s%d offen offset:1024 sc1 lds" % (ZSUM, sWS, sWS + 3, sT0))
                if j == 0 and hasdma:
                    a(du[0])
            for t in fill[pos:pos + cnt[j]]:
                if isinstance(t, tuple):
                    epi_out(a, typ, t[1], z2=(line == 1))
                    if line == 1 and t[1] == 1:
                        q.issue("ds_write_b64 v%d, v[%d:%d]" % (T0 + 2, ZSUM, ZSQ), "csw")
                else:
                    a(t)
            pos += cnt[j]
            if last and i == 1 and j == 7:
                zn_stores(a, sT0)
            if hasdma:
                if j == 0:
                    if i == 2 and PFREST > 0:
                        a("buffer_load_dword v%d, s[%d:%d], s%d offen lds" % (vPf, sX, sX + 3, sXoff))
                        a("s_add_u32 s%d, s%d, %d" % (sXoff, sXoff, 1792 * PFL * 128))
                    a(du[1])
                if j == 4:
                    a(du[2])
                    a(du[3])
                    if i == 2:
                        a("s_sub_u32 s%d, s%d, s%d" % (sWb, sWb, sDelta))
            if lump and j == 6:
                lump()
            if (j & 3) == 0:
                cs_mfma(a, i, j)
            if line == 1 and i == 4:
                if j == 0:
                    a("v_xor_b32 v%d, 0x800, v%d" % (T0 + 2, T0 + 2))
                    q.issue("ds_read_b64 v[%d:%d], v%d" % (T0 + 4, T0 + 5, T0 + 2), "zp")
                    a("v_lshlrev_b32 v%d, 3, v0" % T0)
                if j == 2:
                    a("s_waitcnt lgkmcnt(0)")
                    q.q = []
                    a("s_cmp_lg_u32 s%d, 16" % sZok)
                    a(rare(a, "s_cbranch_scc1", lambda lb: zok_check(a, T0 + 6)) + ":")
                    a("v_add_f32 v%d, v%d, v%d" % (ZSUM, ZSUM, T0 + 4))
                    a("v_add_f32 v%d, v%d, v%d" % (ZSQ, ZSQ, T0 + 5))
                    a("v_or_b32 v%d, 0x80000000, v%d" % (ZSQ, ZSQ))
                    a("s_mov_b32 exec_hi, 0")
                    a("buffer_store_dwordx2 v[%d:%d], v%d, s[%d:%d], s%d offen sc1" % (ZSUM, ZSQ, T0, sWS, sWS + 3, sL0))
                    a("s_mov_b64 exec, -1")
            if j == 0 and i == 4 and last:
                a("s_cmp_eq_u32 s%d, 0" % sReady)
                a(rare(a, "s_cbranch_scc1", lambda lb: z2_fetch(a)) + ":")
            if j == 1 and i == 4 and last:
                lsk = a.label("Lns")
                a("s_cmp_lg_u32 s%d, 2" % sL1)
                a("s_cbranch_scc1 %s" % lsk)
                cz_signal(a)
                a(lsk + ":")
            if i == 4 and j == 7:
                for t in next_line_ops():
                    a(t)
        assert pos == len(fill)
    assert q.q == (["csw"] if last else INQ2), q.q
    if STAMP:
        a("s_mov_b32 s88, s90")
        a("s_mov_b32 s90, s92")
    stamp(a, 10)


def z2_fetch(a):
    for t in stat_lane(ZT + 8):
        a(t)
    a("s_and_b32 s%d, s%d, 0xfffff000" % (sT0, sZ2w))
    for t in range(7):
        a("buffer_load_dwordx2 v[%d:%d], v%d, s[%d:%d], s%d offen offset:%d sc1" % (
            ST + 2 * t, ST + 2 * t + 1, ZT + 8, sWS, sWS + 3, sT0, 256 * t))


def z2_slow(a, lb):
    lp, lo = a.label("Lpoll"), a.label("Lok")
    a("s_waitcnt vmcnt(1)")
    a(lp + ":")
    for t in valid_ops(ZT):
        a(t)
    a("s_cbranch_scc1 %s" % lo)
    z2_fetch(a)
    a("s_waitcnt vmcnt(0)")
    a("s_branch %s" % lp)
    a(lo + ":")
    for t in sum_ops() + norm_ops():
        a(t)
    zn_stores(a, sOut0)


def tail_common(a):
    q = LdsQ(a)
    a("s_waitcnt lgkmcnt(0)")
    a("s_barrier")
    q.issue("ds_read_b128 v[%d:%d], v%d" % (PK, PK + 3, vCsR), "csr")
    ext_mfma(a, q)
    stamp(a, 11)
    a("s_cmp_eq_u32 s%d, 0" % sReady)
    a(rare(a, "s_cbranch_scc1", lambda lb: z2_slow(a, lb)) + ":")
    stamp(a, 12)
    a("s_add_u32 s71, s%d, 128" % sT2)
    a("s_mov_b32 s70, s%d" % sZok)
    a("s_mov_b32 s69, s%d" % sReady)
    import p2
    p2.p2_loads(a)
    a("s_nop 9")


def pf_wsp(a, first, n):
    srd(a, sDBG, 58, S * S * 2)
    a("s_lshl_b32 s%d, s%d, 3" % (sT0, sRb))
    a("s_add_u32 s%d, s%d, s%d" % (sT0, sT0, sW))
    a("s_mul_i32 s%d, s%d, %d" % (sT0, sT0, n * 64 * 128))
    a("s_add_u32 s%d, s%d, %d" % (sT0, sT0, first * 128))
    a("v_lshlrev_b32 v99, 7, v0")
    for t in range(n):
        a("buffer_load_dword v%d, v99, s[%d:%d], s%d offen" % (100 + t, sDBG, sDBG + 3, sT0))
        a("s_add_u32 s%d, s%d, 8192" % (sT0, sT0))


def retile(a):
    a("s_waitcnt lgkmcnt(0)")
    srd(a, sX, 44, D * D * 2)
    srd(a, sW0, 46, FH * D * 2)
    a("s_cmp_lt_u32 s%d, 4" % sRb)
    a("s_cselect_b32 s%d, s44, s46" % sW1)
    a("s_cselect_b32 s%d, s45, s47" % (sW1 + 1))
    csel(a, sW1 + 2, hex(D * D * 2), hex(FH * D * 2))
    a("s_cselect_b32 s%d, 16, -4" % sT1)
    a("s_and_b32 s%d, s%d, 0xffff" % (sW1 + 1, sW1 + 1))
    a("s_mov_b32 s%d, 0x20000" % (sW1 + 3))
    a("s_mul_i32 s%d, s%d, 160" % (sT0, sW))
    for t in range(5):
        a("v_add_u32 v100, %d, v0" % (64 * t))
        a("v_mul_u32_u24 v101, 205, v100")
        a("v_lshrrev_b32 v101, 11, v101")
        a("v_mul_u32_u24 v101, %d, v101" % (1280 - 160))
        a("v_lshl_add_u32 v101, v100, 4, v101")
        a("v_add_u32 v%d, s%d, v101" % (104 + t, sT0))
    a("s_mul_i32 s%d, s%d, %d" % (sXoff, sRb, 32 * 1280))
    a("s_add_u32 s%d, s%d, s%d" % (sT1, sRb, sT1))
    a("s_mul_i32 s%d, s%d, %d" % (sW1off, sT1, 32 * 1280))
    a("s_add_u32 s%d, s%d, %d" % (sW0off, sXoff, 12 * 32 * 1280))
    for n, (sd, so) in enumerate(((sX, sXoff), (sW1, sW1off), (sW0, sW0off))):
        for t in range(5):
            d = 112 + 20 * n + 4 * t
            a("buffer_load_dwordx4 v[%d:%d], v%d, s[%d:%d], s%d offen" % (d, d + 3, 104 + t, sd, sd + 3, so))
    a("v_lshlrev_b32 v102, 4, v0")
    a("s_mul_i32 s%d, s%d, 40" % (sT0, sRb))
    a("s_mul_i32 s%d, s%d, 5" % (sT1, sW))
    a("s_add_u32 s%d, s%d, s%d" % (sT0, sT0, sT1))
    a("s_lshl_b32 s%d, s%d, 10" % (sT0, sT0))
    a("s_add_u32 s%d, s%d, 0x%x" % (sT2, sT0, WS_B3))


def retile_store(a):
    for n in range(3):
        if n == 2:
            a("s_cmp_eq_u32 s%d, 15" % sRb)
            a("s_cbranch_scc1 K1_rtd")
        a("s_waitcnt vmcnt(%d)" % 12)
        for t in range(5):
            d = 112 + 20 * n + 4 * t
            a("s_add_u32 s%d, s%d, %d" % (sT1, sT2, (n * 16 * 40 + t) * 1024))
            a("buffer_store_dwordx4 v[%d:%d], v102, s[%d:%d], s%d offen sc1" % (d, d + 3, sWS, sWS + 3, sT1))
    a("K1_rtd:")


def tail(a, typ):
    if typ == "G":
        a("s_load_dwordx2 s[44:45], s[0:1], %d" % KA_WO)
        a("s_load_dwordx2 s[46:47], s[0:1], %d" % KA_WOUT)
        retile(a)
    for qd in range(4):
        for t in epi_quad(typ, qd):
            a(t)
        if qd & 1:
            epi_out(a, typ, qd >> 1)
    if typ == "G":
        retile_store(a)
        if N14:
            pf_wsp(a, 128 * N15 * 64, N14)
        a("s_waitcnt vmcnt(0)")
    stamp(a, 13)
    stamp(a, 14)
    stamp_dump(a, 15, sWS, sW, WS_STAMP)
    if typ == "G":
        a("s_branch P2_entry")


def gen_k1(a, label):
    a(".p2align 8")
    a(label + ":")
    end = "K1_end"
    a("s_cmp_ge_u32 s2, 256")
    a("s_cbranch_scc1 %s" % end)
    stamp(a, 0)
    a("s_load_dwordx4 s[48:51], s[0:1], %d" % KA_X)
    a("s_load_dwordx2 s[54:55], s[0:1], %d" % KA_WIN)
    a("s_load_dwordx2 s[58:59], s[0:1], %d" % KA_WSP)
    a("s_load_dwordx4 s[60:63], s[0:1], %d" % KA_DBG)
    a("v_lshrrev_b32 v1, 6, v0")
    a("v_and_b32 v0, 63, v0")
    a("v_readfirstlane_b32 s%d, v1" % sW)
    a("s_and_b32 s%d, s2, 1" % sRb)
    a("s_lshl_b32 s%d, s%d, 3" % (sRb, sRb))
    a("s_lshr_b32 s%d, s2, 5" % sT0)
    a("s_add_u32 s%d, s%d, s%d" % (sRb, sRb, sT0))
    a("s_bfe_u32 s%d, s2, 0x20001" % sT1)
    a("s_bfe_u32 s%d, s2, 0x20003" % sT0)
    a("s_mul_i32 s%d, s%d, 3" % (sCg, sT1))
    a("s_add_u32 s%d, s%d, s%d" % (sCg, sCg, sT0))
    a("s_add_u32 s%d, s%d, 12" % (sT1, sT1))
    a("s_cmp_eq_u32 s%d, 3" % sT0)
    a("s_cselect_b32 s%d, s%d, s%d" % (sCg, sT1, sCg))
    a("s_and_b32 s%d, s%d, 3" % (sR, sW))
    a("s_lshr_b32 s%d, s%d, 2" % (sC, sW))
    a("s_cmp_eq_u32 s%d, 15" % sCg)
    a("s_cbranch_scc1 K1_side")
    a("v_lshrrev_b32 v3, 3, v0")
    a("s_lshl_b32 s%d, s%d, 4" % (sT0, sW))
    a("v_add_u32 v3, s%d, v3" % sT0)
    a("v_lshrrev_b32 v1, 4, v0")
    a("v_and_b32 v2, 7, v0")
    a("v_xor_b32 v4, v1, v2")
    a("v_mul_u32_u24 v5, 1280, v3")
    a("v_lshl_add_u32 v%d, v4, 4, v5" % vXd0)
    a("v_xor_b32 v4, 4, v4")
    a("v_lshl_add_u32 v%d, v4, 4, v5" % vXd1)
    a("v_add_u32 v%d, %d, v%d" % (vXd1, 8 * 1280 - 1024, vXd1))
    a("v_and_b32 v1, 1, v1")
    a("v_lshlrev_b32 v1, 2, v1")
    a("v_xor_b32 v2, v1, v2")
    a("v_lshlrev_b32 v2, 4, v2")
    a("v_mul_u32_u24 v%d, 3456, v3" % vW0a)
    a("v_add_u32 v%d, v%d, v2" % (vW0a, vW0a))
    a("v_add_u32 v%d, %d, v%d" % (vW0b, 8 * 3456 - 1024, vW0a))
    a("s_mul_i32 s%d, s%d, %d" % (sXoff, sRb, 128 * 1280))
    a("s_add_u32 s%d, s%d, 13" % (sLg, sCg))
    a("s_cmp_eq_u32 s%d, 14" % sCg)
    a("s_cselect_b32 s%d, 12, s%d" % (sLg, sLg))
    a("s_cselect_b32 s%d, 1, 0" % sOne)
    a("s_lshl_b32 s%d, s%d, 7" % (sW0off, sLg))
    a("s_mul_i32 s%d, s%d, %d" % (sWb, sR, CH))
    a("s_lshl_b32 s%d, s%d, 11" % (sT0, sC))
    a("s_add_u32 s%d, s%d, s%d" % (sWb, sWb, sT0))
    a("s_add_u32 s%d, s%d, %d" % (sWb, sWb, REG))
    a("s_lshr_b32 s%d, s%d, 1" % (sT0, sW))
    a("s_mul_i32 s%d, s%d, %d" % (sXb, sT0, CH))
    a("s_and_b32 s%d, s%d, 1" % (sT0, sW))
    a("s_lshl_b32 s%d, s%d, 11" % (sT0, sT0))
    a("s_add_u32 s%d, s%d, s%d" % (sXb, sXb, sT0))
    a("s_add_u32 s%d, s%d, %d" % (sXb, sXb, REG))
    a("s_waitcnt lgkmcnt(0)")
    srd(a, sX, 48, S * D * 2)
    srd(a, sW0, 54, D * F * 2)
    for L in (dma_x(0), dma_b0(0)):
        for t in L:
            a(t)
    if "nopf" not in EXP:
        lskip = a.label("Lpf")
        a("s_cmp_eq_u32 s%d, %d" % (sW, 77 if "nocode" in EXP else 7))
        a("s_cbranch_scc1 K1_pfcode")
        if "nopfx" in EXP:
            a("s_branch %s" % lskip)
        a("s_cmp_gt_u32 s%d, 2" % sW)
        a("s_cbranch_scc1 %s" % lskip)
        a("s_cmp_eq_u32 s%d, 2" % sW)
        a("s_cbranch_scc1 K1_pfw0")
        a("s_mul_i32 s%d, s%d, %d" % (sT0, sCg, 86 * 128))
        a("s_mul_i32 s%d, s%d, %d" % (sT1, sW, 43 * 128))
        a("s_add_u32 s%d, s%d, s%d" % (sT0, sT0, sT1))
        a("s_mul_i32 s%d, s%d, %d" % (sT1, sRb, 128 * 1280))
        a("s_add_u32 s%d, s%d, s%d" % (sT0, sT0, sT1))
        a("v_min_u32 v%d, 42, v0" % (E0 + 12))
        a("v_lshlrev_b32 v%d, 7, v%d" % (E0 + 12, E0 + 12))
        a("buffer_load_dword v%d, v%d, s[%d:%d], s%d offen" % (E0 + 13, E0 + 12, sX, sX + 3, sT0))
        a("s_branch %s" % lskip)

        def pfw0(lb):
            a("s_mul_i32 s%d, s%d, %d" % (sT0, sRb, 40 * 3456))
            a("s_lshl_b32 s%d, s%d, 7" % (sT1, sLg))
            a("s_add_u32 s%d, s%d, s%d" % (sT0, sT0, sT1))
            a("v_min_u32 v%d, 39, v0" % (E0 + 12))
            a("v_mul_u32_u24 v%d, 3456, v%d" % (E0 + 12, E0 + 12))
            a("buffer_load_dword v%d, v%d, s[%d:%d], s%d offen" % (E0 + 13, E0 + 12, sW0, sW0 + 3, sT0))

        def pfcode(lb):
            a("s_getpc_b64 s[52:53]")
            a("K1_pc:")
            a("s_sub_u32 s52, s52, K1_pc-%s" % label)
            a("s_subb_u32 s53, s53, 0")
            a("s_bfe_u32 s%d, s2, 0x30003" % sT0)
            a("s_lshl_b32 s%d, s%d, 6" % (sT0, sT0))
            a("v_add_u32 v%d, s%d, v0" % (E0 + 12, sT0))
            a("v_lshlrev_b32 v%d, 7, v%d" % (E0 + 12, E0 + 12))
            a("v_min_u32 v%d, (CODE_END-%s-4), v%d" % (E0 + 12, label, E0 + 12))
            a("global_load_dword v%d, v%d, s[52:53]" % (E0 + 13, E0 + 12))
        a("K1_pfw0:")
        pfw0(None)
        a("s_branch %s" % lskip)
        a("K1_pfcode:")
        pfcode(None)
        a(lskip + ":")
    for t in dma_x(1):
        a(t)
    stamp(a, 1)
    a("v_mov_b32 v%d, v3" % (E0 + 8))
    a("v_mov_b32 v%d, v2" % (E0 + 9))
    e = E0
    a("s_xor_b32 s%d, s%d, s%d" % (sT1, sR, sC))
    a("v_lshrrev_b32 v1, 5, v0")
    a("v_and_b32 v%d, 31, v0" % (e + 1))
    a("v_lshlrev_b32 v%d, 7, v%d" % (e + 1, e + 1))
    a("v_bfe_u32 v%d, v0, 1, 3" % (e + 2))
    a("v_xor_b32 v%d, v%d, v1" % (e + 2, e + 2))
    a("s_lshl_b32 s%d, s%d, 1" % (sT0, sT1))
    a("v_xor_b32 v%d, s%d, v%d" % (e + 2, sT0, e + 2))
    a("v_lshl_add_u32 v%d, v%d, 4, v%d" % (e + 1, e + 2, e + 1))
    a("s_mul_i32 s%d, s%d, %d" % (sT0, sR, CH))
    a("s_add_u32 s%d, s%d, %d" % (sT0, sT0, REG))
    a("v_add_u32 v%d, s%d, v%d" % (vXA, sT0, e + 1))
    for t in range(1, 4):
        a("v_xor_b32 v%d, %d, v%d" % (vXA + t, 32 * t, vXA))
    a("v_bfe_u32 v%d, v0, 2, 2" % e)
    a("v_lshl_add_u32 v%d, v1, 3, v%d" % (e, e))
    a("v_lshlrev_b32 v%d, 7, v%d" % (e, e))
    a("v_bfe_u32 v%d, v0, 4, 1" % (e + 1))
    a("v_lshlrev_b32 v%d, 1, v%d" % (e + 1, e + 1))
    a("v_bfe_u32 v%d, v0, 1, 1" % (e + 2))
    a("v_add_u32 v%d, v%d, v%d" % (e + 1, e + 1, e + 2))
    a("s_lshl_b32 s%d, s%d, 2" % (sT0, sC))
    a("v_add_u32 v%d, s%d, v%d" % (e + 1, sT0, e + 1))
    a("v_bfe_u32 v%d, v0, 3, 1" % (e + 2))
    a("v_lshlrev_b32 v%d, 2, v%d" % (e + 2, e + 2))
    a("v_xor_b32 v%d, v%d, v%d" % (e + 1, e + 1, e + 2))
    a("v_lshl_add_u32 v%d, v%d, 4, v%d" % (e, e + 1, e))
    a("v_and_b32 v%d, 1, v0" % (e + 1))
    a("v_lshl_add_u32 v%d, v%d, 3, v%d" % (e, e + 1, e))
    for t in range(4):
        a("s_xor_b32 s%d, s%d, %d" % (sT0, sT1, t))
        a("s_mul_i32 s%d, s%d, %d" % (sT0, sT0, CH))
        a("v_add_u32 v%d, s%d, v%d" % (vA + t, sT0, e))
    for L in (dma_x(2), dma_b0(1)):
        for t in L:
            a(t)
    a("s_mov_b32 s%d, 0x3f803f80" % sOnes)
    a("v_lshrrev_b32 v%d, 4, v0" % (e + 1))
    a("v_bfe_u32 v%d, v0, 2, 2" % (e + 2))
    a("v_cmp_eq_u32 vcc, v%d, v%d" % (e + 1, e + 2))
    a("v_mov_b32 v%d, s%d" % (e + 1, sOnes))
    for t in range(4):
        a("v_cndmask_b32 v%d, 0, v%d, vcc" % (SEL + t, e + 1))

    class Rec:
        def __init__(self):
            self.L = []

        def __call__(self, t):
            self.L.append(t)
    r = Rec()
    srd(r, sW1, 50, D * 3 * D * 2)
    r("v_mul_u32_u24 v%d, 3840, v%d" % (vW1a, E0 + 8))
    r("v_add_u32 v%d, v%d, v%d" % (vW1a, vW1a, E0 + 9))
    r("v_add_u32 v%d, %d, v%d" % (vW1b, 8 * 3840 - 1024, vW1a))
    r("s_lshl_b32 s%d, s%d, 1" % (sT0, sLg))
    r("s_add_u32 s%d, s%d, s%d" % (sT0, sT0, sC))
    r("s_cmp_ge_u32 s%d, 27\ns_cselect_b32 s%d, 1.0, 0" % (sT0, sIsZ2))
    r("s_lshl_b32 s%d, s%d, 2" % (sT2, sRb))
    r("s_add_u32 s%d, s%d, s%d" % (sT2, sT2, sR))
    r("s_mul_i32 s%d, s%d, %d" % (sA, sT2, NG_Z * 1024))
    r("s_add_u32 s%d, s%d, 0x%x" % (sA, sA, WS_Z))
    r("s_lshl_b32 s%d, s%d, 11" % (sOut, sT0))
    r("s_add_u32 s%d, s%d, s%d" % (sOut, sOut, sA))
    r("s_cmp_lg_u32 s%d, 0\ns_cselect_b32 s%d, s%d, 0x40000000\ns_cselect_b32 s%d, 0x40000000, s%d" % (sIsZ2, sOut0, sOut, sOut, sOut))
    r("s_sub_u32 s%d, s%d, %d" % (sGl, sWb, REG - 8192))
    r("s_lshl_b32 s%d, s%d, 12" % (sZ2w, sT2))
    r("s_lshl_b32 s%d, s%d, 8" % (sT0, sCg))
    r("s_add_u32 s%d, s%d, s%d" % (sZ2w, sZ2w, sT0))
    r("s_add_u32 s%d, s%d, 0x%x" % (sZ2w, sZ2w, WS_ST2))
    r("s_lshl_b32 s%d, s%d, 1" % (sT0, sCg))
    r("s_mul_i32 s%d, s%d, 3" % (sT1, sCg))
    r("s_sub_u32 s%d, s%d, 11" % (sT1, sT1))
    r("s_cmp_lt_u32 s%d, 12\ns_cselect_b32 s%d, s%d, s%d\ns_cselect_b32 s%d, 1, 0" % (sCg, sLg, sT0, sT1, sType))
    r("s_lshl_b32 s%d, s%d, 7" % (sW1off, sLg))
    r("s_mul_i32 s%d, s%d, %d" % (sOut2, sT2, NG_QKV * 1024))
    r("s_lshl_b32 s%d, s%d, 12" % (sT0, sLg))
    r("s_add_u32 s%d, s%d, s%d" % (sOut2, sOut2, sT0))
    r("s_lshl_b32 s%d, s%d, 11" % (sT1, sC))
    r("s_add_u32 s%d, s%d, s%d" % (sOut2, sOut2, sT1))
    r("s_sub_u32 s%d, s%d, 1" % (sLg, sLg))
    r("s_lshl_b32 s%d, s%d, 12" % (sT0, sCg))
    r("s_add_u32 s%d, s%d, s%d" % (sT0, sT0, sT1))
    r("s_add_u32 s%d, s%d, s%d" % (sT0, sT0, sA))
    r("s_sub_u32 s%d, s%d, 4096" % (sT1, sOut2))
    r1 = Rec()
    r1("s_cmp_lt_u32 s%d, 12" % sCg)
    r1("s_cselect_b32 s%d, s%d, s%d" % (sOut1, sT0, sT1))
    r1("s_cselect_b32 s%d, s%d, s%d" % (sUoff, sCg, sLg))
    csel(r1, sUstep, str(128 * 3456), str(128 * 3840))
    r1("s_cselect_b64 s[%d:%d], s[%d:%d], s[%d:%d]" % (sWu, sWu + 1, sW0, sW0 + 1, sW1, sW1 + 1))
    r1("s_cselect_b32 s%d, s%d, s%d" % (sWu + 2, sW0 + 2, sW1 + 2))
    r1("s_cselect_b64 vcc, -1, 0")
    r("\n".join(r1.L))
    r("s_mov_b32 s%d, 0x20000" % (sWu + 3))
    r("v_cndmask_b32 v%d, v%d, v%d, vcc" % (vUa, vW1a, vW0a))
    r("v_cndmask_b32 v%d, v%d, v%d, vcc" % (vUb, vW1b, vW0b))
    r("s_lshl_b32 s%d, s%d, 7" % (sUoff, sUoff))
    r("s_cmp_eq_u32 s%d, 1\ns_cselect_b32 s%d, 0x40000000, s%d" % (sOne, sUoff, sUoff))
    late = []
    srd(r, sWS, 62, WS_END)
    srd(r, sDBG, 60, 256)
    r("v_lshlrev_b32 v%d, 2, v1" % (e + 1))
    r("v_xor_b32 v%d, v%d, v0" % (e + 1, e + 1))
    r("v_lshlrev_b32 v%d, 4, v%d" % (vSt0, e + 1))
    r("v_xor_b32 v%d, 0x80, v%d" % (vSt1, vSt0))
    r("v_add_u32 v%d, 1024, v%d" % (vSt1, vSt1))
    r("s_lshl_b32 s%d, s%d, 10" % (sT0, sC))
    r("s_add_u32 s%d, s%d, %d" % (sT0, sT0, 3 * 4096))
    r("v_lshlrev_b32 v%d, 4, v0" % vCsR)
    r("v_add_u32 v%d, s%d, v%d" % (vCsR, sT0, vCsR))
    r("s_lshl_b32 s%d, s%d, 2" % (sT0, sR))
    r("v_add_u32 v%d, s%d, v%d" % (vCsW, sT0, vCsR))
    r("v_mov_b32 v%d, 0" % ZSUM)
    r("v_mov_b32 v%d, 0" % ZSQ)
    r("s_mov_b32 s%d, %d" % (sDelta, REG))
    r("s_mov_b32 s%d, s%d" % (sReady, sOne))
    r("s_lshl_b32 s%d, s%d, 10" % (sT2, sRb))
    r("s_add_u32 s%d, s%d, 0x%x" % (sT2, sT2, WS_FL))
    r("s_cmp_eq_u32 s%d, 0\ns_cselect_b32 s%d, 2, 99" % (sW, sL1))
    r("s_cmp_eq_u32 s%d, 0\ns_cselect_b32 s%d, s%d, 0x40000000" % (sC, sL0, sZ2w))
    late += r.L
    nlate = spread(len(late), 16) + [0] * 24

    seq = ["x0", "b0", "x1", "x2", "b1"]
    plan = {-1: ["x3", "x4"], 0: ["b2", "x5"], 1: ["x6"], 2: ["b3", "x7"], 3: ["x8"], 4: ["b4", "x9"],
            5: ["u0"], 6: ["u1"], 7: ["u2"], 8: ["u3"], 9: ["u4"]}
    q = LdsQ(a)

    def dma_list(it):
        return dma_x(int(it[1:])) if it[0] == "x" else dma_b0(int(it[1:])) if it[0] == "b" else dma_u(int(it[1:]))

    def xread(hp, t):
        x = X0 + 16 * hp + 4 * t
        q.issue("ds_read_b128 v[%d:%d], v%d offset:%d" % (x, x + 3, vXA + t, (hp % 5) * 4096), "x%d" % hp)

    def stats(x, first):
        def c(r_):
            return "0" if first else "v[%d:%d]" % (r_, r_ + 3)
        a("v_mfma_f32_4x4x4_16b_bf16 v[%d:%d], v[%d:%d], v[%d:%d], %s" % (XQ, XQ + 3, x, x + 1, x, x + 1, c(XQ)))
        a("v_mfma_f32_4x4x4_16b_bf16 v[%d:%d], v[%d:%d], v[%d:%d], %s" % (XQ2, XQ2 + 3, x + 2, x + 3, x + 2, x + 3, c(XQ2)))
        a("v_mfma_f32_16x16x32_bf16 v[%d:%d], v[%d:%d], v[%d:%d], %s" % (XS, XS + 3, SEL, SEL + 3, x, x + 3, c(XS)))

    def vmwait(need):
        last = max(seq.index(n) for n in need)
        a("s_waitcnt vmcnt(%d)" % (2 * (len(seq) - 1 - last)))

    vmwait(["x0", "b0"])
    a("s_barrier")
    stamp(a, 2)
    for t in range(4):
        xread(0, t)
    for j in range(3):
        frag_reads(q, 0, j)
    for it in plan[-1]:
        for t in dma_list(it):
            a(t)
        seq.append(it)
    lp = 0
    for h in range(10):
        i, hh = h >> 1, h & 1
        need = []
        if h < 9:
            need.append("x%d" % (h + 1))
        if hh == 1:
            need.append("b%d" % (i + 1) if i < 4 else "u0")
        q.wait("x%d" % h)
        vmwait(need)
        a("s_barrier")
        if h in (2, 4, 6, 8):
            stamp(a, 2 + i)
        dl = []
        for it in plan[h]:
            dl.append(dma_list(it))
            seq.append(it)
        if h == 9:
            stats(X0 + 16 * h, False)
            stats(X0 + 16 * h + 8, False)
        for t in range(4):
            j = 4 * hh + t
            x = X0 + 32 * i + 4 * j
            q.wait("f%d" % j)
            mfma(a, i, j)
            if h == 9 and t == 2:
                q.issue("ds_write_b32 v%d, v%d" % (vCsW, CSA), "csw")
                a("v_add_u32 v%d, s%d, v%d" % (vCsW, sDelta, vCsW))
            jn = j + 3
            if jn < 8:
                frag_reads(q, i, jn)
            else:
                frag_reads(q, (i + 1) % 5, jn - 8)
            if i == 4 and 1 <= j <= 4:
                tt = (j + 3) & 3
                a("v_add_u32 v%d, s%d, v%d" % (vA + tt, sDelta, vA + tt))
            if h < 9 and t < 2:
                xread(h + 1, 2 * t)
                xread(h + 1, 2 * t + 1)
            n, half = t >> 1, t & 1
            if len(dl) == 1:
                n, half = 0, (0 if t == 0 else 1 if t == 2 else None)
            if half == 0:
                a(dl[n][0])
                a(dl[n][1])
            elif half == 1:
                a(dl[n][2])
                a(dl[n][3])
            for tx in late[lp:lp + nlate[4 * h + t]]:
                a(tx)
            lp += nlate[4 * h + t]
            if t == 0:
                cs_mfma(a, i, j)
            if h < 9 and (t & 1) == 0:
                stats(x, h == 0 and t == 0)
            if h == 9 and t == 0:
                a("v_and_b32 v1, 3, v0")
                for tt in range(4):
                    a("v_add_f32 v%d, v%d, v%d" % (XQ + tt, XQ + tt, XQ2 + tt))
                for tt in range(1, 4):
                    a("v_cmp_eq_u32 vcc, %d, v1" % tt)
                    a("v_cndmask_b32 v%d, v%d, v%d, vcc" % (XQ, XQ, XQ + tt))
                a("v_mov_b32 v%d, v%d" % (XQ + 1, XS))
                a("s_lshl_b32 s%d, s%d, 9" % (sT0, sW))
                a("s_add_u32 s%d, s%d, %d" % (sT0, sT0, CH + 3 * 4096))
                a("v_lshlrev_b32 v1, 3, v0")
                a("v_add_u32 v1, s%d, v1" % sT0)
                q.issue("ds_write_b64 v1, v[%d:%d]" % (XQ, XQ + 1), "stw")
                a("v_xor_b32 v1, 0x800, v1")
            if h == 9 and t == 1:
                q.wait("stw")
                a("s_barrier")
                q.issue("ds_read_b64 v[%d:%d], v1" % (XQ + 2, XQ + 3), "str")
    assert lp == len(late)
    q.wait("str")
    assert q.q == INQ2[2:], q.q
    sq, sm, t0, t1 = XQ, XQ + 1, XQ + 2, XQ + 3
    a("v_add_f32 v%d, v%d, v%d" % (sq, sq, t0))
    a("v_add_f32 v%d, v%d, v%d" % (sm, sm, t1))
    a("v_mov_b32 v%d, v%d" % (t0, sq))
    a("v_mov_b32 v%d, v%d" % (t1, sm))
    a("v_permlane32_swap_b32 v%d, v%d" % (sq, t0))
    a("v_permlane32_swap_b32 v%d, v%d" % (sm, t1))
    a("v_add_f32 v%d, v%d, v%d" % (sq, sq, t0))
    a("v_add_f32 v%d, v%d, v%d" % (sm, sm, t1))
    a("v_mul_f32 v%d, %s, v%d" % (NEGMU, fhex(-1.0 / D), sm))
    a("v_mul_f32 v%d, %s, v%d" % (sq, fhex(1.0 / D), sq))
    a("v_fma_f32 v%d, -v%d, v%d, v%d" % (sq, NEGMU, NEGMU, sq))
    a("v_max_f32 v%d, 0, v%d" % (sq, sq))
    a("v_add_f32 v%d, %s, v%d" % (sq, fhex(1e-5), sq))
    a("v_rsq_f32 v%d, v%d" % (RSTD, sq))
    a("v_sqrt_f32 v%d, v%d" % (IRSTD, sq))
    a("v_mul_f32 v%d, %s, v%d" % (RL, fhex(LOG2E), RSTD))
    a("v_mul_f32 v%d, %s, v%d" % (K1c, fhex(GC1), RSTD))
    a("v_mul_f32 v%d, v%d, v%d" % (K2c, RSTD, RSTD))
    a("v_mul_f32 v%d, v%d, v%d" % (K2c, K2c, RSTD))
    a("v_mul_f32 v%d, %s, v%d" % (K2c, fhex(GC2), K2c))
    a("s_mov_b32 s%d, 1" % sLine)
    a("s_load_dword s%d, s[60:61], 0" % sZok)
    stamp(a, 7)
    a("s_cmp_eq_u32 s%d, 1" % sOne)
    a("s_cbranch_scc1 K1_tail")
    a("s_sub_u32 s%d, s%d, s%d" % (sWb, sWb, sDelta))
    for t in dma_unit(0) + dma_unit(1):
        a(t)
    srd(a, sX, 58, S * S * 2)
    a("s_mul_i32 s%d, s%d, 14" % (sXoff, sRb))
    a("s_add_u32 s%d, s%d, s%d" % (sXoff, sXoff, sCg))
    a("s_lshl_b32 s%d, s%d, 3" % (sXoff, sXoff))
    a("s_add_u32 s%d, s%d, s%d" % (sXoff, sXoff, sW))
    a("s_mul_i32 s%d, s%d, %d" % (sXoff, sXoff, PFL * 128))
    a("s_add_u32 s%d, s%d, %d" % (sXoff, sXoff, (65536 - PFREST) * 128))
    a("v_min_u32 v%d, %d, v0" % (vPf, max(PFL - 1, 0)))
    a("v_lshlrev_b32 v%d, 7, v%d" % (vPf, vPf))
    body(a, "G", 1)
    a("s_cmp_eq_u32 s%d, 0" % sType)
    a("s_cbranch_scc1 K1_bodyP")
    body(a, "G", 2)
    a("K1_bodyL:")
    body(a, "P", 3)
    a("K1_tail:")
    tail_common(a)
    a("s_cmp_eq_u32 s%d, 1" % sOne)
    a("s_cbranch_scc1 K1_tailG")
    tail(a, "P")
    import p2
    p2.gen_p2(a)
    a("K1_tailG:")
    tail(a, "G")
    a("K1_bodyP:")
    body(a, "P", 2)
    a("s_branch K1_bodyL")
    flush_rare(a)

    a("K1_side:")
    a("s_waitcnt lgkmcnt(0)")
    srd(a, sWS, 62, WS_END)
    srd(a, sDBG, 60, 256)
    for t in range(4):
        a("v_mov_b32 v%d, 0" % (8 + t))
    a("v_mov_b32 v12, 1")
    a("v_lshlrev_b32 v6, 4, v0")
    a("s_lshl_b32 s%d, s%d, 3" % (sT0, sRb))
    a("s_add_u32 s%d, s%d, s%d" % (sT0, sT0, sW))
    a("s_lshl_b32 s%d, s%d, 11" % (sT0, sT0))
    a("s_add_u32 s%d, s%d, 0x%x" % (sT0, sT0, WS_ST2))
    a("buffer_store_dwordx4 v[8:11], v6, s[%d:%d], s%d offen sc1" % (sWS, sWS + 3, sT0))
    a("buffer_store_dwordx4 v[8:11], v6, s[%d:%d], s%d offen offset:1024 sc1" % (sWS, sWS + 3, sT0))
    a("s_mul_i32 s%d, s%d, 6" % (sT0, sRb))
    a("s_add_u32 s%d, s%d, s%d" % (sT0, sT0, sW))
    a("s_lshl_b32 s%d, s%d, 10" % (sT0, sT0))
    a("s_add_u32 s%d, s%d, 0x%x" % (sT0, sT0, WS_KV))
    a("s_lshl_b32 s%d, s%d, 10" % (sT1, sRb))
    a("s_add_u32 s%d, s%d, 0x%x" % (sT1, sT1, WS_FL))
    a("s_cmp_ge_u32 s%d, 6" % sW)
    a("s_cselect_b32 s%d, s%d, s%d" % (sT0, sT1, sT0))
    a("buffer_store_dwordx4 v[8:11], v6, s[%d:%d], s%d offen sc1" % (sWS, sWS + 3, sT0))
    a("s_waitcnt vmcnt(0)")
    a("s_barrier")
    a("s_cmp_lg_u32 s%d, 6" % sW)
    a("s_cbranch_scc1 K1_nofl2")
    a("s_mov_b64 exec, 1")
    a("buffer_atomic_add v12, off, s[%d:%d], 0 sc1" % (sDBG, sDBG + 3))
    a("s_mov_b64 exec, -1")
    stamp(a, 1)
    a("K1_nofl2:")
    a("s_barrier")
    stamp(a, 12)
    pf_wsp(a, 0, N15)
    a("s_mov_b32 s71, 0")
    a("s_mov_b32 s70, 0")
    a("s_mov_b32 s69, 1")
    import p2
    p2.p2_loads(a)
    a("s_waitcnt vmcnt(0)")
    stamp(a, 13)
    stamp(a, 14)
    stamp_dump(a, 15, sWS, sW, WS_STAMP)
    a("s_branch P2_entry")
    a(end + ":")
    a("s_endpgm")
```

```python
import os
from asmlib import *
from common import *

LOG2E = 1.4426950408889634
GC1 = -2.0 * 0.7978845608028654 * LOG2E
GC2 = GC1 * 0.044715

REG = 81920
CH = 20480
K1_LDS = 2 * REG

X0, M0, E0, FR, HOLD, PK, T0 = 96, 80, 64, 48, 40, 36, 28
SEL, CSA = 24, 20
NEGMU, RSTD, RL, K1c, K2c, IRSTD = 19, 18, 17, 16, 15, 14
ZSUM, ZSQ = 12, 13
vA = 8
vW1a, vW1b, vSt0, vSt1, vCsR, vCsW = 7, 6, 5, 4, 3, 2
vXA, vXd0, vXd1, vW0a, vW0b = 40, 44, 45, 46, 47
XS, XQ, XQ2 = 36, 28, 32
sX, sW0, sW1, sWS, sDBG = 4, 8, 12, 16, 20
sRb, sCg, sW, sR, sC = 24, 25, 26, 27, 28
sXoff, sW0off, sW1off, sUstep, sUoff = 29, 30, 31, 32, 33
sWu, sOut2, sZok, sL0 = 52, 3, 56, 57
sGl = 70
sFl = 65
vUa, vUb = 74, 75
sDelta, sWb, sT0, sXb, sReady = 34, 35, 36, 37, 38
sOnes, sA, sB, sCc, sOut, sLine, sIsZ2, sType, sOne = 39, 40, 41, 42, 43, 44, 45, 46, 47
sOut1, sL1, sZ2w, sT1, sT2, sOut0, sZ2keep, sLg = 64, 65, 66, 67, 68, 69, 70, 71

STAMP = os.environ.get("STAMP", "0") in ("1", "2")
STOP = "s_memrealtime" if os.environ.get("STAMP") == "2" else "s_memtime"
WS_STAMP = 0x1800000
EXP = os.environ.get("EXP", "").split(",")


LITE = "lite" in EXP
PHASE = [1]
MAP1 = {0: 0, 7: 1, 10: 2, 13: 3}
MAP2 = {1: 4, 2: 5, 3: 6, 4: 7, 6: 8, 8: 9, 10: 10, 11: 11, 12: 12, 14: 14}


def stamp(a, i):
    if STAMP and LITE:
        m = MAP1 if PHASE[0] == 1 else ({14: 14} if "steps" in EXP else MAP2)
        if i in m:
            a("%s s[%d:%d]" % (STOP, 72 + 2 * m[i], 73 + 2 * m[i]))
        return
    if STAMP:
        a("%s s[%d:%d]" % (STOP, 72 + 2 * i, 73 + 2 * i))


def stamp_dump(a, n, srdn, wreg, base):
    if not STAMP or (LITE and base == WS_STAMP):
        return
    if LITE:
        n = 15
    if "dbgt" in EXP:
        lab = a.label("Ldb")
        sel = [0, 2, 7, 8, 9, 10, 13] if base == WS_STAMP else [0, 2, 4, 8, 11, 12, 14]
        first = 1 if base == WS_STAMP else 8
        a("s_load_dwordx2 s[%d:%d], s[0:1], %d" % (srdn, srdn + 1, KA_DBG))
        a("s_waitcnt lgkmcnt(0)")
        a("s_and_b32 s%d, s%d, 0xffff" % (srdn + 1, srdn + 1))
        a("s_mov_b32 s%d, 256" % (srdn + 2))
        a("s_mov_b32 s%d, 0x20000" % (srdn + 3))
        a("s_cmp_lg_u32 s%d, 0" % wreg)
        a("s_cbranch_scc1 %s" % lab)
        a("s_mov_b64 exec, 1")
        if base != WS_STAMP:
            a("v_mov_b32 v2, s100")
            a("buffer_atomic_umax v2, off, s[%d:%d], 0 offset:60 sc1" % (srdn, srdn + 3))
        a("s_cmp_lg_u32 s2, 37")
        a("s_cbranch_scc1 %s" % lab)
        for k, i in enumerate(sel):
            a("v_mov_b32 v2, s%d" % (72 + 2 * i))
            a("buffer_store_dword v2, off, s[%d:%d], 0 offset:%d sc1" % (srdn, srdn + 3, 4 * (first + k)))
        a(lab + ":")
        a("s_mov_b64 exec, -1")
        return
    a("s_waitcnt lgkmcnt(0)")
    a("s_lshl_b32 s%d, s2, 3" % sT0)
    a("s_add_u32 s%d, s%d, s%d" % (sT0, sT0, wreg))
    a("s_lshl_b32 s%d, s%d, 6" % (sT0, sT0))
    a("s_add_u32 s%d, s%d, 0x%x" % (sT0, sT0, base))
    a("s_mov_b32 s%d, 0x4000000" % (srdn + 2))
    a("v_mov_b32 v1, 0")
    a("s_mov_b64 exec, 1")
    for i in range(n):
        a("v_mov_b32 v2, s%d" % (72 + 2 * i))
        a("buffer_store_dword v2, v1, s[%d:%d], s%d offen offset:%d" % (srdn, srdn + 3, sT0, 4 * i))
    a("s_mov_b64 exec, -1")


class LdsQ:
    def __init__(self, a, init=()):
        self.a = a
        self.q = list(init)

    def issue(self, text, tag):
        self.a(text)
        self.q.append(tag)

    def wait(self, *tags):
        idx = [i for i, t in enumerate(self.q) if t in tags]
        if not idx:
            return
        last = max(idx)
        n = len(self.q) - 1 - last
        assert n <= 15
        self.a("s_waitcnt lgkmcnt(%d)" % n)
        self.q = self.q[last + 1:]


def srd(a, d, plo, nbytes):
    a("s_mov_b32 s%d, s%d" % (d, plo))
    a("s_and_b32 s%d, s%d, 0xffff" % (d + 1, plo + 1))
    a("s_mov_b32 s%d, 0x%x" % (d + 2, nbytes))
    a("s_mov_b32 s%d, 0x20000" % (d + 3))


def csel(a, d, t, f):
    a("s_mov_b32 s%d, %s" % (d, f))
    a("s_cselect_b32 s%d, %s, s%d" % (d, t, d))


def spread(n_items, n_slots):
    base, rem = divmod(n_items, n_slots)
    return [base + (1 if i < rem else 0) for i in range(n_slots)]


def frag_reads(q, pos, j):
    d = FR + 4 * (j & 3)
    off = pos * 4096 + (j >> 2) * 2048
    q.issue("ds_read_b64_tr_b16 v[%d:%d], v%d offset:%d" % (d, d + 1, vA + (j & 3), off), "f%d" % j)
    q.issue("ds_read_b64_tr_b16 v[%d:%d], v%d offset:%d" % (d + 2, d + 3, vA + (j & 3), off + 512), "f%d" % j)


def skew(seqs, d):
    if "noskew" in EXP:
        d = 0
    items = sorted((i + d * n, n, op) for n, s in enumerate(seqs) for i, op in enumerate(s))
    return [op for _, _, op in items]


def gelu_ops(regs, outs):
    seqs = []
    for e, (t, p) in zip(regs, outs):
        seqs.append([
            "v_mul_f32 v%d, v%d, v%d" % (t, e, e),
            "v_fma_f32 v%d, v%d, v%d, v%d" % (p, t, K2c, K1c),
            "v_mul_f32 v%d, v%d, v%d" % (p, p, e),
            "v_exp_f32 v%d, v%d" % (p, p),
            "v_fma_f32 v%d, v%d, v%d, v%d" % (p, p, IRSTD, IRSTD),
            "v_rcp_f32 v%d, v%d" % (p, p),
            "v_mul_f32 v%d, v%d, v%d" % (t, e, p),
        ])
    return skew(seqs, 2)


def phi_ops(regs, outs):
    seqs = []
    for e, (t, p) in zip(regs, outs):
        seqs.append([
            "v_mul_f32 v%d, v%d, v%d" % (p, e, RL),
            "v_exp_f32 v%d, v%d clamp" % (p, p),
            "v_fma_f32 v%d, v%d, v%d, s%d" % (t, e, RSTD, sCc),
            "v_max_f32 v%d, s%d, v%d" % (t, sA, t),
            "v_fma_f32 v%d, v%d, s%d, v%d" % (t, p, sB, t),
        ])
    return skew(seqs, 1)


def epi_quad(typ, qd, hold=False):
    regs = [E0 + 4 * qd + i for i in range(4)]
    outs = [(T0 + 2 * i, T0 + 2 * i + 1) for i in range(4)]
    ops = gelu_ops(regs, outs) if typ == "G" else phi_ops(regs, outs)
    o = HOLD + 2 * qd if hold else PK + 2 * (qd & 1)
    ops.append("v_cvt_pk_bf16_f32 v%d, v%d, v%d" % (o, outs[0][0], outs[1][0]))
    ops.append("v_cvt_pk_bf16_f32 v%d, v%d, v%d" % (o + 1, outs[2][0], outs[3][0]))
    return ops


RARE = []


def rare(a, cond_branch, fn):
    lr, lb = a.label("Lrare"), a.label("Lback")
    a("%s %s" % (cond_branch, lr))
    RARE.append((lr, lb, fn))
    return lb


def flush_rare(a):
    for lr, lb, fn in RARE:
        a(lr + ":")
        fn(lb)
        a("s_branch %s" % lb)
    del RARE[:]


def epi_out(a, typ, half, z2=False):
    vst = vSt0 if half == 0 else vSt1
    src = HOLD + 4 * half if z2 else PK
    a("buffer_store_dwordx4 v[%d:%d], v%d, s[%d:%d], s%d offen sc1" % (src, src + 3, vst, sWS, sWS + 3, sOut))
    if not z2:
        return
    if half == 1:
        a("s_lshl_b32 s%d, s%d, 9" % (sT0, sW))
        a("s_add_u32 s%d, s%d, %d" % (sT0, sT0, REG + CH + 2 * 4096))
        a("v_lshlrev_b32 v%d, 3, v0" % (T0 + 2))
        a("v_add_u32 v%d, s%d, v%d" % (T0 + 2, sT0, T0 + 2))
        a("v_mul_f32 v%d, s%d, v%d" % (ZSUM, sIsZ2, ZSUM))
        a("v_mul_f32 v%d, s%d, v%d" % (ZSQ, sIsZ2, ZSQ))
        a("v_mov_b32 v%d, v%d" % (T0, ZSUM))
        a("v_mov_b32 v%d, v%d" % (T0 + 1, ZSQ))
        a("v_permlane32_swap_b32 v%d, v%d" % (ZSUM, T0))
        a("v_permlane32_swap_b32 v%d, v%d" % (ZSQ, T0 + 1))
        a("v_add_f32 v%d, v%d, v%d" % (ZSUM, ZSUM, T0))
        a("v_add_f32 v%d, v%d, v%d" % (ZSQ, ZSQ, T0 + 1))


def dma_unit(pos):
    return [
        "s_add_u32 m0, s%d, %d" % (sWb, pos * 4096),
        "buffer_load_dwordx4 v%d, s[%d:%d], s%d offen lds" % (vW1a, sW1, sW1 + 3, sW1off),
        "buffer_load_dwordx4 v%d, s[%d:%d], s%d offen offset:1024 lds" % (vW1b, sW1, sW1 + 3, sW1off),
        "s_add_u32 s%d, s%d, %d" % (sW1off, sW1off, (128 - 4 * 128 * 3840) & 0xffffffff if pos == 4 else 128 * 3840),
    ]


def dma_u(pos):
    return [
        "s_add_u32 m0, s%d, %d" % (sWb, pos * 4096),
        "buffer_load_dwordx4 v%d, s[%d:%d], s%d offen lds" % (vUa, sWu, sWu + 3, sUoff),
        "buffer_load_dwordx4 v%d, s[%d:%d], s%d offen offset:1024 lds" % (vUb, sWu, sWu + 3, sUoff),
        "s_add_u32 s%d, s%d, s%d" % (sUoff, sUoff, sUstep),
    ]


def dma_x(hp):
    return [
        "s_add_u32 m0, s%d, %d" % (sXb, (hp % 5) * 4096),
        "buffer_load_dwordx4 v%d, s[%d:%d], s%d offen lds" % (vXd0, sX, sX + 3, sXoff),
        "buffer_load_dwordx4 v%d, s[%d:%d], s%d offen offset:1024 lds" % (vXd1, sX, sX + 3, sXoff),
        "s_add_u32 s%d, s%d, 128" % (sXoff, sXoff),
    ]


def dma_b0(i):
    return [
        "s_add_u32 m0, s%d, %d" % (sWb, i * 4096 - REG),
        "buffer_load_dwordx4 v%d, s[%d:%d], s%d offen lds" % (vW0a, sW0, sW0 + 3, sW0off),
        "buffer_load_dwordx4 v%d, s[%d:%d], s%d offen offset:1024 lds" % (vW0b, sW0, sW0 + 3, sW0off),
        "s_add_u32 s%d, s%d, %d" % (sW0off, sW0off, 128 * 3456),
    ]


def mfma(a, i, j):
    x = X0 + 32 * i + 4 * j
    f = FR + 4 * (j & 3)
    d = E0 if (i == 4 and j == 7) else M0
    c = "0" if (i == 0 and j == 0) else "v[%d:%d]" % (M0, M0 + 15)
    a("v_mfma_f32_32x32x16_bf16 v[%d:%d], v[%d:%d], v[%d:%d], %s" % (d, d + 15, f, f + 3, x, x + 3, c))


def cs_mfma(a, i, j):
    f = FR + 4 * (j & 3)
    c = "0" if (i == 0 and j == 0) else "v[%d:%d]" % (CSA, CSA + 3)
    a("v_mfma_f32_16x16x32_bf16 v[%d:%d], v[%d:%d], v[%d:%d], %s" % (CSA, CSA + 3, SEL, SEL + 3, f, f + 3, c))


def ext_mfma(a, q):
    q.wait("csr")
    a("v_add_f32 v%d, v%d, v%d" % (PK, PK, PK + 1))
    a("v_add_f32 v%d, v%d, v%d" % (PK + 2, PK + 2, PK + 3))
    a("v_add_f32 v%d, v%d, v%d" % (PK, PK, PK + 2))
    a("v_add_u32 v%d, s%d, v%d" % (vCsR, sDelta, vCsR))
    a("v_mfma_f32_32x32x2_f32 v[%d:%d], v%d, v%d, v[%d:%d]" % (E0, E0 + 15, PK, NEGMU, E0, E0 + 15))


ST = X0
ZN = X0 + 16
ZT = X0 + 24
XE = X0 + 48
vPf = 1
OWN = int(os.environ.get("OWN", "16"))
SIDE_END = int(os.environ.get("SIDE_END", "32"))
TPOS = [tuple(int(c) for c in t.split(".")) for t in os.environ.get("TPOS", "1.2,3.3").split(",") if t]
TLN = OWN // max(len(TPOS), 1)
TAT = int(os.environ.get("TAT", "2"))
W1AT = int(os.environ.get("W1AT", "8"))
N15 = int(os.environ.get("N15", "4"))
N14 = int(os.environ.get("N14", "0"))
PFREST = 65536 - 128 * 64 * (N15 + N14)
PFL = -(-PFREST // (1792 * 2))
LRDY = 2 * 4096 + 3584


def zok_check(a, tmp):
    l0, l1 = a.label("Lz0"), a.label("Lz1")
    a(l0 + ":")
    a("s_cmp_eq_u32 s%d, 16" % sZok)
    a("s_cbranch_scc1 %s" % l1)
    a("buffer_load_dword v%d, off, s[%d:%d], 0 sc1" % (tmp, sDBG, sDBG + 3))
    a("s_waitcnt vmcnt(0)")
    a("v_readfirstlane_b32 s%d, v%d" % (sZok, tmp))
    a("s_branch %s" % l0)
    a(l1 + ":")


def stat_lane(v):
    return ["v_and_b32 v%d, 31, v0" % v,
            "v_lshlrev_b32 v%d, 3, v%d" % (v, v),
            "v_lshrrev_b32 v%d, 5, v0" % (v + 1),
            "v_mul_u32_u24 v%d, %d, v%d" % (v + 1, 7 * 256, v + 1),
            "v_add_u32 v%d, v%d, v%d" % (v, v, v + 1)]


def valid_ops(t):
    L = ["v_and_b32 v%d, v%d, v%d" % (t, ST + 1, ST + 3),
         "v_and_b32 v%d, v%d, v%d" % (t + 1, ST + 5, ST + 7),
         "v_and_b32 v%d, v%d, v%d" % (t + 2, ST + 9, ST + 11),
         "v_and_b32 v%d, v%d, v%d" % (t, t, ST + 13),
         "v_and_b32 v%d, v%d, v%d" % (t + 1, t + 1, t + 2),
         "v_and_b32 v%d, v%d, v%d" % (t, t, t + 1),
         "v_cmp_gt_i32 vcc, 0, v%d" % t,
         "s_cmp_eq_u64 vcc, -1"]
    return L


def sum_ops():
    L = []
    for (d, s_) in ((0, 4), (1, 5), (2, 6), (0, 3), (1, 2), (0, 1)):
        L.append("v_add_f32 v%d, v%d, v%d" % (ST + 2 * d, ST + 2 * d, ST + 2 * s_))
        L.append("v_add_f32 v%d, v%d, v%d" % (ST + 2 * d + 1, ST + 2 * d + 1, ST + 2 * s_ + 1))
    return L


def norm_ops():
    L = ["v_mov_b32 v%d, v%d" % (ST + 2, ST),
         "v_mov_b32 v%d, v%d" % (ST + 3, ST + 1),
         "v_lshlrev_b32 v%d, 16, v%d" % (ZT, HOLD),
         "v_and_b32 v%d, 0xffff0000, v%d" % (ZT + 1, HOLD),
         "v_permlane32_swap_b32 v%d, v%d" % (ST, ST + 2),
         "v_permlane32_swap_b32 v%d, v%d" % (ST + 1, ST + 3),
         "v_add_f32 v%d, v%d, v%d" % (ST, ST, ST + 2),
         "v_add_f32 v%d, v%d, v%d" % (ST + 1, ST + 1, ST + 3),
         "v_mul_f32 v%d, %s, v%d" % (ST, fhex(-1.0 / FH), ST),
         "v_mul_f32 v%d, %s, v%d" % (ST + 1, fhex(-1.0 / FH), ST + 1),
         "v_fma_f32 v%d, -v%d, v%d, v%d" % (ST + 1, ST, ST, ST + 1),
         "v_max_f32 v%d, 0, v%d" % (ST + 1, ST + 1),
         "v_add_f32 v%d, %s, v%d" % (ST + 1, fhex(1e-5), ST + 1),
         "v_rsq_f32 v%d, v%d" % (ST + 1, ST + 1),
         "v_lshlrev_b32 v%d, 16, v%d" % (ZT + 2, HOLD + 1),
         "v_and_b32 v%d, 0xffff0000, v%d" % (ZT + 3, HOLD + 1)]
    for t in range(8):
        z = ZT + 2 * (t & 3)
        L.append("v_add_f32 v%d, v%d, v%d" % (z, z, ST))
        L.append("v_add_f32 v%d, v%d, v%d" % (z + 1, z + 1, ST))
        if t + 2 < 8:
            z2 = ZT + 2 * ((t + 2) & 3)
            L.append("v_lshlrev_b32 v%d, 16, v%d" % (z2, HOLD + t + 2))
            L.append("v_and_b32 v%d, 0xffff0000, v%d" % (z2 + 1, HOLD + t + 2))
        L.append("v_mul_f32 v%d, v%d, v%d" % (z, z, ST + 1))
        L.append("v_mul_f32 v%d, v%d, v%d" % (z + 1, z + 1, ST + 1))
        L.append("v_cvt_pk_bf16_f32 v%d, v%d, v%d" % (ZN + t, z, z + 1))
    return L


def zn_stores(a, soff):
    a("buffer_store_dwordx4 v[%d:%d], v%d, s[%d:%d], s%d offen sc1" % (ZN, ZN + 3, vSt0, sWS, sWS + 3, soff))
    a("buffer_store_dwordx4 v[%d:%d], v%d, s[%d:%d], s%d offen sc1" % (ZN + 4, ZN + 7, vSt1, sWS, sWS + 3, soff))


def cz_signal(a):
    a("v_mov_b32 v%d, 1" % ZSUM)
    a("v_lshlrev_b32 v%d, 7, v0" % ZSQ)
    a("s_mov_b64 exec, 0xff")
    a("buffer_atomic_add v%d, v%d, s[%d:%d], s%d offen sc1" % (ZSUM, ZSQ, sWS, sWS + 3, sT2))
    a("s_mov_b64 exec, -1")


INQ2 = ["f0", "f0", "csw", "f1", "f1", "f2", "f2"]


def next_line_ops():
    return [
        "s_mov_b32 s%d, s%d" % (sOut, sOut1),
        "s_mov_b32 s%d, s%d" % (sOut1, sOut2),
        "s_add_u32 s%d, s%d, 4096" % (sOut2, sOut2),
        "s_cmp_ge_u32 s%d, 20\ns_mov_b32 s%d, %s\ns_cselect_b32 s%d, 0xff800000, s%d\ns_cselect_b32 s%d, 0, 1.0\ns_cselect_b32 s%d, 0, %s" % (
            sLg, sA, fhex(1e-6), sA, sA, sB, sCc, fhex(1e-6)),
        "s_add_u32 s%d, s%d, 1" % (sLg, sLg),
    ]


PRE1 = []
PRE_AT = {(0, 1): 0, (0, 4): 2, (0, 7): 4, (2, 0): 1, (2, 2): 3, (2, 4): 5, (2, 6): 6, (3, 0): 7, (3, 2): 8, (3, 4): 9}
if "prelate" in EXP:
    PRE_AT = {(2, 0): 0, (2, 2): 1, (2, 4): 2, (2, 6): 3, (3, 0): 4, (3, 2): 5, (3, 4): 6, (3, 6): 7, (4, 0): 8, (4, 2): 9}
MARK = {}


def vm_since(a, idx, pre=0):
    return pre + sum(1 for t in a.ins[idx:] if t.kind in ("vmem", "vmem_lds"))


def body(a, typ, line, start=None):
    last = line == 3
    q = LdsQ(a, INQ2)
    allp = []
    for qd in range(4):
        allp += epi_quad(typ, qd, hold=(line == 1))
        if line == 1:
            for t in (HOLD + 2 * qd, HOLD + 2 * qd + 1):
                allp.append("v_dot2c_f32_bf16 v%d, s%d, v%d" % (ZSUM, sOnes, t))
                allp.append("v_dot2c_f32_bf16 v%d, v%d, v%d" % (ZSQ, t, t))
        if qd & 1:
            allp.append(("out", qd >> 1))
    if not last:
        if line == 1:
            ecnt = spread(len(PRE1), 6) + [0] + spread(len(allp), 24) + [0] * 9
            allp = PRE1 + allp
        else:
            ecnt = [0] * 6 + spread(len(allp), 33) + [0]
        lfill, p0 = [], 0
        for i in range(5):
            n = sum(ecnt[8 * i:8 * i + 8])
            lfill.append(allp[p0:p0 + n])
            p0 += n
    if last:
        n3 = spread(len(allp), 3)
        lfill = [[], norm_ops(), allp[:n3[0]], allp[n3[0]:n3[0] + n3[1]], allp[n3[0] + n3[1]:]]
        assert ("out", 0) in lfill[3]
    for i in range(5):
        q.wait("csw")
        if not last:
            u = 5 * line + i + 1
            if start is not None and MARK[u] <= start[0]:
                n = sum(1 for t in a.ins[MARK[u]:start[0]] if t.kind in ("vmem", "vmem_lds")) + vm_since(a, start[1])
            else:
                n = vm_since(a, MARK[u])
            a("s_waitcnt vmcnt(%d)" % (10 if "vm10" in EXP else n))
        elif i in (0, 4):
            a("s_waitcnt vmcnt(%d)" % (1 if i == 0 else vm_since(a, MARK["zn"])))
        a("s_barrier")
        SM = {(1, 1): 4, (1, 3): 5, (2, 0): 6, (2, 2): 7, (2, 3): 8, (2, 4): 9, (3, 0): 10, (3, 1): 11, (3, 3): 12, (3, 4): 13}
        if "steps" in EXP and (line, i) in SM:
            a("%s s[%d:%d]" % (STOP, 72 + 2 * SM[(line, i)], 73 + 2 * SM[(line, i)]))
        if ("st2" in EXP and line == 2) or ("st1" in EXP and line == 1):
            stamp(a, 2 + i)
        if "st3" in EXP and last:
            stamp(a, 2 + i)
        du = dma_unit((i + 2) % 5)
        lump = None
        hasdma = line == 1 or (line == 2 and i < 3)
        fill = lfill[i]
        if last:
            nslots = 7 if i == 4 else 8
            cnt = spread(len(fill), nslots) + [0] * (8 - nslots)
        else:
            cnt = ecnt[8 * i:8 * i + 8]
        pos = 0
        for j in range(8):
            q.wait("f%d" % j)
            mfma(a, i, j)
            if i == 0 and j == 0:
                q.issue("ds_read_b128 v[%d:%d], v%d" % (PK, PK + 3, vCsR), "csr")
            if last and i == 2 and j in (1, 2):
                d, off = XE + 4 * (j - 1), 4 * 4096 + (j - 1) * 2048
                q.issue("ds_read_b64_tr_b16 v[%d:%d], v%d offset:%d" % (d, d + 1, vA, off), "xe")
                q.issue("ds_read_b64_tr_b16 v[%d:%d], v%d offset:%d" % (d + 2, d + 3, vA, off + 512), "xe")
            if last and i == 4 and j == 0:
                q.issue("ds_read_b128 v[%d:%d], v%d" % (XE + 8, XE + 11, vCsR), "csr")
            if i == (3 if last else 4) and j == 6:
                q.issue("ds_write_b32 v%d, v%d" % (vCsW, CSA), "csw")
                if line == 1:
                    a("v_subrev_u32 v%d, %d, v%d" % (vCsW, REG, vCsW))
                if line == 2:
                    a("v_add_u32 v%d, %d, v%d" % (vCsW, REG + 3 * CH - 4096, vCsW))
            if last and i == 4 and j == 2:
                import p2
                p2.p2_loads(a)
            jn = j + 3
            if jn < 8:
                frag_reads(q, i, jn)
            elif not (last and i == 4):
                frag_reads(q, (i + 1) % 5, jn - 8)
            if i == 4 and 1 <= j <= 4 and not last:
                t = (j + 3) & 3
                a("v_add_u32 v%d, s%d, v%d" % (vA + t, sDelta, vA + t))
            if i == 0 and j == (3 if line == 1 else 2):
                ext_mfma(a, q)
                if last:
                    a("v_add_u32 v%d, %d, v%d" % (vCsR, 3 * CH - 4096, vCsR))
                a("s_sub_u32 s%d, 0, s%d" % (sDelta, sDelta))
            if last and i == 0:
                if j == 0:
                    for t in stat_lane(T0):
                        a(t)
                    a("s_mul_i32 s%d, s%d, %d" % (sT0, sR, CH))
                    a("s_add_u32 s%d, s%d, 8192" % (sT0, sT0))
                    a("v_add_u32 v%d, s%d, v%d" % (T0, sT0, T0))
                if j <= 3:
                    for t in (2 * j, 2 * j + 1):
                        if t < 7:
                            q.issue("ds_read_b64 v[%d:%d], v%d offset:%d" % (ST + 2 * t, ST + 2 * t + 1, T0, 256 * t), "st")
                if j == 5:
                    q.wait("st")
                    for t in valid_ops(T0 + 2):
                        a(t)
                    a("s_cselect_b32 s%d, 1, 0" % sT0)
                    a("v_mov_b32 v%d, s%d" % (T0 + 2, sT0))
                    a("v_mov_b32 v%d, %d" % (T0 + 3, LRDY))
                    a("s_mov_b64 exec, 1")
                    q.issue("ds_add_u32 v%d, v%d" % (T0 + 3, T0 + 2), "csw")
                    a("s_mov_b64 exec, -1")
                if j >= 6:
                    for t in sum_ops()[6 * (j - 6):6 * (j - 5)]:
                        a(t)
            if last and i == 1:
                if j == 0:
                    q.issue("ds_read_b32 v%d, v%d" % (T0 + 2, T0 + 3), "rdy")
                if j == 4:
                    q.wait("rdy")
                    a("v_readfirstlane_b32 s%d, v%d" % (sT1, T0 + 2))
                    a("s_cmp_eq_u32 s%d, %d" % (sT1, 9 if "fslow" in EXP else 8))
                    a("s_cselect_b32 s%d, 1, 0" % sReady)
                    a("s_cselect_b32 s%d, s%d, 0x40000000" % (sT0, sOut0))
                    a("s_cselect_b32 s%d, s%d, 99" % (sL1, sL1))
            if not last:
                if j == 0 and i == 3 and line == 2:
                    a("s_mov_b32 m0, s%d" % sGl)
                    a("v_lshlrev_b32 v%d, 4, v0" % ZSUM)
                    a("s_and_b32 s%d, s%d, 0xfffff000" % (sT0, sZ2w))
                    a("s_lshl_b32 s%d, s%d, 11" % (sT1, sC))
                    a("s_add_u32 s%d, s%d, s%d" % (sT0, sT0, sT1))
                    a("buffer_load_dwordx4 v%d, s[%d:%d], s%d offen sc1 lds" % (ZSUM, sWS, sWS + 3, sT0))
                if j == 4 and i == 3 and line == 2:
                    a("buffer_load_dwordx4 v%d, s[%d:%d], s%d offen offset:1024 sc1 lds" % (ZSUM, sWS, sWS + 3, sT0))
                if j == 0 and hasdma:
                    a(du[0])
            for t in fill[pos:pos + cnt[j]]:
                if isinstance(t, tuple):
                    epi_out(a, typ, t[1], z2=(line == 1))
                    if line == 1 and t[1] == 1:
                        q.issue("ds_write_b64 v%d, v[%d:%d]" % (T0 + 2, ZSUM, ZSQ), "csw")
                else:
                    a(t)
            pos += cnt[j]
            if last and i == 1 and j == 7:
                zn_stores(a, sT0)
            if line == 2 and i == 4 and j < 4:
                import p2
                for t in p2.pre_setup(vW1b)[4 * j:4 * j + 4]:
                    a(t)
            import p2
            if last and PRE_AT.get((i, j), 99) < p2.NPRE:
                a(p2.pre_dma(PRE_AT[(i, j)], vW1b, sX))
            if last and i == 1 and j == 7:
                MARK["zn"] = len(a.ins)
            if last and j == 7 and (line, i) in TPOS:
                a("buffer_load_dword v%d, v%d, s[%d:%d], s%d offen" % (X0 + 40, vPf, sX, sX + 3, sXoff))
            if hasdma:
                if j == 0:
                    if (line, i) in TPOS:
                        a("buffer_load_dword v%d, s[%d:%d], s%d offen lds" % (vPf, sX, sX + 3, sXoff))
                        a("s_add_u32 s%d, s%d, %d" % (sXoff, sXoff, TLN * 128))
                    a(du[1])
                if j == 4:
                    a(du[2])
                    MARK[5 * line + i + 7] = len(a.ins)
                    a(du[3])
                    if i == 2:
                        a("s_sub_u32 s%d, s%d, s%d" % (sWb, sWb, sDelta))
            if lump and j == 6:
                lump()
            if (j & 3) == 0 and not (last and i == 4):
                cs_mfma(a, i, j)
            if last and (i, j) in ((2, 6), (3, 2)):
                q.wait("xe")
                f = XE + (0 if i == 2 else 4)
                a("v_mfma_f32_16x16x32_bf16 v[%d:%d], v[%d:%d], v[%d:%d], v[%d:%d]" % (CSA, CSA + 3, SEL, SEL + 3, f, f + 3, CSA, CSA + 3))
            if last and i == 4 and j == 3:
                c = XE + 8
                q.wait("csr")
                a("v_add_f32 v%d, v%d, v%d" % (c, c, c + 1))
                a("v_add_f32 v%d, v%d, v%d" % (c + 2, c + 2, c + 3))
                a("v_add_f32 v%d, v%d, v%d" % (c, c, c + 2))
                a("v_mfma_f32_32x32x2_f32 v[%d:%d], v%d, v%d, v[%d:%d]" % (M0, M0 + 15, c, NEGMU, M0, M0 + 15))
            if line == 1 and i == 4:
                if j == 0:
                    a("v_xor_b32 v%d, 0x800, v%d" % (T0 + 2, T0 + 2))
                    q.issue("ds_read_b64 v[%d:%d], v%d" % (T0 + 4, T0 + 5, T0 + 2), "zp")
                    a("v_lshlrev_b32 v%d, 3, v0" % T0)
                if j == 2:
                    a("s_waitcnt lgkmcnt(0)")
                    q.q = []
                    a("s_cmp_lg_u32 s%d, 16" % sZok)
                    a(rare(a, "s_cbranch_scc1", lambda lb: zok_check(a, T0 + 6)) + ":")
                    a("v_add_f32 v%d, v%d, v%d" % (ZSUM, ZSUM, T0 + 4))
                    a("v_add_f32 v%d, v%d, v%d" % (ZSQ, ZSQ, T0 + 5))
                    a("v_or_b32 v%d, 0x80000000, v%d" % (ZSQ, ZSQ))
                    a("s_mov_b32 exec_hi, 0")
                    a("buffer_store_dwordx2 v[%d:%d], v%d, s[%d:%d], s%d offen sc1" % (ZSUM, ZSQ, T0, sWS, sWS + 3, sL0))
                    a("s_mov_b64 exec, -1")
            if j == 0 and i == 4 and last:
                a("s_cmp_eq_u32 s%d, 0" % sReady)
                a(rare(a, "s_cbranch_scc1", lambda lb: z2_fetch(a)) + ":")
            if j == 1 and i == 4 and last:
                lsk = a.label("Lns")
                a("s_cmp_lg_u32 s%d, 2" % sL1)
                a("s_cbranch_scc1 %s" % lsk)
                cz_signal(a)
                a(lsk + ":")
            if i == 4 and j == 7:
                for t in next_line_ops():
                    a(t)
        assert pos == len(fill)
    assert q.q == ([] if last else INQ2), q.q
    if STAMP and not LITE:
        a("s_mov_b32 s88, s90")
        a("s_mov_b32 s90, s92")
    stamp(a, 10)


def z2_fetch(a):
    for t in stat_lane(ZT + 8):
        a(t)
    a("s_and_b32 s%d, s%d, 0xfffff000" % (sT0, sZ2w))
    for t in range(7):
        a("buffer_load_dwordx2 v[%d:%d], v%d, s[%d:%d], s%d offen offset:%d sc1" % (
            ST + 2 * t, ST + 2 * t + 1, ZT + 8, sWS, sWS + 3, sT0, 256 * t))


def z2_slow(a, lb):
    lp, lo = a.label("Lpoll"), a.label("Lok")
    a("s_waitcnt vmcnt(1)")
    a(lp + ":")
    for t in valid_ops(ZT):
        a(t)
    a("s_cbranch_scc1 %s" % lo)
    z2_fetch(a)
    a("s_waitcnt vmcnt(0)")
    a("s_branch %s" % lp)
    a(lo + ":")
    for t in sum_ops() + norm_ops():
        a(t)
    zn_stores(a, sOut0)


def tail_regs(a):
    a("s_add_u32 s71, s%d, 1024" % sT2)
    a("s_mov_b32 s70, %s" % ("0" if "fzok" in EXP else "s%d" % sZok))
    a("s_mov_b32 s69, s%d" % sReady)


def tail_one(a):
    q = LdsQ(a)
    a("s_waitcnt lgkmcnt(0)")
    a("s_barrier")
    q.issue("ds_read_b128 v[%d:%d], v%d" % (PK, PK + 3, vCsR), "csr")
    ext_mfma(a, q)
    tail_regs(a)
    a("s_nop 3")


def own_row(a, d):
    a("s_bfe_u32 s%d, s2, 0x20001" % d)
    a("s_lshl_b32 s%d, s%d, 3" % (d, d))
    a("s_lshr_b32 s%d, s2, 5" % sT0)
    a("s_add_u32 s%d, s%d, s%d" % (d, d, sT0))
    a("s_lshl_b32 s%d, s%d, 1" % (d, d))
    a("s_and_b32 s%d, s2, 1" % sT0)
    a("s_add_u32 s%d, s%d, s%d" % (d, d, sT0))
    a("s_lshl_b32 s%d, s%d, 2" % (d, d))
    a("s_bfe_u32 s%d, s2, 0x20003" % sT0)
    a("s_add_u32 s%d, s%d, s%d" % (d, d, sT0))
    a("s_lshl_b32 s%d, s%d, 3" % (d, d))
    a("s_add_u32 s%d, s%d, s%d" % (d, d, sW))
    a("s_lshl_b32 s%d, s%d, 12" % (d, d))


def pf_own(a):
    if OWN == 0:
        return
    srd(a, sDBG, 58, S * S * 2)
    own_row(a, sXoff)
    a("v_min_u32 v99, %d, v0" % (OWN - 1))
    a("v_lshlrev_b32 v99, 7, v99")
    a("buffer_load_dword v98, v99, s[%d:%d], s%d offen" % (sDBG, sDBG + 3, sXoff))


def pf_wsp(a):
    srd(a, sDBG, 58, S * S * 2)
    a("s_lshl_b32 s%d, s%d, 3" % (sT0, sRb))
    a("s_add_u32 s%d, s%d, s%d" % (sT0, sT0, sW))
    a("s_lshl_b32 s%d, s%d, 16" % (sT0, sT0))
    a("s_add_u32 s%d, s%d, 32768" % (sT2, sT0))
    a("v_and_b32 v97, 7, v0")
    a("v_lshlrev_b32 v97, 7, v97")
    a("v_lshrrev_b32 v96, 3, v0")
    a("v_lshl_add_u32 v97, v96, 12, v97")
    n = 0
    for g in range(OWN, SIDE_END, 8):
        for so in (sT0, sT2):
            a("buffer_load_dword v%d, v97, s[%d:%d], s%d offen offset:%d" % (100 + n, sDBG, sDBG + 3, so, g * 128))
            n += 1


def retile(a):
    a("s_lshl_b32 s%d, s%d, 1" % (sRb, sRb))
    a("s_and_b32 s%d, s%d, 1" % (sT0, sCg))
    a("s_add_u32 s%d, s%d, s%d" % (sRb, sRb, sT0))
    a("s_waitcnt lgkmcnt(0)")
    srd(a, sW0, 46, FH * D * 2)
    a("s_mov_b32 s%d, -20" % sT1)
    a("s_cmp_lt_u32 s%d, 20" % sRb)
    a("s_cselect_b32 s%d, s44, s46" % sW1)
    a("s_cselect_b32 s%d, s45, s47" % (sW1 + 1))
    csel(a, sW1 + 2, hex(D * D * 2), hex(FH * D * 2))
    a("s_cselect_b32 s%d, 0, s%d" % (sT1, sT1))
    a("s_and_b32 s%d, s%d, 0xffff" % (sW1 + 1, sW1 + 1))
    a("s_mov_b32 s%d, 0x20000" % (sW1 + 3))
    a("s_mul_i32 s%d, s%d, 160" % (sT0, sW))
    for t in range(5):
        a("v_add_u32 v120, %d, v0" % (64 * t))
        a("v_mul_u32_u24 v121, 205, v120")
        a("v_lshrrev_b32 v121, 11, v121")
        a("v_mul_u32_u24 v121, %d, v121" % (1280 - 160))
        a("v_lshl_add_u32 v121, v120, 4, v121")
        a("v_add_u32 v%d, s%d, v121" % (124 + t, sT0))
    a("s_add_u32 s%d, s%d, s%d" % (sT1, sRb, sT1))
    a("s_mul_i32 s%d, s%d, %d" % (sW1off, sT1, 32 * 1280))
    a("s_add_u32 s%d, s%d, 12" % (sT1, sRb))
    a("s_mul_i32 s%d, s%d, %d" % (sW0off, sT1, 32 * 1280))
    for n, (sd, so) in enumerate(((sW1, sW1off), (sW0, sW0off))):
        for t in range(5):
            d = 132 + 20 * n + 4 * t
            a("buffer_load_dwordx4 v[%d:%d], v%d, s[%d:%d], s%d offen" % (d, d + 3, 124 + t, sd, sd + 3, so))
    a("v_lshlrev_b32 v122, 4, v0")
    a("s_mul_i32 s%d, s%d, 40" % (sT0, sRb))
    a("s_mul_i32 s%d, s%d, 5" % (sT1, sW))
    a("s_add_u32 s%d, s%d, s%d" % (sT0, sT0, sT1))
    a("s_lshl_b32 s%d, s%d, 10" % (sT0, sT0))
    a("s_add_u32 s%d, s%d, 0x%x" % (sT2, sT0, WS_B3))
    for n in range(2):
        if n == 1:
            a("s_cmp_ge_u32 s%d, 15" % sRb)
            a("s_cbranch_scc1 K1_rtd")
        a("s_waitcnt vmcnt(5)")
        for t in range(5):
            d = 132 + 20 * n + 4 * t
            a("s_add_u32 s%d, s%d, %d" % (sT1, sT2, (n * 32 * 40 + t) * 1024))
            a("buffer_store_dwordx4 v[%d:%d], v122, s[%d:%d], s%d offen sc1" % (d, d + 3, sWS, sWS + 3, sT1))
    a("K1_rtd:")


def tail(a, typ):
    import p2
    if typ == "P":
        p2.p2_early(a)
    else:
        a("s_nop 10")
    for qd in range(4):
        for t in epi_quad(typ, qd):
            a(t)
        if qd == (1 if p2.NPST == 2 else 3) and typ == "P" and p2.NPST:
            p2.p2_poll(a)
        if qd & 1:
            epi_out(a, typ, qd >> 1)
    if typ == "G":
        a("s_branch P2_late")
        return
    if p2.NPST == 0:
        p2.p2_poll(a)
    stamp(a, 13)
    stamp(a, 14)
    stamp_dump(a, 15, sWS, sW, WS_STAMP)


def gen_k1(a, label):
    a(".p2align 8")
    a(label + ":")
    end = "K1_end"
    a("s_cmp_ge_u32 s2, 256")
    a("s_cbranch_scc1 %s" % end)
    stamp(a, 0)
    a("s_load_dwordx4 s[48:51], s[0:1], %d" % KA_X)
    a("s_load_dwordx2 s[54:55], s[0:1], %d" % KA_WIN)
    a("s_load_dwordx2 s[58:59], s[0:1], %d" % KA_WSP)
    a("s_load_dwordx4 s[60:63], s[0:1], %d" % KA_DBG)
    a("v_lshrrev_b32 v1, 6, v0")
    a("v_and_b32 v0, 63, v0")
    a("v_readfirstlane_b32 s%d, v1" % sW)
    a("s_and_b32 s%d, s2, 1" % sRb)
    a("s_lshl_b32 s%d, s%d, 3" % (sRb, sRb))
    a("s_lshr_b32 s%d, s2, 5" % sT0)
    a("s_add_u32 s%d, s%d, s%d" % (sRb, sRb, sT0))
    a("s_bfe_u32 s%d, s2, 0x20001" % sT1)
    a("s_bfe_u32 s%d, s2, 0x20003" % sT0)
    a("s_mul_i32 s%d, s%d, 3" % (sCg, sT1))
    a("s_add_u32 s%d, s%d, s%d" % (sCg, sCg, sT0))
    if "bal" in EXP:
        a("s_add_u32 s%d, s%d, s%d" % (sT1, sT1, sRb))
        a("s_and_b32 s%d, s%d, 3" % (sT1, sT1))
    a("s_add_u32 s%d, s%d, 12" % (sT1, sT1))
    a("s_cmp_eq_u32 s%d, 3" % sT0)
    a("s_cselect_b32 s%d, s%d, s%d" % (sCg, sT1, sCg))
    a("s_and_b32 s%d, s%d, 3" % (sR, sW))
    a("s_lshr_b32 s%d, s%d, 2" % (sC, sW))
    a("s_cmp_eq_u32 s%d, 15" % sCg)
    a("s_cbranch_scc1 K1_side")
    a("v_lshrrev_b32 v3, 3, v0")
    a("s_lshl_b32 s%d, s%d, 4" % (sT0, sW))
    a("v_add_u32 v3, s%d, v3" % sT0)
    a("v_lshrrev_b32 v1, 4, v0")
    a("v_and_b32 v2, 7, v0")
    a("v_xor_b32 v4, v1, v2")
    a("v_mul_u32_u24 v5, 1280, v3")
    a("v_lshl_add_u32 v%d, v4, 4, v5" % vXd0)
    a("v_xor_b32 v4, 4, v4")
    a("v_lshl_add_u32 v%d, v4, 4, v5" % vXd1)
    a("v_add_u32 v%d, %d, v%d" % (vXd1, 8 * 1280 - 1024, vXd1))
    a("v_and_b32 v1, 1, v1")
    a("v_lshlrev_b32 v1, 2, v1")
    a("v_xor_b32 v2, v1, v2")
    a("v_lshlrev_b32 v2, 4, v2")
    a("v_mul_u32_u24 v%d, 3456, v3" % vW0a)
    a("v_add_u32 v%d, v%d, v2" % (vW0a, vW0a))
    a("v_add_u32 v%d, %d, v%d" % (vW0b, 8 * 3456 - 1024, vW0a))
    a("s_mul_i32 s%d, s%d, %d" % (sXoff, sRb, 128 * 1280))
    a("s_add_u32 s%d, s%d, 13" % (sLg, sCg))
    a("s_cmp_eq_u32 s%d, 14" % sCg)
    a("s_cselect_b32 s%d, 12, s%d" % (sLg, sLg))
    a("s_cselect_b32 s%d, 1, 0" % sOne)
    a("s_lshl_b32 s%d, s%d, 7" % (sW0off, sLg))
    a("s_mul_i32 s%d, s%d, %d" % (sWb, sR, CH))
    a("s_lshl_b32 s%d, s%d, 11" % (sT0, sC))
    a("s_add_u32 s%d, s%d, s%d" % (sWb, sWb, sT0))
    a("s_add_u32 s%d, s%d, %d" % (sWb, sWb, REG))
    a("s_lshr_b32 s%d, s%d, 1" % (sT0, sW))
    a("s_mul_i32 s%d, s%d, %d" % (sXb, sT0, CH))
    a("s_and_b32 s%d, s%d, 1" % (sT0, sW))
    a("s_lshl_b32 s%d, s%d, 11" % (sT0, sT0))
    a("s_add_u32 s%d, s%d, s%d" % (sXb, sXb, sT0))
    a("s_add_u32 s%d, s%d, %d" % (sXb, sXb, REG))
    a("s_waitcnt lgkmcnt(0)")
    srd(a, sX, 48, S * D * 2)
    srd(a, sW0, 54, D * F * 2)
    for L in (dma_x(0), dma_b0(0)):
        for t in L:
            a(t)
    if "nopf" not in EXP:
        lskip = a.label("Lpf")
        a("s_cmp_eq_u32 s%d, %d" % (sW, 77 if "nocode" in EXP else 7))
        a("s_cbranch_scc1 K1_pfcode")
        if "nopfx" in EXP:
            a("s_branch %s" % lskip)
        a("s_cmp_gt_u32 s%d, %d" % (sW, 2 if "w0str" in EXP else 3))
        a("s_cbranch_scc1 %s" % lskip)
        a("s_cmp_ge_u32 s%d, 2" % sW)
        a("s_cbranch_scc1 K1_pfw0")
        a("s_mul_i32 s%d, s%d, %d" % (sT0, sCg, 86 * 128))
        a("s_mul_i32 s%d, s%d, %d" % (sT1, sW, 43 * 128))
        a("s_add_u32 s%d, s%d, s%d" % (sT0, sT0, sT1))
        a("s_mul_i32 s%d, s%d, %d" % (sT1, sRb, 128 * 1280))
        a("s_add_u32 s%d, s%d, s%d" % (sT0, sT0, sT1))
        a("v_min_u32 v%d, 42, v0" % (E0 + 12))
        a("v_lshlrev_b32 v%d, 7, v%d" % (E0 + 12, E0 + 12))
        a("buffer_load_dword v%d, v%d, s[%d:%d], s%d offen" % (E0 + 13, E0 + 12, sX, sX + 3, sT0))
        a("s_branch %s" % lskip)

        def pfw0(lb):
            if "w0str" not in EXP:
                a("s_mul_i32 s%d, s%d, 15" % (sT0, sRb))
                a("s_add_u32 s%d, s%d, s%d" % (sT0, sT0, sCg))
                a("s_lshl_b32 s%d, s%d, 1" % (sT0, sT0))
                a("s_add_u32 s%d, s%d, s%d" % (sT0, sT0, sW))
                a("s_sub_u32 s%d, s%d, 2" % (sT0, sT0))
                a("s_mul_i32 s%d, s%d, %d" % (sT0, sT0, 36 * 128))
                a("v_min_u32 v%d, 35, v0" % (E0 + 12))
                a("v_lshlrev_b32 v%d, 7, v%d" % (E0 + 12, E0 + 12))
                a("buffer_load_dword v%d, v%d, s[%d:%d], s%d offen" % (E0 + 13, E0 + 12, sW0, sW0 + 3, sT0))
                return
            a("s_mul_i32 s%d, s%d, %d" % (sT0, sRb, 40 * 3456))
            a("s_lshl_b32 s%d, s%d, 7" % (sT1, sLg))
            a("s_add_u32 s%d, s%d, s%d" % (sT0, sT0, sT1))
            a("v_min_u32 v%d, 39, v0" % (E0 + 12))
            a("v_mul_u32_u24 v%d, 3456, v%d" % (E0 + 12, E0 + 12))
            a("buffer_load_dword v%d, v%d, s[%d:%d], s%d offen" % (E0 + 13, E0 + 12, sW0, sW0 + 3, sT0))

        def pfcode(lb):
            a("s_getpc_b64 s[52:53]")
            a("K1_pc:")
            a("s_sub_u32 s52, s52, K1_pc-%s" % label)
            a("s_subb_u32 s53, s53, 0")
            a("s_bfe_u32 s%d, s2, 0x30003" % sT0)
            a("s_lshl_b32 s%d, s%d, 6" % (sT0, sT0))
            a("v_add_u32 v%d, s%d, v0" % (E0 + 12, sT0))
            a("v_lshlrev_b32 v%d, 7, v%d" % (E0 + 12, E0 + 12))
            a("v_min_u32 v%d, (CODE_END-%s-4), v%d" % (E0 + 12, label, E0 + 12))
            a("global_load_dword v%d, v%d, s[52:53]" % (E0 + 13, E0 + 12))
        a("K1_pfw0:")
        pfw0(None)
        a("s_branch %s" % lskip)
        a("K1_pfcode:")
        pfcode(None)
        a(lskip + ":")
    for t in dma_x(1):
        a(t)
    stamp(a, 1)
    a("v_mov_b32 v%d, v3" % (E0 + 8))
    a("v_mov_b32 v%d, v2" % (E0 + 9))
    e = E0
    a("s_xor_b32 s%d, s%d, s%d" % (sT1, sR, sC))
    a("v_lshrrev_b32 v1, 5, v0")
    a("v_and_b32 v%d, 31, v0" % (e + 1))
    a("v_lshlrev_b32 v%d, 7, v%d" % (e + 1, e + 1))
    a("v_bfe_u32 v%d, v0, 1, 3" % (e + 2))
    a("v_xor_b32 v%d, v%d, v1" % (e + 2, e + 2))
    a("s_lshl_b32 s%d, s%d, 1" % (sT0, sT1))
    a("v_xor_b32 v%d, s%d, v%d" % (e + 2, sT0, e + 2))
    a("v_lshl_add_u32 v%d, v%d, 4, v%d" % (e + 1, e + 2, e + 1))
    a("s_mul_i32 s%d, s%d, %d" % (sT0, sR, CH))
    a("s_add_u32 s%d, s%d, %d" % (sT0, sT0, REG))
    a("v_add_u32 v%d, s%d, v%d" % (vXA, sT0, e + 1))
    for t in range(1, 4):
        a("v_xor_b32 v%d, %d, v%d" % (vXA + t, 32 * t, vXA))
    a("v_bfe_u32 v%d, v0, 2, 2" % e)
    a("v_lshl_add_u32 v%d, v1, 3, v%d" % (e, e))
    a("v_lshlrev_b32 v%d, 7, v%d" % (e, e))
    a("v_bfe_u32 v%d, v0, 4, 1" % (e + 1))
    a("v_lshlrev_b32 v%d, 1, v%d" % (e + 1, e + 1))
    a("v_bfe_u32 v%d, v0, 1, 1" % (e + 2))
    a("v_add_u32 v%d, v%d, v%d" % (e + 1, e + 1, e + 2))
    a("s_lshl_b32 s%d, s%d, 2" % (sT0, sC))
    a("v_add_u32 v%d, s%d, v%d" % (e + 1, sT0, e + 1))
    a("v_bfe_u32 v%d, v0, 3, 1" % (e + 2))
    a("v_lshlrev_b32 v%d, 2, v%d" % (e + 2, e + 2))
    a("v_xor_b32 v%d, v%d, v%d" % (e + 1, e + 1, e + 2))
    a("v_lshl_add_u32 v%d, v%d, 4, v%d" % (e, e + 1, e))
    a("v_and_b32 v%d, 1, v0" % (e + 1))
    a("v_lshl_add_u32 v%d, v%d, 3, v%d" % (e, e + 1, e))
    for t in range(4):
        a("s_xor_b32 s%d, s%d, %d" % (sT0, sT1, t))
        a("s_mul_i32 s%d, s%d, %d" % (sT0, sT0, CH))
        a("v_add_u32 v%d, s%d, v%d" % (vA + t, sT0, e))
    for L in (dma_x(2), dma_b0(1)):
        for t in L:
            a(t)
    a("s_mov_b32 s%d, 0x3f803f80" % sOnes)
    a("v_lshrrev_b32 v%d, 4, v0" % (e + 1))
    a("v_bfe_u32 v%d, v0, 2, 2" % (e + 2))
    a("v_cmp_eq_u32 vcc, v%d, v%d" % (e + 1, e + 2))
    a("v_mov_b32 v%d, s%d" % (e + 1, sOnes))
    for t in range(4):
        a("v_cndmask_b32 v%d, 0, v%d, vcc" % (SEL + t, e + 1))

    class Rec:
        def __init__(self):
            self.L = []

        def __call__(self, t):
            self.L.append(t)
    r = Rec()
    srd(r, sW1, 50, D * 3 * D * 2)
    r("v_mul_u32_u24 v%d, 3840, v%d" % (vW1a, E0 + 8))
    r("v_add_u32 v%d, v%d, v%d" % (vW1a, vW1a, E0 + 9))
    r("v_add_u32 v%d, %d, v%d" % (vW1b, 8 * 3840 - 1024, vW1a))
    r("s_lshl_b32 s%d, s%d, 1" % (sT0, sLg))
    r("s_add_u32 s%d, s%d, s%d" % (sT0, sT0, sC))
    r("s_cmp_ge_u32 s%d, 27\ns_cselect_b32 s%d, 1.0, 0" % (sT0, sIsZ2))
    r("s_lshl_b32 s%d, s%d, 2" % (sT2, sRb))
    r("s_add_u32 s%d, s%d, s%d" % (sT2, sT2, sR))
    r("s_mul_i32 s%d, s%d, %d" % (sA, sT2, NG_Z * 1024))
    r("s_add_u32 s%d, s%d, 0x%x" % (sA, sA, WS_Z))
    r("s_lshl_b32 s%d, s%d, 11" % (sOut, sT0))
    r("s_add_u32 s%d, s%d, s%d" % (sOut, sOut, sA))
    if "pre" not in EXP:
        r("s_cmp_lg_u32 s%d, 0\ns_cselect_b32 s%d, s%d, 0x40000000\ns_cselect_b32 s%d, 0x40000000, s%d" % (sIsZ2, sOut0, sOut, sOut, sOut))
    else:
        r("s_cmp_lg_u32 s%d, 0\ns_cselect_b32 s%d, s%d, 0x40000000" % (sIsZ2, sOut0, sOut))
    r("s_sub_u32 s%d, s%d, %d" % (sGl, sWb, REG - 8192))
    r("s_lshl_b32 s%d, s%d, 12" % (sZ2w, sT2))
    r("s_lshl_b32 s%d, s%d, 8" % (sT0, sCg))
    r("s_add_u32 s%d, s%d, s%d" % (sZ2w, sZ2w, sT0))
    r("s_add_u32 s%d, s%d, 0x%x" % (sZ2w, sZ2w, WS_ST2))
    r("s_lshl_b32 s%d, s%d, 1" % (sT0, sCg))
    r("s_mul_i32 s%d, s%d, 3" % (sT1, sCg))
    r("s_sub_u32 s%d, s%d, 11" % (sT1, sT1))
    r("s_cmp_lt_u32 s%d, 12\ns_cselect_b32 s%d, s%d, s%d\ns_cselect_b32 s%d, 1, 0" % (sCg, sLg, sT0, sT1, sType))
    r("s_lshl_b32 s%d, s%d, 7" % (sW1off, sLg))
    r("s_mul_i32 s%d, s%d, %d" % (sOut2, sT2, NG_QKV * 1024))
    r("s_lshl_b32 s%d, s%d, 12" % (sT0, sLg))
    r("s_add_u32 s%d, s%d, s%d" % (sOut2, sOut2, sT0))
    r("s_lshl_b32 s%d, s%d, 11" % (sT1, sC))
    r("s_add_u32 s%d, s%d, s%d" % (sOut2, sOut2, sT1))
    r("s_sub_u32 s%d, s%d, 1" % (sLg, sLg))
    r("s_lshl_b32 s%d, s%d, 12" % (sT0, sCg))
    r("s_add_u32 s%d, s%d, s%d" % (sT0, sT0, sT1))
    r("s_add_u32 s%d, s%d, s%d" % (sT0, sT0, sA))
    r("s_sub_u32 s%d, s%d, 4096" % (sT1, sOut2))
    r1 = Rec()
    r1("s_cmp_lt_u32 s%d, 12" % sCg)
    r1("s_cselect_b32 s%d, s%d, s%d" % (sOut1, sT0, sT1))
    r1("s_cselect_b32 s%d, s%d, s%d" % (sUoff, sCg, sLg))
    csel(r1, sUstep, str(128 * 3456), str(128 * 3840))
    r1("s_cselect_b64 s[%d:%d], s[%d:%d], s[%d:%d]" % (sWu, sWu + 1, sW0, sW0 + 1, sW1, sW1 + 1))
    r1("s_cselect_b32 s%d, s%d, s%d" % (sWu + 2, sW0 + 2, sW1 + 2))
    r1("s_cselect_b64 vcc, -1, 0")
    r("\n".join(r1.L))
    r("s_mov_b32 s%d, 0x20000" % (sWu + 3))
    r("v_cndmask_b32 v%d, v%d, v%d, vcc" % (vUa, vW1a, vW0a))
    r("v_cndmask_b32 v%d, v%d, v%d, vcc" % (vUb, vW1b, vW0b))
    r("s_lshl_b32 s%d, s%d, 7" % (sUoff, sUoff))
    r("s_cmp_eq_u32 s%d, 1\ns_cselect_b32 s%d, 0x40000000, s%d\ns_cselect_b32 s%d, 0x40000000, s%d" % (sOne, sUoff, sUoff, sW1off, sW1off))
    late = []
    srd(r, sWS, 62, WS_END)
    srd(r, sDBG, 60, 256)
    r("v_lshlrev_b32 v%d, 2, v1" % (e + 1))
    r("v_xor_b32 v%d, v%d, v0" % (e + 1, e + 1))
    r("v_lshlrev_b32 v%d, 4, v%d" % (vSt0, e + 1))
    r("v_xor_b32 v%d, 0x80, v%d" % (vSt1, vSt0))
    r("v_add_u32 v%d, 1024, v%d" % (vSt1, vSt1))
    r("s_lshl_b32 s%d, s%d, 10" % (sT0, sC))
    r("s_add_u32 s%d, s%d, %d" % (sT0, sT0, 3 * 4096))
    r("v_lshlrev_b32 v%d, 4, v0" % vCsR)
    r("v_add_u32 v%d, s%d, v%d" % (vCsR, sT0, vCsR))
    r("s_lshl_b32 s%d, s%d, 2" % (sT0, sR))
    r("v_add_u32 v%d, s%d, v%d" % (vCsW, sT0, vCsR))
    r("v_mov_b32 v%d, 0" % ZSUM)
    r("v_mov_b32 v%d, 0" % ZSQ)
    r("s_mov_b32 s%d, %d" % (sDelta, REG))
    r("s_mov_b32 s%d, s%d" % (sReady, sOne))
    r("s_lshl_b32 s%d, s%d, 11" % (sT2, sRb))
    r("s_add_u32 s%d, s%d, 0x%x" % (sT2, sT2, WS_FL))
    r("s_cmp_eq_u32 s%d, 0\ns_cselect_b32 s%d, 2, 99" % (sW, sL1))
    r("s_cmp_eq_u32 s%d, 0\ns_cselect_b32 s%d, s%d, 0x40000000" % (sC, sL0, sZ2w))
    late += r.L
    nlate = spread(len(late), 16) + [0] * 24

    seq = ["x0", "b0", "x1", "x2", "b1"]
    plan = {-1: ["x3", "x4"], 0: ["b2", "x5"], 1: ["x6"], 2: ["b3", "x7"], 3: ["x8"], 4: ["b4", "x9"],
            5: ["u0"], 6: ["u1"], 7: ["u2"], 8: ["u3", "w0"], 9: ["u4", "w1"]}
    q = LdsQ(a)

    def dma_list(it):
        if it[0] == "w":
            L = dma_unit(int(it[1:]))
            L[0] = "s_sub_u32 m0, s%d, %d" % (sWb, REG - 4096 * int(it[1:]))
            return L
        return dma_x(int(it[1:])) if it[0] == "x" else dma_b0(int(it[1:])) if it[0] == "b" else dma_u(int(it[1:]))

    def xread(hp, t):
        x = X0 + 16 * hp + 4 * t
        q.issue("ds_read_b128 v[%d:%d], v%d offset:%d" % (x, x + 3, vXA + t, (hp % 5) * 4096), "x%d" % hp)

    def stats(x, first):
        def c(r_):
            return "0" if first else "v[%d:%d]" % (r_, r_ + 3)
        a("v_mfma_f32_4x4x4_16b_bf16 v[%d:%d], v[%d:%d], v[%d:%d], %s" % (XQ, XQ + 3, x, x + 1, x, x + 1, c(XQ)))
        a("v_mfma_f32_4x4x4_16b_bf16 v[%d:%d], v[%d:%d], v[%d:%d], %s" % (XQ2, XQ2 + 3, x + 2, x + 3, x + 2, x + 3, c(XQ2)))
        a("v_mfma_f32_16x16x32_bf16 v[%d:%d], v[%d:%d], v[%d:%d], %s" % (XS, XS + 3, SEL, SEL + 3, x, x + 3, c(XS)))

    def vmwait(need):
        last = max(seq.index(n) for n in need)
        a("s_waitcnt vmcnt(%d)" % sum(1 if t == "T" else 2 for t in seq[last + 1:]))

    vmwait(["x0", "b0"])
    a("s_barrier")
    stamp(a, 2)
    for t in range(4):
        xread(0, t)
    for j in range(3):
        frag_reads(q, 0, j)
    for it in plan[-1]:
        for t in dma_list(it):
            a(t)
        seq.append(it)
    lp = 0
    for h in range(10):
        i, hh = h >> 1, h & 1
        need = []
        if h < 9:
            need.append("x%d" % (h + 1))
        if hh == 1:
            need.append("b%d" % (i + 1) if i < 4 else "u0")
        q.wait("x%d" % h)
        vmwait(need)
        a("s_barrier")
        if h in (2, 4, 6, 8):
            stamp(a, 2 + i)
        dl = []
        for it in plan[h]:
            dl.append(dma_list(it))
            seq.append(it)
        if h == 9:
            stats(X0 + 16 * h, False)
            stats(X0 + 16 * h + 8, False)
        for t in range(4):
            j = 4 * hh + t
            x = X0 + 32 * i + 4 * j
            q.wait("f%d" % j)
            mfma(a, i, j)
            if h == 9 and t == 2:
                q.issue("ds_write_b32 v%d, v%d" % (vCsW, CSA), "csw")
                a("v_add_u32 v%d, s%d, v%d" % (vCsW, sDelta, vCsW))
            jn = j + 3
            if jn < 8:
                frag_reads(q, i, jn)
            else:
                frag_reads(q, (i + 1) % 5, jn - 8)
            if i == 4 and 1 <= j <= 4:
                tt = (j + 3) & 3
                a("v_add_u32 v%d, s%d, v%d" % (vA + tt, sDelta, vA + tt))
            if h < 9 and t < 2:
                xread(h + 1, 2 * t)
                xread(h + 1, 2 * t + 1)
            n, half = t >> 1, t & 1
            if len(dl) == 1:
                n, half = 0, (0 if t == 0 else 1 if t == 2 else None)
            if half == 0:
                a(dl[n][0])
                a(dl[n][1])
            elif half == 1:
                a(dl[n][2])
                if plan[h][n][0] == "u":
                    MARK[5 + int(plan[h][n][1:])] = len(a.ins)
                if plan[h][n][0] == "w":
                    MARK[10 + int(plan[h][n][1:])] = len(a.ins)
                a(dl[n][3])
            for tx in late[lp:lp + nlate[4 * h + t]]:
                a(tx)
            lp += nlate[4 * h + t]
            if h == W1AT and t == 3:
                a("s_mul_i32 s%d, s%d, 15" % (sT0, sRb))
                a("s_add_u32 s%d, s%d, s%d" % (sT0, sT0, sCg))
                a("s_lshl_b32 s%d, s%d, 3" % (sT0, sT0))
                a("s_add_u32 s%d, s%d, s%d" % (sT0, sT0, sW))
                a("s_mul_i32 s%d, s%d, %d" % (sT0, sT0, 10 * 128))
                a("v_min_u32 v%d, 9, v0" % vPf)
                a("v_lshlrev_b32 v%d, 7, v%d" % (vPf, vPf))
                a("s_sub_u32 m0, s%d, %d" % (sWb, REG - 2 * 4096))
                a("buffer_load_dword v%d, s[%d:%d], s%d offen lds" % (vPf, sW1, sW1 + 3, sT0))
                seq.append("T")
            if t == 0:
                cs_mfma(a, i, j)
            if h < 9 and (t & 1) == 0:
                stats(x, h == 0 and t == 0)
            if h == 9 and t == 0:
                a("v_and_b32 v1, 3, v0")
                for tt in range(4):
                    a("v_add_f32 v%d, v%d, v%d" % (XQ + tt, XQ + tt, XQ2 + tt))
                for tt in range(1, 4):
                    a("v_cmp_eq_u32 vcc, %d, v1" % tt)
                    a("v_cndmask_b32 v%d, v%d, v%d, vcc" % (XQ, XQ, XQ + tt))
                a("v_mov_b32 v%d, v%d" % (XQ + 1, XS))
                a("s_lshl_b32 s%d, s%d, 9" % (sT0, sW))
                a("s_add_u32 s%d, s%d, %d" % (sT0, sT0, CH + 3 * 4096))
                a("v_lshlrev_b32 v1, 3, v0")
                a("v_add_u32 v1, s%d, v1" % sT0)
                q.issue("ds_write_b64 v1, v[%d:%d]" % (XQ, XQ + 1), "stw")
                a("v_xor_b32 v1, 0x800, v1")
            if h == 9 and t == 1:
                q.wait("stw")
                a("s_barrier")
                q.issue("ds_read_b64 v[%d:%d], v1" % (XQ + 2, XQ + 3), "str")
    assert lp == len(late)
    q.wait("str")
    assert q.q == INQ2[2:], q.q
    r = Rec()
    sq, sm, t0, t1 = XQ, XQ + 1, XQ + 2, XQ + 3
    r("v_add_f32 v%d, v%d, v%d" % (sq, sq, t0))
    r("v_add_f32 v%d, v%d, v%d" % (sm, sm, t1))
    r("v_mov_b32 v%d, v%d" % (t0, sq))
    r("v_mov_b32 v%d, v%d" % (t1, sm))
    r("v_permlane32_swap_b32 v%d, v%d" % (sq, t0))
    r("v_permlane32_swap_b32 v%d, v%d" % (sm, t1))
    r("v_add_f32 v%d, v%d, v%d" % (sq, sq, t0))
    r("v_add_f32 v%d, v%d, v%d" % (sm, sm, t1))
    r("v_mul_f32 v%d, %s, v%d" % (NEGMU, fhex(-1.0 / D), sm))
    r("v_mul_f32 v%d, %s, v%d" % (sq, fhex(1.0 / D), sq))
    r("v_fma_f32 v%d, -v%d, v%d, v%d" % (sq, NEGMU, NEGMU, sq))
    r("v_max_f32 v%d, 0, v%d" % (sq, sq))
    r("v_add_f32 v%d, %s, v%d" % (sq, fhex(1e-5), sq))
    r("v_rsq_f32 v%d, v%d" % (RSTD, sq))
    r("v_sqrt_f32 v%d, v%d" % (IRSTD, sq))
    r("v_mul_f32 v%d, %s, v%d" % (RL, fhex(LOG2E), RSTD))
    r("v_mul_f32 v%d, %s, v%d" % (K1c, fhex(GC1), RSTD))
    r("v_mul_f32 v%d, v%d, v%d" % (K2c, RSTD, RSTD))
    r("v_mul_f32 v%d, v%d, v%d" % (K2c, K2c, RSTD))
    r("v_mul_f32 v%d, %s, v%d" % (K2c, fhex(GC2), K2c))
    fin = list(r.L)
    a("s_load_dword s%d, s[60:61], %d" % (sZok, 4 if "fzok" in EXP else 0))
    stamp(a, 7)
    a("s_cmp_eq_u32 s%d, 1" % sOne)

    def one(lb):
        for t in fin:
            a(t)
    rare(a, "s_cbranch_scc1", one)
    RARE[-1] = (RARE[-1][0], "K1_tail", RARE[-1][2])
    a("s_sub_u32 s%d, s%d, s%d" % (sWb, sWb, sDelta))
    r = Rec()
    srd(r, sX, 58, S * S * 2)
    own_row(r, sXoff)
    r("v_min_u32 v%d, %d, v0" % (vPf, max(TLN - 1, 0)))
    r("v_lshlrev_b32 v%d, 7, v%d" % (vPf, vPf))
    pre = []
    for n in range(max(len(fin), len(r.L))):
        pre += fin[n:n + 1] + r.L[n:n + 1]
    PRE1[:] = pre
    body(a, "G", 1)
    a("s_cmp_eq_u32 s%d, 0" % sType)
    a("s_cbranch_scc1 K1_bodyP")
    brk = len(a.ins)
    body(a, "G", 2)
    a("K1_bodyL:")
    body(a, "P", 3)
    a("s_waitcnt lgkmcnt(0)")
    a("s_cmp_eq_u32 s%d, 0" % sReady)
    a(rare(a, "s_cbranch_scc1", lambda lb: z2_slow(a, lb)) + ":")
    tail_regs(a)
    tail(a, "P")
    import p2
    PHASE[0] = 2
    p2.gen_p2(a)
    PHASE[0] = 1
    a("K1_tail:")
    tail_one(a)
    tail(a, "G")
    a("K1_bodyP:")
    body(a, "P", 2, start=(brk, len(a.ins)))
    a("s_branch K1_bodyL")
    flush_rare(a)

    a("K1_side:")
    a("s_waitcnt lgkmcnt(0)")
    srd(a, sWS, 62, WS_END)
    srd(a, sDBG, 60, 256)
    for t in range(4):
        a("v_mov_b32 v%d, 0" % (8 + t))
    a("v_mov_b32 v12, 1")
    a("v_lshlrev_b32 v6, 4, v0")
    a("s_lshl_b32 s%d, s%d, 3" % (sT0, sRb))
    a("s_add_u32 s%d, s%d, s%d" % (sT0, sT0, sW))
    a("s_lshl_b32 s%d, s%d, 11" % (sT0, sT0))
    a("s_add_u32 s%d, s%d, 0x%x" % (sT0, sT0, WS_ST2))
    a("buffer_store_dwordx4 v[8:11], v6, s[%d:%d], s%d offen sc1" % (sWS, sWS + 3, sT0))
    a("buffer_store_dwordx4 v[8:11], v6, s[%d:%d], s%d offen offset:1024 sc1" % (sWS, sWS + 3, sT0))
    a("s_mul_i32 s%d, s%d, 6" % (sT0, sRb))
    a("s_add_u32 s%d, s%d, s%d" % (sT0, sT0, sW))
    a("s_lshl_b32 s%d, s%d, 10" % (sT0, sT0))
    a("s_add_u32 s%d, s%d, 0x%x" % (sT0, sT0, WS_KV))
    a("s_lshl_b32 s%d, s%d, 11" % (sT1, sRb))
    a("s_add_u32 s%d, s%d, 0x%x" % (sT1, sT1, WS_FL))
    a("s_and_b32 s%d, s%d, 1" % (sT2, sW))
    a("s_lshl_b32 s%d, s%d, 10" % (sT2, sT2))
    a("s_add_u32 s%d, s%d, s%d" % (sT2, sT2, sT1))
    a("s_cmp_ge_u32 s%d, 6" % sW)
    a("s_cselect_b32 s%d, s%d, s%d" % (sT0, sT2, sT0))
    a("buffer_store_dwordx4 v[8:11], v6, s[%d:%d], s%d offen sc1" % (sWS, sWS + 3, sT0))
    a("s_waitcnt vmcnt(0)")
    a("s_barrier")
    a("s_cmp_lg_u32 s%d, 6" % sW)
    a("s_cbranch_scc1 K1_nofl2")
    a("s_mov_b64 exec, 1")
    a("buffer_atomic_add v12, off, s[%d:%d], 0 sc1" % (sDBG, sDBG + 3))
    a("s_mov_b64 exec, -1")
    stamp(a, 1)
    a("K1_nofl2:")
    a("s_barrier")
    stamp(a, 12)
    pf_wsp(a)
    a("s_add_u32 s71, s%d, 1024" % sT1)
    a("s_mov_b32 s70, 0")
    a("s_mov_b32 s69, 1")
    a("P2_late:")
    pf_own(a)
    a("s_load_dwordx2 s[44:45], s[0:1], %d" % KA_WO)
    a("s_load_dwordx2 s[46:47], s[0:1], %d" % KA_WOUT)
    p2.p2_loads(a)
    retile(a)
    a("s_waitcnt vmcnt(0)")
    stamp(a, 13)
    stamp(a, 14)
    stamp_dump(a, 15, sWS, sW, WS_STAMP)
    a("s_barrier")
    if STAMP:
        srd(a, sWS, 52, WS_END)
    srd(a, sX, 58, S * S * 2)
    for t in p2.pre_setup(vW1b):
        a(t)
    for st in range(p2.NPRE):
        a(p2.pre_dma(st, vW1b, sX))
    p2.p2_early(a)
    p2.p2_poll(a)
    a("s_waitcnt vmcnt(0)")
    a("s_branch P2_entry")
    flush_rare(a)
    a(end + ":")
    a("s_endpgm")
```

```python
from asmlib import *
from common import *
from k1 import srd, csel, stamp, stamp_dump, STAMP, WS_STAMP, EXP, spread
import k1

RB = 81920
SIDE = 0
NSA = 5
NPRE = int(__import__('os').environ.get('NPRE', '6'))
OSC = RB + 5 * 14336
NEA = int(__import__("os").environ.get("NEA", "0"))
NEB = int(__import__("os").environ.get("NEB", "0"))
SL1, SL2 = int(__import__("os").environ.get("SL1", "3")), int(__import__("os").environ.get("SL2", "24"))
KB = int(__import__("os").environ.get("KB", "0"))
assert KB == 0
LREL = 155648
NPST = int(__import__('os').environ.get('NPST', '2'))
CNT_KV = WS_CNT
CNT_O = WS_CNT + 4096
CNT_U = WS_CNT + 8192

ACC = 224
FA = (128, 176)
Z1R = 112
DO = 80
ACB = 80
KVF = 48
XR = 36
import os
FRA, FRB = float(os.environ.get("FRA", "0.7")), float(os.environ.get("FRB", "0.7"))
import os
def _t(n, d): return tuple(int(x) for x in os.environ.get(n, d).split(","))
HK = _t("HK", "4,0,6")
PA = _t("PA", "0,3")
PK = _t("PK", "14,17,20,24")
PO = _t("PO", "27,29")
PU = _t("PU", "37,39")
sCall, sZk = 71, 70
PQR = 36
T = 24
vL16, vLA, vLB0, vA, vB0, vB1, vAt = 10, 11, 12, 13, 14, 15, 16
vBias, vPoll, vZa, vZb, vO = 19, 20, 21, 22, 23
vXl = 20
vLA3, vLB3 = 8, 9
vAd0, vAd1 = 8, 9
vT0, vT1, vT2, vT3, vXd = 11, 12, 13, 14, 15
vPz = 21
sA, sBS, sX, sWS, sO = 4, 8, 12, 16, 20
sA3, sB3 = 8, 12
sI, sJ, sW, sRR, sCC = 24, 25, 26, 27, 28
sAoff, sBoff, sRd, sRdB, sIt, sHook = 29, 30, 31, 32, 33, 34
sT0, sT1, sT2, sT3 = 36, 37, 38, 39
sMA, sMB, sHd, sCnt, sKv, sOdd = 35, 67, 42, 43, 44, 45
sA3off, sB3off, sMB3, sCntI = 56, 57, 58, 59
sXo0, sXo1 = 60, 61
sWk, sKvW, sCntW = 64, 65, 66
assert k1.sT0 == sT0


def ring(s, step, end, wrap):
    return "s_add_u32 s%d, s%d, %d\ns_cmp_eq_u32 s%d, %d\ns_cselect_b32 s%d, %d, s%d" % (s, s, step, s, end, s, wrap, s)


def kjump(st, norm, back, fwd):
    if KB and st % (2 * KB) == KB - 1:
        return back
    if KB and st % (2 * KB) == 2 * KB - 1:
        return fwd
    return norm


def slotA(st):
    return 8192 * (st if st < 4 else 4 + (st - 4) % 6)


def slotB(st):
    return RB + (14336 * ((st + 3) % 5) if st < 32 else 10240 * ((st - 32 + 7) % 8))


def pre_setup(vt):
    return [
        "s_bfe_u32 s32, s2, 0x20001",
        "s_lshl_b32 s32, s32, 3",
        "s_lshr_b32 s33, s2, 5",
        "s_add_u32 s32, s32, s33",
        "s_lshl_b32 s32, s32, 3",
        "s_add_u32 s32, s32, s%d" % sW,
        "s_lshl_b32 s32, s32, 15",
        "s_lshl_b32 s33, s%d, 2" % sW,
        "v_lshrrev_b32 v%d, 4, v0" % (vt + 1),
        "v_add_u32 v%d, s33, v%d" % (vt + 1, vt + 1),
        "v_xor_b32 v%d, v%d, v0" % (vt + 1, vt + 1),
        "v_and_b32 v%d, 7, v%d" % (vt + 1, vt + 1),
        "v_lshrrev_b32 v%d, 3, v0" % vt,
        "v_lshlrev_b32 v%d, 12, v%d" % (vt, vt),
        "v_lshl_add_u32 v%d, v%d, 4, v%d" % (vt, vt + 1, vt),
        "s_lshl_b32 s33, s%d, 10" % sW,
    ]


def pre_dma(st, vt, srdn):
    return "s_add_u32 m0, s33, %d\nbuffer_load_dwordx4 v%d, s[%d:%d], s32 offen offset:%d lds" % (
        slotA(st) - 128 * st, vt, srdn, srdn + 3, 128 * st)


vA2, vB2, vB3 = 16, 17, 18
vU, vBias2 = 30, 31


def read_A(fs, nct):
    L = []
    L.append("v_add_u32 v%d, s%d, v%d" % (vA, sRd, vLA))
    L.append("v_add_u32 v%d, s%d, v%d" % (vB0, sRdB, vLB0))
    L.append("v_xor_b32 v%d, 64, v%d" % (vB1, vB0))
    for k in range(2):
        if k:
            L.append("v_xor_b32 v%d, 64, v%d" % (vA2, vA))
        for rt in range(2):
            d = fs + 8 * k + 4 * rt
            L.append("ds_read_b128 v[%d:%d], v%d offset:%d" % (d, d + 3, vA2 if k else vA, rt * 2048))
        for ct in range(nct):
            if k == 0 and ct == 1:
                L.append("v_xor_b32 v%d, 0x80, v%d" % (vB2, vB0))
                L.append("v_xor_b32 v%d, 0xc0, v%d" % (vB3, vB0))
            d = fs + 16 + 16 * k + 4 * ct
            off = k * 7168 + ct * 1024
            L.append("ds_read_b64_tr_b16 v[%d:%d], v%d offset:%d" % (d, d + 1, vB2 if ct & 1 else vB0, off))
            L.append("ds_read_b64_tr_b16 v[%d:%d], v%d offset:%d" % (d + 2, d + 3, vB3 if ct & 1 else vB1, off))
    L.append(ring(sRd, 8192, RB, 32768))
    L.append(ring(sRdB, 14336, OSC, RB))
    return L


def read_B(fs, nct):
    L = []
    L.append("v_add_u32 v%d, s%d, v%d" % (vA, sRd, vLA3))
    L.append("v_add_u32 v%d, s%d, v%d" % (vB0, sRdB, vLB3))
    for k in range(2):
        for rt in range(2):
            d = fs + 8 * k + 4 * rt
            L.append("ds_read_b128 v[%d:%d], v%d offset:%d" % (d, d + 3, vA, k * 2048 + rt * 256))
        for ct in range(nct):
            d = fs + 16 + 12 * k + 4 * ct
            off = k * 5120 + ct * 32
            L.append("ds_read_b64_tr_b16 v[%d:%d], v%d offset:%d" % (d, d + 1, vB0, off))
            L.append("ds_read_b64_tr_b16 v[%d:%d], v%d offset:%d" % (d + 2, d + 3, vB0, off + 1280))
    L.append(ring(sRd, 8192, RB, 32768))
    L.append(ring(sRdB, 10240, 2 * RB, RB))
    return L


def mf_A(cur, nct):
    L = []
    for k in range(2):
        for ct in range(nct):
            for rt in range(2):
                fb, fa, acc = cur + 16 + 16 * k + 4 * ct, cur + 8 * k + 4 * rt, ACC + 16 * rt + 4 * ct
                L.append("v_mfma_f32_16x16x32_bf16 v[%d:%d], v[%d:%d], v[%d:%d], v[%d:%d]" % (
                    acc, acc + 3, fb, fb + 3, fa, fa + 3, acc, acc + 3))
    return L


def mf_B(cur, nct):
    L = []
    for k in range(2):
        for ct in range(nct):
            for rt in range(2):
                fb, fa, acc = cur + 16 + 12 * k + 4 * ct, cur + 8 * k + 4 * rt, ACB + 12 * rt + 4 * ct
                L.append("v_mfma_f32_16x16x32_bf16 v[%d:%d], v[%d:%d], v[%d:%d], v[%d:%d]" % (
                    acc, acc + 3, fb, fb + 3, fa, fa + 3, acc, acc + 3))
    return L


def cstage(a, mf, rd, frac, barrier=True):
    a("s_waitcnt lgkmcnt(0)")
    if barrier:
        a("s_barrier")
    if "nomf" in EXP:
        mf = ["s_nop 0"] * len(mf)
    if "nopmf" in EXP:
        mf = ["s_nop 2"] * len(mf)
    if "nord" in EXP:
        rd = [t for t in rd if not t.startswith("ds_")]
    ns = max(1, int(len(mf) * frac))
    nr = spread(len(rd), ns) + [0] * (len(mf) - ns)
    p = 0
    for n, m in enumerate(mf):
        a(m)
        for t in rd[p:p + nr[n]]:
            a(t)
        p += nr[n]


def quad_addr(a, dst, vq, swz, t0, t1):
    a("v_and_b32 v%d, 1, v%d" % (t0, vq))
    if swz:
        a("v_bfe_u32 v%d, v%d, 2, 1" % (t1, vq))
        a("v_lshl_add_u32 v%d, v%d, 1, v%d" % (t1, t1, t0))
        a("v_lshlrev_b32 v%d, 2, v%d" % (t1, t1))
        a("v_xor_b32 v%d, v%d, v2" % (t1, t1))
        a("v_lshl_add_u32 v%d, v%d, 5, v%d" % (t0, t0, t1))
    else:
        a("v_lshl_add_u32 v%d, v%d, 5, v2" % (t0, t0))
    a("v_lshlrev_b32 v%d, 4, v%d" % (t0, t0))
    a("v_bfe_u32 v%d, v%d, 1, 1" % (t1, vq))
    a("v_lshl_add_u32 v%d, v%d, 3, v%d" % (t0, t1, t0))
    a("v_lshrrev_b32 v%d, 2, v%d" % (t1, vq))
    a("v_lshl_add_u32 v%d, v%d, 10, v%d" % (dst, t1, t0))


def srd_off(a, d, plo, off, nbytes):
    a("s_add_u32 s%d, s%d, 0x%x" % (d, plo, off))
    a("s_addc_u32 s%d, s%d, 0" % (d + 1, plo + 1))
    a("s_and_b32 s%d, s%d, 0xffff" % (d + 1, d + 1))
    a("s_mov_b32 s%d, 0x%x" % (d + 2, nbytes))
    a("s_mov_b32 s%d, 0x20000" % (d + 3))


def signal(a, scnt, off=0, n=0):
    a("s_waitcnt vmcnt(%d)" % n)
    a("v_mov_b32 v%d, 1" % T)
    a("v_mov_b32 v%d, 0" % (T + 1))
    a("s_mov_b64 exec, 1")
    a("buffer_atomic_add v%d, v%d, s[%d:%d], s%d offen offset:%d sc1" % (T, T + 1, sWS, sWS + 3, scnt, off))
    a("s_mov_b64 exec, -1")


def poll_issue(a, scnt, off=0):
    a("v_mov_b32 v%d, 0" % T)
    a("buffer_load_dword v%d, v%d, s[%d:%d], s%d offen offset:%d sc1" % (vPoll, T, sWS, sWS + 3, scnt, off))


def poll_check(a, scnt, off=0, target=32, n=0):
    l0, l1 = a.label("Lchk"), a.label("Lok")
    a("s_waitcnt vmcnt(%d)" % n)
    a(l0 + ":")
    a("v_readfirstlane_b32 s%d, v%d" % (sT0, vPoll))
    a("s_cmp_eq_u32 s%d, %d" % (sT0, target))
    a("s_cbranch_scc1 %s" % l1)
    poll_issue(a, scnt, off)
    a("s_waitcnt vmcnt(0)")
    a("s_branch %s" % l0)
    a(l1 + ":")


def p2_loads(a):
    a("s_load_dwordx4 s[48:51], s[0:1], %d" % KA_WSP)
    a("s_load_dwordx2 s[52:53], s[0:1], %d" % KA_WS)
    a("s_load_dwordx2 s[54:55], s[0:1], %d" % KA_X)
    a("s_load_dwordx2 s[62:63], s[0:1], %d" % KA_OUT)


def p2_early(a):
    lab = a.label("Learly")
    a("v_and_b32 v%d, 15, v0" % vPz)
    a("v_lshlrev_b32 v%d, 11, v%d" % (vPz, vPz))
    a("v_lshlrev_b32 v%d, 4, v0" % vL16)
    a("s_bfe_u32 s%d, s2, 0x20001" % sI)
    a("s_lshl_b32 s%d, s%d, 3" % (sI, sI))
    a("s_lshr_b32 s%d, s2, 5" % sT0)
    a("s_add_u32 s%d, s%d, s%d" % (sI, sI, sT0))
    a("s_and_b32 s%d, s2, 1" % sJ)
    a("s_lshl_b32 s%d, s%d, 2" % (sJ, sJ))
    a("s_bfe_u32 s%d, s2, 0x20003" % sT0)
    a("s_add_u32 s%d, s%d, s%d" % (sJ, sJ, sT0))
    a("s_and_b32 s%d, s%d, 1" % (sRR, sW))
    a("s_bfe_u32 s%d, s%d, 0x10001" % (sCC, sW))
    a("s_cmp_ge_u32 s%d, 4" % sW)
    a("s_cbranch_scc1 %s" % lab)
    a("s_cmp_lg_u32 s%d, 16" % sZk)
    a(k1.rare(a, "s_cbranch_scc1", lambda lb: zk_wait(a)) + ":")
    a("s_and_b32 s%d, s2, 7" % sT3)
    a("s_lshl_b32 s%d, s%d, 7" % (sT3, sT3))
    a("s_add_u32 s%d, s%d, 0x%x" % (sT3, sT3, WS_FL))
    a("v_lshrrev_b32 v1, 3, v0")
    a("s_lshl_b32 s%d, s%d, 4" % (sT1, sW))
    a("v_add_u32 v1, s%d, v1" % sT1)
    a("v_lshlrev_b32 v1, 12, v1")
    a("v_lshrrev_b32 v6, 4, v0")
    a("v_and_b32 v7, 7, v0")
    a("v_xor_b32 v6, v6, v7")
    a("v_lshl_add_u32 v%d, v6, 4, v1" % vAd0)
    a("v_xor_b32 v6, 4, v6")
    a("v_lshl_add_u32 v%d, v6, 4, v1" % vAd1)
    a("v_add_u32 v%d, %d, v%d" % (vAd1, 8 * 4096 - 1024, vAd1))
    a("s_lshl_b32 s%d, s%d, 18" % (sAoff, sI))
    a("s_lshl_b32 s%d, s%d, 11" % (sMA, sW))
    srd(a, sA, 48, S * S * 2)
    a("s_add_u32 s%d, s%d, %d" % (sAoff, sAoff, 128 * NPRE))
    a("s_mul_i32 s%d, s%d, 7" % (sMB, sCC))
    a("s_lshl_b32 s%d, s%d, 2" % (sT1, sRR))
    a("s_add_u32 s%d, s%d, s%d" % (sMB, sMB, sT1))
    a("s_lshl_b32 s%d, s%d, 10" % (sMB, sMB))
    a("s_mul_i32 s%d, s%d, %d" % (sBoff, sCC, NG_Z))
    a("s_add_u32 s%d, s%d, s%d" % (sBoff, sBoff, sT1))
    a("s_mul_i32 s%d, s%d, 7" % (sT1, sJ))
    a("s_add_u32 s%d, s%d, s%d" % (sBoff, sBoff, sT1))
    a("s_lshl_b32 s%d, s%d, 10" % (sBoff, sBoff))
    a("s_add_u32 s%d, s%d, %d" % (sBoff, sBoff, WS_Z + 54 * 1024))
    if KB:
        a("s_add_u32 s%d, s%d, s%d" % (sT1, sI, sJ))
        a("s_and_b32 s%d, s%d, 1" % (sT1, sT1))
        a("s_mul_i32 s%d, s%d, %d" % (sT0, sT1, KB * 128))
        a("s_add_u32 s%d, s%d, s%d" % (sAoff, sAoff, sT0))
        a("s_lshl_b32 s%d, s%d, 1" % (sT0, sT0))
        a("s_sub_u32 s31, 128, s%d" % sT0)
        a("s_add_u32 s32, 128, s%d" % sT0)
        a("s_mul_i32 s%d, s%d, %d" % (sT0, sT1, KB * 2 * NG_Z * 1024))
        a("s_add_u32 s%d, s%d, s%d" % (sBoff, sBoff, sT0))
        a("s_lshl_b32 s%d, s%d, 1" % (sT0, sT0))
        a("s_sub_u32 s33, %d, s%d" % (2 * NG_Z * 1024, sT0))
        a("s_add_u32 s34, %d, s%d" % (2 * NG_Z * 1024, sT0))
    a("s_mov_b32 s46, s%d" % sRR)
    a("s_mov_b32 s47, 0")
    a("s_mov_b64 vcc, s[46:47]")
    a(lab + ":")


def p2_poll(a):
    lab = a.label("Lnp")
    a("s_cmp_lg_u32 s%d, 0" % sW)
    a("s_cbranch_scc1 %s" % lab)
    a("buffer_load_dword v%d, v%d, s[%d:%d], s%d offen sc1" % (vPoll, vPz, sWS, sWS + 3, sT3))
    a(lab + ":")


def zk_wait(a):
    srd(a, sO, 60, 256)
    l0 = a.label("Lz0")
    a(l0 + ":")
    a("s_sleep 2")
    a("buffer_load_dword v%d, off, s[%d:%d], 0 sc1" % (vPoll, sO, sO + 3))
    a("s_waitcnt vmcnt(0)")
    a("v_readfirstlane_b32 s%d, v%d" % (sZk, vPoll))
    a("s_cmp_eq_u32 s%d, 16" % sZk)
    a("s_cbranch_scc0 %s" % l0)


def gen_p2(a):
    a("P2_entry:")
    if STAMP and k1.LITE and "steps" not in EXP:
        a("s_add_u32 s98, s72, s69")
    stamp(a, 0)
    if STAMP:
        srd(a, sWS, 52, WS_END)
    a("s_cmp_ge_u32 s%d, 4" % sW)
    a("s_cbranch_scc1 K2_consumer")
    a("K2_loader:")
    Q = []

    def younger(pred):
        idx = [n for n, t in enumerate(Q) if pred(t)]
        return min(63, len(Q) - 1 - max(idx)) if idx else 63

    def dAa(st):
        if "noA" in EXP:
            return
        a("s_add_u32 m0, s%d, %d" % (sMA, slotA(st)))
        a("buffer_load_dwordx4 v%d, s[%d:%d], s%d offen lds" % (vAd0, sA, sA + 3, sAoff))
        a("buffer_load_dwordx4 v%d, s[%d:%d], s%d offen offset:1024 lds" % (vAd1, sA, sA + 3, sAoff))
        a("s_add_u32 s%d, s%d, %s" % (sAoff, sAoff, kjump(st, "128", "s31", "s32")))
        Q.extend([("S", st)] * 2)

    class NoSc:
        def __call__(self, t):
            if "nodma2" in EXP and t.endswith(" lds"):
                return
            if "nodma2" in EXP and t.startswith("s_waitcnt vmcnt"):
                t = "s_waitcnt vmcnt(0)"
            a0(t.replace(" sc1 lds", " lds") if "nosc" in EXP else t)
        def label(self, x):
            return a0.label(x)
    a0 = a
    a = NoSc()

    def dAb(st):
        a("s_add_u32 m0, s%d, %d" % (sMB, slotB(st)))
        for t in range(3):
            a("buffer_load_dwordx4 v%d, s[%d:%d], s%d offen offset:%d sc1 lds" % (vL16, sWS, sWS + 3, sBoff, 1024 * t))
        lab = a.label("Lsk")
        a("s_cbranch_vccnz %s" % lab)
        a("buffer_load_dwordx4 v%d, s[%d:%d], s%d offen offset:3072 sc1 lds" % (vL16, sWS, sWS + 3, sBoff))
        a(lab + ":")
        a("s_add_u32 s%d, s%d, %s" % (sBoff, sBoff, kjump(st, str(2 * NG_Z * 1024), "s33", "s34")))
        Q.extend([("S", st)] * 3)

    def dB3(st):
        if "noB3" in EXP:
            return
        a("s_add_u32 m0, s%d, %d" % (sMB3, slotB(st)))
        for t in range(2):
            a("buffer_load_dwordx4 v%d, s[%d:%d], s%d offen offset:%d sc1 lds" % (vL16, sB3, sB3 + 3, sB3off, 1024 * t))
        lab = a.label("Lsk")
        a("s_cbranch_vccnz %s" % lab)
        a("buffer_load_dwordx4 v%d, s[%d:%d], s%d offen offset:2048 sc1 lds" % (vL16, sB3, sB3 + 3, sB3off))
        a(lab + ":")
        a("s_add_u32 s%d, s%d, %d" % (sB3off, sB3off, 80 * 1024))
        Q.extend([("S", st)] * 2)

    def dA3(st):
        if st == 55:
            a("s_cmp_eq_u32 s%d, 1" % sRR)
            a("s_cselect_b32 s%d, 0x40000000, s%d" % (sA3off, sA3off))
        a("s_add_u32 m0, s%d, %d" % (sMA, slotA(st)))
        for t in range(2):
            a("buffer_load_dwordx4 v%d, s[%d:%d], s%d offen offset:%d sc1 lds" % (vL16, sA3, sA3 + 3, sA3off, 1024 * t))
        a("s_add_u32 s%d, s%d, 4096" % (sA3off, sA3off))
        Q.extend([("S", st)] * 2)

    def vpoll_issue(vaddr, soff):
        a("buffer_load_dword v%d, v%d, s[%d:%d], s%d offen sc1" % (vPoll, vaddr, sWS, sWS + 3, soff))

    def vpoll_check(vaddr, soff, target, n):
        l0, l1 = a.label("Lchk"), a.label("Lok")
        a("s_waitcnt vmcnt(%d)" % n)
        a(l0 + ":")
        a("v_cmp_eq_u32 s[46:47], %d, v%d" % (target, vPoll))
        a("s_cmp_eq_u64 s[46:47], -1")
        a("s_cbranch_scc1 %s" % l1)
        a("s_sleep %d" % SL1)
        if target == 14:
            l2 = a.label("Lsl")
            a("v_cmp_eq_u32 s[46:47], 0, v%d" % vPoll)
            a("s_cmp_eq_u64 s[46:47], 0")
            a("s_cbranch_scc1 %s" % l2)
            a("s_sleep %d" % SL2)
            a(l2 + ":")
        vpoll_issue(vaddr, soff)
        a("s_waitcnt vmcnt(0)")
        a("s_branch %s" % l0)
        a(l1 + ":")

    a("v_mov_b32 v6, %d" % LREL)
    a("s_cmp_lg_u32 s%d, 0" % sW)
    a("s_cbranch_scc1 K2_nw0")
    a("s_waitcnt vmcnt(%d)" % (0 if (STAMP and not k1.LITE) else NPST))
    a("v_cmp_eq_u32 s[46:47], 14, v%d" % vPoll)
    a("s_cmp_eq_u64 s[46:47], -1")
    a("s_cselect_b32 s%d, %d, 0" % (sT0, 0 if "flate" in EXP else 1))
    a("v_mov_b32 v7, s%d" % sT0)
    a("ds_write_b32 v6, v7")
    a("s_waitcnt lgkmcnt(0)")
    a("K2_nw0:")
    a("s_barrier")
    a("ds_read_b32 v7, v6")
    for st in range(NPRE, 3):
        dAa(st)
    stamp(a, 1)
    a("s_waitcnt lgkmcnt(0)")
    a("v_readfirstlane_b32 s%d, v7" % sT0)
    a("s_cmp_eq_u32 s%d, 1" % sT0)

    def late(lb):
        a("s_waitcnt vmcnt(0)")
        a("s_barrier")
        a("s_cmp_lg_u32 s%d, 0" % sW)
        a("s_cbranch_scc1 K2_lw")
        vpoll_issue(vPz, sT3)
        vpoll_check(vPz, sT3, 14, 0)
        a("K2_lw:")
        a("s_barrier")
        n = len(Q)
        for st in range(3):
            dAb(st)
        del Q[n:]
    lb = k1.rare(a, "s_cbranch_scc0", late)
    for st in range(3):
        dAb(st)
    a("s_waitcnt vmcnt(9)")
    a("s_barrier")
    a("s_barrier")
    a(lb + ":")
    stamp(a, 2)
    a("v_and_b32 v%d, 1, v0" % vPz)
    a("v_lshlrev_b32 v%d, 11, v%d" % (vPz, vPz))
    a("s_lshr_b32 s%d, s%d, 2" % (sT3, sI))
    a("s_lshl_b32 s%d, s%d, 12" % (sT3, sT3))
    a("s_add_u32 s%d, s%d, 0x%x" % (sT3, sT3, WS_FL + 1024))
    a("s_lshl_b32 s%d, s%d, 7" % (sT0, sJ))
    a("s_add_u32 s%d, s%d, s%d" % (sT3, sT3, sT0))
    a("s_waitcnt vmcnt(%d)" % younger(lambda t: t == ("S", 0)))
    a("s_barrier")
    for st in range(3, NSA):
        if st >= NPRE:
            dAa(st)
        dAb(st)
    if NPRE <= 5:
        dAa(5)
    srd_off(a, sA3, 52, WS_A3, 64 * NG_A3 * 1024)
    srd_off(a, sB3, 52, WS_B3, 47 * 40 * 1024)
    a("s_lshl_b32 s%d, s%d, 1" % (sT0, sI))
    a("s_add_u32 s%d, s%d, s%d" % (sT0, sT0, sCC))
    a("s_mul_i32 s%d, s%d, %d" % (sA3off, sT0, NG_A3))
    a("s_lshl_b32 s%d, s%d, 1" % (sT0, sRR))
    a("s_add_u32 s%d, s%d, s%d" % (sA3off, sA3off, sT0))
    a("s_lshl_b32 s%d, s%d, 10" % (sA3off, sA3off))
    a("s_mul_i32 s%d, s%d, 3" % (sT0, sRR))
    a("s_mul_i32 s%d, s%d, 40" % (sB3off, sCC))
    a("s_add_u32 s%d, s%d, s%d" % (sB3off, sB3off, sT0))
    a("s_mul_i32 s%d, s%d, 5" % (sT1, sJ))
    a("s_add_u32 s%d, s%d, s%d" % (sB3off, sB3off, sT1))
    a("s_lshl_b32 s%d, s%d, 10" % (sB3off, sB3off))
    a("s_mul_i32 s%d, s%d, 5" % (sMB3, sCC))
    a("s_add_u32 s%d, s%d, s%d" % (sMB3, sMB3, sT0))
    a("s_lshl_b32 s%d, s%d, 10" % (sMB3, sMB3))
    a("v_lshrrev_b32 v1, 5, v0")
    a("v_and_b32 v2, 31, v0")
    a("s_lshl_b32 s%d, s%d, 2" % (sHd, sJ))
    a("s_add_u32 s%d, s%d, s%d" % (sHd, sHd, sW))
    a("s_mul_i32 s%d, s%d, 2560" % (sKv, sHd))
    a("s_add_u32 s%d, s%d, 0x%x" % (sKv, sKv, WS_KV))
    a("s_lshl_b32 s%d, s%d, 7" % (sCnt, sHd))
    a("s_add_u32 s%d, s%d, 0x%x" % (sCnt, sCnt, CNT_KV))
    a("s_lshl_b32 s%d, s%d, 7" % (sCntI, sI))
    a("s_add_u32 s%d, s%d, 0x%x" % (sCntI, sCntI, CNT_O))
    a("s_mul_i32 s%d, s%d, 5" % (sT0, sW))
    a("v_add_u32 v%d, s%d, v1" % (T + 3, sT0))
    quad_addr(a, T + 6, T + 3, False, T + 4, T + 5)
    a("v_add_u32 v%d, 2, v%d" % (T + 3, T + 3))
    quad_addr(a, T + 7, T + 3, False, T + 4, T + 5)
    a("s_add_u32 s%d, s%d, 4" % (sT0, sT0))
    a("v_mov_b32 v%d, s%d" % (T + 3, sT0))
    quad_addr(a, T + 8, T + 3, False, T + 4, T + 5)
    for n in range(3):
        a("v_add_u32 v%d, %d, v%d" % (T + 6 + n, OSC, T + 6 + n))
    a("s_lshl_b32 s%d, s%d, 10" % (sT0, sW))
    a("v_add_u32 v%d, s%d, v%d" % (vT0, sT0, vL16))
    a("s_lshl_b32 s%d, s%d, 8" % (sT0, sW))
    a("s_add_u32 s%d, s%d, 4096" % (sT0, sT0))
    a("v_add_u32 v%d, s%d, v%d" % (vT1, sT0, vL16))
    a("v_add_u32 v%d, %d, v%d" % (vT2, OSC, vT0))
    a("v_add_u32 v%d, %d, v%d" % (vT3, OSC, vT1))
    for t in range(3):
        a("v_add_u32 v%d, %d, v0" % (T + 3, 64 * t))
        a("v_min_u32 v%d, 159, v%d" % (T + 3, T + 3))
        a("v_mul_u32_u24 v%d, 205, v%d" % (T + 4, T + 3))
        a("v_lshrrev_b32 v%d, 11, v%d" % (T + 4, T + 4))
        a("v_mul_u32_u24 v%d, %d, v%d" % (T + 4, 1280 - 160, T + 4))
        a("v_lshl_add_u32 v%d, v%d, 4, v%d" % (vXd + t, T + 3, T + 4))
        if t:
            a("v_subrev_u32 v%d, %d, v%d" % (vXd + t, 1024 * t, vXd + t))
    srd(a, sO, 54, S * D * 2)
    a("s_lshl_b32 s%d, s%d, 2" % (sT0, sI))
    a("s_add_u32 s%d, s%d, s%d" % (sT0, sT0, sW))
    a("s_mul_i32 s%d, s%d, %d" % (sXo0, sT0, 16 * 1280))
    a("s_mul_i32 s%d, s%d, 160" % (sT0, sJ))
    a("s_add_u32 s%d, s%d, s%d" % (sXo0, sXo0, sT0))
    a("s_lshl_b32 s%d, s%d, 12" % (sXo1, sW))
    a("v_cmp_eq_u32 s[46:47], 24, v2")
    a("v_cndmask_b32 v%d, v2, 20, s[46:47]" % (T + 9))
    a("v_lshlrev_b32 v%d, 2, v%d" % (T + 9, T + 9))
    a("v_lshl_add_u32 v%d, v1, 10, v%d" % (T + 10, T + 9))
    a("v_lshl_add_u32 v%d, v1, 30, v%d" % (T + 9, T + 9))
    nextA = 32
    nextB = 32
    for b in range(0, 55):
        need = [("S", b + 1)] if b != 31 else []
        if b == 2 * HK[0] - 1:
            need.append(("SD", 0))
        if need:
            a("s_waitcnt vmcnt(%d)" % younger(lambda t: t in need))
        a("s_barrier")
        if b == PA[0]:
            vpoll_issue(vPz, sT3)
            Q.append(("P", b))
        if b == PA[1]:
            stamp(a, 3)
            vpoll_check(vPz, sT3, 16, younger(lambda t: t[0] == "P"))
            stamp(a, 4)
            a("s_and_b32 s%d, s%d, 3" % (sWk, sI))
            a("s_andn2_b32 s%d, s%d, 3" % (sT0, sI))
            a("s_add_u32 s%d, s%d, s%d" % (sT0, sT0, sW))
            a("s_mul_i32 s%d, s%d, %d" % (sT0, sT0, 2 * NG_QKV))
            a("s_mul_i32 s%d, s%d, 5" % (sT1, sJ))
            a("s_add_u32 s%d, s%d, s%d" % (sT0, sT0, sT1))
            a("s_add_u32 s%d, s%d, s%d" % (sT0, sT0, sWk))
            a("s_lshl_b32 s%d, s%d, 10" % (sT0, sT0))
            a("s_add_u32 s%d, s%d, %d" % (sT0, sT0, WS_QKV + 40 * 1024))
            a("s_lshl_b32 s%d, s%d, 13" % (sT2, sW))
            for n in range(4):
                a("s_add_u32 m0, s%d, %d" % (sT2, SIDE + 2048 * n))
                a("s_add_u32 s%d, s%d, %d" % (sT1, sT0, ((n & 1) * NG_QKV + (n >> 1) * 40) * 1024))
                a("buffer_load_dwordx4 v%d, s[%d:%d], s%d offen sc1 lds" % (vL16, sWS, sWS + 3, sT1))
                a("buffer_load_dwordx4 v%d, s[%d:%d], s%d offen offset:1024 sc1 lds" % (vL16, sWS, sWS + 3, sT1))
            Q.extend([("SD", 0)] * 8)
        if b == PA[1] + 6:
            a("s_mul_i32 s%d, s%d, 5" % (sT0, sHd))
            a("v_lshlrev_b32 v%d, 1, v1" % (T + 1))
            a("v_add_u32 v%d, s%d, v%d" % (T + 1, sT0, T + 1))
            a("s_mul_i32 s%d, s%d, %d" % (sT1, sI, 2 * NG_QKV * 1024))
            a("s_add_u32 s%d, s%d, %d" % (sT2, sT1, NG_QKV * 1024))
            for n in range(3):
                if n == 1:
                    a("v_add_u32 v%d, 1, v%d" % (T + 1, T + 1))
                if n == 2:
                    a("s_add_u32 s%d, s%d, 4" % (sT0, sT0))
                    a("v_mov_b32 v%d, s%d" % (T + 1, sT0))
                quad_addr(a, T + 2, T + 1, True, T + 4, T + 5)
                for sb in range(2):
                    d = PQR + 6 * sb + 2 * n
                    if "noex" not in EXP:
                        a("buffer_load_dwordx2 v[%d:%d], v%d, s[%d:%d], s%d offen sc1" % (d, d + 1, T + 2, sWS, sWS + 3, sT1 if sb == 0 else sT2))
            Q.extend([("PQ", 0)] * 6)
        if b == PK[0]:
            poll_issue(a, sCnt)
            Q.append(("P", b))
        if b == PK[1]:
            stamp(a, 5)
            poll_check(a, sCnt, target=24, n=younger(lambda t: t[0] == "P"))
            stamp(a, 6)
            for n in range(8):
                a("buffer_load_dword v%d, v%d, s[%d:%d], s%d offen offset:%d sc1" % (KVF + n, T + 10, sWS, sWS + 3, sKv, 128 * n))
            for n in range(4):
                a("buffer_load_dword v%d, v%d, s[%d:%d], s%d offen offset:%d sc1" % (KVF + 8 + n, T + 9, sWS, sWS + 3, sKv, 2048 + 128 * n))
            Q.extend([("KV", 0)] * 12)
        if b + NSA <= 31:
            dAb(b + NSA)
        if NPRE <= b + 6 <= 31:
            dAa(b + 6)
        if b == PO[0]:
            poll_issue(a, sCntI)
            Q.append(("P", b))
        if b == PU[0]:
            poll_issue(a, sCntI)
            Q.append(("P", b))
        avail = {32: 26, 33: 27, 34: 28, 35: 29, 36: 29, 37: 30, 38: 31, 39: 31}
        while nextB <= 55 and avail.get(nextB, nextB - 8) <= b:
            dB3(nextB)
            nextB += 1
        if b in (PO[1], PU[1]):
            stamp(a, 7 if b == PO[1] else 9)
            poll_check(a, sCntI, n=younger(lambda t: t[0] == "P"))
            stamp(a, 8 if b == PO[1] else 10)
            if b == PO[1]:
                a("s_add_u32 s%d, s%d, %d" % (sCntI, sCntI, CNT_U - CNT_O))
        if b >= PO[1]:
            lim = min(b + 6, 55) if b >= PU[1] else min(b + 6, 41)
            while nextA <= lim:
                dA3(nextA)
                nextA += 1
        if b == 31:
            a("s_waitcnt vmcnt(%d)" % younger(lambda t: t == ("S", 32)))
            a("s_barrier")
        if b == 36:
            a("s_mov_b32 m0, s%d" % sXo1)
            for t in range(3):
                a("buffer_load_dwordx4 v%d, s[%d:%d], s%d offen offset:%d lds" % (vXd + t, sO, sO + 3, sXo0, 1024 * t))
            Q.extend([("X", 0)] * 3)
        if b == PK[2]:
            a("s_mul_i32 s%d, s%d, %d" % (sT1, sI, 2 * NG_A3 * 1024))
            a("s_mul_i32 s%d, s%d, 5120" % (sT2, sJ))
            a("s_add_u32 s%d, s%d, s%d" % (sT1, sT1, sT2))
            a("s_add_u32 s%d, s%d, 0x%x" % (sT1, sT1, WS_A3))
            a("s_add_u32 s%d, s%d, %d" % (sT2, sT1, NG_A3 * 1024))
            a("v_cmp_eq_u32 s[46:47], 1, v1")
            a("s_waitcnt vmcnt(%d)" % younger(lambda t: t[0] == "KV"))
            for n in range(6):
                a("v_cvt_pk_bf16_f32 v%d, v%d, v%d" % (KVF + 16 + n, KVF + 2 * n, KVF + 2 * n + 1))
            for sb in range(2):
                d, p = DO + 16 * sb, PQR + 6 * sb
                a("v_mfma_f32_32x32x16_bf16 v[%d:%d], v[%d:%d], v[%d:%d], 0" % (d, d + 15, KVF + 16, KVF + 19, p, p + 3))
                a("v_mfma_f32_32x32x8_bf16 v[%d:%d], v[%d:%d], v[%d:%d], v[%d:%d]" % (d, d + 15, KVF + 20, KVF + 21, p + 4, p + 5, d, d + 15))
            for sb in range(2):
                d = DO + 16 * sb
                a("v_cndmask_b32 v%d, v%d, v%d, s[46:47]" % (T, d + 12, d + 8))
                a("v_add_f32 v%d, %s, v%d" % (T, fhex(1e-6), T))
                a("v_rcp_f32 v%d, v%d" % (T, T))
                for r in range(12):
                    a("v_mul_f32 v%d, v%d, v%d" % (d + r, d + r, T))
                for n in range(6):
                    a("v_cvt_pk_bf16_f32 v%d, v%d, v%d" % (KVF + 8 * sb + n, d + 2 * n, d + 2 * n + 1))
            for n in range(3):
                if n == 2:
                    a("s_mov_b32 exec_hi, 0")
                for sb in range(2):
                    p = KVF + 8 * sb + 2 * n
                    a("ds_write_b64 v%d, v[%d:%d] offset:%d" % (T + 6 + n, p, p + 1, 5120 * sb))
            a("s_mov_b64 exec, -1")
            a("s_waitcnt lgkmcnt(0)")
        if b == PK[2] + 1:
            for sb in range(2):
                a("ds_read_b128 v[%d:%d], v%d offset:%d" % (DO + 8 * sb, DO + 8 * sb + 3, vT2, 5120 * sb))
            a("s_mov_b64 exec, 0xffff")
            for sb in range(2):
                a("ds_read_b128 v[%d:%d], v%d offset:%d" % (DO + 8 * sb + 4, DO + 8 * sb + 7, vT3, 5120 * sb))
            a("s_waitcnt lgkmcnt(0)")
            for sb in range(2):
                a("buffer_store_dwordx4 v[%d:%d], v%d, s[%d:%d], s%d offen sc1" % (DO + 8 * sb + 4, DO + 8 * sb + 7, vT1, sWS, sWS + 3, sT1 if sb == 0 else sT2))
            a("s_mov_b64 exec, -1")
            for sb in range(2):
                a("buffer_store_dwordx4 v[%d:%d], v%d, s[%d:%d], s%d offen sc1" % (DO + 8 * sb, DO + 8 * sb + 3, vT0, sWS, sWS + 3, sT1 if sb == 0 else sT2))
            Q.extend([("O", 0)] * 4)
        if b == PK[3]:
            signal(a, sCntI, n=younger(lambda t: t[0] == "O"))
            Q.append(("G", 0))
    stamp(a, 11)
    if STAMP:
        a("s_add_u32 s%d, s%d, 4" % (sW, sW))
    stamp_dump(a, 12, sWS, sW, WS_STAMP + 0x20000)
    a("s_endpgm")
    a = a0
    a("K2_consumer:")
    if "prio" in EXP:
        a("s_setprio 2")
    a("s_barrier")
    a("s_and_b32 s%d, s%d, 3" % (sW, sW))

    a("s_lshl_b32 s%d, s%d, 2" % (sHd, sJ))
    a("s_add_u32 s%d, s%d, s%d" % (sHd, sHd, sW))
    a("s_and_b32 s%d, s%d, 3" % (sWk, sI))
    a("s_lshl_b32 s%d, s%d, 13" % (sT2, sW))
    a("s_add_u32 s%d, s%d, %d" % (sT2, sT2, SIDE))
    a("s_mov_b32 s%d, %d" % (sRd, slotA(0)))
    a("s_mov_b32 s%d, %d" % (sRdB, slotB(0)))
    srd(a, sBS, 50, S * 2)
    srd(a, sO, 62, S * D * 2)
    a("v_lshrrev_b32 v1, 4, v0")
    a("v_and_b32 v2, 15, v0")
    a("v_and_b32 v3, 1, v1")
    a("v_lshrrev_b32 v4, 1, v1")
    a("v_lshl_add_u32 v5, v3, 5, v2")
    a("v_lshlrev_b32 v5, 4, v5")
    a("v_lshl_add_u32 v5, v4, 10, v5")
    a("s_lshl_b32 s%d, s%d, 12" % (sT0, sRR))
    a("v_add_u32 v%d, s%d, v5" % (vLA3, sT0))
    a("v_lshrrev_b32 v5, 2, v2")
    a("v_lshl_add_u32 v5, v3, 2, v5")
    a("v_lshl_add_u32 v5, v4, 4, v5")
    a("v_mul_u32_u24 v5, 160, v5")
    a("v_and_b32 v6, 3, v0")
    a("v_lshl_add_u32 v5, v6, 3, v5")
    a("s_mul_i32 s%d, s%d, 96" % (sT0, sCC))
    a("v_add_u32 v%d, s%d, v5" % (vLB3, sT0))
    a("v_mul_u32_u24 v%d, 160, v2" % vXl)
    a("v_lshl_add_u32 v%d, v1, 3, v%d" % (vXl, vXl))
    a("s_lshl_b32 s%d, s%d, 13" % (sT0, sRR))
    a("s_mul_i32 s%d, s%d, 96" % (sT1, sCC))
    a("s_add_u32 s%d, s%d, s%d" % (sT0, sT0, sT1))
    a("v_add_u32 v%d, s%d, v%d" % (vXl, sT0, vXl))
    a("v_mul_u32_u24 v%d, 1280, v2" % vO)
    a("v_lshl_add_u32 v%d, v1, 3, v%d" % (vO, vO))
    a("s_lshl_b32 s%d, s%d, 1" % (sT3, sI))
    a("s_add_u32 s%d, s%d, s%d" % (sT3, sT3, sRR))
    a("s_mul_i32 s%d, s%d, %d" % (sXo0, sT3, 32 * 1280))
    a("s_mul_i32 s%d, s%d, 160" % (sT0, sJ))
    a("s_add_u32 s%d, s%d, s%d" % (sXo0, sXo0, sT0))
    a("s_mul_i32 s%d, s%d, 96" % (sT0, sCC))
    a("s_add_u32 s%d, s%d, s%d" % (sXo0, sXo0, sT0))
    a("s_add_u32 s%d, s%d, %d" % (sXo1, sXo0, 16 * 1280))
    a("s_lshl_b32 s%d, s%d, 5" % (sT1, sRR))
    a("v_add_u32 v5, s%d, v2" % sT1)
    a("v_lshlrev_b32 v%d, 7, v5" % vLA)
    a("v_lshrrev_b32 v5, 1, v2")
    a("v_xor_b32 v5, v5, v1")
    a("v_lshl_add_u32 v%d, v5, 4, v%d" % (vLA, vLA))
    a("s_and_b32 s%d, s%d, 1" % (sT1, sJ))
    a("s_lshl_b32 s%d, s%d, 3" % (sT1, sT1))
    a("v_bfe_u32 v5, v0, 2, 2")
    a("v_lshl_add_u32 v5, v1, 3, v5")
    a("v_and_b32 v6, 1, v0")
    a("v_lshlrev_b32 v7, 2, v6")
    a("v_xor_b32 v5, v5, v7")
    a("v_xor_b32 v5, s%d, v5" % sT1)
    a("v_lshl_add_u32 v5, v6, 5, v5")
    a("v_lshlrev_b32 v5, 4, v5")
    a("v_bfe_u32 v7, v0, 1, 1")
    a("v_lshl_add_u32 v5, v7, 3, v5")
    a("s_lshl_b32 s%d, s%d, 12" % (sT0, sCC))
    a("v_add_u32 v%d, s%d, v5" % (vLB0, sT0))
    a("v_lshl_add_u32 v5, v3, 5, v2")
    a("v_lshlrev_b32 v5, 4, v5")
    a("v_lshl_add_u32 v%d, v4, 3, v5" % vU)
    a("v_lshlrev_b32 v5, 6, v3")
    a("v_xor_b32 v%d, v5, v%d" % (vZa, vU))
    a("s_lshl_b32 s%d, s%d, 4" % (sT1, sT1))
    a("v_xor_b32 v%d, s%d, v%d" % (vZa, sT1, vZa))
    a("v_xor_b32 v%d, 0x80, v%d" % (vZb, vZa))
    a("v_lshlrev_b32 v%d, 1, v2" % vBias2)
    a("v_lshrrev_b32 v1, 5, v0")
    a("v_and_b32 v2, 31, v0")
    a("v_bfe_u32 v3, v0, 2, 2")
    a("v_lshl_add_u32 v3, v1, 3, v3")
    a("v_bfe_u32 v5, v0, 4, 1")
    a("v_and_b32 v6, 3, v0")
    a("v_lshl_add_u32 v6, v5, 2, v6")
    a("v_min_u32 v6, 4, v6")
    a("v_add_u32 v6, s%d, v6" % sWk)
    a("v_and_b32 v4, 1, v6")
    a("v_lshrrev_b32 v5, 2, v6")
    a("s_add_u32 s%d, s%d, s%d" % (sT1, sJ, sWk))
    a("v_add_u32 v7, s%d, v5" % sT1)
    a("v_and_b32 v7, 1, v7")
    a("v_lshl_add_u32 v7, v7, 1, v4")
    a("v_lshlrev_b32 v7, 2, v7")
    a("v_xor_b32 v7, v7, v3")
    a("v_lshl_add_u32 v7, v4, 5, v7")
    a("v_lshlrev_b32 v7, 4, v7")
    a("v_bfe_u32 v4, v6, 1, 1")
    a("v_lshl_add_u32 v7, v4, 3, v7")
    a("v_lshl_add_u32 v7, v5, 10, v7")
    a("v_add_u32 v%d, s%d, v7" % (T + 8, sT2))
    a("v_xor_b32 v%d, 64, v%d" % (T + 9, T + 8))
    a("v_cmp_eq_u32 s[46:47], 20, v2")
    a("v_mov_b32 v%d, 0x3f803f80" % (T + 10))
    a("v_lshlrev_b32 v%d, 9, v1" % (T + 3))
    a("v_lshl_add_u32 v%d, v2, 2, v%d" % (T + 3, T + 3))
    a("s_mul_i32 s%d, s%d, 2560" % (sKv, sHd))
    a("s_add_u32 s%d, s%d, 0x%x" % (sKv, sKv, WS_KV))
    a("s_lshl_b32 s%d, s%d, 7" % (sCnt, sHd))
    a("s_add_u32 s%d, s%d, 0x%x" % (sCnt, sCnt, CNT_KV))
    a("s_lshl_b32 s%d, s%d, 2" % (sT0, sJ))
    a("s_add_u32 s%d, s%d, s%d" % (sT0, sT0, sWk))
    a("s_mul_i32 s%d, s%d, 2560" % (sKvW, sT0))
    a("s_lshl_b32 s%d, s%d, 10" % (sT1, sW))
    a("s_add_u32 s%d, s%d, s%d" % (sKvW, sKvW, sT1))
    a("s_add_u32 s%d, s%d, 0x%x" % (sKvW, sKvW, WS_KV))
    a("s_lshl_b32 s%d, s%d, 7" % (sCntW, sT0))
    a("s_add_u32 s%d, s%d, 0x%x" % (sCntW, sCntW, CNT_KV))
    a("v_add_u32 v%d, s%d, v%d" % (T + 4, sT2, vL16))
    a("s_add_u32 s%d, s%d, %d" % (sT1, sT1, SIDE))
    a("v_add_u32 v%d, s%d, v%d" % (T + 5, sT1, vL16))
    a("s_lshl_b32 s%d, s%d, 7" % (sCntI, sI))
    a("s_add_u32 s%d, s%d, 0x%x" % (sCntI, sCntI, CNT_O))
    for p in range(32):
        a("v_mov_b32 v%d, 0" % (ACC + p))
    a("s_mul_i32 s%d, s%d, 7" % (sT0, sJ))
    a("s_lshl_b32 s%d, s%d, 2" % (sT1, sCC))
    a("s_add_u32 s%d, s%d, s%d" % (sOdd, sT0, sT1))
    a("s_mul_i32 s%d, s%d, %d" % (sT2, sT3, NG_Z))
    a("s_add_u32 s%d, s%d, s%d" % (sT2, sT2, sOdd))
    a("s_lshl_b32 s%d, s%d, 10" % (sT2, sT2))
    a("s_add_u32 s%d, s%d, 0x%x" % (sT2, sT2, WS_Z))
    stamp(a, 1)
    a("s_waitcnt vmcnt(0)")
    a("s_barrier")
    a("s_cmp_lg_u32 s%d, 0" % sW)
    a("s_cbranch_scc1 K2_noall")
    a("v_mov_b32 v%d, 1" % T)
    a("v_lshlrev_b32 v%d, 7, v0" % (T + 2))
    a("s_mov_b64 exec, 0xff")
    a("buffer_atomic_add v%d, v%d, s[%d:%d], s%d offen sc1" % (T, T + 2, sWS, sWS + 3, sCall))
    a("s_cmp_eq_u32 s69, 1")
    a("s_cbranch_scc1 K2_nolate")
    a("s_sub_u32 s%d, s%d, 1024" % (sCall, sCall))
    a("buffer_atomic_add v%d, v%d, s[%d:%d], s%d offen sc1" % (T, T + 2, sWS, sWS + 3, sCall))
    a("K2_nolate:")
    a("s_mov_b64 exec, -1")
    a("K2_noall:")
    a("s_barrier")
    a("s_barrier")
    a("s_cmp_eq_u32 s%d, 1" % sCC)
    a("s_cbranch_scc1 K2_cc1")
    for cc in range(2):
        na, nb = 4 - cc, 3 - cc

        def ab(t, cc=cc):
            a(t.replace("@", "_%d" % cc))
        if cc:
            a("K2_cc1:")
        stamp(a, 2)
        for t in read_A(FA[0], na):
            a(t)
        ab("s_mov_b32 s%d, 0" % sIt)
        ab("s_mov_b32 s%d, %d" % (sHook, HK[0]))
        stamp(a, 3)
        ab("K2_loop@:")
        cstage(a, mf_A(FA[0], na), read_A(FA[1], na), FRA)
        ab("s_cmp_eq_u32 s%d, %d" % (sIt, HK[0]))
        ab("s_cbranch_scc1 K2_h1@")
        ab("K2_mid@:")
        cstage(a, mf_A(FA[1], na), read_A(FA[0], na), FRA)
        ab("s_add_u32 s%d, s%d, 1" % (sIt, sIt))
        ab("s_cmp_eq_u32 s%d, s%d" % (sIt, sHook))
        ab("s_cbranch_scc0 K2_loop@")
        ab("s_cmp_eq_u32 s%d, 15" % sIt)
        ab("s_cbranch_scc1 K2_h7@")
        ab("s_cmp_eq_u32 s%d, %d" % (sIt, HK[2]))
        ab("s_cbranch_scc1 K2_h2@")
        stamp(a, 4)
        ab("s_mov_b32 s%d, %d" % (sHook, HK[2]))
        for m in range(2):
            for k in range(4):
                d = KVF + 16 * m + 4 * k
                off = m * 4096 + (k >> 1) * 2048 + (k & 1) * 256
                ab("ds_read_b64_tr_b16 v[%d:%d], v%d offset:%d" % (d, d + 1, T + 8, off))
                ab("ds_read_b64_tr_b16 v[%d:%d], v%d offset:%d" % (d + 2, d + 3, T + 9, off))
        ab("s_waitcnt lgkmcnt(0)")
        for p in range(16):
            ab("v_cndmask_b32 v%d, v%d, v%d, s[46:47]" % (KVF + 16 + p, KVF + 16 + p, T + 10))
        for k in range(4):
            ab("v_mfma_f32_32x32x16_bf16 v[%d:%d], v[%d:%d], v[%d:%d], %s" % (
                DO, DO + 15, KVF + 4 * k, KVF + 4 * k + 3, KVF + 16 + 4 * k, KVF + 19 + 4 * k,
                "0" if k == 0 else "v[%d:%d]" % (DO, DO + 15)))
        for q in range(3):
            ab("ds_write_b128 v%d, v[%d:%d] offset:%d" % (T + 4, DO + 4 * q, DO + 4 * q + 3, 1024 * q))
        ab("s_branch K2_loop@")
        ab("K2_h1@:")
        ab("s_cmp_eq_u32 s%d, 3" % sW)
        ab("s_cbranch_scc1 K2_noat@")
        for q in range(4):
            ab("ds_read_b128 v[%d:%d], v%d offset:%d" % (KVF + 4 * q, KVF + 4 * q + 3, T + 5, 8192 * q))
        ab("s_waitcnt lgkmcnt(0)")
        for r in range(4):
            ab("v_add_f32 v%d, v%d, v%d" % (KVF + r, KVF + r, KVF + 4 + r))
            ab("v_add_f32 v%d, v%d, v%d" % (KVF + 8 + r, KVF + 8 + r, KVF + 12 + r))
        for r in range(4):
            ab("v_add_f32 v%d, v%d, v%d" % (KVF + r, KVF + r, KVF + 8 + r))
        ab("s_cmp_eq_u32 s%d, 2" % sW)
        ab("s_cselect_b32 exec_hi, 0, 0x1fffff")
        ab("s_mov_b32 exec_lo, 0x1fffff")
        for r in range(4):
            ab("buffer_atomic_add_f32 v%d, v%d, s[%d:%d], s%d offen offset:%d" % (
                KVF + r, T + 3, sWS, sWS + 3, sKvW, r * 128))
        ab("s_mov_b64 exec, -1")
        ab("K2_noat@:")
        for p in range(24):
            ab("v_mov_b32 v%d, 0" % (ACB + p))
        ab("s_branch K2_mid@")
        ab("K2_h2@:")
        ab("s_mov_b32 s%d, 15" % sHook)
        stamp(a, 5)
        ab("s_cmp_eq_u32 s%d, 3" % sW)
        ab("s_cbranch_scc1 K2_nosig@")
        signal(a, sCntW)
        ab("K2_nosig@:")
        stamp(a, 6)
        for ct in range(na):
            for rt in range(2):
                z = Z1R + 8 * rt + 2 * ct
                ab("buffer_load_dwordx2 v[%d:%d], v%d, s[%d:%d], s%d offen offset:%d sc1" % (
                    z, z + 1, vZb if ct & 1 else vZa, sWS, sWS + 3, sT2, 1024 * ct + 256 * rt))
        ab("s_lshl_b32 s%d, s%d, 6" % (sT0, sT3))
        ab("buffer_load_ushort v%d, v%d, s[%d:%d], s%d offen" % (vBias, vBias2, sBS, sBS + 3, sT0))
        ab("buffer_load_ushort v%d, v%d, s[%d:%d], s%d offen offset:32" % (vBias2, vBias2, sBS, sBS + 3, sT0))
        ab("s_branch K2_loop@")
        ab("K2_h7@:")
        cstage(a, mf_A(FA[0], na), read_A(FA[1], na), FRA)
        cstage(a, mf_A(FA[1], na), [], FRA)
        stamp(a, 8)
        ab("s_mov_b32 s%d, %d" % (sRdB, slotB(32)))
        ab("s_waitcnt vmcnt(0)")
        ab("v_lshlrev_b32 v%d, 16, v%d" % (vBias, vBias))
        ab("s_mul_i32 s%d, s%d, %d" % (sT0, sT3, NG_A3))
        ab("s_add_u32 s%d, s%d, s%d" % (sT0, sT0, sOdd))
        ab("s_lshl_b32 s%d, s%d, 10" % (sT0, sT0))
        ab("s_add_u32 s%d, s%d, %d" % (sT0, sT0, WS_A3 + 40 * 1024))
        ab("v_lshlrev_b32 v%d, 16, v%d" % (vBias2, vBias2))
        for ct in range(na):
            if cc == 1 and ct == 1:
                ab("s_cmp_eq_u32 s%d, 53" % sOdd)
                ab("s_cbranch_scc1 K2_done@")
            for rt in range(2):
                acc = ACC + 16 * rt + 4 * ct
                z = Z1R + 8 * rt + 2 * ct
                vb = vBias2 if rt else vBias
                for pp in range(2):
                    t = T + 2 * pp
                    ab("v_lshlrev_b32 v%d, 16, v%d" % (t, z + pp))
                    ab("v_and_b32 v%d, 0xffff0000, v%d" % (t + 1, z + pp))
                    ab("v_add_f32 v%d, v%d, v%d" % (acc + 2 * pp, acc + 2 * pp, vb))
                    ab("v_add_f32 v%d, v%d, v%d" % (acc + 2 * pp + 1, acc + 2 * pp + 1, vb))
                    ab("v_mul_f32 v%d, v%d, v%d" % (t, t, acc + 2 * pp))
                    ab("v_mul_f32 v%d, v%d, v%d" % (t + 1, t + 1, acc + 2 * pp + 1))
                    ab("v_cvt_pk_bf16_f32 v%d, v%d, v%d" % (z + pp, t, t + 1))
                ab("buffer_store_dwordx2 v[%d:%d], v%d, s[%d:%d], s%d offen offset:%d sc1" % (
                    z, z + 1, vU, sWS, sWS + 3, sT0, 1024 * ct + 256 * rt))
        ab("K2_done@:")
        stamp(a, 9)
        ab("s_add_u32 s%d, s%d, %d" % (sCntI, sCntI, CNT_U - CNT_O))
        ab("s_barrier")
        for t in read_B(FA[0], nb):
            a(t)
        cstage(a, mf_B(FA[0], nb), read_B(FA[1], nb), FRB)
        cstage(a, mf_B(FA[1], nb), read_B(FA[0], nb), FRB)
        stamp(a, 10)
        signal(a, sCntI)
        stamp(a, 11)
        ab("s_mov_b32 s%d, 1" % sIt)
        ab("K3_loop@:")
        cstage(a, mf_B(FA[0], nb), read_B(FA[1], nb), FRB)
        cstage(a, mf_B(FA[1], nb), read_B(FA[0], nb), FRB)
        ab("s_add_u32 s%d, s%d, 1" % (sIt, sIt))
        ab("s_cmp_eq_u32 s%d, 12" % sIt)
        ab("s_cbranch_scc0 K3_loop@")
        stamp(a, 12)
        for rt in range(2):
            for ct in range(nb):
                x = XR + 6 * rt + 2 * ct
                ab("ds_read_b64 v[%d:%d], v%d offset:%d" % (x, x + 1, vXl, rt * 4096 + 32 * ct))
        ab("s_waitcnt lgkmcnt(0)")
        for rt in range(2):
            for ct in range(nb):
                acc = ACB + 12 * rt + 4 * ct
                x = XR + 6 * rt + 2 * ct
                for p in range(2):
                    t = T + 2 * p
                    ab("v_lshlrev_b32 v%d, 16, v%d" % (t, x + p))
                    ab("v_and_b32 v%d, 0xffff0000, v%d" % (t + 1, x + p))
                    ab("v_add_f32 v%d, v%d, v%d" % (t, t, acc + 2 * p))
                    ab("v_add_f32 v%d, v%d, v%d" % (t + 1, t + 1, acc + 2 * p + 1))
                    ab("v_cvt_pk_bf16_f32 v%d, v%d, v%d" % (x + p, t, t + 1))
                ab("buffer_store_dwordx2 v[%d:%d], v%d, s[%d:%d], s%d offen offset:%d" % (x, x + 1, vO, sO, sO + 3, sXo0 if rt == 0 else sXo1, 32 * ct))
        stamp(a, 13)
        if STAMP:
            ab("s_waitcnt vmcnt(0)")
        stamp(a, 14)
        stamp_dump(a, 15, sWS, sW, WS_STAMP + 0x20000)
        ab("s_endpgm")
```

```python
import sys
from asmlib import *
from common import *
import k1

HEADER = open('cdna_kernels/%s.s.ref' % NAME).read().split('; Override launch')[0]

def kd(name, nv, ns):
    acc = (nv + 3) // 4 * 4
    return """.amdhsa_kernel %s
  .amdhsa_next_free_vgpr %d
  .amdhsa_next_free_sgpr %d
  .amdhsa_accum_offset %d
  .amdhsa_group_segment_fixed_size 0
  .amdhsa_kernarg_size 88
  .amdhsa_user_sgpr_count 2
  .amdhsa_user_sgpr_kernarg_segment_ptr 1
  .amdhsa_system_sgpr_workgroup_id_x 1
.end_amdhsa_kernel
""" % (name, nv, ns, acc)

def build(kernels, path):
    a = Asm()
    launches, kds = [], []
    for name, fn, grid, block, lds in kernels:
        start = len(a.ins)
        a(".globl %s" % name)
        a(".type %s,@function" % name)
        fn(a, name)
        mv, ms = a.max_regs(start)
        if name == NAME + "_kernel":
            launches.append("; @launch grid=(%d,1,1) block=(%d,1,1) lds=%d" % (grid, block, lds))
        else:
            launches.append("; @launch kernel=%s grid=(%d,1,1) block=(%d,1,1) lds=%d" % (name, grid, block, lds))
        kds.append(".p2align 6\n" + kd(name, mv + 1, ms + 1))
        print(name, "vgpr", mv + 1, "sgpr", ms + 1, "instrs", len(a.ins) - start, file=sys.stderr)
    a("CODE_END:")
    for b in a.check_edges()[:10]:
        print("EDGE HAZARD", b, file=sys.stderr)
    for b in a.check_waits()[:10]:
        print("WAIT?", b, file=sys.stderr)
    txt = HEADER + "\n".join(launches) + "\n" + '.amdgcn_target "amdgcn-amd-amdhsa--gfx950"\n.text\n' + a.text() + '.section .rodata,"a"\n' + "".join(kds)
    open(path, "w").write(txt)

if __name__ == "__main__":
    import os
    ks = [(NAME + "_kernel" if os.environ.get("PLAIN") else "k1_kernel", k1.gen_k1, 256, 512, k1.K1_LDS)]
    build(ks, sys.argv[1] if len(sys.argv) > 1 else 'cdna_kernels/%s.s' % NAME)
```

```python
import os
from asmlib import *
from common import *

LOG2E = 1.4426950408889634
GC1 = -2.0 * 0.7978845608028654 * LOG2E
GC2 = GC1 * 0.044715

REG = 81920
CH = 20480
K1_LDS = 2 * REG

X0, M0, E0, FR, HOLD, PK, T0 = 96, 80, 64, 48, 40, 36, 28
SEL, CSA = 24, 20
NEGMU, RSTD, RL, K1c, K2c, IRSTD = 19, 18, 17, 16, 15, 14
ZSUM, ZSQ = 12, 13
vA = 8
vW1a, vW1b, vSt0, vSt1, vCsR, vCsW = 7, 6, 5, 4, 3, 2
vXA, vXd0, vXd1, vW0a, vW0b = 40, 44, 45, 46, 47
XS, XQ, XQ2 = 36, 28, 32
sX, sW0, sW1, sWS, sDBG = 4, 8, 12, 16, 20
sRb, sCg, sW, sR, sC = 24, 25, 26, 27, 28
sXoff, sW0off, sW1off, sUstep, sUoff = 29, 30, 31, 32, 33
sWu, sOut2, sZok, sL0 = 52, 3, 56, 57
sGl = 70
sFl = 65
vUa, vUb = 74, 75
sDelta, sWb, sT0, sXb, sReady = 34, 35, 36, 37, 38
sOnes, sA, sB, sCc, sOut, sLine, sIsZ2, sType, sOne = 39, 40, 41, 42, 43, 44, 45, 46, 47
sOut1, sL1, sZ2w, sT1, sT2, sOut0, sZ2keep, sLg = 64, 65, 66, 67, 68, 69, 70, 71

STAMP = os.environ.get("STAMP", "0") in ("1", "2")
STOP = "s_memrealtime" if os.environ.get("STAMP") == "2" else "s_memtime"
WS_STAMP = 0x1800000
EXP = os.environ.get("EXP", "").split(",")


LITE = "lite" in EXP
PHASE = [1]
MAP1 = {0: 0, 7: 1, 10: 2, 13: 3}
MAP2 = {1: 4, 2: 5, 3: 6, 4: 7, 6: 8, 8: 9, 10: 10, 11: 11, 12: 12, 14: 14}


def stamp(a, i):
    if STAMP and LITE:
        m = MAP1 if PHASE[0] == 1 else ({14: 14} if "steps" in EXP else MAP2)
        if i in m:
            a("%s s[%d:%d]" % (STOP, 72 + 2 * m[i], 73 + 2 * m[i]))
        return
    if STAMP:
        a("%s s[%d:%d]" % (STOP, 72 + 2 * i, 73 + 2 * i))


def stamp_dump(a, n, srdn, wreg, base):
    if not STAMP or (LITE and base == WS_STAMP):
        return
    if LITE:
        n = 15
    if "dbgt" in EXP:
        lab = a.label("Ldb")
        sel = [0, 2, 7, 8, 9, 10, 13] if base == WS_STAMP else [0, 2, 4, 8, 11, 12, 14]
        first = 1 if base == WS_STAMP else 8
        a("s_load_dwordx2 s[%d:%d], s[0:1], %d" % (srdn, srdn + 1, KA_DBG))
        a("s_waitcnt lgkmcnt(0)")
        a("s_and_b32 s%d, s%d, 0xffff" % (srdn + 1, srdn + 1))
        a("s_mov_b32 s%d, 256" % (srdn + 2))
        a("s_mov_b32 s%d, 0x20000" % (srdn + 3))
        a("s_cmp_lg_u32 s%d, 0" % wreg)
        a("s_cbranch_scc1 %s" % lab)
        a("s_mov_b64 exec, 1")
        if base != WS_STAMP:
            a("v_mov_b32 v2, s100")
            a("buffer_atomic_umax v2, off, s[%d:%d], 0 offset:60 sc1" % (srdn, srdn + 3))
        a("s_cmp_lg_u32 s2, 37")
        a("s_cbranch_scc1 %s" % lab)
        for k, i in enumerate(sel):
            a("v_mov_b32 v2, s%d" % (72 + 2 * i))
            a("buffer_store_dword v2, off, s[%d:%d], 0 offset:%d sc1" % (srdn, srdn + 3, 4 * (first + k)))
        a(lab + ":")
        a("s_mov_b64 exec, -1")
        return
    a("s_waitcnt lgkmcnt(0)")
    a("s_lshl_b32 s%d, s2, 3" % sT0)
    a("s_add_u32 s%d, s%d, s%d" % (sT0, sT0, wreg))
    a("s_lshl_b32 s%d, s%d, 6" % (sT0, sT0))
    a("s_add_u32 s%d, s%d, 0x%x" % (sT0, sT0, base))
    a("s_mov_b32 s%d, 0x4000000" % (srdn + 2))
    a("v_mov_b32 v1, 0")
    a("s_mov_b64 exec, 1")
    for i in range(n):
        a("v_mov_b32 v2, s%d" % (72 + 2 * i))
        a("buffer_store_dword v2, v1, s[%d:%d], s%d offen offset:%d" % (srdn, srdn + 3, sT0, 4 * i))
    a("s_mov_b64 exec, -1")


class LdsQ:
    def __init__(self, a, init=()):
        self.a = a
        self.q = list(init)

    def issue(self, text, tag):
        self.a(text)
        self.q.append(tag)

    def wait(self, *tags):
        idx = [i for i, t in enumerate(self.q) if t in tags]
        if not idx:
            return
        last = max(idx)
        n = len(self.q) - 1 - last
        assert n <= 15
        self.a("s_waitcnt lgkmcnt(%d)" % n)
        self.q = self.q[last + 1:]


def srd(a, d, plo, nbytes):
    a("s_mov_b32 s%d, s%d" % (d, plo))
    a("s_and_b32 s%d, s%d, 0xffff" % (d + 1, plo + 1))
    a("s_mov_b32 s%d, 0x%x" % (d + 2, nbytes))
    a("s_mov_b32 s%d, 0x20000" % (d + 3))


def csel(a, d, t, f):
    a("s_mov_b32 s%d, %s" % (d, f))
    a("s_cselect_b32 s%d, %s, s%d" % (d, t, d))


def spread(n_items, n_slots):
    base, rem = divmod(n_items, n_slots)
    return [base + (1 if i < rem else 0) for i in range(n_slots)]


def frag_reads(q, pos, j):
    d = FR + 4 * (j & 3)
    off = pos * 4096 + (j >> 2) * 2048
    q.issue("ds_read_b64_tr_b16 v[%d:%d], v%d offset:%d" % (d, d + 1, vA + (j & 3), off), "f%d" % j)
    q.issue("ds_read_b64_tr_b16 v[%d:%d], v%d offset:%d" % (d + 2, d + 3, vA + (j & 3), off + 512), "f%d" % j)


def skew(seqs, d):
    if "noskew" in EXP:
        d = 0
    items = sorted((i + d * n, n, op) for n, s in enumerate(seqs) for i, op in enumerate(s))
    return [op for _, _, op in items]


def gelu_ops(regs, outs):
    seqs = []
    for e, (t, p) in zip(regs, outs):
        seqs.append([
            "v_mul_f32 v%d, v%d, v%d" % (t, e, e),
            "v_fma_f32 v%d, v%d, v%d, v%d" % (p, t, K2c, K1c),
            "v_mul_f32 v%d, v%d, v%d" % (p, p, e),
            "v_exp_f32 v%d, v%d" % (p, p),
            "v_fma_f32 v%d, v%d, v%d, v%d" % (p, p, IRSTD, IRSTD),
            "v_rcp_f32 v%d, v%d" % (p, p),
            "v_mul_f32 v%d, v%d, v%d" % (t, e, p),
        ])
    return skew(seqs, float(os.environ.get('SKG', '2')))


def phi_ops(regs, outs):
    seqs = []
    for e, (t, p) in zip(regs, outs):
        seqs.append([
            "v_mul_f32 v%d, v%d, v%d" % (p, e, RL),
            "v_exp_f32 v%d, v%d clamp" % (p, p),
            "v_fma_f32 v%d, v%d, v%d, s%d" % (t, e, RSTD, sCc),
            "v_max_f32 v%d, s%d, v%d" % (t, sA, t),
            "v_fma_f32 v%d, v%d, s%d, v%d" % (t, p, sB, t),
        ])
    return skew(seqs, float(os.environ.get('SKP', '1')))


def epi_cont(typ, hold):
    d = float(os.environ.get("CD", "1.0"))
    items = []
    for e in range(16):
        p, x = T0 + (e & 7), E0 + e
        if typ == "G":
            ops = ["v_mul_f32 v%d, v%d, v%d" % (p, x, x),
                   "v_fma_f32 v%d, v%d, v%d, v%d" % (p, p, K2c, K1c),
                   "v_mul_f32 v%d, v%d, v%d" % (p, p, x),
                   "v_exp_f32 v%d, v%d" % (p, p),
                   "v_fma_f32 v%d, v%d, v%d, v%d" % (p, p, IRSTD, IRSTD),
                   "v_rcp_f32 v%d, v%d" % (p, p),
                   "v_mul_f32 v%d, v%d, v%d" % (x, x, p)]
        else:
            ops = ["v_mul_f32 v%d, v%d, v%d" % (p, x, RL),
                   "v_exp_f32 v%d, v%d clamp" % (p, p),
                   "v_fma_f32 v%d, v%d, v%d, s%d" % (x, x, RSTD, sCc),
                   "v_max_f32 v%d, s%d, v%d" % (x, sA, x),
                   "v_fma_f32 v%d, v%d, s%d, v%d" % (x, p, sB, x)]
        n = len(ops)
        assert 8 * d > n - 1
        for i, op in enumerate(ops):
            items.append((e * d + i, e, op))
        if e & 1:
            o = (HOLD + e // 2) if hold else PK + (e // 2) % 4
            t = e * d + n
            items.append((t, e, "v_cvt_pk_bf16_f32 v%d, v%d, v%d" % (o, x - 1, x)))
            if hold:
                items.append((t + 1, e, "v_dot2c_f32_bf16 v%d, s%d, v%d" % (ZSUM, sOnes, o)))
                items.append((t + 2, e, "v_dot2c_f32_bf16 v%d, v%d, v%d" % (ZSQ, o, o)))
        if (e & 7) == 7:
            items.append((e * d + n + (2.5 if hold else 0.5), e, ("out", e >> 3)))
    items.sort(key=lambda x: (x[0], x[1]))
    return [x[2] for x in items]


def epi_quad(typ, qd, hold=False):
    regs = [E0 + 4 * qd + i for i in range(4)]
    outs = [(T0 + 2 * i, T0 + 2 * i + 1) for i in range(4)]
    ops = gelu_ops(regs, outs) if typ == "G" else phi_ops(regs, outs)
    o = HOLD + 2 * qd if hold else PK + 2 * (qd & 1)
    ops.append("v_cvt_pk_bf16_f32 v%d, v%d, v%d" % (o, outs[0][0], outs[1][0]))
    ops.append("v_cvt_pk_bf16_f32 v%d, v%d, v%d" % (o + 1, outs[2][0], outs[3][0]))
    return ops


RARE = []


def rare(a, cond_branch, fn):
    lr, lb = a.label("Lrare"), a.label("Lback")
    a("%s %s" % (cond_branch, lr))
    RARE.append((lr, lb, fn))
    return lb


def flush_rare(a):
    for lr, lb, fn in RARE:
        a(lr + ":")
        fn(lb)
        a("s_branch %s" % lb)
    del RARE[:]


def epi_out(a, typ, half, z2=False):
    vst = vSt0 if half == 0 else vSt1
    src = HOLD + 4 * half if z2 else PK
    a("buffer_store_dwordx4 v[%d:%d], v%d, s[%d:%d], s%d offen sc1" % (src, src + 3, vst, sWS, sWS + 3, sOut))
    if not z2:
        return
    if half == 1:
        a("s_lshl_b32 s%d, s%d, 9" % (sT0, sW))
        a("s_add_u32 s%d, s%d, %d" % (sT0, sT0, REG + CH + 2 * 4096))
        a("v_lshlrev_b32 v%d, 3, v0" % (T0 + 2))
        a("v_add_u32 v%d, s%d, v%d" % (T0 + 2, sT0, T0 + 2))
        a("v_mul_f32 v%d, s%d, v%d" % (ZSUM, sIsZ2, ZSUM))
        a("v_mul_f32 v%d, s%d, v%d" % (ZSQ, sIsZ2, ZSQ))
        a("v_mov_b32 v%d, v%d" % (T0, ZSUM))
        a("v_mov_b32 v%d, v%d" % (T0 + 1, ZSQ))
        a("v_permlane32_swap_b32 v%d, v%d" % (ZSUM, T0))
        a("v_permlane32_swap_b32 v%d, v%d" % (ZSQ, T0 + 1))
        a("v_add_f32 v%d, v%d, v%d" % (ZSUM, ZSUM, T0))
        a("v_add_f32 v%d, v%d, v%d" % (ZSQ, ZSQ, T0 + 1))


def dma_unit(pos):
    return [
        "s_add_u32 m0, s%d, %d" % (sWb, pos * 4096),
        "buffer_load_dwordx4 v%d, s[%d:%d], s%d offen lds" % (vW1a, sW1, sW1 + 3, sW1off),
        "buffer_load_dwordx4 v%d, s[%d:%d], s%d offen offset:1024 lds" % (vW1b, sW1, sW1 + 3, sW1off),
        "s_add_u32 s%d, s%d, %d" % (sW1off, sW1off, (128 - 4 * 128 * 3840) & 0xffffffff if pos == 4 else 128 * 3840),
    ]


def dma_u(pos):
    return [
        "s_add_u32 m0, s%d, %d" % (sWb, pos * 4096),
        "buffer_load_dwordx4 v%d, s[%d:%d], s%d offen lds" % (vUa, sWu, sWu + 3, sUoff),
        "buffer_load_dwordx4 v%d, s[%d:%d], s%d offen offset:1024 lds" % (vUb, sWu, sWu + 3, sUoff),
        "s_add_u32 s%d, s%d, s%d" % (sUoff, sUoff, sUstep),
    ]


def dma_x(hp):
    return [
        "s_add_u32 m0, s%d, %d" % (sXb, (hp % 5) * 4096),
        "buffer_load_dwordx4 v%d, s[%d:%d], s%d offen lds" % (vXd0, sX, sX + 3, sXoff),
        "buffer_load_dwordx4 v%d, s[%d:%d], s%d offen offset:1024 lds" % (vXd1, sX, sX + 3, sXoff),
        "s_add_u32 s%d, s%d, 128" % (sXoff, sXoff),
    ]


def dma_b0(i):
    return [
        "s_add_u32 m0, s%d, %d" % (sWb, i * 4096 - REG),
        "buffer_load_dwordx4 v%d, s[%d:%d], s%d offen lds" % (vW0a, sW0, sW0 + 3, sW0off),
        "buffer_load_dwordx4 v%d, s[%d:%d], s%d offen offset:1024 lds" % (vW0b, sW0, sW0 + 3, sW0off),
        "s_add_u32 s%d, s%d, %d" % (sW0off, sW0off, 128 * 3456),
    ]


def mfma(a, i, j):
    x = X0 + 32 * i + 4 * j
    f = FR + 4 * (j & 3)
    d = E0 if (i == 4 and j == 7) else M0
    c = "0" if (i == 0 and j == 0) else "v[%d:%d]" % (M0, M0 + 15)
    a("v_mfma_f32_32x32x16_bf16 v[%d:%d], v[%d:%d], v[%d:%d], %s" % (d, d + 15, f, f + 3, x, x + 3, c))


def cs_mfma(a, i, j):
    f = FR + 4 * (j & 3)
    c = "0" if (i == 0 and j == 0) else "v[%d:%d]" % (CSA, CSA + 3)
    a("v_mfma_f32_16x16x32_bf16 v[%d:%d], v[%d:%d], v[%d:%d], %s" % (CSA, CSA + 3, SEL, SEL + 3, f, f + 3, c))


def ext_mfma(a, q):
    q.wait("csr")
    a("v_add_f32 v%d, v%d, v%d" % (PK, PK, PK + 1))
    a("v_add_f32 v%d, v%d, v%d" % (PK + 2, PK + 2, PK + 3))
    a("v_add_f32 v%d, v%d, v%d" % (PK, PK, PK + 2))
    a("v_add_u32 v%d, s%d, v%d" % (vCsR, sDelta, vCsR))
    a("v_mfma_f32_32x32x2_f32 v[%d:%d], v%d, v%d, v[%d:%d]" % (E0, E0 + 15, PK, NEGMU, E0, E0 + 15))


ST = X0
ZN = X0 + 16
ZT = X0 + 24
XE = X0 + 48
vPf = 1
OWN = int(os.environ.get("OWN", "16"))
SIDE_END = int(os.environ.get("SIDE_END", "32"))
TPOS = [tuple(int(c) for c in t.split(".")) for t in os.environ.get("TPOS", "1.2,2.0").split(",") if t]
TLN = OWN // max(len(TPOS), 1)
TAT = int(os.environ.get("TAT", "2"))
W1AT = int(os.environ.get("W1AT", "8"))
N15 = int(os.environ.get("N15", "4"))
N14 = int(os.environ.get("N14", "0"))
PFREST = 65536 - 128 * 64 * (N15 + N14)
PFL = -(-PFREST // (1792 * 2))
LRDY = 2 * 4096 + 3584


def zok_check(a, tmp):
    l0, l1 = a.label("Lz0"), a.label("Lz1")
    a(l0 + ":")
    a("s_cmp_eq_u32 s%d, 16" % sZok)
    a("s_cbranch_scc1 %s" % l1)
    a("buffer_load_dword v%d, off, s[%d:%d], 0 sc1" % (tmp, sDBG, sDBG + 3))
    a("s_waitcnt vmcnt(0)")
    a("v_readfirstlane_b32 s%d, v%d" % (sZok, tmp))
    a("s_branch %s" % l0)
    a(l1 + ":")


def stat_lane(v):
    return ["v_and_b32 v%d, 31, v0" % v,
            "v_lshlrev_b32 v%d, 3, v%d" % (v, v),
            "v_lshrrev_b32 v%d, 5, v0" % (v + 1),
            "v_mul_u32_u24 v%d, %d, v%d" % (v + 1, 7 * 256, v + 1),
            "v_add_u32 v%d, v%d, v%d" % (v, v, v + 1)]


def valid_ops(t):
    L = ["v_and_b32 v%d, v%d, v%d" % (t, ST + 1, ST + 3),
         "v_and_b32 v%d, v%d, v%d" % (t + 1, ST + 5, ST + 7),
         "v_and_b32 v%d, v%d, v%d" % (t + 2, ST + 9, ST + 11),
         "v_and_b32 v%d, v%d, v%d" % (t, t, ST + 13),
         "v_and_b32 v%d, v%d, v%d" % (t + 1, t + 1, t + 2),
         "v_and_b32 v%d, v%d, v%d" % (t, t, t + 1),
         "v_cmp_gt_i32 vcc, 0, v%d" % t,
         "s_cmp_eq_u64 vcc, -1"]
    return L


def sum_ops():
    L = []
    for (d, s_) in ((0, 4), (1, 5), (2, 6), (0, 3), (1, 2), (0, 1)):
        L.append("v_add_f32 v%d, v%d, v%d" % (ST + 2 * d, ST + 2 * d, ST + 2 * s_))
        L.append("v_add_f32 v%d, v%d, v%d" % (ST + 2 * d + 1, ST + 2 * d + 1, ST + 2 * s_ + 1))
    return L


def norm_ops():
    L = ["v_mov_b32 v%d, v%d" % (ST + 2, ST),
         "v_mov_b32 v%d, v%d" % (ST + 3, ST + 1),
         "v_lshlrev_b32 v%d, 16, v%d" % (ZT, HOLD),
         "v_and_b32 v%d, 0xffff0000, v%d" % (ZT + 1, HOLD),
         "v_permlane32_swap_b32 v%d, v%d" % (ST, ST + 2),
         "v_permlane32_swap_b32 v%d, v%d" % (ST + 1, ST + 3),
         "v_add_f32 v%d, v%d, v%d" % (ST, ST, ST + 2),
         "v_add_f32 v%d, v%d, v%d" % (ST + 1, ST + 1, ST + 3),
         "v_mul_f32 v%d, %s, v%d" % (ST, fhex(-1.0 / FH), ST),
         "v_mul_f32 v%d, %s, v%d" % (ST + 1, fhex(-1.0 / FH), ST + 1),
         "v_fma_f32 v%d, -v%d, v%d, v%d" % (ST + 1, ST, ST, ST + 1),
         "v_max_f32 v%d, 0, v%d" % (ST + 1, ST + 1),
         "v_add_f32 v%d, %s, v%d" % (ST + 1, fhex(1e-5), ST + 1),
         "v_rsq_f32 v%d, v%d" % (ST + 1, ST + 1),
         "v_lshlrev_b32 v%d, 16, v%d" % (ZT + 2, HOLD + 1),
         "v_and_b32 v%d, 0xffff0000, v%d" % (ZT + 3, HOLD + 1)]
    for t in range(8):
        z = ZT + 2 * (t & 3)
        L.append("v_add_f32 v%d, v%d, v%d" % (z, z, ST))
        L.append("v_add_f32 v%d, v%d, v%d" % (z + 1, z + 1, ST))
        if t + 2 < 8:
            z2 = ZT + 2 * ((t + 2) & 3)
            L.append("v_lshlrev_b32 v%d, 16, v%d" % (z2, HOLD + t + 2))
            L.append("v_and_b32 v%d, 0xffff0000, v%d" % (z2 + 1, HOLD + t + 2))
        L.append("v_mul_f32 v%d, v%d, v%d" % (z, z, ST + 1))
        L.append("v_mul_f32 v%d, v%d, v%d" % (z + 1, z + 1, ST + 1))
        L.append("v_cvt_pk_bf16_f32 v%d, v%d, v%d" % (ZN + t, z, z + 1))
    return L


def zn_stores(a, soff):
    a("buffer_store_dwordx4 v[%d:%d], v%d, s[%d:%d], s%d offen sc1" % (ZN, ZN + 3, vSt0, sWS, sWS + 3, soff))
    a("buffer_store_dwordx4 v[%d:%d], v%d, s[%d:%d], s%d offen sc1" % (ZN + 4, ZN + 7, vSt1, sWS, sWS + 3, soff))


def cz_signal(a):
    a("v_mov_b32 v%d, 1" % ZSUM)
    a("v_lshlrev_b32 v%d, 7, v0" % ZSQ)
    a("s_mov_b64 exec, 0xff")
    a("buffer_atomic_add v%d, v%d, s[%d:%d], s%d offen sc1" % (ZSUM, ZSQ, sWS, sWS + 3, sT2))
    a("s_mov_b64 exec, -1")


INQ2 = ["f0", "f0", "csw", "f1", "f1", "f2", "f2"]


def next_line_ops():
    return [
        "s_mov_b32 s%d, s%d" % (sOut, sOut1),
        "s_mov_b32 s%d, s%d" % (sOut1, sOut2),
        "s_add_u32 s%d, s%d, 4096" % (sOut2, sOut2),
        "s_cmp_ge_u32 s%d, 20\ns_mov_b32 s%d, %s\ns_cselect_b32 s%d, 0xff800000, s%d\ns_cselect_b32 s%d, 0, 1.0\ns_cselect_b32 s%d, 0, %s" % (
            sLg, sA, fhex(1e-6), sA, sA, sB, sCc, fhex(1e-6)),
        "s_add_u32 s%d, s%d, 1" % (sLg, sLg),
    ]


PRE1 = []
PRE_AT = {(0, 1): 0, (0, 4): 2, (0, 7): 4, (2, 0): 1, (2, 2): 3, (2, 4): 5, (2, 6): 6, (3, 0): 7, (3, 2): 8, (3, 4): 9}
if "prelate" in EXP:
    PRE_AT = {(2, 0): 0, (2, 2): 1, (2, 4): 2, (2, 6): 3, (3, 0): 4, (3, 2): 5, (3, 4): 6, (3, 6): 7, (4, 0): 8, (4, 2): 9}
MARK = {}


def vm_since(a, idx, pre=0):
    return pre + sum(1 for t in a.ins[idx:] if t.kind in ("vmem", "vmem_lds"))


def body(a, typ, line, start=None):
    last = line == 3
    q = LdsQ(a, INQ2)
    allp = []
    if "cont" in EXP:
        allp = epi_cont(typ, line == 1)
    for qd in range(0 if "cont" not in EXP else 4, 4):
        allp += epi_quad(typ, qd, hold=(line == 1))
        if line == 1:
            for t in (HOLD + 2 * qd, HOLD + 2 * qd + 1):
                allp.append("v_dot2c_f32_bf16 v%d, s%d, v%d" % (ZSUM, sOnes, t))
                allp.append("v_dot2c_f32_bf16 v%d, v%d, v%d" % (ZSQ, t, t))
        if qd & 1:
            allp.append(("out", qd >> 1))
    if not last:
        if line == 1:
            ecnt = spread(len(PRE1), 6) + [0] + spread(len(allp), 24) + [0] * 9
            allp = PRE1 + allp
        else:
            ecnt = [0] * 6 + spread(len(allp), 33) + [0]
        lfill, p0 = [], 0
        for i in range(5):
            n = sum(ecnt[8 * i:8 * i + 8])
            lfill.append(allp[p0:p0 + n])
            p0 += n
    if last:
        n3 = spread(len(allp), 3)
        lfill = [[], norm_ops(), allp[:n3[0]], allp[n3[0]:n3[0] + n3[1]], allp[n3[0] + n3[1]:]]
        assert ("out", 0) in lfill[3]
    for i in range(5):
        q.wait("csw")
        if not last:
            u = 5 * line + i + 1
            if start is not None and MARK[u] <= start[0]:
                n = sum(1 for t in a.ins[MARK[u]:start[0]] if t.kind in ("vmem", "vmem_lds")) + vm_since(a, start[1])
            else:
                n = vm_since(a, MARK[u])
            a("s_waitcnt vmcnt(%d)" % (10 if "vm10" in EXP else n))
        elif i in (0, 4):
            a("s_waitcnt vmcnt(%d)" % (1 if i == 0 else vm_since(a, MARK["zn"])))
        a("s_barrier")
        SM = {(1, 1): 4, (1, 3): 5, (2, 0): 6, (2, 2): 7, (2, 3): 8, (2, 4): 9, (3, 0): 10, (3, 1): 11, (3, 3): 12, (3, 4): 13}
        if "steps" in EXP and (line, i) in SM:
            a("%s s[%d:%d]" % (STOP, 72 + 2 * SM[(line, i)], 73 + 2 * SM[(line, i)]))
        if ("st2" in EXP and line == 2) or ("st1" in EXP and line == 1):
            stamp(a, 2 + i)
        if "st3" in EXP and last:
            stamp(a, 2 + i)
        du = dma_unit((i + 2) % 5)
        lump = None
        hasdma = line == 1 or (line == 2 and i < 3)
        fill = lfill[i]
        if last:
            nslots = 7 if i == 4 else 8
            cnt = spread(len(fill), nslots) + [0] * (8 - nslots)
        else:
            cnt = ecnt[8 * i:8 * i + 8]
        pos = 0
        for j in range(8):
            q.wait("f%d" % j)
            mfma(a, i, j)
            if i == 0 and j == 0:
                q.issue("ds_read_b128 v[%d:%d], v%d" % (PK, PK + 3, vCsR), "csr")
            if last and i == 2 and j in (1, 2):
                d, off = XE + 4 * (j - 1), 4 * 4096 + (j - 1) * 2048
                q.issue("ds_read_b64_tr_b16 v[%d:%d], v%d offset:%d" % (d, d + 1, vA, off), "xe")
                q.issue("ds_read_b64_tr_b16 v[%d:%d], v%d offset:%d" % (d + 2, d + 3, vA, off + 512), "xe")
            if last and i == 4 and j == 0:
                q.issue("ds_read_b128 v[%d:%d], v%d" % (XE + 8, XE + 11, vCsR), "csr")
            if i == (3 if last else 4) and j == 6:
                q.issue("ds_write_b32 v%d, v%d" % (vCsW, CSA), "csw")
                if line == 1:
                    a("v_subrev_u32 v%d, %d, v%d" % (vCsW, REG, vCsW))
                if line == 2:
                    a("v_add_u32 v%d, %d, v%d" % (vCsW, REG + 3 * CH - 4096, vCsW))
            if last and i == 4 and j == 2:
                import p2
                p2.p2_loads(a)
            jn = j + 3
            if jn < 8:
                frag_reads(q, i, jn)
            elif not (last and i == 4):
                frag_reads(q, (i + 1) % 5, jn - 8)
            if i == 4 and 1 <= j <= 4 and not last:
                t = (j + 3) & 3
                a("v_add_u32 v%d, s%d, v%d" % (vA + t, sDelta, vA + t))
            if i == 0 and j == (3 if line == 1 else 2):
                ext_mfma(a, q)
                if last:
                    a("v_add_u32 v%d, %d, v%d" % (vCsR, 3 * CH - 4096, vCsR))
                a("s_sub_u32 s%d, 0, s%d" % (sDelta, sDelta))
            if last and i == 0:
                if j == 0:
                    for t in stat_lane(T0):
                        a(t)
                    a("s_mul_i32 s%d, s%d, %d" % (sT0, sR, CH))
                    a("s_add_u32 s%d, s%d, 8192" % (sT0, sT0))
                    a("v_add_u32 v%d, s%d, v%d" % (T0, sT0, T0))
                if j <= 3:
                    for t in (2 * j, 2 * j + 1):
                        if t < 7:
                            q.issue("ds_read_b64 v[%d:%d], v%d offset:%d" % (ST + 2 * t, ST + 2 * t + 1, T0, 256 * t), "st")
                if j == 5:
                    q.wait("st")
                    for t in valid_ops(T0 + 2):
                        a(t)
                    a("s_cselect_b32 s%d, 1, 0" % sT0)
                    a("v_mov_b32 v%d, s%d" % (T0 + 2, sT0))
                    a("v_mov_b32 v%d, %d" % (T0 + 3, LRDY))
                    a("s_mov_b64 exec, 1")
                    q.issue("ds_add_u32 v%d, v%d" % (T0 + 3, T0 + 2), "csw")
                    a("s_mov_b64 exec, -1")
                if j >= 6:
                    for t in sum_ops()[6 * (j - 6):6 * (j - 5)]:
                        a(t)
            if last and i == 1:
                if j == 0:
                    q.issue("ds_read_b32 v%d, v%d" % (T0 + 2, T0 + 3), "rdy")
                if j == 4:
                    q.wait("rdy")
                    a("v_readfirstlane_b32 s%d, v%d" % (sT1, T0 + 2))
                    a("s_cmp_eq_u32 s%d, %d" % (sT1, 9 if "fslow" in EXP else 8))
                    a("s_cselect_b32 s%d, 1, 0" % sReady)
                    a("s_cselect_b32 s%d, s%d, 0x40000000" % (sT0, sOut0))
                    a("s_cselect_b32 s%d, s%d, 99" % (sL1, sL1))
            if not last:
                if j == 0 and i == 3 and line == 2:
                    a("s_mov_b32 m0, s%d" % sGl)
                    a("v_lshlrev_b32 v%d, 4, v0" % ZSUM)
                    a("s_and_b32 s%d, s%d, 0xfffff000" % (sT0, sZ2w))
                    a("s_lshl_b32 s%d, s%d, 11" % (sT1, sC))
                    a("s_add_u32 s%d, s%d, s%d" % (sT0, sT0, sT1))
                    a("buffer_load_dwordx4 v%d, s[%d:%d], s%d offen sc1 lds" % (ZSUM, sWS, sWS + 3, sT0))
                if j == 4 and i == 3 and line == 2:
                    a("buffer_load_dwordx4 v%d, s[%d:%d], s%d offen offset:1024 sc1 lds" % (ZSUM, sWS, sWS + 3, sT0))
                if j == 0 and hasdma:
                    a(du[0])
            for t in fill[pos:pos + cnt[j]]:
                if isinstance(t, tuple):
                    epi_out(a, typ, t[1], z2=(line == 1))
                    if line == 1 and t[1] == 1:
                        q.issue("ds_write_b64 v%d, v[%d:%d]" % (T0 + 2, ZSUM, ZSQ), "csw")
                else:
                    a(t)
            pos += cnt[j]
            if last and i == 1 and j == 7:
                zn_stores(a, sT0)
            if line == 2 and i == 4 and j < 4:
                import p2
                for t in p2.pre_setup(vW1b)[4 * j:4 * j + 4]:
                    a(t)
            import p2
            if last and PRE_AT.get((i, j), 99) < p2.NPRE:
                a(p2.pre_dma(PRE_AT[(i, j)], vW1b, sX))
            if last and i == 1 and j == 7:
                MARK["zn"] = len(a.ins)
            if last and j == 7 and (line, i) in TPOS:
                a("buffer_load_dword v%d, v%d, s[%d:%d], s%d offen" % (X0 + 40, vPf, sX, sX + 3, sXoff))
            if hasdma:
                if j == 0:
                    if (line, i) in TPOS:
                        a("buffer_load_dword v%d, s[%d:%d], s%d offen lds" % (vPf, sX, sX + 3, sXoff))
                        a("s_add_u32 s%d, s%d, %d" % (sXoff, sXoff, TLN * 128))
                    a(du[1])
                if j == 4:
                    a(du[2])
                    MARK[5 * line + i + 7] = len(a.ins)
                    a(du[3])
                    if i == 2:
                        a("s_sub_u32 s%d, s%d, s%d" % (sWb, sWb, sDelta))
            if lump and j == 6:
                lump()
            if (j & 3) == 0 and not (last and i == 4):
                cs_mfma(a, i, j)
            if last and (i, j) in ((2, 6), (3, 2)):
                q.wait("xe")
                f = XE + (0 if i == 2 else 4)
                a("v_mfma_f32_16x16x32_bf16 v[%d:%d], v[%d:%d], v[%d:%d], v[%d:%d]" % (CSA, CSA + 3, SEL, SEL + 3, f, f + 3, CSA, CSA + 3))
            if last and i == 4 and j == 3:
                c = XE + 8
                q.wait("csr")
                a("v_add_f32 v%d, v%d, v%d" % (c, c, c + 1))
                a("v_add_f32 v%d, v%d, v%d" % (c + 2, c + 2, c + 3))
                a("v_add_f32 v%d, v%d, v%d" % (c, c, c + 2))
                a("v_mfma_f32_32x32x2_f32 v[%d:%d], v%d, v%d, v[%d:%d]" % (M0, M0 + 15, c, NEGMU, M0, M0 + 15))
            if line == 1 and i == 4:
                if j == 0:
                    a("v_xor_b32 v%d, 0x800, v%d" % (T0 + 2, T0 + 2))
                    q.issue("ds_read_b64 v[%d:%d], v%d" % (T0 + 4, T0 + 5, T0 + 2), "zp")
                    a("v_lshlrev_b32 v%d, 3, v0" % T0)
                if j == 2:
                    a("s_waitcnt lgkmcnt(0)")
                    q.q = []
                    a("s_cmp_lg_u32 s%d, 16" % sZok)
                    a(rare(a, "s_cbranch_scc1", lambda lb: zok_check(a, T0 + 6)) + ":")
                    a("v_add_f32 v%d, v%d, v%d" % (ZSUM, ZSUM, T0 + 4))
                    a("v_add_f32 v%d, v%d, v%d" % (ZSQ, ZSQ, T0 + 5))
                    a("v_or_b32 v%d, 0x80000000, v%d" % (ZSQ, ZSQ))
                    a("s_mov_b32 exec_hi, 0")
                    a("buffer_store_dwordx2 v[%d:%d], v%d, s[%d:%d], s%d offen sc1" % (ZSUM, ZSQ, T0, sWS, sWS + 3, sL0))
                    a("s_mov_b64 exec, -1")
            if j == 0 and i == 4 and last:
                a("s_cmp_eq_u32 s%d, 0" % sReady)
                a(rare(a, "s_cbranch_scc1", lambda lb: z2_fetch(a)) + ":")
            if j == 1 and i == 4 and last:
                lsk = a.label("Lns")
                a("s_cmp_lg_u32 s%d, 2" % sL1)
                a("s_cbranch_scc1 %s" % lsk)
                cz_signal(a)
                a(lsk + ":")
            if i == 4 and j == 7:
                for t in next_line_ops():
                    a(t)
        assert pos == len(fill)
    assert q.q == ([] if last else INQ2), q.q
    if STAMP and not LITE:
        a("s_mov_b32 s88, s90")
        a("s_mov_b32 s90, s92")
    stamp(a, 10)


def z2_fetch(a):
    for t in stat_lane(ZT + 8):
        a(t)
    a("s_and_b32 s%d, s%d, 0xfffff000" % (sT0, sZ2w))
    for t in range(7):
        a("buffer_load_dwordx2 v[%d:%d], v%d, s[%d:%d], s%d offen offset:%d sc1" % (
            ST + 2 * t, ST + 2 * t + 1, ZT + 8, sWS, sWS + 3, sT0, 256 * t))


def z2_slow(a, lb):
    lp, lo = a.label("Lpoll"), a.label("Lok")
    a("s_waitcnt vmcnt(1)")
    a(lp + ":")
    for t in valid_ops(ZT):
        a(t)
    a("s_cbranch_scc1 %s" % lo)
    z2_fetch(a)
    a("s_waitcnt vmcnt(0)")
    a("s_branch %s" % lp)
    a(lo + ":")
    for t in sum_ops() + norm_ops():
        a(t)
    zn_stores(a, sOut0)


def tail_regs(a):
    a("s_add_u32 s71, s%d, 1024" % sT2)
    a("s_mov_b32 s70, %s" % ("0" if "fzok" in EXP else "s%d" % sZok))
    a("s_mov_b32 s69, s%d" % sReady)


def tail_one(a):
    q = LdsQ(a)
    a("s_waitcnt lgkmcnt(0)")
    a("s_barrier")
    q.issue("ds_read_b128 v[%d:%d], v%d" % (PK, PK + 3, vCsR), "csr")
    ext_mfma(a, q)
    tail_regs(a)
    a("s_nop 3")


def own_row(a, d):
    a("s_bfe_u32 s%d, s2, 0x20001" % d)
    a("s_lshl_b32 s%d, s%d, 3" % (d, d))
    a("s_lshr_b32 s%d, s2, 5" % sT0)
    a("s_add_u32 s%d, s%d, s%d" % (d, d, sT0))
    a("s_lshl_b32 s%d, s%d, 1" % (d, d))
    a("s_and_b32 s%d, s2, 1" % sT0)
    a("s_add_u32 s%d, s%d, s%d" % (d, d, sT0))
    a("s_lshl_b32 s%d, s%d, 2" % (d, d))
    a("s_bfe_u32 s%d, s2, 0x20003" % sT0)
    a("s_add_u32 s%d, s%d, s%d" % (d, d, sT0))
    a("s_lshl_b32 s%d, s%d, 3" % (d, d))
    a("s_add_u32 s%d, s%d, s%d" % (d, d, sW))
    a("s_lshl_b32 s%d, s%d, 12" % (d, d))


def pf_own(a):
    if OWN == 0:
        return
    srd(a, sDBG, 58, S * S * 2)
    own_row(a, sXoff)
    a("v_min_u32 v99, %d, v0" % (OWN - 1))
    a("v_lshlrev_b32 v99, 7, v99")
    a("buffer_load_dword v98, v99, s[%d:%d], s%d offen" % (sDBG, sDBG + 3, sXoff))


def pf_wsp(a):
    srd(a, sDBG, 58, S * S * 2)
    a("s_lshl_b32 s%d, s%d, 3" % (sT0, sRb))
    a("s_add_u32 s%d, s%d, s%d" % (sT0, sT0, sW))
    a("s_lshl_b32 s%d, s%d, 16" % (sT0, sT0))
    a("s_add_u32 s%d, s%d, 32768" % (sT2, sT0))
    a("v_and_b32 v97, 7, v0")
    a("v_lshlrev_b32 v97, 7, v97")
    a("v_lshrrev_b32 v96, 3, v0")
    a("v_lshl_add_u32 v97, v96, 12, v97")
    n = 0
    for g in range(OWN, SIDE_END, 8):
        for so in (sT0, sT2):
            a("buffer_load_dword v%d, v97, s[%d:%d], s%d offen offset:%d" % (100 + n, sDBG, sDBG + 3, so, g * 128))
            n += 1


def retile(a):
    a("s_lshl_b32 s%d, s%d, 1" % (sRb, sRb))
    a("s_and_b32 s%d, s%d, 1" % (sT0, sCg))
    a("s_add_u32 s%d, s%d, s%d" % (sRb, sRb, sT0))
    a("s_waitcnt lgkmcnt(0)")
    srd(a, sW0, 46, FH * D * 2)
    a("s_mov_b32 s%d, -20" % sT1)
    a("s_cmp_lt_u32 s%d, 20" % sRb)
    a("s_cselect_b32 s%d, s44, s46" % sW1)
    a("s_cselect_b32 s%d, s45, s47" % (sW1 + 1))
    csel(a, sW1 + 2, hex(D * D * 2), hex(FH * D * 2))
    a("s_cselect_b32 s%d, 0, s%d" % (sT1, sT1))
    a("s_and_b32 s%d, s%d, 0xffff" % (sW1 + 1, sW1 + 1))
    a("s_mov_b32 s%d, 0x20000" % (sW1 + 3))
    a("s_mul_i32 s%d, s%d, 160" % (sT0, sW))
    for t in range(5):
        a("v_add_u32 v120, %d, v0" % (64 * t))
        a("v_mul_u32_u24 v121, 205, v120")
        a("v_lshrrev_b32 v121, 11, v121")
        a("v_mul_u32_u24 v121, %d, v121" % (1280 - 160))
        a("v_lshl_add_u32 v121, v120, 4, v121")
        a("v_add_u32 v%d, s%d, v121" % (124 + t, sT0))
    a("s_add_u32 s%d, s%d, s%d" % (sT1, sRb, sT1))
    a("s_mul_i32 s%d, s%d, %d" % (sW1off, sT1, 32 * 1280))
    a("s_add_u32 s%d, s%d, 12" % (sT1, sRb))
    a("s_mul_i32 s%d, s%d, %d" % (sW0off, sT1, 32 * 1280))
    for n, (sd, so) in enumerate(((sW1, sW1off), (sW0, sW0off))):
        for t in range(5):
            d = 132 + 20 * n + 4 * t
            a("buffer_load_dwordx4 v[%d:%d], v%d, s[%d:%d], s%d offen" % (d, d + 3, 124 + t, sd, sd + 3, so))
    a("v_lshlrev_b32 v122, 4, v0")
    a("s_mul_i32 s%d, s%d, 40" % (sT0, sRb))
    a("s_mul_i32 s%d, s%d, 5" % (sT1, sW))
    a("s_add_u32 s%d, s%d, s%d" % (sT0, sT0, sT1))
    a("s_lshl_b32 s%d, s%d, 10" % (sT0, sT0))
    a("s_add_u32 s%d, s%d, 0x%x" % (sT2, sT0, WS_B3))
    for n in range(2):
        if n == 1:
            a("s_cmp_ge_u32 s%d, 15" % sRb)
            a("s_cbranch_scc1 K1_rtd")
        a("s_waitcnt vmcnt(5)")
        for t in range(5):
            d = 132 + 20 * n + 4 * t
            a("s_add_u32 s%d, s%d, %d" % (sT1, sT2, (n * 32 * 40 + t) * 1024))
            a("buffer_store_dwordx4 v[%d:%d], v122, s[%d:%d], s%d offen sc1" % (d, d + 3, sWS, sWS + 3, sT1))
    a("K1_rtd:")


def tail(a, typ):
    import p2
    if typ == "P":
        p2.p2_early(a)
    else:
        a("s_nop 10")
    if "cont" in EXP:
        for t in epi_cont(typ, False):
            if isinstance(t, tuple):
                if t[1] == 0 and typ == "P":
                    p2.p2_poll(a)
                epi_out(a, typ, t[1])
            else:
                a(t)
    for qd in range(0 if "cont" not in EXP else 4, 4):
        for t in epi_quad(typ, qd):
            a(t)
        if qd == (1 if p2.NPST == 2 else 3) and typ == "P" and p2.NPST:
            p2.p2_poll(a)
        if qd & 1:
            epi_out(a, typ, qd >> 1)
    if typ == "G":
        a("s_branch P2_late")
        return
    if p2.NPST == 0:
        p2.p2_poll(a)
    stamp(a, 13)
    stamp(a, 14)
    stamp_dump(a, 15, sWS, sW, WS_STAMP)


def gen_k1(a, label):
    a(".p2align 8")
    a(label + ":")
    end = "K1_end"
    a("s_cmp_ge_u32 s2, 256")
    a("s_cbranch_scc1 %s" % end)
    stamp(a, 0)
    a("s_load_dwordx4 s[48:51], s[0:1], %d" % KA_X)
    a("s_load_dwordx2 s[54:55], s[0:1], %d" % KA_WIN)
    a("s_load_dwordx2 s[58:59], s[0:1], %d" % KA_WSP)
    a("s_load_dwordx4 s[60:63], s[0:1], %d" % KA_DBG)
    a("v_lshrrev_b32 v1, 6, v0")
    a("v_and_b32 v0, 63, v0")
    a("v_readfirstlane_b32 s%d, v1" % sW)
    a("s_and_b32 s%d, s2, 1" % sRb)
    a("s_lshl_b32 s%d, s%d, 3" % (sRb, sRb))
    a("s_lshr_b32 s%d, s2, 5" % sT0)
    a("s_add_u32 s%d, s%d, s%d" % (sRb, sRb, sT0))
    a("s_bfe_u32 s%d, s2, 0x20001" % sT1)
    a("s_bfe_u32 s%d, s2, 0x20003" % sT0)
    a("s_mul_i32 s%d, s%d, 3" % (sCg, sT1))
    a("s_add_u32 s%d, s%d, s%d" % (sCg, sCg, sT0))
    if "bal" in EXP:
        a("s_add_u32 s%d, s%d, s%d" % (sT1, sT1, sRb))
        a("s_and_b32 s%d, s%d, 3" % (sT1, sT1))
    a("s_add_u32 s%d, s%d, 12" % (sT1, sT1))
    a("s_cmp_eq_u32 s%d, 3" % sT0)
    a("s_cselect_b32 s%d, s%d, s%d" % (sCg, sT1, sCg))
    a("s_and_b32 s%d, s%d, 3" % (sR, sW))
    a("s_lshr_b32 s%d, s%d, 2" % (sC, sW))
    a("s_cmp_eq_u32 s%d, 15" % sCg)
    a("s_cbranch_scc1 K1_side")
    a("v_lshrrev_b32 v3, 3, v0")
    a("s_lshl_b32 s%d, s%d, 4" % (sT0, sW))
    a("v_add_u32 v3, s%d, v3" % sT0)
    a("v_lshrrev_b32 v1, 4, v0")
    a("v_and_b32 v2, 7, v0")
    a("v_xor_b32 v4, v1, v2")
    a("v_mul_u32_u24 v5, 1280, v3")
    a("v_lshl_add_u32 v%d, v4, 4, v5" % vXd0)
    a("v_xor_b32 v4, 4, v4")
    a("v_lshl_add_u32 v%d, v4, 4, v5" % vXd1)
    a("v_add_u32 v%d, %d, v%d" % (vXd1, 8 * 1280 - 1024, vXd1))
    a("v_and_b32 v1, 1, v1")
    a("v_lshlrev_b32 v1, 2, v1")
    a("v_xor_b32 v2, v1, v2")
    a("v_lshlrev_b32 v2, 4, v2")
    a("v_mul_u32_u24 v%d, 3456, v3" % vW0a)
    a("v_add_u32 v%d, v%d, v2" % (vW0a, vW0a))
    a("v_add_u32 v%d, %d, v%d" % (vW0b, 8 * 3456 - 1024, vW0a))
    a("s_mul_i32 s%d, s%d, %d" % (sXoff, sRb, 128 * 1280))
    a("s_add_u32 s%d, s%d, 13" % (sLg, sCg))
    a("s_cmp_eq_u32 s%d, 14" % sCg)
    a("s_cselect_b32 s%d, 12, s%d" % (sLg, sLg))
    a("s_cselect_b32 s%d, 1, 0" % sOne)
    a("s_lshl_b32 s%d, s%d, 7" % (sW0off, sLg))
    a("s_mul_i32 s%d, s%d, %d" % (sWb, sR, CH))
    a("s_lshl_b32 s%d, s%d, 11" % (sT0, sC))
    a("s_add_u32 s%d, s%d, s%d" % (sWb, sWb, sT0))
    a("s_add_u32 s%d, s%d, %d" % (sWb, sWb, REG))
    a("s_lshr_b32 s%d, s%d, 1" % (sT0, sW))
    a("s_mul_i32 s%d, s%d, %d" % (sXb, sT0, CH))
    a("s_and_b32 s%d, s%d, 1" % (sT0, sW))
    a("s_lshl_b32 s%d, s%d, 11" % (sT0, sT0))
    a("s_add_u32 s%d, s%d, s%d" % (sXb, sXb, sT0))
    a("s_add_u32 s%d, s%d, %d" % (sXb, sXb, REG))
    a("s_waitcnt lgkmcnt(0)")
    if "zearly" in EXP:
        a("s_load_dword s%d, s[60:61], 0" % sZok)
    srd(a, sX, 48, S * D * 2)
    srd(a, sW0, 54, D * F * 2)
    for L in (dma_x(0), dma_b0(0)):
        for t in L:
            a(t)
    if "nopf" not in EXP:
        lskip = a.label("Lpf")
        a("s_cmp_eq_u32 s%d, %d" % (sW, 77 if "nocode" in EXP else 7))
        a("s_cbranch_scc1 K1_pfcode")
        if "nopfx" in EXP:
            a("s_branch %s" % lskip)
        a("s_cmp_gt_u32 s%d, %d" % (sW, 2 if "w0str" in EXP else 3))
        a("s_cbranch_scc1 %s" % lskip)
        a("s_cmp_ge_u32 s%d, 2" % sW)
        a("s_cbranch_scc1 K1_pfw0")
        a("s_mul_i32 s%d, s%d, %d" % (sT0, sCg, 86 * 128))
        a("s_mul_i32 s%d, s%d, %d" % (sT1, sW, 43 * 128))
        a("s_add_u32 s%d, s%d, s%d" % (sT0, sT0, sT1))
        a("s_mul_i32 s%d, s%d, %d" % (sT1, sRb, 128 * 1280))
        a("s_add_u32 s%d, s%d, s%d" % (sT0, sT0, sT1))
        a("v_min_u32 v%d, 42, v0" % (E0 + 12))
        a("v_lshlrev_b32 v%d, 7, v%d" % (E0 + 12, E0 + 12))
        a("buffer_load_dword v%d, v%d, s[%d:%d], s%d offen" % (E0 + 13, E0 + 12, sX, sX + 3, sT0))
        a("s_branch %s" % lskip)

        def pfw0(lb):
            if "w0str" not in EXP:
                a("s_mul_i32 s%d, s%d, 15" % (sT0, sRb))
                a("s_add_u32 s%d, s%d, s%d" % (sT0, sT0, sCg))
                a("s_lshl_b32 s%d, s%d, 1" % (sT0, sT0))
                a("s_add_u32 s%d, s%d, s%d" % (sT0, sT0, sW))
                a("s_sub_u32 s%d, s%d, 2" % (sT0, sT0))
                a("s_mul_i32 s%d, s%d, %d" % (sT0, sT0, 36 * 128))
                a("v_min_u32 v%d, 35, v0" % (E0 + 12))
                a("v_lshlrev_b32 v%d, 7, v%d" % (E0 + 12, E0 + 12))
                a("buffer_load_dword v%d, v%d, s[%d:%d], s%d offen" % (E0 + 13, E0 + 12, sW0, sW0 + 3, sT0))
                return
            a("s_mul_i32 s%d, s%d, %d" % (sT0, sRb, 40 * 3456))
            a("s_lshl_b32 s%d, s%d, 7" % (sT1, sLg))
            a("s_add_u32 s%d, s%d, s%d" % (sT0, sT0, sT1))
            a("v_min_u32 v%d, 39, v0" % (E0 + 12))
            a("v_mul_u32_u24 v%d, 3456, v%d" % (E0 + 12, E0 + 12))
            a("buffer_load_dword v%d, v%d, s[%d:%d], s%d offen" % (E0 + 13, E0 + 12, sW0, sW0 + 3, sT0))

        def pfcode(lb):
            a("s_getpc_b64 s[52:53]")
            a("K1_pc:")
            a("s_sub_u32 s52, s52, K1_pc-%s" % label)
            a("s_subb_u32 s53, s53, 0")
            a("s_bfe_u32 s%d, s2, 0x30003" % sT0)
            a("s_lshl_b32 s%d, s%d, 6" % (sT0, sT0))
            a("v_add_u32 v%d, s%d, v0" % (E0 + 12, sT0))
            a("v_lshlrev_b32 v%d, 7, v%d" % (E0 + 12, E0 + 12))
            a("v_min_u32 v%d, (CODE_END-%s-4), v%d" % (E0 + 12, label, E0 + 12))
            a("global_load_dword v%d, v%d, s[52:53]" % (E0 + 13, E0 + 12))
        a("K1_pfw0:")
        pfw0(None)
        a("s_branch %s" % lskip)
        a("K1_pfcode:")
        pfcode(None)
        a(lskip + ":")
    for t in dma_x(1):
        a(t)
    stamp(a, 1)
    a("v_mov_b32 v%d, v3" % (E0 + 8))
    a("v_mov_b32 v%d, v2" % (E0 + 9))
    e = E0
    a("s_xor_b32 s%d, s%d, s%d" % (sT1, sR, sC))
    a("v_lshrrev_b32 v1, 5, v0")
    a("v_and_b32 v%d, 31, v0" % (e + 1))
    a("v_lshlrev_b32 v%d, 7, v%d" % (e + 1, e + 1))
    a("v_bfe_u32 v%d, v0, 1, 3" % (e + 2))
    a("v_xor_b32 v%d, v%d, v1" % (e + 2, e + 2))
    a("s_lshl_b32 s%d, s%d, 1" % (sT0, sT1))
    a("v_xor_b32 v%d, s%d, v%d" % (e + 2, sT0, e + 2))
    a("v_lshl_add_u32 v%d, v%d, 4, v%d" % (e + 1, e + 2, e + 1))
    a("s_mul_i32 s%d, s%d, %d" % (sT0, sR, CH))
    a("s_add_u32 s%d, s%d, %d" % (sT0, sT0, REG))
    a("v_add_u32 v%d, s%d, v%d" % (vXA, sT0, e + 1))
    for t in range(1, 4):
        a("v_xor_b32 v%d, %d, v%d" % (vXA + t, 32 * t, vXA))
    a("v_bfe_u32 v%d, v0, 2, 2" % e)
    a("v_lshl_add_u32 v%d, v1, 3, v%d" % (e, e))
    a("v_lshlrev_b32 v%d, 7, v%d" % (e, e))
    a("v_bfe_u32 v%d, v0, 4, 1" % (e + 1))
    a("v_lshlrev_b32 v%d, 1, v%d" % (e + 1, e + 1))
    a("v_bfe_u32 v%d, v0, 1, 1" % (e + 2))
    a("v_add_u32 v%d, v%d, v%d" % (e + 1, e + 1, e + 2))
    a("s_lshl_b32 s%d, s%d, 2" % (sT0, sC))
    a("v_add_u32 v%d, s%d, v%d" % (e + 1, sT0, e + 1))
    a("v_bfe_u32 v%d, v0, 3, 1" % (e + 2))
    a("v_lshlrev_b32 v%d, 2, v%d" % (e + 2, e + 2))
    a("v_xor_b32 v%d, v%d, v%d" % (e + 1, e + 1, e + 2))
    a("v_lshl_add_u32 v%d, v%d, 4, v%d" % (e, e + 1, e))
    a("v_and_b32 v%d, 1, v0" % (e + 1))
    a("v_lshl_add_u32 v%d, v%d, 3, v%d" % (e, e + 1, e))
    for t in range(4):
        a("s_xor_b32 s%d, s%d, %d" % (sT0, sT1, t))
        a("s_mul_i32 s%d, s%d, %d" % (sT0, sT0, CH))
        a("v_add_u32 v%d, s%d, v%d" % (vA + t, sT0, e))
    for L in (dma_x(2), dma_b0(1)):
        for t in L:
            a(t)
    a("s_mov_b32 s%d, 0x3f803f80" % sOnes)
    a("v_lshrrev_b32 v%d, 4, v0" % (e + 1))
    a("v_bfe_u32 v%d, v0, 2, 2" % (e + 2))
    a("v_cmp_eq_u32 vcc, v%d, v%d" % (e + 1, e + 2))
    a("v_mov_b32 v%d, s%d" % (e + 1, sOnes))
    for t in range(4):
        a("v_cndmask_b32 v%d, 0, v%d, vcc" % (SEL + t, e + 1))

    class Rec:
        def __init__(self):
            self.L = []

        def __call__(self, t):
            self.L.append(t)
    r = Rec()
    srd(r, sW1, 50, D * 3 * D * 2)
    r("v_mul_u32_u24 v%d, 3840, v%d" % (vW1a, E0 + 8))
    r("v_add_u32 v%d, v%d, v%d" % (vW1a, vW1a, E0 + 9))
    r("v_add_u32 v%d, %d, v%d" % (vW1b, 8 * 3840 - 1024, vW1a))
    r("s_lshl_b32 s%d, s%d, 1" % (sT0, sLg))
    r("s_add_u32 s%d, s%d, s%d" % (sT0, sT0, sC))
    r("s_cmp_ge_u32 s%d, 27\ns_cselect_b32 s%d, 1.0, 0" % (sT0, sIsZ2))
    r("s_lshl_b32 s%d, s%d, 2" % (sT2, sRb))
    r("s_add_u32 s%d, s%d, s%d" % (sT2, sT2, sR))
    r("s_mul_i32 s%d, s%d, %d" % (sA, sT2, NG_Z * 1024))
    r("s_add_u32 s%d, s%d, 0x%x" % (sA, sA, WS_Z))
    r("s_lshl_b32 s%d, s%d, 11" % (sOut, sT0))
    r("s_add_u32 s%d, s%d, s%d" % (sOut, sOut, sA))
    if "pre" not in EXP:
        r("s_cmp_lg_u32 s%d, 0\ns_cselect_b32 s%d, s%d, 0x40000000\ns_cselect_b32 s%d, 0x40000000, s%d" % (sIsZ2, sOut0, sOut, sOut, sOut))
    else:
        r("s_cmp_lg_u32 s%d, 0\ns_cselect_b32 s%d, s%d, 0x40000000" % (sIsZ2, sOut0, sOut))
    r("s_sub_u32 s%d, s%d, %d" % (sGl, sWb, REG - 8192))
    r("s_lshl_b32 s%d, s%d, 12" % (sZ2w, sT2))
    r("s_lshl_b32 s%d, s%d, 8" % (sT0, sCg))
    r("s_add_u32 s%d, s%d, s%d" % (sZ2w, sZ2w, sT0))
    r("s_add_u32 s%d, s%d, 0x%x" % (sZ2w, sZ2w, WS_ST2))
    r("s_lshl_b32 s%d, s%d, 1" % (sT0, sCg))
    r("s_mul_i32 s%d, s%d, 3" % (sT1, sCg))
    r("s_sub_u32 s%d, s%d, 11" % (sT1, sT1))
    r("s_cmp_lt_u32 s%d, 12\ns_cselect_b32 s%d, s%d, s%d\ns_cselect_b32 s%d, 1, 0" % (sCg, sLg, sT0, sT1, sType))
    r("s_lshl_b32 s%d, s%d, 7" % (sW1off, sLg))
    r("s_mul_i32 s%d, s%d, %d" % (sOut2, sT2, NG_QKV * 1024))
    r("s_lshl_b32 s%d, s%d, 12" % (sT0, sLg))
    r("s_add_u32 s%d, s%d, s%d" % (sOut2, sOut2, sT0))
    r("s_lshl_b32 s%d, s%d, 11" % (sT1, sC))
    r("s_add_u32 s%d, s%d, s%d" % (sOut2, sOut2, sT1))
    r("s_sub_u32 s%d, s%d, 1" % (sLg, sLg))
    r("s_lshl_b32 s%d, s%d, 12" % (sT0, sCg))
    r("s_add_u32 s%d, s%d, s%d" % (sT0, sT0, sT1))
    r("s_add_u32 s%d, s%d, s%d" % (sT0, sT0, sA))
    r("s_sub_u32 s%d, s%d, 4096" % (sT1, sOut2))
    r1 = Rec()
    r1("s_cmp_lt_u32 s%d, 12" % sCg)
    r1("s_cselect_b32 s%d, s%d, s%d" % (sOut1, sT0, sT1))
    r1("s_cselect_b32 s%d, s%d, s%d" % (sUoff, sCg, sLg))
    csel(r1, sUstep, str(128 * 3456), str(128 * 3840))
    r1("s_cselect_b64 s[%d:%d], s[%d:%d], s[%d:%d]" % (sWu, sWu + 1, sW0, sW0 + 1, sW1, sW1 + 1))
    r1("s_cselect_b32 s%d, s%d, s%d" % (sWu + 2, sW0 + 2, sW1 + 2))
    r1("s_cselect_b64 vcc, -1, 0")
    r("\n".join(r1.L))
    r("s_mov_b32 s%d, 0x20000" % (sWu + 3))
    r("v_cndmask_b32 v%d, v%d, v%d, vcc" % (vUa, vW1a, vW0a))
    r("v_cndmask_b32 v%d, v%d, v%d, vcc" % (vUb, vW1b, vW0b))
    r("s_lshl_b32 s%d, s%d, 7" % (sUoff, sUoff))
    r("s_cmp_eq_u32 s%d, 1\ns_cselect_b32 s%d, 0x40000000, s%d\ns_cselect_b32 s%d, 0x40000000, s%d" % (sOne, sUoff, sUoff, sW1off, sW1off))
    late = []
    srd(r, sWS, 62, WS_END)
    srd(r, sDBG, 60, 256)
    r("v_lshlrev_b32 v%d, 2, v1" % (e + 1))
    r("v_xor_b32 v%d, v%d, v0" % (e + 1, e + 1))
    r("v_lshlrev_b32 v%d, 4, v%d" % (vSt0, e + 1))
    r("v_xor_b32 v%d, 0x80, v%d" % (vSt1, vSt0))
    r("v_add_u32 v%d, 1024, v%d" % (vSt1, vSt1))
    r("s_lshl_b32 s%d, s%d, 10" % (sT0, sC))
    r("s_add_u32 s%d, s%d, %d" % (sT0, sT0, 3 * 4096))
    r("v_lshlrev_b32 v%d, 4, v0" % vCsR)
    r("v_add_u32 v%d, s%d, v%d" % (vCsR, sT0, vCsR))
    r("s_lshl_b32 s%d, s%d, 2" % (sT0, sR))
    r("v_add_u32 v%d, s%d, v%d" % (vCsW, sT0, vCsR))
    r("v_mov_b32 v%d, 0" % ZSUM)
    r("v_mov_b32 v%d, 0" % ZSQ)
    r("s_mov_b32 s%d, %d" % (sDelta, REG))
    r("s_mov_b32 s%d, s%d" % (sReady, sOne))
    r("s_lshl_b32 s%d, s%d, 11" % (sT2, sRb))
    r("s_add_u32 s%d, s%d, 0x%x" % (sT2, sT2, WS_FL))
    r("s_cmp_eq_u32 s%d, 0\ns_cselect_b32 s%d, 2, 99" % (sW, sL1))
    r("s_cmp_eq_u32 s%d, 0\ns_cselect_b32 s%d, s%d, 0x40000000" % (sC, sL0, sZ2w))
    late += r.L
    nlate = spread(len(late), 16) + [0] * 24

    seq = ["x0", "b0", "x1", "x2", "b1"]
    plan = {-1: ["x3", "x4"], 0: ["b2", "x5"], 1: ["x6"], 2: ["b3", "x7"], 3: ["x8"], 4: ["b4", "x9"],
            5: ["u0"], 6: ["u1"], 7: ["u2"], 8: ["u3", "w0"], 9: ["u4", "w1"]}
    q = LdsQ(a)

    def dma_list(it):
        if it[0] == "w":
            L = dma_unit(int(it[1:]))
            L[0] = "s_sub_u32 m0, s%d, %d" % (sWb, REG - 4096 * int(it[1:]))
            return L
        return dma_x(int(it[1:])) if it[0] == "x" else dma_b0(int(it[1:])) if it[0] == "b" else dma_u(int(it[1:]))

    def xread(hp, t):
        x = X0 + 16 * hp + 4 * t
        q.issue("ds_read_b128 v[%d:%d], v%d offset:%d" % (x, x + 3, vXA + t, (hp % 5) * 4096), "x%d" % hp)

    def stats(x, first):
        def c(r_):
            return "0" if first else "v[%d:%d]" % (r_, r_ + 3)
        a("v_mfma_f32_4x4x4_16b_bf16 v[%d:%d], v[%d:%d], v[%d:%d], %s" % (XQ, XQ + 3, x, x + 1, x, x + 1, c(XQ)))
        a("v_mfma_f32_4x4x4_16b_bf16 v[%d:%d], v[%d:%d], v[%d:%d], %s" % (XQ2, XQ2 + 3, x + 2, x + 3, x + 2, x + 3, c(XQ2)))
        a("v_mfma_f32_16x16x32_bf16 v[%d:%d], v[%d:%d], v[%d:%d], %s" % (XS, XS + 3, SEL, SEL + 3, x, x + 3, c(XS)))

    def vmwait(need):
        last = max(seq.index(n) for n in need)
        a("s_waitcnt vmcnt(%d)" % sum(1 if t == "T" else 2 for t in seq[last + 1:]))

    vmwait(["x0", "b0"])
    a("s_barrier")
    stamp(a, 2)
    for t in range(4):
        xread(0, t)
    for j in range(3):
        frag_reads(q, 0, j)
    for it in plan[-1]:
        for t in dma_list(it):
            a(t)
        seq.append(it)
    lp = 0
    for h in range(10):
        i, hh = h >> 1, h & 1
        need = []
        if h < 9:
            need.append("x%d" % (h + 1))
        if hh == 1:
            need.append("b%d" % (i + 1) if i < 4 else "u0")
        q.wait("x%d" % h)
        vmwait(need)
        a("s_barrier")
        if h in (2, 4, 6, 8):
            stamp(a, 2 + i)
        dl = []
        for it in plan[h]:
            dl.append(dma_list(it))
            seq.append(it)
        if h == 9:
            stats(X0 + 16 * h, False)
            stats(X0 + 16 * h + 8, False)
        for t in range(4):
            j = 4 * hh + t
            x = X0 + 32 * i + 4 * j
            q.wait("f%d" % j)
            mfma(a, i, j)
            if h == 9 and t == 2:
                q.issue("ds_write_b32 v%d, v%d" % (vCsW, CSA), "csw")
                a("v_add_u32 v%d, s%d, v%d" % (vCsW, sDelta, vCsW))
            jn = j + 3
            if jn < 8:
                frag_reads(q, i, jn)
            else:
                frag_reads(q, (i + 1) % 5, jn - 8)
            if i == 4 and 1 <= j <= 4:
                tt = (j + 3) & 3
                a("v_add_u32 v%d, s%d, v%d" % (vA + tt, sDelta, vA + tt))
            if h < 9 and t < 2:
                xread(h + 1, 2 * t)
                xread(h + 1, 2 * t + 1)
            n, half = t >> 1, t & 1
            if len(dl) == 1:
                n, half = 0, (0 if t == 0 else 1 if t == 2 else None)
            if half == 0:
                a(dl[n][0])
                a(dl[n][1])
            elif half == 1:
                a(dl[n][2])
                if plan[h][n][0] == "u":
                    MARK[5 + int(plan[h][n][1:])] = len(a.ins)
                if plan[h][n][0] == "w":
                    MARK[10 + int(plan[h][n][1:])] = len(a.ins)
                a(dl[n][3])
            for tx in late[lp:lp + nlate[4 * h + t]]:
                a(tx)
            lp += nlate[4 * h + t]
            if h == W1AT and t == 3:
                a("s_mul_i32 s%d, s%d, 15" % (sT0, sRb))
                a("s_add_u32 s%d, s%d, s%d" % (sT0, sT0, sCg))
                a("s_lshl_b32 s%d, s%d, 3" % (sT0, sT0))
                a("s_add_u32 s%d, s%d, s%d" % (sT0, sT0, sW))
                a("s_mul_i32 s%d, s%d, %d" % (sT0, sT0, 10 * 128))
                a("v_min_u32 v%d, 9, v0" % vPf)
                a("v_lshlrev_b32 v%d, 7, v%d" % (vPf, vPf))
                a("s_sub_u32 m0, s%d, %d" % (sWb, REG - 2 * 4096))
                a("buffer_load_dword v%d, s[%d:%d], s%d offen lds" % (vPf, sW1, sW1 + 3, sT0))
                seq.append("T")
            if t == 0:
                cs_mfma(a, i, j)
            if h < 9 and (t & 1) == 0:
                stats(x, h == 0 and t == 0)
            if h == 9 and t == 0:
                a("v_and_b32 v1, 3, v0")
                for tt in range(4):
                    a("v_add_f32 v%d, v%d, v%d" % (XQ + tt, XQ + tt, XQ2 + tt))
                for tt in range(1, 4):
                    a("v_cmp_eq_u32 vcc, %d, v1" % tt)
                    a("v_cndmask_b32 v%d, v%d, v%d, vcc" % (XQ, XQ, XQ + tt))
                a("v_mov_b32 v%d, v%d" % (XQ + 1, XS))
                a("s_lshl_b32 s%d, s%d, 9" % (sT0, sW))
                a("s_add_u32 s%d, s%d, %d" % (sT0, sT0, CH + 3 * 4096))
                a("v_lshlrev_b32 v1, 3, v0")
                a("v_add_u32 v1, s%d, v1" % sT0)
                q.issue("ds_write_b64 v1, v[%d:%d]" % (XQ, XQ + 1), "stw")
                a("v_xor_b32 v1, 0x800, v1")
            if h == 9 and t == 1:
                q.wait("stw")
                a("s_barrier")
                q.issue("ds_read_b64 v[%d:%d], v1" % (XQ + 2, XQ + 3), "str")
    assert lp == len(late)
    q.wait("str")
    assert q.q == INQ2[2:], q.q
    r = Rec()
    sq, sm, t0, t1 = XQ, XQ + 1, XQ + 2, XQ + 3
    r("v_add_f32 v%d, v%d, v%d" % (sq, sq, t0))
    r("v_add_f32 v%d, v%d, v%d" % (sm, sm, t1))
    r("v_mov_b32 v%d, v%d" % (t0, sq))
    r("v_mov_b32 v%d, v%d" % (t1, sm))
    r("v_permlane32_swap_b32 v%d, v%d" % (sq, t0))
    r("v_permlane32_swap_b32 v%d, v%d" % (sm, t1))
    r("v_add_f32 v%d, v%d, v%d" % (sq, sq, t0))
    r("v_add_f32 v%d, v%d, v%d" % (sm, sm, t1))
    r("v_mul_f32 v%d, %s, v%d" % (NEGMU, fhex(-1.0 / D), sm))
    r("v_mul_f32 v%d, %s, v%d" % (sq, fhex(1.0 / D), sq))
    r("v_fma_f32 v%d, -v%d, v%d, v%d" % (sq, NEGMU, NEGMU, sq))
    r("v_max_f32 v%d, 0, v%d" % (sq, sq))
    r("v_add_f32 v%d, %s, v%d" % (sq, fhex(1e-5), sq))
    r("v_rsq_f32 v%d, v%d" % (RSTD, sq))
    r("v_sqrt_f32 v%d, v%d" % (IRSTD, sq))
    r("v_mul_f32 v%d, %s, v%d" % (RL, fhex(LOG2E), RSTD))
    r("v_mul_f32 v%d, %s, v%d" % (K1c, fhex(GC1), RSTD))
    r("v_mul_f32 v%d, v%d, v%d" % (K2c, RSTD, RSTD))
    r("v_mul_f32 v%d, v%d, v%d" % (K2c, K2c, RSTD))
    r("v_mul_f32 v%d, %s, v%d" % (K2c, fhex(GC2), K2c))
    fin = list(r.L)
    if "zearly" not in EXP:
        a("s_load_dword s%d, s[60:61], %d" % (sZok, 4 if "fzok" in EXP else 0))
    stamp(a, 7)
    a("s_cmp_eq_u32 s%d, 1" % sOne)

    def one(lb):
        for t in fin:
            a(t)
    rare(a, "s_cbranch_scc1", one)
    RARE[-1] = (RARE[-1][0], "K1_tail", RARE[-1][2])
    a("s_sub_u32 s%d, s%d, s%d" % (sWb, sWb, sDelta))
    r = Rec()
    srd(r, sX, 58, S * S * 2)
    own_row(r, sXoff)
    r("v_min_u32 v%d, %d, v0" % (vPf, max(TLN - 1, 0)))
    r("v_lshlrev_b32 v%d, 7, v%d" % (vPf, vPf))
    pre = []
    for n in range(max(len(fin), len(r.L))):
        pre += fin[n:n + 1] + r.L[n:n + 1]
    PRE1[:] = pre
    body(a, "G", 1)
    a("s_cmp_eq_u32 s%d, 0" % sType)
    a("s_cbranch_scc1 K1_bodyP")
    brk = len(a.ins)
    body(a, "G", 2)
    a("K1_bodyL:")
    body(a, "P", 3)
    a("s_waitcnt lgkmcnt(0)")
    a("s_cmp_eq_u32 s%d, 0" % sReady)
    a(rare(a, "s_cbranch_scc1", lambda lb: z2_slow(a, lb)) + ":")
    tail_regs(a)
    tail(a, "P")
    import p2
    PHASE[0] = 2
    p2.gen_p2(a)
    PHASE[0] = 1
    a("K1_tail:")
    tail_one(a)
    tail(a, "G")
    a("K1_bodyP:")
    body(a, "P", 2, start=(brk, len(a.ins)))
    a("s_branch K1_bodyL")
    flush_rare(a)

    a("K1_side:")
    a("s_waitcnt lgkmcnt(0)")
    srd(a, sWS, 62, WS_END)
    srd(a, sDBG, 60, 256)
    for t in range(4):
        a("v_mov_b32 v%d, 0" % (8 + t))
    a("v_mov_b32 v12, 1")
    a("v_lshlrev_b32 v6, 4, v0")
    a("s_lshl_b32 s%d, s%d, 3" % (sT0, sRb))
    a("s_add_u32 s%d, s%d, s%d" % (sT0, sT0, sW))
    a("s_lshl_b32 s%d, s%d, 11" % (sT0, sT0))
    a("s_add_u32 s%d, s%d, 0x%x" % (sT0, sT0, WS_ST2))
    a("buffer_store_dwordx4 v[8:11], v6, s[%d:%d], s%d offen sc1" % (sWS, sWS + 3, sT0))
    a("buffer_store_dwordx4 v[8:11], v6, s[%d:%d], s%d offen offset:1024 sc1" % (sWS, sWS + 3, sT0))
    a("s_mul_i32 s%d, s%d, 6" % (sT0, sRb))
    a("s_add_u32 s%d, s%d, s%d" % (sT0, sT0, sW))
    a("s_lshl_b32 s%d, s%d, 10" % (sT0, sT0))
    a("s_add_u32 s%d, s%d, 0x%x" % (sT0, sT0, WS_KV))
    a("s_lshl_b32 s%d, s%d, 11" % (sT1, sRb))
    a("s_add_u32 s%d, s%d, 0x%x" % (sT1, sT1, WS_FL))
    a("s_and_b32 s%d, s%d, 1" % (sT2, sW))
    a("s_lshl_b32 s%d, s%d, 10" % (sT2, sT2))
    a("s_add_u32 s%d, s%d, s%d" % (sT2, sT2, sT1))
    a("s_cmp_ge_u32 s%d, 6" % sW)
    a("s_cselect_b32 s%d, s%d, s%d" % (sT0, sT2, sT0))
    a("buffer_store_dwordx4 v[8:11], v6, s[%d:%d], s%d offen sc1" % (sWS, sWS + 3, sT0))
    a("s_waitcnt vmcnt(0)")
    a("s_barrier")
    a("s_cmp_lg_u32 s%d, 6" % sW)
    a("s_cbranch_scc1 K1_nofl2")
    a("s_mov_b64 exec, 1")
    a("buffer_atomic_add v12, off, s[%d:%d], 0 sc1" % (sDBG, sDBG + 3))
    a("s_mov_b64 exec, -1")
    stamp(a, 1)
    a("K1_nofl2:")
    a("s_barrier")
    stamp(a, 12)
    pf_wsp(a)
    a("s_add_u32 s71, s%d, 1024" % sT1)
    a("s_mov_b32 s70, 0")
    a("s_mov_b32 s69, 1")
    a("P2_late:")
    pf_own(a)
    a("s_load_dwordx2 s[44:45], s[0:1], %d" % KA_WO)
    a("s_load_dwordx2 s[46:47], s[0:1], %d" % KA_WOUT)
    p2.p2_loads(a)
    retile(a)
    if "bsp" in EXP:
        srd(a, sX, 50, S * 2)
        a("v_lshlrev_b32 v95, 7, v0")
        a("buffer_load_dword v94, v95, s[%d:%d], 0 offen" % (sX, sX + 3))
    a("s_waitcnt vmcnt(0)")
    stamp(a, 13)
    stamp(a, 14)
    stamp_dump(a, 15, sWS, sW, WS_STAMP)
    a("s_barrier")
    if STAMP:
        srd(a, sWS, 52, WS_END)
    srd(a, sX, 58, S * S * 2)
    for t in p2.pre_setup(vW1b):
        a(t)
    for st in range(p2.NPRE):
        a(p2.pre_dma(st, vW1b, sX))
    p2.p2_early(a)
    p2.p2_poll(a)
    a("s_waitcnt vmcnt(0)")
    a("s_branch P2_entry")
    flush_rare(a)
    a(end + ":")
    a("s_endpgm")
```

```python
from asmlib import *
from common import *
from k1 import srd, csel, stamp, stamp_dump, STAMP, WS_STAMP, EXP, spread
import k1

RB = 81920
SIDE = 0
NSA = 5
NPRE = int(__import__('os').environ.get('NPRE', '6'))
OSC = RB + 5 * 14336
NEA = int(__import__("os").environ.get("NEA", "0"))
NEB = int(__import__("os").environ.get("NEB", "0"))
SL1, SL2 = int(__import__("os").environ.get("SL1", "3")), int(__import__("os").environ.get("SL2", "24"))
KB = int(__import__("os").environ.get("KB", "0"))
assert KB == 0
OTB = int(__import__("os").environ.get("OTB", "99"))
LREL = 155648
NPST = int(__import__('os').environ.get('NPST', '2'))
CNT_KV = WS_CNT
CNT_O = WS_CNT + 4096
CNT_U = WS_CNT + 8192

ACC = 224
FA = (128, 176)
Z1R = 112
DO = 80
ACB = 80
KVF = 48
XR = 36
import os
FRA, FRB = float(os.environ.get("FRA", "0.7")), float(os.environ.get("FRB", "0.7"))
import os
def _t(n, d): return tuple(int(x) for x in os.environ.get(n, d).split(","))
HK = _t("HK", "4,0,6")
PA = _t("PA", "0,3")
PK = _t("PK", "14,17,20,24")
PO = _t("PO", "27,29")
PU = _t("PU", "37,39")
sCall, sZk = 71, 70
sWrap = 29
PQR = 36
T = 24
vL16, vLA, vLB0, vA, vB0, vB1, vAt = 10, 11, 12, 13, 14, 15, 16
vBias, vPoll, vZa, vZb, vO = 19, 20, 21, 22, 23
vXl = 20
vLA3, vLB3 = 8, 9
vAd0, vAd1 = 8, 9
vT0, vT1, vT2, vT3, vXd = 11, 12, 13, 14, 15
vPz = 21
sA, sBS, sX, sWS, sO = 4, 8, 12, 16, 20
sA3, sB3 = 8, 12
sI, sJ, sW, sRR, sCC = 24, 25, 26, 27, 28
sAoff, sBoff, sRd, sRdB, sIt, sHook = 29, 30, 31, 32, 33, 34
sT0, sT1, sT2, sT3 = 36, 37, 38, 39
sMA, sMB, sHd, sCnt, sKv, sOdd = 35, 67, 42, 43, 44, 45
sA3off, sB3off, sMB3, sCntI = 56, 57, 58, 59
sXo0, sXo1 = 60, 61
sWk, sKvW, sCntW = 64, 65, 66
assert k1.sT0 == sT0


def ring(s, step, end, wrap):
    return "s_add_u32 s%d, s%d, %d\ns_cmp_eq_u32 s%d, %d\ns_cselect_b32 s%d, %d, s%d" % (s, s, step, s, end, s, wrap, s)


def kjump(st, norm, back, fwd):
    if KB and st % (2 * KB) == KB - 1:
        return back
    if KB and st % (2 * KB) == 2 * KB - 1:
        return fwd
    return norm


def slotA(st):
    return 8192 * (st if st < 4 else 4 + (st - 4) % 6)


DEEP = "deep" in EXP


def slotB(st):
    if st >= 32:
        return RB + 10240 * ((st - 32 + 7) % 8)
    if not DEEP:
        return RB + 14336 * ((st + 3) % 5)
    if st <= 17:
        return RB + 14336 * ((st + 2) % 5)
    n = (st - 13) % 7
    return RB + 14336 * n if n < 5 else 14336 * (n - 5)


def issueB(st):
    if not DEEP or st <= 17:
        return st - 5
    return {18: 12, 19: 12}.get(st, st - 7)


def pre_setup(vt):
    return [
        "s_bfe_u32 s32, s2, 0x20001",
        "s_lshl_b32 s32, s32, 3",
        "s_lshr_b32 s33, s2, 5",
        "s_add_u32 s32, s32, s33",
        "s_lshl_b32 s32, s32, 3",
        "s_add_u32 s32, s32, s%d" % sW,
        "s_lshl_b32 s32, s32, 15",
        "s_lshl_b32 s33, s%d, 2" % sW,
        "v_lshrrev_b32 v%d, 4, v0" % (vt + 1),
        "v_add_u32 v%d, s33, v%d" % (vt + 1, vt + 1),
        "v_xor_b32 v%d, v%d, v0" % (vt + 1, vt + 1),
        "v_and_b32 v%d, 7, v%d" % (vt + 1, vt + 1),
        "v_lshrrev_b32 v%d, 3, v0" % vt,
        "v_lshlrev_b32 v%d, 12, v%d" % (vt, vt),
        "v_lshl_add_u32 v%d, v%d, 4, v%d" % (vt, vt + 1, vt),
        "s_lshl_b32 s33, s%d, 10" % sW,
    ]


def pre_dma(st, vt, srdn):
    return "s_add_u32 m0, s33, %d\nbuffer_load_dwordx4 v%d, s[%d:%d], s32 offen offset:%d lds" % (
        slotA(st) - 128 * st, vt, srdn, srdn + 3, 128 * st)


vA2, vB2, vB3 = 16, 17, 18
vU, vBias2 = 30, 31


def read_A(fs, nct):
    L = []
    L.append("v_add_u32 v%d, s%d, v%d" % (vA, sRd, vLA))
    L.append("v_add_u32 v%d, s%d, v%d" % (vB0, sRdB, vLB0))
    L.append("v_xor_b32 v%d, 64, v%d" % (vB1, vB0))
    for k in range(2):
        if k:
            L.append("v_xor_b32 v%d, 64, v%d" % (vA2, vA))
        for rt in range(2):
            d = fs + 8 * k + 4 * rt
            L.append("ds_read_b128 v[%d:%d], v%d offset:%d" % (d, d + 3, vA2 if k else vA, rt * 2048))
        for ct in range(nct):
            if k == 0 and ct == 1:
                L.append("v_xor_b32 v%d, 0x80, v%d" % (vB2, vB0))
                L.append("v_xor_b32 v%d, 0xc0, v%d" % (vB3, vB0))
            d = fs + 16 + 16 * k + 4 * ct
            off = k * 7168 + ct * 1024
            L.append("ds_read_b64_tr_b16 v[%d:%d], v%d offset:%d" % (d, d + 1, vB2 if ct & 1 else vB0, off))
            L.append("ds_read_b64_tr_b16 v[%d:%d], v%d offset:%d" % (d + 2, d + 3, vB3 if ct & 1 else vB1, off))
    L.append(ring(sRd, 8192, RB, 32768))
    if DEEP:
        L.append("s_add_u32 s%d, s%d, 14336\ns_cmp_eq_u32 s%d, %d\ns_cselect_b32 s%d, s%d, s%d" % (sRdB, sRdB, sRdB, OSC, sRdB, sWrap, sRdB))
        L.append("s_cmp_eq_u32 s%d, 28672\ns_cselect_b32 s%d, %d, s%d" % (sRdB, sRdB, RB, sRdB))
    else:
        L.append(ring(sRdB, 14336, OSC, RB))
    return L


def read_B(fs, nct):
    L = []
    L.append("v_add_u32 v%d, s%d, v%d" % (vA, sRd, vLA3))
    L.append("v_add_u32 v%d, s%d, v%d" % (vB0, sRdB, vLB3))
    for k in range(2):
        for rt in range(2):
            d = fs + 8 * k + 4 * rt
            L.append("ds_read_b128 v[%d:%d], v%d offset:%d" % (d, d + 3, vA, k * 2048 + rt * 256))
        for ct in range(nct):
            d = fs + 16 + 12 * k + 4 * ct
            off = k * 5120 + ct * 32
            L.append("ds_read_b64_tr_b16 v[%d:%d], v%d offset:%d" % (d, d + 1, vB0, off))
            L.append("ds_read_b64_tr_b16 v[%d:%d], v%d offset:%d" % (d + 2, d + 3, vB0, off + 1280))
    L.append(ring(sRd, 8192, RB, 32768))
    L.append(ring(sRdB, 10240, 2 * RB, RB))
    return L


def mf_A(cur, nct):
    L = []
    for k in range(2):
        for ct in range(nct):
            for rt in range(2):
                fb, fa, acc = cur + 16 + 16 * k + 4 * ct, cur + 8 * k + 4 * rt, ACC + 16 * rt + 4 * ct
                L.append("v_mfma_f32_16x16x32_bf16 v[%d:%d], v[%d:%d], v[%d:%d], v[%d:%d]" % (
                    acc, acc + 3, fb, fb + 3, fa, fa + 3, acc, acc + 3))
    return L


def mf_B(cur, nct):
    L = []
    for k in range(2):
        for ct in range(nct):
            for rt in range(2):
                fb, fa, acc = cur + 16 + 12 * k + 4 * ct, cur + 8 * k + 4 * rt, ACB + 12 * rt + 4 * ct
                L.append("v_mfma_f32_16x16x32_bf16 v[%d:%d], v[%d:%d], v[%d:%d], v[%d:%d]" % (
                    acc, acc + 3, fb, fb + 3, fa, fa + 3, acc, acc + 3))
    return L


def cstage(a, mf, rd, frac, barrier=True):
    a("s_waitcnt lgkmcnt(0)")
    if barrier:
        a("s_barrier")
    if "nomf" in EXP:
        mf = ["s_nop 0"] * len(mf)
    if "nopmf" in EXP:
        mf = ["s_nop 2"] * len(mf)
    if "nord" in EXP:
        rd = [t for t in rd if not t.startswith("ds_")]
    ns = max(1, int(len(mf) * frac))
    nr = spread(len(rd), ns) + [0] * (len(mf) - ns)
    p = 0
    for n, m in enumerate(mf):
        a(m)
        for t in rd[p:p + nr[n]]:
            a(t)
        p += nr[n]


def quad_addr(a, dst, vq, swz, t0, t1):
    a("v_and_b32 v%d, 1, v%d" % (t0, vq))
    if swz:
        a("v_bfe_u32 v%d, v%d, 2, 1" % (t1, vq))
        a("v_lshl_add_u32 v%d, v%d, 1, v%d" % (t1, t1, t0))
        a("v_lshlrev_b32 v%d, 2, v%d" % (t1, t1))
        a("v_xor_b32 v%d, v%d, v2" % (t1, t1))
        a("v_lshl_add_u32 v%d, v%d, 5, v%d" % (t0, t0, t1))
    else:
        a("v_lshl_add_u32 v%d, v%d, 5, v2" % (t0, t0))
    a("v_lshlrev_b32 v%d, 4, v%d" % (t0, t0))
    a("v_bfe_u32 v%d, v%d, 1, 1" % (t1, vq))
    a("v_lshl_add_u32 v%d, v%d, 3, v%d" % (t0, t1, t0))
    a("v_lshrrev_b32 v%d, 2, v%d" % (t1, vq))
    a("v_lshl_add_u32 v%d, v%d, 10, v%d" % (dst, t1, t0))


def srd_off(a, d, plo, off, nbytes):
    a("s_add_u32 s%d, s%d, 0x%x" % (d, plo, off))
    a("s_addc_u32 s%d, s%d, 0" % (d + 1, plo + 1))
    a("s_and_b32 s%d, s%d, 0xffff" % (d + 1, d + 1))
    a("s_mov_b32 s%d, 0x%x" % (d + 2, nbytes))
    a("s_mov_b32 s%d, 0x20000" % (d + 3))


def signal(a, scnt, off=0, n=0):
    a("s_waitcnt vmcnt(%d)" % n)
    a("v_mov_b32 v%d, 1" % T)
    a("v_mov_b32 v%d, 0" % (T + 1))
    a("s_mov_b64 exec, 1")
    a("buffer_atomic_add v%d, v%d, s[%d:%d], s%d offen offset:%d sc1" % (T, T + 1, sWS, sWS + 3, scnt, off))
    a("s_mov_b64 exec, -1")


def poll_issue(a, scnt, off=0):
    a("v_mov_b32 v%d, 0" % T)
    a("buffer_load_dword v%d, v%d, s[%d:%d], s%d offen offset:%d sc1" % (vPoll, T, sWS, sWS + 3, scnt, off))


def poll_check(a, scnt, off=0, target=32, n=0):
    l0, l1 = a.label("Lchk"), a.label("Lok")
    a("s_waitcnt vmcnt(%d)" % n)
    a(l0 + ":")
    a("v_readfirstlane_b32 s%d, v%d" % (sT0, vPoll))
    a("s_cmp_eq_u32 s%d, %d" % (sT0, target))
    a("s_cbranch_scc1 %s" % l1)
    poll_issue(a, scnt, off)
    a("s_waitcnt vmcnt(0)")
    a("s_branch %s" % l0)
    a(l1 + ":")


def p2_loads(a):
    a("s_load_dwordx4 s[48:51], s[0:1], %d" % KA_WSP)
    a("s_load_dwordx2 s[52:53], s[0:1], %d" % KA_WS)
    a("s_load_dwordx2 s[54:55], s[0:1], %d" % KA_X)
    a("s_load_dwordx2 s[62:63], s[0:1], %d" % KA_OUT)


def p2_early(a):
    lab = a.label("Learly")
    a("v_and_b32 v%d, 15, v0" % vPz)
    a("v_lshlrev_b32 v%d, 11, v%d" % (vPz, vPz))
    a("v_lshlrev_b32 v%d, 4, v0" % vL16)
    a("s_bfe_u32 s%d, s2, 0x20001" % sI)
    a("s_lshl_b32 s%d, s%d, 3" % (sI, sI))
    a("s_lshr_b32 s%d, s2, 5" % sT0)
    a("s_add_u32 s%d, s%d, s%d" % (sI, sI, sT0))
    a("s_and_b32 s%d, s2, 1" % sJ)
    a("s_lshl_b32 s%d, s%d, 2" % (sJ, sJ))
    a("s_bfe_u32 s%d, s2, 0x20003" % sT0)
    a("s_add_u32 s%d, s%d, s%d" % (sJ, sJ, sT0))
    a("s_and_b32 s%d, s%d, 1" % (sRR, sW))
    a("s_bfe_u32 s%d, s%d, 0x10001" % (sCC, sW))
    a("s_cmp_ge_u32 s%d, 4" % sW)
    a("s_cbranch_scc1 %s" % lab)
    a("s_cmp_lg_u32 s%d, 16" % sZk)
    a(k1.rare(a, "s_cbranch_scc1", lambda lb: zk_wait(a)) + ":")
    a("s_and_b32 s%d, s2, 7" % sT3)
    a("s_lshl_b32 s%d, s%d, 7" % (sT3, sT3))
    a("s_add_u32 s%d, s%d, 0x%x" % (sT3, sT3, WS_FL))
    a("v_lshrrev_b32 v1, 3, v0")
    a("s_lshl_b32 s%d, s%d, 4" % (sT1, sW))
    a("v_add_u32 v1, s%d, v1" % sT1)
    a("v_lshlrev_b32 v1, 12, v1")
    a("v_lshrrev_b32 v6, 4, v0")
    a("v_and_b32 v7, 7, v0")
    a("v_xor_b32 v6, v6, v7")
    a("v_lshl_add_u32 v%d, v6, 4, v1" % vAd0)
    a("v_xor_b32 v6, 4, v6")
    a("v_lshl_add_u32 v%d, v6, 4, v1" % vAd1)
    a("v_add_u32 v%d, %d, v%d" % (vAd1, 8 * 4096 - 1024, vAd1))
    a("s_lshl_b32 s%d, s%d, 18" % (sAoff, sI))
    a("s_lshl_b32 s%d, s%d, 11" % (sMA, sW))
    srd(a, sA, 48, S * S * 2)
    a("s_add_u32 s%d, s%d, %d" % (sAoff, sAoff, 128 * NPRE))
    a("s_mul_i32 s%d, s%d, 7" % (sMB, sCC))
    a("s_lshl_b32 s%d, s%d, 2" % (sT1, sRR))
    a("s_add_u32 s%d, s%d, s%d" % (sMB, sMB, sT1))
    a("s_lshl_b32 s%d, s%d, 10" % (sMB, sMB))
    a("s_mul_i32 s%d, s%d, %d" % (sBoff, sCC, NG_Z))
    a("s_add_u32 s%d, s%d, s%d" % (sBoff, sBoff, sT1))
    a("s_mul_i32 s%d, s%d, 7" % (sT1, sJ))
    a("s_add_u32 s%d, s%d, s%d" % (sBoff, sBoff, sT1))
    a("s_lshl_b32 s%d, s%d, 10" % (sBoff, sBoff))
    a("s_add_u32 s%d, s%d, %d" % (sBoff, sBoff, WS_Z + 54 * 1024))
    if KB:
        a("s_add_u32 s%d, s%d, s%d" % (sT1, sI, sJ))
        a("s_and_b32 s%d, s%d, 1" % (sT1, sT1))
        a("s_mul_i32 s%d, s%d, %d" % (sT0, sT1, KB * 128))
        a("s_add_u32 s%d, s%d, s%d" % (sAoff, sAoff, sT0))
        a("s_lshl_b32 s%d, s%d, 1" % (sT0, sT0))
        a("s_sub_u32 s31, 128, s%d" % sT0)
        a("s_add_u32 s32, 128, s%d" % sT0)
        a("s_mul_i32 s%d, s%d, %d" % (sT0, sT1, KB * 2 * NG_Z * 1024))
        a("s_add_u32 s%d, s%d, s%d" % (sBoff, sBoff, sT0))
        a("s_lshl_b32 s%d, s%d, 1" % (sT0, sT0))
        a("s_sub_u32 s33, %d, s%d" % (2 * NG_Z * 1024, sT0))
        a("s_add_u32 s34, %d, s%d" % (2 * NG_Z * 1024, sT0))
    a("s_mov_b32 s46, s%d" % sRR)
    a("s_mov_b32 s47, 0")
    a("s_mov_b64 vcc, s[46:47]")
    a(lab + ":")


def p2_poll(a):
    lab = a.label("Lnp")
    a("s_cmp_lg_u32 s%d, 0" % sW)
    a("s_cbranch_scc1 %s" % lab)
    a("buffer_load_dword v%d, v%d, s[%d:%d], s%d offen sc1" % (vPoll, vPz, sWS, sWS + 3, sT3))
    a(lab + ":")


def zk_wait(a):
    srd(a, sO, 60, 256)
    l0 = a.label("Lz0")
    a(l0 + ":")
    a("s_sleep 2")
    a("buffer_load_dword v%d, off, s[%d:%d], 0 sc1" % (vPoll, sO, sO + 3))
    a("s_waitcnt vmcnt(0)")
    a("v_readfirstlane_b32 s%d, v%d" % (sZk, vPoll))
    a("s_cmp_eq_u32 s%d, 16" % sZk)
    a("s_cbranch_scc0 %s" % l0)


def gen_p2(a):
    a("P2_entry:")
    if STAMP and k1.LITE and "steps" not in EXP:
        a("s_add_u32 s98, s72, s69")
    stamp(a, 0)
    if STAMP:
        srd(a, sWS, 52, WS_END)
    a("s_cmp_ge_u32 s%d, 4" % sW)
    a("s_cbranch_scc1 K2_consumer")
    a("K2_loader:")
    Q = []

    def younger(pred):
        idx = [n for n, t in enumerate(Q) if pred(t)]
        return min(63, len(Q) - 1 - max(idx)) if idx else 63

    def dAa(st):
        if "noA" in EXP:
            return
        a("s_add_u32 m0, s%d, %d" % (sMA, slotA(st)))
        a("buffer_load_dwordx4 v%d, s[%d:%d], s%d offen lds" % (vAd0, sA, sA + 3, sAoff))
        a("buffer_load_dwordx4 v%d, s[%d:%d], s%d offen offset:1024 lds" % (vAd1, sA, sA + 3, sAoff))
        a("s_add_u32 s%d, s%d, %s" % (sAoff, sAoff, kjump(st, "128", "s31", "s32")))
        Q.extend([("S", st)] * 2)

    class NoSc:
        def __call__(self, t):
            if "nodma2" in EXP and t.endswith(" lds"):
                return
            if "nodma2" in EXP and t.startswith("s_waitcnt vmcnt"):
                t = "s_waitcnt vmcnt(0)"
            a0(t.replace(" sc1 lds", " lds") if "nosc" in EXP else t)
        def label(self, x):
            return a0.label(x)
    a0 = a
    a = NoSc()

    def dAb(st):
        a("s_add_u32 m0, s%d, %d" % (sMB, slotB(st)))
        for t in range(3):
            a("buffer_load_dwordx4 v%d, s[%d:%d], s%d offen offset:%d sc1 lds" % (vL16, sWS, sWS + 3, sBoff, 1024 * t))
        lab = a.label("Lsk")
        a("s_cbranch_vccnz %s" % lab)
        a("buffer_load_dwordx4 v%d, s[%d:%d], s%d offen offset:3072 sc1 lds" % (vL16, sWS, sWS + 3, sBoff))
        a(lab + ":")
        a("s_add_u32 s%d, s%d, %s" % (sBoff, sBoff, kjump(st, str(2 * NG_Z * 1024), "s33", "s34")))
        Q.extend([("S", st)] * 3)

    def dB3(st):
        if "noB3" in EXP:
            return
        a("s_add_u32 m0, s%d, %d" % (sMB3, slotB(st)))
        for t in range(2):
            a("buffer_load_dwordx4 v%d, s[%d:%d], s%d offen offset:%d sc1 lds" % (vL16, sB3, sB3 + 3, sB3off, 1024 * t))
        lab = a.label("Lsk")
        a("s_cbranch_vccnz %s" % lab)
        a("buffer_load_dwordx4 v%d, s[%d:%d], s%d offen offset:2048 sc1 lds" % (vL16, sB3, sB3 + 3, sB3off))
        a(lab + ":")
        a("s_add_u32 s%d, s%d, %d" % (sB3off, sB3off, 80 * 1024))
        Q.extend([("S", st)] * 2)

    def dA3(st):
        if st == 55:
            a("s_cmp_eq_u32 s%d, 1" % sRR)
            a("s_cselect_b32 s%d, 0x40000000, s%d" % (sA3off, sA3off))
        a("s_add_u32 m0, s%d, %d" % (sMA, slotA(st)))
        for t in range(2):
            a("buffer_load_dwordx4 v%d, s[%d:%d], s%d offen offset:%d sc1 lds" % (vL16, sA3, sA3 + 3, sA3off, 1024 * t))
        a("s_add_u32 s%d, s%d, 4096" % (sA3off, sA3off))
        Q.extend([("S", st)] * 2)

    def vpoll_issue(vaddr, soff):
        a("buffer_load_dword v%d, v%d, s[%d:%d], s%d offen sc1" % (vPoll, vaddr, sWS, sWS + 3, soff))

    def vpoll_check(vaddr, soff, target, n):
        l0, l1 = a.label("Lchk"), a.label("Lok")
        a("s_waitcnt vmcnt(%d)" % n)
        a(l0 + ":")
        a("v_cmp_eq_u32 s[46:47], %d, v%d" % (target, vPoll))
        a("s_cmp_eq_u64 s[46:47], -1")
        a("s_cbranch_scc1 %s" % l1)
        a("s_sleep %d" % SL1)
        if target == 14:
            l2 = a.label("Lsl")
            a("v_cmp_eq_u32 s[46:47], 0, v%d" % vPoll)
            a("s_cmp_eq_u64 s[46:47], 0")
            a("s_cbranch_scc1 %s" % l2)
            a("s_sleep %d" % SL2)
            a(l2 + ":")
        vpoll_issue(vaddr, soff)
        a("s_waitcnt vmcnt(0)")
        a("s_branch %s" % l0)
        a(l1 + ":")

    a("v_mov_b32 v6, %d" % LREL)
    a("s_cmp_lg_u32 s%d, 0" % sW)
    a("s_cbranch_scc1 K2_nw0")
    a("s_waitcnt vmcnt(%d)" % (0 if (STAMP and not k1.LITE) else NPST))
    a("v_cmp_eq_u32 s[46:47], 14, v%d" % vPoll)
    a("s_cmp_eq_u64 s[46:47], -1")
    a("s_cselect_b32 s%d, %d, 0" % (sT0, 0 if "flate" in EXP else 1))
    a("v_mov_b32 v7, s%d" % sT0)
    a("ds_write_b32 v6, v7")
    a("s_waitcnt lgkmcnt(0)")
    a("K2_nw0:")
    a("s_barrier")
    a("ds_read_b32 v7, v6")
    for st in range(NPRE, 3):
        dAa(st)
    stamp(a, 1)
    a("s_waitcnt lgkmcnt(0)")
    a("v_readfirstlane_b32 s%d, v7" % sT0)
    a("s_cmp_eq_u32 s%d, 1" % sT0)

    def late(lb):
        a("s_waitcnt vmcnt(0)")
        a("s_barrier")
        a("s_cmp_lg_u32 s%d, 0" % sW)
        a("s_cbranch_scc1 K2_lw")
        vpoll_issue(vPz, sT3)
        vpoll_check(vPz, sT3, 14, 0)
        a("K2_lw:")
        a("s_barrier")
        n = len(Q)
        for st in range(3):
            dAb(st)
        del Q[n:]
    lb = k1.rare(a, "s_cbranch_scc0", late)
    for st in range(3):
        dAb(st)
    a("s_waitcnt vmcnt(9)")
    a("s_barrier")
    a("s_barrier")
    a(lb + ":")
    stamp(a, 2)
    a("v_and_b32 v%d, 1, v0" % vPz)
    a("v_lshlrev_b32 v%d, 11, v%d" % (vPz, vPz))
    a("s_lshr_b32 s%d, s%d, 2" % (sT3, sI))
    a("s_lshl_b32 s%d, s%d, 12" % (sT3, sT3))
    a("s_add_u32 s%d, s%d, 0x%x" % (sT3, sT3, WS_FL + 1024))
    a("s_lshl_b32 s%d, s%d, 7" % (sT0, sJ))
    a("s_add_u32 s%d, s%d, s%d" % (sT3, sT3, sT0))
    a("s_waitcnt vmcnt(%d)" % younger(lambda t: t == ("S", 0)))
    a("s_barrier")
    for st in range(3, NSA):
        if st >= NPRE:
            dAa(st)
        dAb(st)
    if NPRE <= 5:
        dAa(5)
    srd_off(a, sA3, 52, WS_A3, 64 * NG_A3 * 1024)
    srd_off(a, sB3, 52, WS_B3, 47 * 40 * 1024)
    a("s_lshl_b32 s%d, s%d, 1" % (sT0, sI))
    a("s_add_u32 s%d, s%d, s%d" % (sT0, sT0, sCC))
    a("s_mul_i32 s%d, s%d, %d" % (sA3off, sT0, NG_A3))
    a("s_lshl_b32 s%d, s%d, 1" % (sT0, sRR))
    a("s_add_u32 s%d, s%d, s%d" % (sA3off, sA3off, sT0))
    a("s_lshl_b32 s%d, s%d, 10" % (sA3off, sA3off))
    a("s_mul_i32 s%d, s%d, 3" % (sT0, sRR))
    a("s_mul_i32 s%d, s%d, 40" % (sB3off, sCC))
    a("s_add_u32 s%d, s%d, s%d" % (sB3off, sB3off, sT0))
    a("s_mul_i32 s%d, s%d, 5" % (sT1, sJ))
    a("s_add_u32 s%d, s%d, s%d" % (sB3off, sB3off, sT1))
    a("s_lshl_b32 s%d, s%d, 10" % (sB3off, sB3off))
    a("s_mul_i32 s%d, s%d, 5" % (sMB3, sCC))
    a("s_add_u32 s%d, s%d, s%d" % (sMB3, sMB3, sT0))
    a("s_lshl_b32 s%d, s%d, 10" % (sMB3, sMB3))
    a("v_lshrrev_b32 v1, 5, v0")
    a("v_and_b32 v2, 31, v0")
    a("s_lshl_b32 s%d, s%d, 2" % (sHd, sJ))
    a("s_add_u32 s%d, s%d, s%d" % (sHd, sHd, sW))
    a("s_mul_i32 s%d, s%d, 2560" % (sKv, sHd))
    a("s_add_u32 s%d, s%d, 0x%x" % (sKv, sKv, WS_KV))
    a("s_lshl_b32 s%d, s%d, 7" % (sCnt, sHd))
    a("s_add_u32 s%d, s%d, 0x%x" % (sCnt, sCnt, CNT_KV))
    a("s_lshl_b32 s%d, s%d, 7" % (sCntI, sI))
    a("s_add_u32 s%d, s%d, 0x%x" % (sCntI, sCntI, CNT_O))
    a("s_mul_i32 s%d, s%d, 5" % (sT0, sW))
    a("v_add_u32 v%d, s%d, v1" % (T + 3, sT0))
    quad_addr(a, T + 6, T + 3, False, T + 4, T + 5)
    a("v_add_u32 v%d, 2, v%d" % (T + 3, T + 3))
    quad_addr(a, T + 7, T + 3, False, T + 4, T + 5)
    a("s_add_u32 s%d, s%d, 4" % (sT0, sT0))
    a("v_mov_b32 v%d, s%d" % (T + 3, sT0))
    quad_addr(a, T + 8, T + 3, False, T + 4, T + 5)
    for n in range(3):
        a("v_add_u32 v%d, %d, v%d" % (T + 6 + n, OSC, T + 6 + n))
    a("s_lshl_b32 s%d, s%d, 10" % (sT0, sW))
    a("v_add_u32 v%d, s%d, v%d" % (vT0, sT0, vL16))
    a("s_lshl_b32 s%d, s%d, 8" % (sT0, sW))
    a("s_add_u32 s%d, s%d, 4096" % (sT0, sT0))
    a("v_add_u32 v%d, s%d, v%d" % (vT1, sT0, vL16))
    a("v_add_u32 v%d, %d, v%d" % (vT2, OSC, vT0))
    a("v_add_u32 v%d, %d, v%d" % (vT3, OSC, vT1))
    for t in range(3):
        a("v_add_u32 v%d, %d, v0" % (T + 3, 64 * t))
        a("v_min_u32 v%d, 159, v%d" % (T + 3, T + 3))
        a("v_mul_u32_u24 v%d, 205, v%d" % (T + 4, T + 3))
        a("v_lshrrev_b32 v%d, 11, v%d" % (T + 4, T + 4))
        a("v_mul_u32_u24 v%d, %d, v%d" % (T + 4, 1280 - 160, T + 4))
        a("v_lshl_add_u32 v%d, v%d, 4, v%d" % (vXd + t, T + 3, T + 4))
        if t:
            a("v_subrev_u32 v%d, %d, v%d" % (vXd + t, 1024 * t, vXd + t))
    srd(a, sO, 54, S * D * 2)
    a("s_lshl_b32 s%d, s%d, 2" % (sT0, sI))
    a("s_add_u32 s%d, s%d, s%d" % (sT0, sT0, sW))
    a("s_mul_i32 s%d, s%d, %d" % (sXo0, sT0, 16 * 1280))
    a("s_mul_i32 s%d, s%d, 160" % (sT0, sJ))
    a("s_add_u32 s%d, s%d, s%d" % (sXo0, sXo0, sT0))
    a("s_lshl_b32 s%d, s%d, 12" % (sXo1, sW))
    a("v_cmp_eq_u32 s[46:47], 24, v2")
    a("v_cndmask_b32 v%d, v2, 20, s[46:47]" % (T + 9))
    a("v_lshlrev_b32 v%d, 2, v%d" % (T + 9, T + 9))
    a("v_lshl_add_u32 v%d, v1, 10, v%d" % (T + 10, T + 9))
    a("v_lshl_add_u32 v%d, v1, 30, v%d" % (T + 9, T + 9))
    nextA = 32
    nextB = 32
    for b in range(0, 55):
        need = [("S", b + 1)] if b != 31 else []
        if b == 2 * HK[0] - 1:
            need.append(("SD", 0))
        if need:
            a("s_waitcnt vmcnt(%d)" % younger(lambda t: t in need))
        a("s_barrier")
        if b == PA[0]:
            vpoll_issue(vPz, sT3)
            Q.append(("P", b))
        if b == PA[1]:
            stamp(a, 3)
            vpoll_check(vPz, sT3, 16, younger(lambda t: t[0] == "P"))
            stamp(a, 4)
            a("s_and_b32 s%d, s%d, 3" % (sWk, sI))
            a("s_andn2_b32 s%d, s%d, 3" % (sT0, sI))
            a("s_add_u32 s%d, s%d, s%d" % (sT0, sT0, sW))
            a("s_mul_i32 s%d, s%d, %d" % (sT0, sT0, 2 * NG_QKV))
            a("s_mul_i32 s%d, s%d, 5" % (sT1, sJ))
            a("s_add_u32 s%d, s%d, s%d" % (sT0, sT0, sT1))
            a("s_add_u32 s%d, s%d, s%d" % (sT0, sT0, sWk))
            a("s_lshl_b32 s%d, s%d, 10" % (sT0, sT0))
            a("s_add_u32 s%d, s%d, %d" % (sT0, sT0, WS_QKV + 40 * 1024))
            a("s_lshl_b32 s%d, s%d, 13" % (sT2, sW))
            for n in range(4):
                a("s_add_u32 m0, s%d, %d" % (sT2, SIDE + 2048 * n))
                a("s_add_u32 s%d, s%d, %d" % (sT1, sT0, ((n & 1) * NG_QKV + (n >> 1) * 40) * 1024))
                a("buffer_load_dwordx4 v%d, s[%d:%d], s%d offen sc1 lds" % (vL16, sWS, sWS + 3, sT1))
                a("buffer_load_dwordx4 v%d, s[%d:%d], s%d offen offset:1024 sc1 lds" % (vL16, sWS, sWS + 3, sT1))
            Q.extend([("SD", 0)] * 8)
        if b == PA[1] + 6:
            a("s_mul_i32 s%d, s%d, 5" % (sT0, sHd))
            a("v_lshlrev_b32 v%d, 1, v1" % (T + 1))
            a("v_add_u32 v%d, s%d, v%d" % (T + 1, sT0, T + 1))
            a("s_mul_i32 s%d, s%d, %d" % (sT1, sI, 2 * NG_QKV * 1024))
            a("s_add_u32 s%d, s%d, %d" % (sT2, sT1, NG_QKV * 1024))
            for n in range(3):
                if n == 1:
                    a("v_add_u32 v%d, 1, v%d" % (T + 1, T + 1))
                if n == 2:
                    a("s_add_u32 s%d, s%d, 4" % (sT0, sT0))
                    a("v_mov_b32 v%d, s%d" % (T + 1, sT0))
                quad_addr(a, T + 2, T + 1, True, T + 4, T + 5)
                for sb in range(2):
                    d = PQR + 6 * sb + 2 * n
                    if "noex" not in EXP:
                        a("buffer_load_dwordx2 v[%d:%d], v%d, s[%d:%d], s%d offen sc1" % (d, d + 1, T + 2, sWS, sWS + 3, sT1 if sb == 0 else sT2))
            Q.extend([("PQ", 0)] * 6)
        if b == PK[0]:
            poll_issue(a, sCnt)
            Q.append(("P", b))
        if b == PK[1]:
            stamp(a, 5)
            poll_check(a, sCnt, target=24, n=younger(lambda t: t[0] == "P"))
            stamp(a, 6)
            for n in range(8):
                a("buffer_load_dword v%d, v%d, s[%d:%d], s%d offen offset:%d sc1" % (KVF + n, T + 10, sWS, sWS + 3, sKv, 128 * n))
            for n in range(4):
                a("buffer_load_dword v%d, v%d, s[%d:%d], s%d offen offset:%d sc1" % (KVF + 8 + n, T + 9, sWS, sWS + 3, sKv, 2048 + 128 * n))
            Q.extend([("KV", 0)] * 12)
        for st in range(5, 32):
            if issueB(st) == b:
                dAb(st)
        if NPRE <= b + 6 <= 31:
            dAa(b + 6)
        if b == PO[0]:
            poll_issue(a, sCntI)
            Q.append(("P", b))
        if b == PU[0]:
            poll_issue(a, sCntI)
            Q.append(("P", b))
        avail = {32: 26, 33: 27, 34: 28, 35: 29, 36: 29, 37: 30, 38: 31, 39: 31}
        while nextB <= 55 and avail.get(nextB, nextB - 8) <= b:
            dB3(nextB)
            nextB += 1
        if b in (PO[1], PU[1]):
            stamp(a, 7 if b == PO[1] else 9)
            poll_check(a, sCntI, n=younger(lambda t: t[0] == "P"))
            stamp(a, 8 if b == PO[1] else 10)
            if b == PO[1]:
                a("s_add_u32 s%d, s%d, %d" % (sCntI, sCntI, CNT_U - CNT_O))
        if b >= PO[1]:
            lim = min(b + 6, 55) if b >= PU[1] else min(b + 6, 41)
            while nextA <= lim:
                dA3(nextA)
                nextA += 1
        if b == 31:
            a("s_waitcnt vmcnt(%d)" % younger(lambda t: t == ("S", 32)))
            a("s_barrier")
        if b == 36:
            a("s_mov_b32 m0, s%d" % sXo1)
            for t in range(3):
                a("buffer_load_dwordx4 v%d, s[%d:%d], s%d offen offset:%d lds" % (vXd + t, sO, sO + 3, sXo0, 1024 * t))
            Q.extend([("X", 0)] * 3)
        if b == OTB:
            srd(a, sA, 62, S * D * 2)
            a("s_add_u32 m0, s%d, 16384" % sXo1)
            for t in range(3):
                a("buffer_load_dwordx4 v%d, s[%d:%d], s%d offen offset:%d lds" % (vXd + t, sA, sA + 3, sXo0, 1024 * t))
            Q.extend([("X", 1)] * 3)
        if b == PK[2]:
            a("s_mul_i32 s%d, s%d, %d" % (sT1, sI, 2 * NG_A3 * 1024))
            a("s_mul_i32 s%d, s%d, 5120" % (sT2, sJ))
            a("s_add_u32 s%d, s%d, s%d" % (sT1, sT1, sT2))
            a("s_add_u32 s%d, s%d, 0x%x" % (sT1, sT1, WS_A3))
            a("s_add_u32 s%d, s%d, %d" % (sT2, sT1, NG_A3 * 1024))
            a("v_cmp_eq_u32 s[46:47], 1, v1")
            a("s_waitcnt vmcnt(%d)" % younger(lambda t: t[0] == "KV"))
            for n in range(6):
                a("v_cvt_pk_bf16_f32 v%d, v%d, v%d" % (KVF + 16 + n, KVF + 2 * n, KVF + 2 * n + 1))
            for sb in range(2):
                d, p = DO + 16 * sb, PQR + 6 * sb
                a("v_mfma_f32_32x32x16_bf16 v[%d:%d], v[%d:%d], v[%d:%d], 0" % (d, d + 15, KVF + 16, KVF + 19, p, p + 3))
                a("v_mfma_f32_32x32x8_bf16 v[%d:%d], v[%d:%d], v[%d:%d], v[%d:%d]" % (d, d + 15, KVF + 20, KVF + 21, p + 4, p + 5, d, d + 15))
            for sb in range(2):
                d = DO + 16 * sb
                a("v_cndmask_b32 v%d, v%d, v%d, s[46:47]" % (T, d + 12, d + 8))
                a("v_add_f32 v%d, %s, v%d" % (T, fhex(1e-6), T))
                a("v_rcp_f32 v%d, v%d" % (T, T))
                for r in range(12):
                    a("v_mul_f32 v%d, v%d, v%d" % (d + r, d + r, T))
                for n in range(6):
                    a("v_cvt_pk_bf16_f32 v%d, v%d, v%d" % (KVF + 8 * sb + n, d + 2 * n, d + 2 * n + 1))
            for n in range(3):
                if n == 2:
                    a("s_mov_b32 exec_hi, 0")
                for sb in range(2):
                    p = KVF + 8 * sb + 2 * n
                    a("ds_write_b64 v%d, v[%d:%d] offset:%d" % (T + 6 + n, p, p + 1, 5120 * sb))
            a("s_mov_b64 exec, -1")
            a("s_waitcnt lgkmcnt(0)")
        if b == PK[2] + 1:
            for sb in range(2):
                a("ds_read_b128 v[%d:%d], v%d offset:%d" % (DO + 8 * sb, DO + 8 * sb + 3, vT2, 5120 * sb))
            a("s_mov_b64 exec, 0xffff")
            for sb in range(2):
                a("ds_read_b128 v[%d:%d], v%d offset:%d" % (DO + 8 * sb + 4, DO + 8 * sb + 7, vT3, 5120 * sb))
            a("s_waitcnt lgkmcnt(0)")
            for sb in range(2):
                a("buffer_store_dwordx4 v[%d:%d], v%d, s[%d:%d], s%d offen sc1" % (DO + 8 * sb + 4, DO + 8 * sb + 7, vT1, sWS, sWS + 3, sT1 if sb == 0 else sT2))
            a("s_mov_b64 exec, -1")
            for sb in range(2):
                a("buffer_store_dwordx4 v[%d:%d], v%d, s[%d:%d], s%d offen sc1" % (DO + 8 * sb, DO + 8 * sb + 3, vT0, sWS, sWS + 3, sT1 if sb == 0 else sT2))
            Q.extend([("O", 0)] * 4)
        if b == PK[3]:
            signal(a, sCntI, n=younger(lambda t: t[0] == "O"))
            Q.append(("G", 0))
    stamp(a, 11)
    if STAMP:
        a("s_add_u32 s%d, s%d, 4" % (sW, sW))
    stamp_dump(a, 12, sWS, sW, WS_STAMP + 0x20000)
    a("s_endpgm")
    a = a0
    a("K2_consumer:")
    if "prio" in EXP:
        a("s_setprio 2")
    a("s_barrier")
    a("s_and_b32 s%d, s%d, 3" % (sW, sW))

    a("s_lshl_b32 s%d, s%d, 2" % (sHd, sJ))
    a("s_add_u32 s%d, s%d, s%d" % (sHd, sHd, sW))
    a("s_and_b32 s%d, s%d, 3" % (sWk, sI))
    a("s_lshl_b32 s%d, s%d, 13" % (sT2, sW))
    a("s_add_u32 s%d, s%d, %d" % (sT2, sT2, SIDE))
    a("s_mov_b32 s%d, %d" % (sRd, slotA(0)))
    a("s_mov_b32 s%d, %d" % (sRdB, slotB(0)))
    if DEEP:
        a("s_mov_b32 s%d, %d" % (sWrap, RB))
    srd(a, sBS, 50, S * 2)
    srd(a, sO, 62, S * D * 2)
    a("v_lshrrev_b32 v1, 4, v0")
    a("v_and_b32 v2, 15, v0")
    a("v_and_b32 v3, 1, v1")
    a("v_lshrrev_b32 v4, 1, v1")
    a("v_lshl_add_u32 v5, v3, 5, v2")
    a("v_lshlrev_b32 v5, 4, v5")
    a("v_lshl_add_u32 v5, v4, 10, v5")
    a("s_lshl_b32 s%d, s%d, 12" % (sT0, sRR))
    a("v_add_u32 v%d, s%d, v5" % (vLA3, sT0))
    a("v_lshrrev_b32 v5, 2, v2")
    a("v_lshl_add_u32 v5, v3, 2, v5")
    a("v_lshl_add_u32 v5, v4, 4, v5")
    a("v_mul_u32_u24 v5, 160, v5")
    a("v_and_b32 v6, 3, v0")
    a("v_lshl_add_u32 v5, v6, 3, v5")
    a("s_mul_i32 s%d, s%d, 96" % (sT0, sCC))
    a("v_add_u32 v%d, s%d, v5" % (vLB3, sT0))
    a("v_mul_u32_u24 v%d, 160, v2" % vXl)
    a("v_lshl_add_u32 v%d, v1, 3, v%d" % (vXl, vXl))
    a("s_lshl_b32 s%d, s%d, 13" % (sT0, sRR))
    a("s_mul_i32 s%d, s%d, 96" % (sT1, sCC))
    a("s_add_u32 s%d, s%d, s%d" % (sT0, sT0, sT1))
    a("v_add_u32 v%d, s%d, v%d" % (vXl, sT0, vXl))
    a("v_mul_u32_u24 v%d, 1280, v2" % vO)
    a("v_lshl_add_u32 v%d, v1, 3, v%d" % (vO, vO))
    a("s_lshl_b32 s%d, s%d, 1" % (sT3, sI))
    a("s_add_u32 s%d, s%d, s%d" % (sT3, sT3, sRR))
    a("s_mul_i32 s%d, s%d, %d" % (sXo0, sT3, 32 * 1280))
    a("s_mul_i32 s%d, s%d, 160" % (sT0, sJ))
    a("s_add_u32 s%d, s%d, s%d" % (sXo0, sXo0, sT0))
    a("s_mul_i32 s%d, s%d, 96" % (sT0, sCC))
    a("s_add_u32 s%d, s%d, s%d" % (sXo0, sXo0, sT0))
    a("s_add_u32 s%d, s%d, %d" % (sXo1, sXo0, 16 * 1280))
    a("s_lshl_b32 s%d, s%d, 5" % (sT1, sRR))
    a("v_add_u32 v5, s%d, v2" % sT1)
    a("v_lshlrev_b32 v%d, 7, v5" % vLA)
    a("v_lshrrev_b32 v5, 1, v2")
    a("v_xor_b32 v5, v5, v1")
    a("v_lshl_add_u32 v%d, v5, 4, v%d" % (vLA, vLA))
    a("s_and_b32 s%d, s%d, 1" % (sT1, sJ))
    a("s_lshl_b32 s%d, s%d, 3" % (sT1, sT1))
    a("v_bfe_u32 v5, v0, 2, 2")
    a("v_lshl_add_u32 v5, v1, 3, v5")
    a("v_and_b32 v6, 1, v0")
    a("v_lshlrev_b32 v7, 2, v6")
    a("v_xor_b32 v5, v5, v7")
    a("v_xor_b32 v5, s%d, v5" % sT1)
    a("v_lshl_add_u32 v5, v6, 5, v5")
    a("v_lshlrev_b32 v5, 4, v5")
    a("v_bfe_u32 v7, v0, 1, 1")
    a("v_lshl_add_u32 v5, v7, 3, v5")
    a("s_lshl_b32 s%d, s%d, 12" % (sT0, sCC))
    a("v_add_u32 v%d, s%d, v5" % (vLB0, sT0))
    a("v_lshl_add_u32 v5, v3, 5, v2")
    a("v_lshlrev_b32 v5, 4, v5")
    a("v_lshl_add_u32 v%d, v4, 3, v5" % vU)
    a("v_lshlrev_b32 v5, 6, v3")
    a("v_xor_b32 v%d, v5, v%d" % (vZa, vU))
    a("s_lshl_b32 s%d, s%d, 4" % (sT1, sT1))
    a("v_xor_b32 v%d, s%d, v%d" % (vZa, sT1, vZa))
    a("v_xor_b32 v%d, 0x80, v%d" % (vZb, vZa))
    a("v_lshlrev_b32 v%d, 1, v2" % vBias2)
    a("v_lshrrev_b32 v1, 5, v0")
    a("v_and_b32 v2, 31, v0")
    a("v_bfe_u32 v3, v0, 2, 2")
    a("v_lshl_add_u32 v3, v1, 3, v3")
    a("v_bfe_u32 v5, v0, 4, 1")
    a("v_and_b32 v6, 3, v0")
    a("v_lshl_add_u32 v6, v5, 2, v6")
    a("v_min_u32 v6, 4, v6")
    a("v_add_u32 v6, s%d, v6" % sWk)
    a("v_and_b32 v4, 1, v6")
    a("v_lshrrev_b32 v5, 2, v6")
    a("s_add_u32 s%d, s%d, s%d" % (sT1, sJ, sWk))
    a("v_add_u32 v7, s%d, v5" % sT1)
    a("v_and_b32 v7, 1, v7")
    a("v_lshl_add_u32 v7, v7, 1, v4")
    a("v_lshlrev_b32 v7, 2, v7")
    a("v_xor_b32 v7, v7, v3")
    a("v_lshl_add_u32 v7, v4, 5, v7")
    a("v_lshlrev_b32 v7, 4, v7")
    a("v_bfe_u32 v4, v6, 1, 1")
    a("v_lshl_add_u32 v7, v4, 3, v7")
    a("v_lshl_add_u32 v7, v5, 10, v7")
    a("v_add_u32 v%d, s%d, v7" % (T + 8, sT2))
    a("v_xor_b32 v%d, 64, v%d" % (T + 9, T + 8))
    a("v_cmp_eq_u32 s[46:47], 20, v2")
    a("v_mov_b32 v%d, 0x3f803f80" % (T + 10))
    a("v_lshlrev_b32 v%d, 9, v1" % (T + 3))
    a("v_lshl_add_u32 v%d, v2, 2, v%d" % (T + 3, T + 3))
    a("s_mul_i32 s%d, s%d, 2560" % (sKv, sHd))
    a("s_add_u32 s%d, s%d, 0x%x" % (sKv, sKv, WS_KV))
    a("s_lshl_b32 s%d, s%d, 7" % (sCnt, sHd))
    a("s_add_u32 s%d, s%d, 0x%x" % (sCnt, sCnt, CNT_KV))
    a("s_lshl_b32 s%d, s%d, 2" % (sT0, sJ))
    a("s_add_u32 s%d, s%d, s%d" % (sT0, sT0, sWk))
    a("s_mul_i32 s%d, s%d, 2560" % (sKvW, sT0))
    a("s_lshl_b32 s%d, s%d, 10" % (sT1, sW))
    a("s_add_u32 s%d, s%d, s%d" % (sKvW, sKvW, sT1))
    a("s_add_u32 s%d, s%d, 0x%x" % (sKvW, sKvW, WS_KV))
    a("s_lshl_b32 s%d, s%d, 7" % (sCntW, sT0))
    a("s_add_u32 s%d, s%d, 0x%x" % (sCntW, sCntW, CNT_KV))
    a("v_add_u32 v%d, s%d, v%d" % (T + 4, sT2, vL16))
    a("s_add_u32 s%d, s%d, %d" % (sT1, sT1, SIDE))
    a("v_add_u32 v%d, s%d, v%d" % (T + 5, sT1, vL16))
    a("s_lshl_b32 s%d, s%d, 7" % (sCntI, sI))
    a("s_add_u32 s%d, s%d, 0x%x" % (sCntI, sCntI, CNT_O))
    for p in range(32):
        a("v_mov_b32 v%d, 0" % (ACC + p))
    a("s_mul_i32 s%d, s%d, 7" % (sT0, sJ))
    a("s_lshl_b32 s%d, s%d, 2" % (sT1, sCC))
    a("s_add_u32 s%d, s%d, s%d" % (sOdd, sT0, sT1))
    a("s_mul_i32 s%d, s%d, %d" % (sT2, sT3, NG_Z))
    a("s_add_u32 s%d, s%d, s%d" % (sT2, sT2, sOdd))
    a("s_lshl_b32 s%d, s%d, 10" % (sT2, sT2))
    a("s_add_u32 s%d, s%d, 0x%x" % (sT2, sT2, WS_Z))
    stamp(a, 1)
    a("s_waitcnt vmcnt(0)")
    a("s_barrier")
    a("s_cmp_lg_u32 s%d, 0" % sW)
    a("s_cbranch_scc1 K2_noall")
    a("v_mov_b32 v%d, 1" % T)
    a("v_lshlrev_b32 v%d, 7, v0" % (T + 2))
    a("s_mov_b64 exec, 0xff")
    a("buffer_atomic_add v%d, v%d, s[%d:%d], s%d offen sc1" % (T, T + 2, sWS, sWS + 3, sCall))
    a("s_cmp_eq_u32 s69, 1")
    a("s_cbranch_scc1 K2_nolate")
    a("s_sub_u32 s%d, s%d, 1024" % (sCall, sCall))
    a("buffer_atomic_add v%d, v%d, s[%d:%d], s%d offen sc1" % (T, T + 2, sWS, sWS + 3, sCall))
    a("K2_nolate:")
    a("s_mov_b64 exec, -1")
    a("K2_noall:")
    a("s_barrier")
    a("s_barrier")
    a("s_cmp_eq_u32 s%d, 1" % sCC)
    a("s_cbranch_scc1 K2_cc1")
    for cc in range(2):
        na, nb = 4 - cc, 3 - cc

        def ab(t, cc=cc):
            a(t.replace("@", "_%d" % cc))
        if cc:
            a("K2_cc1:")
        stamp(a, 2)
        for t in read_A(FA[0], na):
            a(t)
        ab("s_mov_b32 s%d, 0" % sIt)
        ab("s_mov_b32 s%d, %d" % (sHook, HK[0]))
        stamp(a, 3)
        ab("K2_loop@:")
        cstage(a, mf_A(FA[0], na), read_A(FA[1], na), FRA)
        ab("s_cmp_eq_u32 s%d, %d" % (sIt, HK[0]))
        ab("s_cbranch_scc1 K2_h1@")
        ab("K2_mid@:")
        cstage(a, mf_A(FA[1], na), read_A(FA[0], na), FRA)
        ab("s_add_u32 s%d, s%d, 1" % (sIt, sIt))
        ab("s_cmp_eq_u32 s%d, s%d" % (sIt, sHook))
        ab("s_cbranch_scc0 K2_loop@")
        ab("s_cmp_eq_u32 s%d, 15" % sIt)
        ab("s_cbranch_scc1 K2_h7@")
        ab("s_cmp_eq_u32 s%d, %d" % (sIt, HK[2]))
        ab("s_cbranch_scc1 K2_h2@")
        stamp(a, 4)
        ab("s_mov_b32 s%d, %d" % (sHook, HK[2]))
        for m in range(2):
            for k in range(4):
                d = KVF + 16 * m + 4 * k
                off = m * 4096 + (k >> 1) * 2048 + (k & 1) * 256
                ab("ds_read_b64_tr_b16 v[%d:%d], v%d offset:%d" % (d, d + 1, T + 8, off))
                ab("ds_read_b64_tr_b16 v[%d:%d], v%d offset:%d" % (d + 2, d + 3, T + 9, off))
        ab("s_waitcnt lgkmcnt(0)")
        for p in range(16):
            ab("v_cndmask_b32 v%d, v%d, v%d, s[46:47]" % (KVF + 16 + p, KVF + 16 + p, T + 10))
        for k in range(4):
            ab("v_mfma_f32_32x32x16_bf16 v[%d:%d], v[%d:%d], v[%d:%d], %s" % (
                DO, DO + 15, KVF + 4 * k, KVF + 4 * k + 3, KVF + 16 + 4 * k, KVF + 19 + 4 * k,
                "0" if k == 0 else "v[%d:%d]" % (DO, DO + 15)))
        for q in range(3):
            ab("ds_write_b128 v%d, v[%d:%d] offset:%d" % (T + 4, DO + 4 * q, DO + 4 * q + 3, 1024 * q))
        ab("s_branch K2_loop@")
        ab("K2_h1@:")
        ab("s_cmp_eq_u32 s%d, 3" % sW)
        ab("s_cbranch_scc1 K2_noat@")
        for q in range(4):
            ab("ds_read_b128 v[%d:%d], v%d offset:%d" % (KVF + 4 * q, KVF + 4 * q + 3, T + 5, 8192 * q))
        ab("s_waitcnt lgkmcnt(0)")
        for r in range(4):
            ab("v_add_f32 v%d, v%d, v%d" % (KVF + r, KVF + r, KVF + 4 + r))
            ab("v_add_f32 v%d, v%d, v%d" % (KVF + 8 + r, KVF + 8 + r, KVF + 12 + r))
        for r in range(4):
            ab("v_add_f32 v%d, v%d, v%d" % (KVF + r, KVF + r, KVF + 8 + r))
        ab("s_cmp_eq_u32 s%d, 2" % sW)
        ab("s_cselect_b32 exec_hi, 0, 0x1fffff")
        ab("s_mov_b32 exec_lo, 0x1fffff")
        for r in range(4):
            ab("buffer_atomic_add_f32 v%d, v%d, s[%d:%d], s%d offen offset:%d" % (
                KVF + r, T + 3, sWS, sWS + 3, sKvW, r * 128))
        ab("s_mov_b64 exec, -1")
        ab("K2_noat@:")
        for p in range(24):
            ab("v_mov_b32 v%d, 0" % (ACB + p))
        ab("s_branch K2_mid@")
        ab("K2_h2@:")
        ab("s_mov_b32 s%d, 15" % sHook)
        if DEEP:
            ab("s_mov_b32 s%d, 0" % sWrap)
        stamp(a, 5)
        ab("s_cmp_eq_u32 s%d, 3" % sW)
        ab("s_cbranch_scc1 K2_nosig@")
        signal(a, sCntW)
        ab("K2_nosig@:")
        stamp(a, 6)
        for ct in range(na):
            for rt in range(2):
                z = Z1R + 8 * rt + 2 * ct
                ab("buffer_load_dwordx2 v[%d:%d], v%d, s[%d:%d], s%d offen offset:%d sc1" % (
                    z, z + 1, vZb if ct & 1 else vZa, sWS, sWS + 3, sT2, 1024 * ct + 256 * rt))
        ab("s_lshl_b32 s%d, s%d, 6" % (sT0, sT3))
        ab("buffer_load_ushort v%d, v%d, s[%d:%d], s%d offen" % (vBias, vBias2, sBS, sBS + 3, sT0))
        ab("buffer_load_ushort v%d, v%d, s[%d:%d], s%d offen offset:32" % (vBias2, vBias2, sBS, sBS + 3, sT0))
        ab("s_branch K2_loop@")
        ab("K2_h7@:")
        cstage(a, mf_A(FA[0], na), read_A(FA[1], na), FRA)
        cstage(a, mf_A(FA[1], na), [], FRA)
        stamp(a, 8)
        ab("s_mov_b32 s%d, %d" % (sRdB, slotB(32)))
        ab("s_waitcnt vmcnt(0)")
        ab("v_lshlrev_b32 v%d, 16, v%d" % (vBias, vBias))
        ab("s_mul_i32 s%d, s%d, %d" % (sT0, sT3, NG_A3))
        ab("s_add_u32 s%d, s%d, s%d" % (sT0, sT0, sOdd))
        ab("s_lshl_b32 s%d, s%d, 10" % (sT0, sT0))
        ab("s_add_u32 s%d, s%d, %d" % (sT0, sT0, WS_A3 + 40 * 1024))
        ab("v_lshlrev_b32 v%d, 16, v%d" % (vBias2, vBias2))
        for ct in range(na):
            if cc == 1 and ct == 1:
                ab("s_cmp_eq_u32 s%d, 53" % sOdd)
                ab("s_cbranch_scc1 K2_done@")
            for rt in range(2):
                acc = ACC + 16 * rt + 4 * ct
                z = Z1R + 8 * rt + 2 * ct
                vb = vBias2 if rt else vBias
                for pp in range(2):
                    t = T + 2 * pp
                    ab("v_lshlrev_b32 v%d, 16, v%d" % (t, z + pp))
                    ab("v_and_b32 v%d, 0xffff0000, v%d" % (t + 1, z + pp))
                    ab("v_add_f32 v%d, v%d, v%d" % (acc + 2 * pp, acc + 2 * pp, vb))
                    ab("v_add_f32 v%d, v%d, v%d" % (acc + 2 * pp + 1, acc + 2 * pp + 1, vb))
                    ab("v_mul_f32 v%d, v%d, v%d" % (t, t, acc + 2 * pp))
                    ab("v_mul_f32 v%d, v%d, v%d" % (t + 1, t + 1, acc + 2 * pp + 1))
                    ab("v_cvt_pk_bf16_f32 v%d, v%d, v%d" % (z + pp, t, t + 1))
                ab("buffer_store_dwordx2 v[%d:%d], v%d, s[%d:%d], s%d offen offset:%d sc1" % (
                    z, z + 1, vU, sWS, sWS + 3, sT0, 1024 * ct + 256 * rt))
        ab("K2_done@:")
        stamp(a, 9)
        ab("s_add_u32 s%d, s%d, %d" % (sCntI, sCntI, CNT_U - CNT_O))
        ab("s_barrier")
        for t in read_B(FA[0], nb):
            a(t)
        cstage(a, mf_B(FA[0], nb), read_B(FA[1], nb), FRB)
        cstage(a, mf_B(FA[1], nb), read_B(FA[0], nb), FRB)
        stamp(a, 10)
        signal(a, sCntI)
        stamp(a, 11)
        ab("s_mov_b32 s%d, 1" % sIt)
        ab("K3_loop@:")
        cstage(a, mf_B(FA[0], nb), read_B(FA[1], nb), FRB)
        cstage(a, mf_B(FA[1], nb), read_B(FA[0], nb), FRB)
        ab("s_add_u32 s%d, s%d, 1" % (sIt, sIt))
        ab("s_cmp_eq_u32 s%d, 12" % sIt)
        ab("s_cbranch_scc0 K3_loop@")
        stamp(a, 12)
        for rt in range(2):
            for ct in range(nb):
                x = XR + 6 * rt + 2 * ct
                ab("ds_read_b64 v[%d:%d], v%d offset:%d" % (x, x + 1, vXl, rt * 4096 + 32 * ct))
        ab("s_waitcnt lgkmcnt(0)")
        for rt in range(2):
            for ct in range(nb):
                acc = ACB + 12 * rt + 4 * ct
                x = XR + 6 * rt + 2 * ct
                for p in range(2):
                    t = T + 2 * p
                    ab("v_lshlrev_b32 v%d, 16, v%d" % (t, x + p))
                    ab("v_and_b32 v%d, 0xffff0000, v%d" % (t + 1, x + p))
                    ab("v_add_f32 v%d, v%d, v%d" % (t, t, acc + 2 * p))
                    ab("v_add_f32 v%d, v%d, v%d" % (t + 1, t + 1, acc + 2 * p + 1))
                    ab("v_cvt_pk_bf16_f32 v%d, v%d, v%d" % (x + p, t, t + 1))
                ab("buffer_store_dwordx2 v[%d:%d], v%d, s[%d:%d], s%d offen offset:%d%s" % (x, x + 1, vO, sO, sO + 3, sXo0 if rt == 0 else sXo1, 32 * ct, os.environ.get("OST", "")))
        stamp(a, 13)
        if STAMP:
            ab("s_waitcnt vmcnt(0)")
        stamp(a, 14)
        stamp_dump(a, 15, sWS, sW, WS_STAMP + 0x20000)
        ab("s_endpgm")
```

```python
import sys
from asmlib import *
from common import *
import k1

HEADER = open('cdna_kernels/%s.s.ref' % NAME).read().split('; Override launch')[0]

DOC = """; One persistent kernel, 256 workgroups x 8 waves, one per CU (generated by a hand-written Python emitter).
"""


def kd(name, nv, ns):
    acc = (nv + 3) // 4 * 4
    return """.amdhsa_kernel %s
  .amdhsa_next_free_vgpr %d
  .amdhsa_next_free_sgpr %d
  .amdhsa_accum_offset %d
  .amdhsa_group_segment_fixed_size 0
  .amdhsa_kernarg_size 88
  .amdhsa_user_sgpr_count 2
  .amdhsa_user_sgpr_kernarg_segment_ptr 1
  .amdhsa_system_sgpr_workgroup_id_x 1
.end_amdhsa_kernel
""" % (name, nv, ns, acc)

def build(kernels, path):
    a = Asm()
    launches, kds = [], []
    for name, fn, grid, block, lds in kernels:
        start = len(a.ins)
        a(".globl %s" % name)
        a(".type %s,@function" % name)
        fn(a, name)
        mv, ms = a.max_regs(start)
        if name == NAME + "_kernel":
            launches.append("; @launch grid=(%d,1,1) block=(%d,1,1) lds=%d" % (grid, block, lds))
        else:
            launches.append("; @launch kernel=%s grid=(%d,1,1) block=(%d,1,1) lds=%d" % (name, grid, block, lds))
        kds.append(".p2align 6\n" + kd(name, mv + 1, ms + 1))
        print(name, "vgpr", mv + 1, "sgpr", ms + 1, "instrs", len(a.ins) - start, file=sys.stderr)
    a("CODE_END:")
    for b in a.check_edges()[:10]:
        print("EDGE HAZARD", b, file=sys.stderr)
    for b in a.check_waits()[:10]:
        print("WAIT?", b, file=sys.stderr)
    txt = HEADER + "\n".join(launches) + "\n" + '.amdgcn_target "amdgcn-amd-amdhsa--gfx950"\n.text\n' + DOC + a.text() + '.section .rodata,"a"\n' + "".join(kds)
    open(path, "w").write(txt)

if __name__ == "__main__":
    import os
    ks = [(NAME + "_kernel" if os.environ.get("PLAIN") else "k1_kernel", k1.gen_k1, 256, 512, k1.K1_LDS)]
    build(ks, sys.argv[1] if len(sys.argv) > 1 else 'cdna_kernels/%s.s' % NAME)
```

```python
import os
from asmlib import *
from common import *

LOG2E = 1.4426950408889634
GC1 = -2.0 * 0.7978845608028654 * LOG2E
GC2 = GC1 * 0.044715

REG = 81920
CH = 20480
K1_LDS = 2 * REG

X0, M0, E0, FR, HOLD, PK, T0 = 96, 80, 64, 48, 40, 36, 28
SEL, CSA = 24, 20
NEGMU, RSTD, RL, K1c, K2c, IRSTD = 19, 18, 17, 16, 15, 14
ZSUM, ZSQ = 12, 13
vA = 8
vW1a, vW1b, vSt0, vSt1, vCsR, vCsW = 7, 6, 5, 4, 3, 2
vXA, vXd0, vXd1, vW0a, vW0b = 40, 44, 45, 46, 47
XS, XQ, XQ2 = 36, 28, 32
sX, sW0, sW1, sWS, sDBG = 4, 8, 12, 16, 20
sRb, sCg, sW, sR, sC = 24, 25, 26, 27, 28
sXoff, sW0off, sW1off, sUstep, sUoff = 29, 30, 31, 32, 33
sWu, sOut2, sZok, sL0 = 52, 3, 56, 57
sGl = 70
sFl = 65
vUa, vUb = 74, 75
sDelta, sWb, sT0, sXb, sReady = 34, 35, 36, 37, 38
sOnes, sA, sB, sCc, sOut, sLine, sIsZ2, sType, sOne = 39, 40, 41, 42, 43, 44, 45, 46, 47
sOut1, sL1, sZ2w, sT1, sT2, sOut0, sZ2keep, sLg = 64, 65, 66, 67, 68, 69, 70, 71

STAMP = os.environ.get("STAMP", "0") in ("1", "2")
STOP = "s_memrealtime" if os.environ.get("STAMP") == "2" else "s_memtime"
WS_STAMP = 0x1800000
EXP = os.environ.get("EXP", "").split(",")


LITE = "lite" in EXP
PHASE = [1]
MAP1 = {0: 0, 7: 1, 10: 2, 13: 3}
MAP2 = {1: 4, 2: 5, 3: 6, 4: 7, 6: 8, 8: 9, 10: 10, 11: 11, 12: 12, 14: 14}


def stamp(a, i):
    if ("pp%d_%d" % (PHASE[0], i)) in EXP:
        a("s_memrealtime s[72:73]")
    if STAMP and LITE:
        m = MAP1 if PHASE[0] == 1 else ({14: 14} if "steps" in EXP else MAP2)
        if i in m:
            a("%s s[%d:%d]" % (STOP, 72 + 2 * m[i], 73 + 2 * m[i]))
        return
    if STAMP:
        a("%s s[%d:%d]" % (STOP, 72 + 2 * i, 73 + 2 * i))


def stamp_dump(a, n, srdn, wreg, base):
    if any(e.startswith("pp") for e in EXP) and base != WS_STAMP and n == 15:
        lab = a.label("Lpp")
        a("s_waitcnt lgkmcnt(0)")
        a("s_cmp_lg_u32 s2, 37")
        a("s_cbranch_scc1 %s" % lab)
        a("s_cmp_lg_u32 s%d, 0" % wreg)
        a("s_cbranch_scc1 %s" % lab)
        a("v_mov_b32 v2, s72")
        a("s_mov_b32 s%d, 0x4000000" % (srdn + 2))
        a("s_mov_b32 s%d, 0x%x" % (sT0, WS_STAMP))
        a("buffer_store_dword v2, off, s[%d:%d], s%d sc1" % (srdn, srdn + 3, sT0))
        a(lab + ":")
    if not STAMP or (LITE and base == WS_STAMP):
        return
    if LITE:
        n = 15
    if "dbgt" in EXP:
        lab = a.label("Ldb")
        sel = [0, 2, 7, 8, 9, 10, 13] if base == WS_STAMP else [0, 2, 4, 8, 11, 12, 14]
        first = 1 if base == WS_STAMP else 8
        a("s_load_dwordx2 s[%d:%d], s[0:1], %d" % (srdn, srdn + 1, KA_DBG))
        a("s_waitcnt lgkmcnt(0)")
        a("s_and_b32 s%d, s%d, 0xffff" % (srdn + 1, srdn + 1))
        a("s_mov_b32 s%d, 256" % (srdn + 2))
        a("s_mov_b32 s%d, 0x20000" % (srdn + 3))
        a("s_cmp_lg_u32 s%d, 0" % wreg)
        a("s_cbranch_scc1 %s" % lab)
        a("s_mov_b64 exec, 1")
        if base != WS_STAMP:
            a("v_mov_b32 v2, s100")
            a("buffer_atomic_umax v2, off, s[%d:%d], 0 offset:60 sc1" % (srdn, srdn + 3))
        a("s_cmp_lg_u32 s2, 37")
        a("s_cbranch_scc1 %s" % lab)
        for k, i in enumerate(sel):
            a("v_mov_b32 v2, s%d" % (72 + 2 * i))
            a("buffer_store_dword v2, off, s[%d:%d], 0 offset:%d sc1" % (srdn, srdn + 3, 4 * (first + k)))
        a(lab + ":")
        a("s_mov_b64 exec, -1")
        return
    a("s_waitcnt lgkmcnt(0)")
    a("s_lshl_b32 s%d, s2, 3" % sT0)
    a("s_add_u32 s%d, s%d, s%d" % (sT0, sT0, wreg))
    a("s_lshl_b32 s%d, s%d, 6" % (sT0, sT0))
    a("s_add_u32 s%d, s%d, 0x%x" % (sT0, sT0, base))
    a("s_mov_b32 s%d, 0x4000000" % (srdn + 2))
    a("v_mov_b32 v1, 0")
    a("s_mov_b64 exec, 1")
    for i in range(n):
        a("v_mov_b32 v2, s%d" % (72 + 2 * i))
        a("buffer_store_dword v2, v1, s[%d:%d], s%d offen offset:%d" % (srdn, srdn + 3, sT0, 4 * i))
    a("s_mov_b64 exec, -1")


class LdsQ:
    def __init__(self, a, init=()):
        self.a = a
        self.q = list(init)

    def issue(self, text, tag):
        self.a(text)
        self.q.append(tag)

    def wait(self, *tags):
        idx = [i for i, t in enumerate(self.q) if t in tags]
        if not idx:
            return
        last = max(idx)
        n = len(self.q) - 1 - last
        assert n <= 15
        self.a("s_waitcnt lgkmcnt(%d)" % n)
        self.q = self.q[last + 1:]


def srd(a, d, plo, nbytes):
    a("s_mov_b32 s%d, s%d" % (d, plo))
    a("s_and_b32 s%d, s%d, 0xffff" % (d + 1, plo + 1))
    a("s_mov_b32 s%d, 0x%x" % (d + 2, nbytes))
    a("s_mov_b32 s%d, 0x20000" % (d + 3))


def csel(a, d, t, f):
    a("s_mov_b32 s%d, %s" % (d, f))
    a("s_cselect_b32 s%d, %s, s%d" % (d, t, d))


def spread(n_items, n_slots):
    base, rem = divmod(n_items, n_slots)
    return [base + (1 if i < rem else 0) for i in range(n_slots)]


def frag_reads(q, pos, j):
    d = FR + 4 * (j & 3)
    off = pos * 4096 + (j >> 2) * 2048
    q.issue("ds_read_b64_tr_b16 v[%d:%d], v%d offset:%d" % (d, d + 1, vA + (j & 3), off), "f%d" % j)
    q.issue("ds_read_b64_tr_b16 v[%d:%d], v%d offset:%d" % (d + 2, d + 3, vA + (j & 3), off + 512), "f%d" % j)


def skew(seqs, d):
    if "noskew" in EXP:
        d = 0
    items = sorted((i + d * n, n, op) for n, s in enumerate(seqs) for i, op in enumerate(s))
    return [op for _, _, op in items]


def gelu_ops(regs, outs):
    seqs = []
    for e, (t, p) in zip(regs, outs):
        seqs.append([
            "v_mul_f32 v%d, v%d, v%d" % (t, e, e),
            "v_fma_f32 v%d, v%d, v%d, v%d" % (p, t, K2c, K1c),
            "v_mul_f32 v%d, v%d, v%d" % (p, p, e),
            "v_exp_f32 v%d, v%d" % (p, p),
            "v_fma_f32 v%d, v%d, v%d, v%d" % (p, p, IRSTD, IRSTD),
            "v_rcp_f32 v%d, v%d" % (p, p),
            "v_mul_f32 v%d, v%d, v%d" % (t, e, p),
        ])
    return skew(seqs, float(os.environ.get('SKG', '2')))


def phi_ops(regs, outs):
    seqs = []
    for e, (t, p) in zip(regs, outs):
        seqs.append([
            "v_mul_f32 v%d, v%d, v%d" % (p, e, RL),
            "v_exp_f32 v%d, v%d clamp" % (p, p),
            "v_fma_f32 v%d, v%d, v%d, s%d" % (t, e, RSTD, sCc),
            "v_max_f32 v%d, s%d, v%d" % (t, sA, t),
            "v_fma_f32 v%d, v%d, s%d, v%d" % (t, p, sB, t),
        ])
    return skew(seqs, float(os.environ.get('SKP', '1')))


def epi_cont(typ, hold):
    d = float(os.environ.get("CD", "1.0"))
    items = []
    for e in range(16):
        p, x = T0 + (e & 7), E0 + e
        if typ == "G":
            ops = ["v_mul_f32 v%d, v%d, v%d" % (p, x, x),
                   "v_fma_f32 v%d, v%d, v%d, v%d" % (p, p, K2c, K1c),
                   "v_mul_f32 v%d, v%d, v%d" % (p, p, x),
                   "v_exp_f32 v%d, v%d" % (p, p),
                   "v_fma_f32 v%d, v%d, v%d, v%d" % (p, p, IRSTD, IRSTD),
                   "v_rcp_f32 v%d, v%d" % (p, p),
                   "v_mul_f32 v%d, v%d, v%d" % (x, x, p)]
        else:
            ops = ["v_mul_f32 v%d, v%d, v%d" % (p, x, RL),
                   "v_exp_f32 v%d, v%d clamp" % (p, p),
                   "v_fma_f32 v%d, v%d, v%d, s%d" % (x, x, RSTD, sCc),
                   "v_max_f32 v%d, s%d, v%d" % (x, sA, x),
                   "v_fma_f32 v%d, v%d, s%d, v%d" % (x, p, sB, x)]
        n = len(ops)
        assert 8 * d > n - 1
        for i, op in enumerate(ops):
            items.append((e * d + i, e, op))
        if e & 1:
            o = (HOLD + e // 2) if hold else PK + (e // 2) % 4
            t = e * d + n
            items.append((t, e, "v_cvt_pk_bf16_f32 v%d, v%d, v%d" % (o, x - 1, x)))
            if hold:
                items.append((t + 1, e, "v_dot2c_f32_bf16 v%d, s%d, v%d" % (ZSUM, sOnes, o)))
                items.append((t + 2, e, "v_dot2c_f32_bf16 v%d, v%d, v%d" % (ZSQ, o, o)))
        if (e & 7) == 7:
            items.append((e * d + n + (2.5 if hold else 0.5), e, ("out", e >> 3)))
    items.sort(key=lambda x: (x[0], x[1]))
    return [x[2] for x in items]


def epi_quad(typ, qd, hold=False):
    regs = [E0 + 4 * qd + i for i in range(4)]
    outs = [(T0 + 2 * i, T0 + 2 * i + 1) for i in range(4)]
    ops = gelu_ops(regs, outs) if typ == "G" else phi_ops(regs, outs)
    o = HOLD + 2 * qd if hold else PK + 2 * (qd & 1)
    ops.append("v_cvt_pk_bf16_f32 v%d, v%d, v%d" % (o, outs[0][0], outs[1][0]))
    ops.append("v_cvt_pk_bf16_f32 v%d, v%d, v%d" % (o + 1, outs[2][0], outs[3][0]))
    return ops


RARE = []


def rare(a, cond_branch, fn):
    lr, lb = a.label("Lrare"), a.label("Lback")
    a("%s %s" % (cond_branch, lr))
    RARE.append((lr, lb, fn))
    return lb


def flush_rare(a):
    for lr, lb, fn in RARE:
        a(lr + ":")
        fn(lb)
        a("s_branch %s" % lb)
    del RARE[:]


def epi_out(a, typ, half, z2=False):
    vst = vSt0 if half == 0 else vSt1
    src = HOLD + 4 * half if z2 else PK
    a("buffer_store_dwordx4 v[%d:%d], v%d, s[%d:%d], s%d offen sc1" % (src, src + 3, vst, sWS, sWS + 3, sOut))
    if not z2:
        return
    if half == 1:
        a("s_lshl_b32 s%d, s%d, 9" % (sT0, sW))
        a("s_add_u32 s%d, s%d, %d" % (sT0, sT0, REG + CH + 2 * 4096))
        a("v_lshlrev_b32 v%d, 3, v0" % (T0 + 2))
        a("v_add_u32 v%d, s%d, v%d" % (T0 + 2, sT0, T0 + 2))
        a("v_mul_f32 v%d, s%d, v%d" % (ZSUM, sIsZ2, ZSUM))
        a("v_mul_f32 v%d, s%d, v%d" % (ZSQ, sIsZ2, ZSQ))
        a("v_mov_b32 v%d, v%d" % (T0, ZSUM))
        a("v_mov_b32 v%d, v%d" % (T0 + 1, ZSQ))
        a("v_permlane32_swap_b32 v%d, v%d" % (ZSUM, T0))
        a("v_permlane32_swap_b32 v%d, v%d" % (ZSQ, T0 + 1))
        a("v_add_f32 v%d, v%d, v%d" % (ZSUM, ZSUM, T0))
        a("v_add_f32 v%d, v%d, v%d" % (ZSQ, ZSQ, T0 + 1))


def dma_unit(pos):
    return [
        "s_add_u32 m0, s%d, %d" % (sWb, pos * 4096),
        "buffer_load_dwordx4 v%d, s[%d:%d], s%d offen lds" % (vW1a, sW1, sW1 + 3, sW1off),
        "buffer_load_dwordx4 v%d, s[%d:%d], s%d offen offset:1024 lds" % (vW1b, sW1, sW1 + 3, sW1off),
        "s_add_u32 s%d, s%d, %d" % (sW1off, sW1off, (128 - 4 * 128 * 3840) & 0xffffffff if pos == 4 else 128 * 3840),
    ]


def dma_u(pos):
    return [
        "s_add_u32 m0, s%d, %d" % (sWb, pos * 4096),
        "buffer_load_dwordx4 v%d, s[%d:%d], s%d offen lds" % (vUa, sWu, sWu + 3, sUoff),
        "buffer_load_dwordx4 v%d, s[%d:%d], s%d offen offset:1024 lds" % (vUb, sWu, sWu + 3, sUoff),
        "s_add_u32 s%d, s%d, s%d" % (sUoff, sUoff, sUstep),
    ]


def dma_x(hp):
    return [
        "s_add_u32 m0, s%d, %d" % (sXb, (hp % 5) * 4096),
        "buffer_load_dwordx4 v%d, s[%d:%d], s%d offen lds" % (vXd0, sX, sX + 3, sXoff),
        "buffer_load_dwordx4 v%d, s[%d:%d], s%d offen offset:1024 lds" % (vXd1, sX, sX + 3, sXoff),
        "s_add_u32 s%d, s%d, 128" % (sXoff, sXoff),
    ]


def dma_b0(i):
    return [
        "s_add_u32 m0, s%d, %d" % (sWb, i * 4096 - REG),
        "buffer_load_dwordx4 v%d, s[%d:%d], s%d offen lds" % (vW0a, sW0, sW0 + 3, sW0off),
        "buffer_load_dwordx4 v%d, s[%d:%d], s%d offen offset:1024 lds" % (vW0b, sW0, sW0 + 3, sW0off),
        "s_add_u32 s%d, s%d, %d" % (sW0off, sW0off, 128 * 3456),
    ]


def mfma(a, i, j):
    x = X0 + 32 * i + 4 * j
    f = FR + 4 * (j & 3)
    d = E0 if (i == 4 and j == 7) else M0
    c = "0" if (i == 0 and j == 0) else "v[%d:%d]" % (M0, M0 + 15)
    a("v_mfma_f32_32x32x16_bf16 v[%d:%d], v[%d:%d], v[%d:%d], %s" % (d, d + 15, f, f + 3, x, x + 3, c))


def cs_mfma(a, i, j):
    f = FR + 4 * (j & 3)
    c = "0" if (i == 0 and j == 0) else "v[%d:%d]" % (CSA, CSA + 3)
    a("v_mfma_f32_16x16x32_bf16 v[%d:%d], v[%d:%d], v[%d:%d], %s" % (CSA, CSA + 3, SEL, SEL + 3, f, f + 3, c))


def ext_mfma(a, q):
    q.wait("csr")
    a("v_add_f32 v%d, v%d, v%d" % (PK, PK, PK + 1))
    a("v_add_f32 v%d, v%d, v%d" % (PK + 2, PK + 2, PK + 3))
    a("v_add_f32 v%d, v%d, v%d" % (PK, PK, PK + 2))
    a("v_add_u32 v%d, s%d, v%d" % (vCsR, sDelta, vCsR))
    a("v_mfma_f32_32x32x2_f32 v[%d:%d], v%d, v%d, v[%d:%d]" % (E0, E0 + 15, PK, NEGMU, E0, E0 + 15))


ST = X0
ZN = X0 + 16
ZT = X0 + 24
XE = X0 + 48
vPf = 1
OWN = int(os.environ.get("OWN", "16"))
SIDE_END = int(os.environ.get("SIDE_END", "32"))
TPOS = [tuple(int(c) for c in t.split(".")) for t in os.environ.get("TPOS", "1.2,2.0").split(",") if t]
TLN = OWN // max(len(TPOS), 1)
TAT = int(os.environ.get("TAT", "2"))
W1AT = int(os.environ.get("W1AT", "8"))
N15 = int(os.environ.get("N15", "4"))
N14 = int(os.environ.get("N14", "0"))
PFREST = 65536 - 128 * 64 * (N15 + N14)
PFL = -(-PFREST // (1792 * 2))
LRDY = 2 * 4096 + 3584


def zok_check(a, tmp):
    l0, l1 = a.label("Lz0"), a.label("Lz1")
    a(l0 + ":")
    a("s_cmp_eq_u32 s%d, 16" % sZok)
    a("s_cbranch_scc1 %s" % l1)
    a("buffer_load_dword v%d, off, s[%d:%d], 0 sc1" % (tmp, sDBG, sDBG + 3))
    a("s_waitcnt vmcnt(0)")
    a("v_readfirstlane_b32 s%d, v%d" % (sZok, tmp))
    a("s_branch %s" % l0)
    a(l1 + ":")


def stat_lane(v):
    return ["v_and_b32 v%d, 31, v0" % v,
            "v_lshlrev_b32 v%d, 3, v%d" % (v, v),
            "v_lshrrev_b32 v%d, 5, v0" % (v + 1),
            "v_mul_u32_u24 v%d, %d, v%d" % (v + 1, 7 * 256, v + 1),
            "v_add_u32 v%d, v%d, v%d" % (v, v, v + 1)]


def valid_ops(t):
    L = ["v_and_b32 v%d, v%d, v%d" % (t, ST + 1, ST + 3),
         "v_and_b32 v%d, v%d, v%d" % (t + 1, ST + 5, ST + 7),
         "v_and_b32 v%d, v%d, v%d" % (t + 2, ST + 9, ST + 11),
         "v_and_b32 v%d, v%d, v%d" % (t, t, ST + 13),
         "v_and_b32 v%d, v%d, v%d" % (t + 1, t + 1, t + 2),
         "v_and_b32 v%d, v%d, v%d" % (t, t, t + 1),
         "v_cmp_gt_i32 vcc, 0, v%d" % t,
         "s_cmp_eq_u64 vcc, -1"]
    return L


def sum_ops():
    L = []
    for (d, s_) in ((0, 4), (1, 5), (2, 6), (0, 3), (1, 2), (0, 1)):
        L.append("v_add_f32 v%d, v%d, v%d" % (ST + 2 * d, ST + 2 * d, ST + 2 * s_))
        L.append("v_add_f32 v%d, v%d, v%d" % (ST + 2 * d + 1, ST + 2 * d + 1, ST + 2 * s_ + 1))
    return L


def norm_ops():
    L = ["v_mov_b32 v%d, v%d" % (ST + 2, ST),
         "v_mov_b32 v%d, v%d" % (ST + 3, ST + 1),
         "v_lshlrev_b32 v%d, 16, v%d" % (ZT, HOLD),
         "v_and_b32 v%d, 0xffff0000, v%d" % (ZT + 1, HOLD),
         "v_permlane32_swap_b32 v%d, v%d" % (ST, ST + 2),
         "v_permlane32_swap_b32 v%d, v%d" % (ST + 1, ST + 3),
         "v_add_f32 v%d, v%d, v%d" % (ST, ST, ST + 2),
         "v_add_f32 v%d, v%d, v%d" % (ST + 1, ST + 1, ST + 3),
         "v_mul_f32 v%d, %s, v%d" % (ST, fhex(-1.0 / FH), ST),
         "v_mul_f32 v%d, %s, v%d" % (ST + 1, fhex(-1.0 / FH), ST + 1),
         "v_fma_f32 v%d, -v%d, v%d, v%d" % (ST + 1, ST, ST, ST + 1),
         "v_max_f32 v%d, 0, v%d" % (ST + 1, ST + 1),
         "v_add_f32 v%d, %s, v%d" % (ST + 1, fhex(1e-5), ST + 1),
         "v_rsq_f32 v%d, v%d" % (ST + 1, ST + 1),
         "v_lshlrev_b32 v%d, 16, v%d" % (ZT + 2, HOLD + 1),
         "v_and_b32 v%d, 0xffff0000, v%d" % (ZT + 3, HOLD + 1)]
    for t in range(8):
        z = ZT + 2 * (t & 3)
        L.append("v_add_f32 v%d, v%d, v%d" % (z, z, ST))
        L.append("v_add_f32 v%d, v%d, v%d" % (z + 1, z + 1, ST))
        if t + 2 < 8:
            z2 = ZT + 2 * ((t + 2) & 3)
            L.append("v_lshlrev_b32 v%d, 16, v%d" % (z2, HOLD + t + 2))
            L.append("v_and_b32 v%d, 0xffff0000, v%d" % (z2 + 1, HOLD + t + 2))
        L.append("v_mul_f32 v%d, v%d, v%d" % (z, z, ST + 1))
        L.append("v_mul_f32 v%d, v%d, v%d" % (z + 1, z + 1, ST + 1))
        L.append("v_cvt_pk_bf16_f32 v%d, v%d, v%d" % (ZN + t, z, z + 1))
    return L


def zn_stores(a, soff):
    a("buffer_store_dwordx4 v[%d:%d], v%d, s[%d:%d], s%d offen sc1" % (ZN, ZN + 3, vSt0, sWS, sWS + 3, soff))
    a("buffer_store_dwordx4 v[%d:%d], v%d, s[%d:%d], s%d offen sc1" % (ZN + 4, ZN + 7, vSt1, sWS, sWS + 3, soff))


def cz_signal(a):
    a("v_mov_b32 v%d, 1" % ZSUM)
    a("v_lshlrev_b32 v%d, 7, v0" % ZSQ)
    a("s_mov_b64 exec, 0xff")
    a("buffer_atomic_add v%d, v%d, s[%d:%d], s%d offen sc1" % (ZSUM, ZSQ, sWS, sWS + 3, sT2))
    a("s_mov_b64 exec, -1")


INQ2 = ["f0", "f0", "csw", "f1", "f1", "f2", "f2"]


def next_line_ops():
    return [
        "s_mov_b32 s%d, s%d" % (sOut, sOut1),
        "s_mov_b32 s%d, s%d" % (sOut1, sOut2),
        "s_add_u32 s%d, s%d, 4096" % (sOut2, sOut2),
        "s_cmp_ge_u32 s%d, 20\ns_mov_b32 s%d, %s\ns_cselect_b32 s%d, 0xff800000, s%d\ns_cselect_b32 s%d, 0, 1.0\ns_cselect_b32 s%d, 0, %s" % (
            sLg, sA, fhex(1e-6), sA, sA, sB, sCc, fhex(1e-6)),
        "s_add_u32 s%d, s%d, 1" % (sLg, sLg),
    ]


PRE1 = []
PRE_AT = {(0, 1): 0, (0, 4): 2, (0, 7): 4, (2, 0): 1, (2, 2): 3, (2, 4): 5, (2, 6): 6, (3, 0): 7, (3, 2): 8, (3, 4): 9}
if "prelate" in EXP:
    PRE_AT = {(2, 0): 0, (2, 2): 1, (2, 4): 2, (2, 6): 3, (3, 0): 4, (3, 2): 5, (3, 4): 6, (3, 6): 7, (4, 0): 8, (4, 2): 9}
MARK = {}


def vm_since(a, idx, pre=0):
    return pre + sum(1 for t in a.ins[idx:] if t.kind in ("vmem", "vmem_lds"))


def body(a, typ, line, start=None):
    last = line == 3
    q = LdsQ(a, INQ2)
    allp = []
    if "nocont" not in EXP:
        allp = epi_cont(typ, line == 1)
    for qd in range(0 if "nocont" in EXP else 4, 4):
        allp += epi_quad(typ, qd, hold=(line == 1))
        if line == 1:
            for t in (HOLD + 2 * qd, HOLD + 2 * qd + 1):
                allp.append("v_dot2c_f32_bf16 v%d, s%d, v%d" % (ZSUM, sOnes, t))
                allp.append("v_dot2c_f32_bf16 v%d, v%d, v%d" % (ZSQ, t, t))
        if qd & 1:
            allp.append(("out", qd >> 1))
    if not last:
        if line == 1:
            ecnt = spread(len(PRE1), 6) + [0] + spread(len(allp), 24) + [0] * 9
            allp = PRE1 + allp
        else:
            ecnt = [0] * 6 + spread(len(allp), 33) + [0]
        lfill, p0 = [], 0
        for i in range(5):
            n = sum(ecnt[8 * i:8 * i + 8])
            lfill.append(allp[p0:p0 + n])
            p0 += n
    if last:
        n3 = spread(len(allp), 3)
        lfill = [[], norm_ops(), allp[:n3[0]], allp[n3[0]:n3[0] + n3[1]], allp[n3[0] + n3[1]:]]
        assert ("out", 0) in lfill[3]
    for i in range(5):
        q.wait("csw")
        if not last:
            u = 5 * line + i + 1
            if start is not None and MARK[u] <= start[0]:
                n = sum(1 for t in a.ins[MARK[u]:start[0]] if t.kind in ("vmem", "vmem_lds")) + vm_since(a, start[1])
            else:
                n = vm_since(a, MARK[u])
            a("s_waitcnt vmcnt(%d)" % (10 if "vm10" in EXP else n))
        elif i in (0, 4):
            a("s_waitcnt vmcnt(%d)" % (1 if i == 0 else vm_since(a, MARK["zn"])))
        a("s_barrier")
        SM = {(1, 1): 4, (1, 3): 5, (2, 0): 6, (2, 2): 7, (2, 3): 8, (2, 4): 9, (3, 0): 10, (3, 1): 11, (3, 3): 12, (3, 4): 13}
        if "steps" in EXP and (line, i) in SM:
            a("%s s[%d:%d]" % (STOP, 72 + 2 * SM[(line, i)], 73 + 2 * SM[(line, i)]))
        if ("st2" in EXP and line == 2) or ("st1" in EXP and line == 1):
            stamp(a, 2 + i)
        if "st3" in EXP and last:
            stamp(a, 2 + i)
        du = dma_unit((i + 2) % 5)
        lump = None
        hasdma = line == 1 or (line == 2 and i < 3)
        fill = lfill[i]
        if last:
            nslots = 7 if i == 4 else 8
            cnt = spread(len(fill), nslots) + [0] * (8 - nslots)
        else:
            cnt = ecnt[8 * i:8 * i + 8]
        pos = 0
        for j in range(8):
            q.wait("f%d" % j)
            mfma(a, i, j)
            if i == 0 and j == 0:
                q.issue("ds_read_b128 v[%d:%d], v%d" % (PK, PK + 3, vCsR), "csr")
            if last and i == 2 and j in (1, 2):
                d, off = XE + 4 * (j - 1), 4 * 4096 + (j - 1) * 2048
                q.issue("ds_read_b64_tr_b16 v[%d:%d], v%d offset:%d" % (d, d + 1, vA, off), "xe")
                q.issue("ds_read_b64_tr_b16 v[%d:%d], v%d offset:%d" % (d + 2, d + 3, vA, off + 512), "xe")
            if last and i == 4 and j == 0:
                q.issue("ds_read_b128 v[%d:%d], v%d" % (XE + 8, XE + 11, vCsR), "csr")
            if i == (3 if last else 4) and j == 6:
                q.issue("ds_write_b32 v%d, v%d" % (vCsW, CSA), "csw")
                if line == 1:
                    a("v_subrev_u32 v%d, %d, v%d" % (vCsW, REG, vCsW))
                if line == 2:
                    a("v_add_u32 v%d, %d, v%d" % (vCsW, REG + 3 * CH - 4096, vCsW))
            if last and i == 4 and j == 2:
                import p2
                p2.p2_loads(a)
            jn = j + 3
            if jn < 8:
                frag_reads(q, i, jn)
            elif not (last and i == 4):
                frag_reads(q, (i + 1) % 5, jn - 8)
            if i == 4 and 1 <= j <= 4 and not last:
                t = (j + 3) & 3
                a("v_add_u32 v%d, s%d, v%d" % (vA + t, sDelta, vA + t))
            if i == 0 and j == (3 if line == 1 else 2):
                ext_mfma(a, q)
                if last:
                    a("v_add_u32 v%d, %d, v%d" % (vCsR, 3 * CH - 4096, vCsR))
                a("s_sub_u32 s%d, 0, s%d" % (sDelta, sDelta))
            if last and i == 0:
                if j == 0:
                    for t in stat_lane(T0):
                        a(t)
                    a("s_mul_i32 s%d, s%d, %d" % (sT0, sR, CH))
                    a("s_add_u32 s%d, s%d, 8192" % (sT0, sT0))
                    a("v_add_u32 v%d, s%d, v%d" % (T0, sT0, T0))
                if j <= 3:
                    for t in (2 * j, 2 * j + 1):
                        if t < 7:
                            q.issue("ds_read_b64 v[%d:%d], v%d offset:%d" % (ST + 2 * t, ST + 2 * t + 1, T0, 256 * t), "st")
                if j == 5:
                    q.wait("st")
                    for t in valid_ops(T0 + 2):
                        a(t)
                    a("s_cselect_b32 s%d, 1, 0" % sT0)
                    a("v_mov_b32 v%d, s%d" % (T0 + 2, sT0))
                    a("v_mov_b32 v%d, %d" % (T0 + 3, LRDY))
                    a("s_mov_b64 exec, 1")
                    q.issue("ds_add_u32 v%d, v%d" % (T0 + 3, T0 + 2), "csw")
                    a("s_mov_b64 exec, -1")
                if j >= 6:
                    for t in sum_ops()[6 * (j - 6):6 * (j - 5)]:
                        a(t)
            if last and i == 1:
                if j == 0:
                    q.issue("ds_read_b32 v%d, v%d" % (T0 + 2, T0 + 3), "rdy")
                if j == 4:
                    q.wait("rdy")
                    a("v_readfirstlane_b32 s%d, v%d" % (sT1, T0 + 2))
                    a("s_cmp_eq_u32 s%d, %d" % (sT1, 9 if "fslow" in EXP else 8))
                    a("s_cselect_b32 s%d, 1, 0" % sReady)
                    a("s_cselect_b32 s%d, s%d, 0x40000000" % (sT0, sOut0))
                    a("s_cselect_b32 s%d, s%d, 99" % (sL1, sL1))
            if not last:
                if j == 0 and i == 3 and line == 2:
                    a("s_mov_b32 m0, s%d" % sGl)
                    a("v_lshlrev_b32 v%d, 4, v0" % ZSUM)
                    a("s_and_b32 s%d, s%d, 0xfffff000" % (sT0, sZ2w))
                    a("s_lshl_b32 s%d, s%d, 11" % (sT1, sC))
                    a("s_add_u32 s%d, s%d, s%d" % (sT0, sT0, sT1))
                    a("buffer_load_dwordx4 v%d, s[%d:%d], s%d offen sc1 lds" % (ZSUM, sWS, sWS + 3, sT0))
                if j == 4 and i == 3 and line == 2:
                    a("buffer_load_dwordx4 v%d, s[%d:%d], s%d offen offset:1024 sc1 lds" % (ZSUM, sWS, sWS + 3, sT0))
                if j == 0 and hasdma:
                    a(du[0])
            for t in fill[pos:pos + cnt[j]]:
                if isinstance(t, tuple):
                    epi_out(a, typ, t[1], z2=(line == 1))
                    if line == 1 and t[1] == 1:
                        q.issue("ds_write_b64 v%d, v[%d:%d]" % (T0 + 2, ZSUM, ZSQ), "csw")
                else:
                    a(t)
            pos += cnt[j]
            if last and i == 1 and j == 7:
                zn_stores(a, sT0)
            if line == 2 and i == 4 and j < 4:
                import p2
                for t in p2.pre_setup(vW1b)[4 * j:4 * j + 4]:
                    a(t)
            import p2
            if last and PRE_AT.get((i, j), 99) < p2.NPRE:
                a(p2.pre_dma(PRE_AT[(i, j)], vW1b, sX))
            if last and i == 1 and j == 7:
                MARK["zn"] = len(a.ins)
            if last and j == 7 and (line, i) in TPOS:
                a("buffer_load_dword v%d, v%d, s[%d:%d], s%d offen" % (X0 + 40, vPf, sX, sX + 3, sXoff))
            if hasdma:
                if j == 0:
                    if (line, i) in TPOS:
                        a("buffer_load_dword v%d, s[%d:%d], s%d offen lds" % (vPf, sX, sX + 3, sXoff))
                        a("s_add_u32 s%d, s%d, %d" % (sXoff, sXoff, TLN * 128))
                    a(du[1])
                if j == 4:
                    a(du[2])
                    MARK[5 * line + i + 7] = len(a.ins)
                    a(du[3])
                    if i == 2:
                        a("s_sub_u32 s%d, s%d, s%d" % (sWb, sWb, sDelta))
            if lump and j == 6:
                lump()
            if (j & 3) == 0 and not (last and i == 4):
                cs_mfma(a, i, j)
            if last and (i, j) in ((2, 6), (3, 2)):
                q.wait("xe")
                f = XE + (0 if i == 2 else 4)
                a("v_mfma_f32_16x16x32_bf16 v[%d:%d], v[%d:%d], v[%d:%d], v[%d:%d]" % (CSA, CSA + 3, SEL, SEL + 3, f, f + 3, CSA, CSA + 3))
            if last and i == 4 and j == 3:
                c = XE + 8
                q.wait("csr")
                a("v_add_f32 v%d, v%d, v%d" % (c, c, c + 1))
                a("v_add_f32 v%d, v%d, v%d" % (c + 2, c + 2, c + 3))
                a("v_add_f32 v%d, v%d, v%d" % (c, c, c + 2))
                a("v_mfma_f32_32x32x2_f32 v[%d:%d], v%d, v%d, v[%d:%d]" % (M0, M0 + 15, c, NEGMU, M0, M0 + 15))
            if line == 1 and i == 4:
                if j == 0:
                    a("v_xor_b32 v%d, 0x800, v%d" % (T0 + 2, T0 + 2))
                    q.issue("ds_read_b64 v[%d:%d], v%d" % (T0 + 4, T0 + 5, T0 + 2), "zp")
                    a("v_lshlrev_b32 v%d, 3, v0" % T0)
                if j == 2:
                    a("s_waitcnt lgkmcnt(0)")
                    q.q = []
                    a("s_cmp_lg_u32 s%d, 16" % sZok)
                    a(rare(a, "s_cbranch_scc1", lambda lb: zok_check(a, T0 + 6)) + ":")
                    a("v_add_f32 v%d, v%d, v%d" % (ZSUM, ZSUM, T0 + 4))
                    a("v_add_f32 v%d, v%d, v%d" % (ZSQ, ZSQ, T0 + 5))
                    a("v_or_b32 v%d, 0x80000000, v%d" % (ZSQ, ZSQ))
                    a("s_mov_b32 exec_hi, 0")
                    a("buffer_store_dwordx2 v[%d:%d], v%d, s[%d:%d], s%d offen sc1" % (ZSUM, ZSQ, T0, sWS, sWS + 3, sL0))
                    a("s_mov_b64 exec, -1")
            if j == 0 and i == 4 and last:
                a("s_cmp_eq_u32 s%d, 0" % sReady)
                a(rare(a, "s_cbranch_scc1", lambda lb: z2_fetch(a)) + ":")
            if j == 1 and i == 4 and last:
                lsk = a.label("Lns")
                a("s_cmp_lg_u32 s%d, 2" % sL1)
                a("s_cbranch_scc1 %s" % lsk)
                cz_signal(a)
                a(lsk + ":")
            if i == 4 and j == 7:
                for t in next_line_ops():
                    a(t)
        assert pos == len(fill)
    assert q.q == ([] if last else INQ2), q.q
    if STAMP and not LITE:
        a("s_mov_b32 s88, s90")
        a("s_mov_b32 s90, s92")
    stamp(a, 10)


def z2_fetch(a):
    for t in stat_lane(ZT + 8):
        a(t)
    a("s_and_b32 s%d, s%d, 0xfffff000" % (sT0, sZ2w))
    for t in range(7):
        a("buffer_load_dwordx2 v[%d:%d], v%d, s[%d:%d], s%d offen offset:%d sc1" % (
            ST + 2 * t, ST + 2 * t + 1, ZT + 8, sWS, sWS + 3, sT0, 256 * t))


def z2_slow(a, lb):
    lp, lo = a.label("Lpoll"), a.label("Lok")
    a("s_waitcnt vmcnt(1)")
    a(lp + ":")
    for t in valid_ops(ZT):
        a(t)
    a("s_cbranch_scc1 %s" % lo)
    z2_fetch(a)
    a("s_waitcnt vmcnt(0)")
    a("s_branch %s" % lp)
    a(lo + ":")
    for t in sum_ops() + norm_ops():
        a(t)
    zn_stores(a, sOut0)


def tail_regs(a):
    a("s_add_u32 s71, s%d, 1024" % sT2)
    a("s_mov_b32 s70, %s" % ("0" if "fzok" in EXP else "s%d" % sZok))
    a("s_mov_b32 s69, s%d" % sReady)


def tail_one(a):
    q = LdsQ(a)
    a("s_waitcnt lgkmcnt(0)")
    a("s_barrier")
    q.issue("ds_read_b128 v[%d:%d], v%d" % (PK, PK + 3, vCsR), "csr")
    ext_mfma(a, q)
    tail_regs(a)
    a("s_nop 3")


def own_row(a, d):
    a("s_bfe_u32 s%d, s2, 0x20001" % d)
    a("s_lshl_b32 s%d, s%d, 3" % (d, d))
    a("s_lshr_b32 s%d, s2, 5" % sT0)
    a("s_add_u32 s%d, s%d, s%d" % (d, d, sT0))
    a("s_lshl_b32 s%d, s%d, 1" % (d, d))
    a("s_and_b32 s%d, s2, 1" % sT0)
    a("s_add_u32 s%d, s%d, s%d" % (d, d, sT0))
    a("s_lshl_b32 s%d, s%d, 2" % (d, d))
    a("s_bfe_u32 s%d, s2, 0x20003" % sT0)
    a("s_add_u32 s%d, s%d, s%d" % (d, d, sT0))
    a("s_lshl_b32 s%d, s%d, 3" % (d, d))
    a("s_add_u32 s%d, s%d, s%d" % (d, d, sW))
    a("s_lshl_b32 s%d, s%d, 12" % (d, d))


def pf_own(a):
    if OWN == 0:
        return
    srd(a, sDBG, 58, S * S * 2)
    own_row(a, sXoff)
    a("v_min_u32 v99, %d, v0" % (OWN - 1))
    a("v_lshlrev_b32 v99, 7, v99")
    a("buffer_load_dword v98, v99, s[%d:%d], s%d offen" % (sDBG, sDBG + 3, sXoff))


def pf_wsp(a):
    srd(a, sDBG, 58, S * S * 2)
    a("s_lshl_b32 s%d, s%d, 3" % (sT0, sRb))
    a("s_add_u32 s%d, s%d, s%d" % (sT0, sT0, sW))
    a("s_lshl_b32 s%d, s%d, 16" % (sT0, sT0))
    a("s_add_u32 s%d, s%d, 32768" % (sT2, sT0))
    a("v_and_b32 v97, 7, v0")
    a("v_lshlrev_b32 v97, 7, v97")
    a("v_lshrrev_b32 v96, 3, v0")
    a("v_lshl_add_u32 v97, v96, 12, v97")
    n = 0
    for g in range(OWN, SIDE_END, 8):
        for so in (sT0, sT2):
            a("buffer_load_dword v%d, v97, s[%d:%d], s%d offen offset:%d" % (100 + n, sDBG, sDBG + 3, so, g * 128))
            n += 1


def retile(a):
    a("s_lshl_b32 s%d, s%d, 1" % (sRb, sRb))
    a("s_and_b32 s%d, s%d, 1" % (sT0, sCg))
    a("s_add_u32 s%d, s%d, s%d" % (sRb, sRb, sT0))
    a("s_waitcnt lgkmcnt(0)")
    srd(a, sW0, 46, FH * D * 2)
    a("s_mov_b32 s%d, -20" % sT1)
    a("s_cmp_lt_u32 s%d, 20" % sRb)
    a("s_cselect_b32 s%d, s44, s46" % sW1)
    a("s_cselect_b32 s%d, s45, s47" % (sW1 + 1))
    csel(a, sW1 + 2, hex(D * D * 2), hex(FH * D * 2))
    a("s_cselect_b32 s%d, 0, s%d" % (sT1, sT1))
    a("s_and_b32 s%d, s%d, 0xffff" % (sW1 + 1, sW1 + 1))
    a("s_mov_b32 s%d, 0x20000" % (sW1 + 3))
    a("s_mul_i32 s%d, s%d, 160" % (sT0, sW))
    for t in range(5):
        a("v_add_u32 v120, %d, v0" % (64 * t))
        a("v_mul_u32_u24 v121, 205, v120")
        a("v_lshrrev_b32 v121, 11, v121")
        a("v_mul_u32_u24 v121, %d, v121" % (1280 - 160))
        a("v_lshl_add_u32 v121, v120, 4, v121")
        a("v_add_u32 v%d, s%d, v121" % (124 + t, sT0))
    a("s_add_u32 s%d, s%d, s%d" % (sT1, sRb, sT1))
    a("s_mul_i32 s%d, s%d, %d" % (sW1off, sT1, 32 * 1280))
    a("s_add_u32 s%d, s%d, 12" % (sT1, sRb))
    a("s_mul_i32 s%d, s%d, %d" % (sW0off, sT1, 32 * 1280))
    for n, (sd, so) in enumerate(((sW1, sW1off), (sW0, sW0off))):
        for t in range(5):
            d = 132 + 20 * n + 4 * t
            a("buffer_load_dwordx4 v[%d:%d], v%d, s[%d:%d], s%d offen" % (d, d + 3, 124 + t, sd, sd + 3, so))
    a("v_lshlrev_b32 v122, 4, v0")
    a("s_mul_i32 s%d, s%d, 40" % (sT0, sRb))
    a("s_mul_i32 s%d, s%d, 5" % (sT1, sW))
    a("s_add_u32 s%d, s%d, s%d" % (sT0, sT0, sT1))
    a("s_lshl_b32 s%d, s%d, 10" % (sT0, sT0))
    a("s_add_u32 s%d, s%d, 0x%x" % (sT2, sT0, WS_B3))
    for n in range(2):
        if n == 1:
            a("s_cmp_ge_u32 s%d, 15" % sRb)
            a("s_cbranch_scc1 K1_rtd")
        a("s_waitcnt vmcnt(5)")
        for t in range(5):
            d = 132 + 20 * n + 4 * t
            a("s_add_u32 s%d, s%d, %d" % (sT1, sT2, (n * 32 * 40 + t) * 1024))
            a("buffer_store_dwordx4 v[%d:%d], v122, s[%d:%d], s%d offen sc1" % (d, d + 3, sWS, sWS + 3, sT1))
    a("K1_rtd:")


def tail(a, typ):
    import p2
    if typ == "P":
        p2.p2_early(a)
    else:
        a("s_nop 10")
    if "nocont" not in EXP:
        for t in epi_cont(typ, False):
            if isinstance(t, tuple):
                if t[1] == 0 and typ == "P":
                    p2.p2_poll(a)
                epi_out(a, typ, t[1])
            else:
                a(t)
    for qd in range(0 if "nocont" in EXP else 4, 4):
        for t in epi_quad(typ, qd):
            a(t)
        if qd == (1 if p2.NPST == 2 else 3) and typ == "P" and p2.NPST:
            p2.p2_poll(a)
        if qd & 1:
            epi_out(a, typ, qd >> 1)
    if typ == "G":
        a("s_branch P2_late")
        return
    if p2.NPST == 0:
        p2.p2_poll(a)
    stamp(a, 13)
    stamp(a, 14)
    stamp_dump(a, 15, sWS, sW, WS_STAMP)


def gen_k1(a, label):
    a(".p2align 8")
    a(label + ":")
    end = "K1_end"
    a("s_cmp_ge_u32 s2, 256")
    a("s_cbranch_scc1 %s" % end)
    stamp(a, 0)
    if "probe" in EXP:
        a("s_memrealtime s[72:73]")
    a("s_load_dwordx4 s[48:51], s[0:1], %d" % KA_X)
    a("s_load_dwordx2 s[54:55], s[0:1], %d" % KA_WIN)
    a("s_load_dwordx2 s[58:59], s[0:1], %d" % KA_WSP)
    a("s_load_dwordx4 s[60:63], s[0:1], %d" % KA_DBG)
    a("v_lshrrev_b32 v1, 6, v0")
    a("v_and_b32 v0, 63, v0")
    a("v_readfirstlane_b32 s%d, v1" % sW)
    a("s_and_b32 s%d, s2, 1" % sRb)
    a("s_lshl_b32 s%d, s%d, 3" % (sRb, sRb))
    a("s_lshr_b32 s%d, s2, 5" % sT0)
    a("s_add_u32 s%d, s%d, s%d" % (sRb, sRb, sT0))
    a("s_bfe_u32 s%d, s2, 0x20001" % sT1)
    a("s_bfe_u32 s%d, s2, 0x20003" % sT0)
    a("s_mul_i32 s%d, s%d, 3" % (sCg, sT1))
    a("s_add_u32 s%d, s%d, s%d" % (sCg, sCg, sT0))
    if "bal" in EXP:
        a("s_add_u32 s%d, s%d, s%d" % (sT1, sT1, sRb))
        a("s_and_b32 s%d, s%d, 3" % (sT1, sT1))
    a("s_add_u32 s%d, s%d, 12" % (sT1, sT1))
    a("s_cmp_eq_u32 s%d, 3" % sT0)
    a("s_cselect_b32 s%d, s%d, s%d" % (sCg, sT1, sCg))
    a("s_and_b32 s%d, s%d, 3" % (sR, sW))
    a("s_lshr_b32 s%d, s%d, 2" % (sC, sW))
    if "prio1" in EXP:
        a("s_cmp_lt_u32 s%d, 4" % sW)
        a("s_cbranch_scc1 K1_pr")
        a("s_setprio 1")
        a("K1_pr:")
    a("s_cmp_eq_u32 s%d, 15" % sCg)
    a("s_cbranch_scc1 K1_side")
    a("v_lshrrev_b32 v3, 3, v0")
    a("s_lshl_b32 s%d, s%d, 4" % (sT0, sW))
    a("v_add_u32 v3, s%d, v3" % sT0)
    a("v_lshrrev_b32 v1, 4, v0")
    a("v_and_b32 v2, 7, v0")
    a("v_xor_b32 v4, v1, v2")
    a("v_mul_u32_u24 v5, 1280, v3")
    a("v_lshl_add_u32 v%d, v4, 4, v5" % vXd0)
    a("v_xor_b32 v4, 4, v4")
    a("v_lshl_add_u32 v%d, v4, 4, v5" % vXd1)
    a("v_add_u32 v%d, %d, v%d" % (vXd1, 8 * 1280 - 1024, vXd1))
    a("v_and_b32 v1, 1, v1")
    a("v_lshlrev_b32 v1, 2, v1")
    a("v_xor_b32 v2, v1, v2")
    a("v_lshlrev_b32 v2, 4, v2")
    a("v_mul_u32_u24 v%d, 3456, v3" % vW0a)
    a("v_add_u32 v%d, v%d, v2" % (vW0a, vW0a))
    a("v_add_u32 v%d, %d, v%d" % (vW0b, 8 * 3456 - 1024, vW0a))
    a("s_mul_i32 s%d, s%d, %d" % (sXoff, sRb, 128 * 1280))
    a("s_add_u32 s%d, s%d, 13" % (sLg, sCg))
    a("s_cmp_eq_u32 s%d, 14" % sCg)
    a("s_cselect_b32 s%d, 12, s%d" % (sLg, sLg))
    a("s_cselect_b32 s%d, 1, 0" % sOne)
    a("s_lshl_b32 s%d, s%d, 7" % (sW0off, sLg))
    a("s_mul_i32 s%d, s%d, %d" % (sWb, sR, CH))
    a("s_lshl_b32 s%d, s%d, 11" % (sT0, sC))
    a("s_add_u32 s%d, s%d, s%d" % (sWb, sWb, sT0))
    a("s_add_u32 s%d, s%d, %d" % (sWb, sWb, REG))
    a("s_lshr_b32 s%d, s%d, 1" % (sT0, sW))
    a("s_mul_i32 s%d, s%d, %d" % (sXb, sT0, CH))
    a("s_and_b32 s%d, s%d, 1" % (sT0, sW))
    a("s_lshl_b32 s%d, s%d, 11" % (sT0, sT0))
    a("s_add_u32 s%d, s%d, s%d" % (sXb, sXb, sT0))
    a("s_add_u32 s%d, s%d, %d" % (sXb, sXb, REG))
    a("s_waitcnt lgkmcnt(0)")
    if "zearly" in EXP:
        a("s_load_dword s%d, s[60:61], 0" % sZok)
    srd(a, sX, 48, S * D * 2)
    srd(a, sW0, 54, D * F * 2)
    for L in (dma_x(0), dma_b0(0)):
        for t in L:
            a(t)
    if "nopf" not in EXP:
        lskip = a.label("Lpf")
        a("s_cmp_eq_u32 s%d, %d" % (sW, 77 if "nocode" in EXP else 7))
        a("s_cbranch_scc1 K1_pfcode")
        if "nopfx" in EXP:
            a("s_branch %s" % lskip)
        a("s_cmp_gt_u32 s%d, %d" % (sW, 2 if "w0str" in EXP else 3))
        a("s_cbranch_scc1 %s" % lskip)
        a("s_cmp_ge_u32 s%d, 2" % sW)
        a("s_cbranch_scc1 K1_pfw0")
        a("s_mul_i32 s%d, s%d, %d" % (sT0, sCg, 86 * 128))
        a("s_mul_i32 s%d, s%d, %d" % (sT1, sW, 43 * 128))
        a("s_add_u32 s%d, s%d, s%d" % (sT0, sT0, sT1))
        a("s_mul_i32 s%d, s%d, %d" % (sT1, sRb, 128 * 1280))
        a("s_add_u32 s%d, s%d, s%d" % (sT0, sT0, sT1))
        a("v_min_u32 v%d, 42, v0" % (E0 + 12))
        a("v_lshlrev_b32 v%d, 7, v%d" % (E0 + 12, E0 + 12))
        a("buffer_load_dword v%d, v%d, s[%d:%d], s%d offen" % (E0 + 13, E0 + 12, sX, sX + 3, sT0))
        a("s_branch %s" % lskip)

        def pfw0(lb):
            if "w0str" not in EXP:
                a("s_mul_i32 s%d, s%d, 15" % (sT0, sRb))
                a("s_add_u32 s%d, s%d, s%d" % (sT0, sT0, sCg))
                a("s_lshl_b32 s%d, s%d, 1" % (sT0, sT0))
                a("s_add_u32 s%d, s%d, s%d" % (sT0, sT0, sW))
                a("s_sub_u32 s%d, s%d, 2" % (sT0, sT0))
                a("s_mul_i32 s%d, s%d, %d" % (sT0, sT0, 36 * 128))
                a("v_min_u32 v%d, 35, v0" % (E0 + 12))
                a("v_lshlrev_b32 v%d, 7, v%d" % (E0 + 12, E0 + 12))
                a("buffer_load_dword v%d, v%d, s[%d:%d], s%d offen" % (E0 + 13, E0 + 12, sW0, sW0 + 3, sT0))
                return
            a("s_mul_i32 s%d, s%d, %d" % (sT0, sRb, 40 * 3456))
            a("s_lshl_b32 s%d, s%d, 7" % (sT1, sLg))
            a("s_add_u32 s%d, s%d, s%d" % (sT0, sT0, sT1))
            a("v_min_u32 v%d, 39, v0" % (E0 + 12))
            a("v_mul_u32_u24 v%d, 3456, v%d" % (E0 + 12, E0 + 12))
            a("buffer_load_dword v%d, v%d, s[%d:%d], s%d offen" % (E0 + 13, E0 + 12, sW0, sW0 + 3, sT0))

        def pfcode(lb):
            a("s_getpc_b64 s[52:53]")
            a("K1_pc:")
            a("s_sub_u32 s52, s52, K1_pc-%s" % label)
            a("s_subb_u32 s53, s53, 0")
            a("s_bfe_u32 s%d, s2, 0x30003" % sT0)
            a("s_lshl_b32 s%d, s%d, 6" % (sT0, sT0))
            a("v_add_u32 v%d, s%d, v0" % (E0 + 12, sT0))
            a("v_lshlrev_b32 v%d, 7, v%d" % (E0 + 12, E0 + 12))
            a("v_min_u32 v%d, (CODE_END-%s-4), v%d" % (E0 + 12, label, E0 + 12))
            a("global_load_dword v%d, v%d, s[52:53]" % (E0 + 13, E0 + 12))
        a("K1_pfw0:")
        pfw0(None)
        a("s_branch %s" % lskip)
        a("K1_pfcode:")
        pfcode(None)
        a(lskip + ":")
    for t in dma_x(1):
        a(t)
    stamp(a, 1)
    a("v_mov_b32 v%d, v3" % (E0 + 8))
    a("v_mov_b32 v%d, v2" % (E0 + 9))
    e = E0
    a("s_xor_b32 s%d, s%d, s%d" % (sT1, sR, sC))
    a("v_lshrrev_b32 v1, 5, v0")
    a("v_and_b32 v%d, 31, v0" % (e + 1))
    a("v_lshlrev_b32 v%d, 7, v%d" % (e + 1, e + 1))
    a("v_bfe_u32 v%d, v0, 1, 3" % (e + 2))
    a("v_xor_b32 v%d, v%d, v1" % (e + 2, e + 2))
    a("s_lshl_b32 s%d, s%d, 1" % (sT0, sT1))
    a("v_xor_b32 v%d, s%d, v%d" % (e + 2, sT0, e + 2))
    a("v_lshl_add_u32 v%d, v%d, 4, v%d" % (e + 1, e + 2, e + 1))
    a("s_mul_i32 s%d, s%d, %d" % (sT0, sR, CH))
    a("s_add_u32 s%d, s%d, %d" % (sT0, sT0, REG))
    a("v_add_u32 v%d, s%d, v%d" % (vXA, sT0, e + 1))
    for t in range(1, 4):
        a("v_xor_b32 v%d, %d, v%d" % (vXA + t, 32 * t, vXA))
    a("v_bfe_u32 v%d, v0, 2, 2" % e)
    a("v_lshl_add_u32 v%d, v1, 3, v%d" % (e, e))
    a("v_lshlrev_b32 v%d, 7, v%d" % (e, e))
    a("v_bfe_u32 v%d, v0, 4, 1" % (e + 1))
    a("v_lshlrev_b32 v%d, 1, v%d" % (e + 1, e + 1))
    a("v_bfe_u32 v%d, v0, 1, 1" % (e + 2))
    a("v_add_u32 v%d, v%d, v%d" % (e + 1, e + 1, e + 2))
    a("s_lshl_b32 s%d, s%d, 2" % (sT0, sC))
    a("v_add_u32 v%d, s%d, v%d" % (e + 1, sT0, e + 1))
    a("v_bfe_u32 v%d, v0, 3, 1" % (e + 2))
    a("v_lshlrev_b32 v%d, 2, v%d" % (e + 2, e + 2))
    a("v_xor_b32 v%d, v%d, v%d" % (e + 1, e + 1, e + 2))
    a("v_lshl_add_u32 v%d, v%d, 4, v%d" % (e, e + 1, e))
    a("v_and_b32 v%d, 1, v0" % (e + 1))
    a("v_lshl_add_u32 v%d, v%d, 3, v%d" % (e, e + 1, e))
    for t in range(4):
        a("s_xor_b32 s%d, s%d, %d" % (sT0, sT1, t))
        a("s_mul_i32 s%d, s%d, %d" % (sT0, sT0, CH))
        a("v_add_u32 v%d, s%d, v%d" % (vA + t, sT0, e))
    for L in (dma_x(2), dma_b0(1)):
        for t in L:
            a(t)
    a("s_mov_b32 s%d, 0x3f803f80" % sOnes)
    a("v_lshrrev_b32 v%d, 4, v0" % (e + 1))
    a("v_bfe_u32 v%d, v0, 2, 2" % (e + 2))
    a("v_cmp_eq_u32 vcc, v%d, v%d" % (e + 1, e + 2))
    a("v_mov_b32 v%d, s%d" % (e + 1, sOnes))
    for t in range(4):
        a("v_cndmask_b32 v%d, 0, v%d, vcc" % (SEL + t, e + 1))

    class Rec:
        def __init__(self):
            self.L = []

        def __call__(self, t):
            self.L.append(t)
    r = Rec()
    srd(r, sW1, 50, D * 3 * D * 2)
    r("v_mul_u32_u24 v%d, 3840, v%d" % (vW1a, E0 + 8))
    r("v_add_u32 v%d, v%d, v%d" % (vW1a, vW1a, E0 + 9))
    r("v_add_u32 v%d, %d, v%d" % (vW1b, 8 * 3840 - 1024, vW1a))
    r("s_lshl_b32 s%d, s%d, 1" % (sT0, sLg))
    r("s_add_u32 s%d, s%d, s%d" % (sT0, sT0, sC))
    r("s_cmp_ge_u32 s%d, 27\ns_cselect_b32 s%d, 1.0, 0" % (sT0, sIsZ2))
    r("s_lshl_b32 s%d, s%d, 2" % (sT2, sRb))
    r("s_add_u32 s%d, s%d, s%d" % (sT2, sT2, sR))
    r("s_mul_i32 s%d, s%d, %d" % (sA, sT2, NG_Z * 1024))
    r("s_add_u32 s%d, s%d, 0x%x" % (sA, sA, WS_Z))
    r("s_lshl_b32 s%d, s%d, 11" % (sOut, sT0))
    r("s_add_u32 s%d, s%d, s%d" % (sOut, sOut, sA))
    if "pre" not in EXP:
        r("s_cmp_lg_u32 s%d, 0\ns_cselect_b32 s%d, s%d, 0x40000000\ns_cselect_b32 s%d, 0x40000000, s%d" % (sIsZ2, sOut0, sOut, sOut, sOut))
    else:
        r("s_cmp_lg_u32 s%d, 0\ns_cselect_b32 s%d, s%d, 0x40000000" % (sIsZ2, sOut0, sOut))
    r("s_sub_u32 s%d, s%d, %d" % (sGl, sWb, REG - 8192))
    r("s_lshl_b32 s%d, s%d, 12" % (sZ2w, sT2))
    r("s_lshl_b32 s%d, s%d, 8" % (sT0, sCg))
    r("s_add_u32 s%d, s%d, s%d" % (sZ2w, sZ2w, sT0))
    r("s_add_u32 s%d, s%d, 0x%x" % (sZ2w, sZ2w, WS_ST2))
    r("s_lshl_b32 s%d, s%d, 1" % (sT0, sCg))
    r("s_mul_i32 s%d, s%d, 3" % (sT1, sCg))
    r("s_sub_u32 s%d, s%d, 11" % (sT1, sT1))
    r("s_cmp_lt_u32 s%d, 12\ns_cselect_b32 s%d, s%d, s%d\ns_cselect_b32 s%d, 1, 0" % (sCg, sLg, sT0, sT1, sType))
    r("s_lshl_b32 s%d, s%d, 7" % (sW1off, sLg))
    r("s_mul_i32 s%d, s%d, %d" % (sOut2, sT2, NG_QKV * 1024))
    r("s_lshl_b32 s%d, s%d, 12" % (sT0, sLg))
    r("s_add_u32 s%d, s%d, s%d" % (sOut2, sOut2, sT0))
    r("s_lshl_b32 s%d, s%d, 11" % (sT1, sC))
    r("s_add_u32 s%d, s%d, s%d" % (sOut2, sOut2, sT1))
    r("s_sub_u32 s%d, s%d, 1" % (sLg, sLg))
    r("s_lshl_b32 s%d, s%d, 12" % (sT0, sCg))
    r("s_add_u32 s%d, s%d, s%d" % (sT0, sT0, sT1))
    r("s_add_u32 s%d, s%d, s%d" % (sT0, sT0, sA))
    r("s_sub_u32 s%d, s%d, 4096" % (sT1, sOut2))
    r1 = Rec()
    r1("s_cmp_lt_u32 s%d, 12" % sCg)
    r1("s_cselect_b32 s%d, s%d, s%d" % (sOut1, sT0, sT1))
    r1("s_cselect_b32 s%d, s%d, s%d" % (sUoff, sCg, sLg))
    csel(r1, sUstep, str(128 * 3456), str(128 * 3840))
    r1("s_cselect_b64 s[%d:%d], s[%d:%d], s[%d:%d]" % (sWu, sWu + 1, sW0, sW0 + 1, sW1, sW1 + 1))
    r1("s_cselect_b32 s%d, s%d, s%d" % (sWu + 2, sW0 + 2, sW1 + 2))
    r1("s_cselect_b64 vcc, -1, 0")
    r("\n".join(r1.L))
    r("s_mov_b32 s%d, 0x20000" % (sWu + 3))
    r("v_cndmask_b32 v%d, v%d, v%d, vcc" % (vUa, vW1a, vW0a))
    r("v_cndmask_b32 v%d, v%d, v%d, vcc" % (vUb, vW1b, vW0b))
    r("s_lshl_b32 s%d, s%d, 7" % (sUoff, sUoff))
    r("s_cmp_eq_u32 s%d, 1\ns_cselect_b32 s%d, 0x40000000, s%d\ns_cselect_b32 s%d, 0x40000000, s%d" % (sOne, sUoff, sUoff, sW1off, sW1off))
    late = []
    srd(r, sWS, 62, WS_END)
    srd(r, sDBG, 60, 256)
    r("v_lshlrev_b32 v%d, 2, v1" % (e + 1))
    r("v_xor_b32 v%d, v%d, v0" % (e + 1, e + 1))
    r("v_lshlrev_b32 v%d, 4, v%d" % (vSt0, e + 1))
    r("v_xor_b32 v%d, 0x80, v%d" % (vSt1, vSt0))
    r("v_add_u32 v%d, 1024, v%d" % (vSt1, vSt1))
    r("s_lshl_b32 s%d, s%d, 10" % (sT0, sC))
    r("s_add_u32 s%d, s%d, %d" % (sT0, sT0, 3 * 4096))
    r("v_lshlrev_b32 v%d, 4, v0" % vCsR)
    r("v_add_u32 v%d, s%d, v%d" % (vCsR, sT0, vCsR))
    r("s_lshl_b32 s%d, s%d, 2" % (sT0, sR))
    r("v_add_u32 v%d, s%d, v%d" % (vCsW, sT0, vCsR))
    r("v_mov_b32 v%d, 0" % ZSUM)
    r("v_mov_b32 v%d, 0" % ZSQ)
    r("s_mov_b32 s%d, %d" % (sDelta, REG))
    r("s_mov_b32 s%d, s%d" % (sReady, sOne))
    r("s_lshl_b32 s%d, s%d, 11" % (sT2, sRb))
    r("s_add_u32 s%d, s%d, 0x%x" % (sT2, sT2, WS_FL))
    r("s_cmp_eq_u32 s%d, 0\ns_cselect_b32 s%d, 2, 99" % (sW, sL1))
    r("s_cmp_eq_u32 s%d, 0\ns_cselect_b32 s%d, s%d, 0x40000000" % (sC, sL0, sZ2w))
    late += r.L
    nlate = spread(len(late), 16) + [0] * 24

    seq = ["x0", "b0", "x1", "x2", "b1"]
    plan = {-1: ["x3", "x4"], 0: ["b2", "x5"], 1: ["x6"], 2: ["b3", "x7"], 3: ["x8"], 4: ["b4", "x9"],
            5: ["u0"], 6: ["u1"], 7: ["u2"], 8: ["u3", "w0"], 9: ["u4", "w1"]}
    q = LdsQ(a)

    def dma_list(it):
        if it[0] == "w":
            L = dma_unit(int(it[1:]))
            L[0] = "s_sub_u32 m0, s%d, %d" % (sWb, REG - 4096 * int(it[1:]))
            return L
        return dma_x(int(it[1:])) if it[0] == "x" else dma_b0(int(it[1:])) if it[0] == "b" else dma_u(int(it[1:]))

    def xread(hp, t):
        x = X0 + 16 * hp + 4 * t
        q.issue("ds_read_b128 v[%d:%d], v%d offset:%d" % (x, x + 3, vXA + t, (hp % 5) * 4096), "x%d" % hp)

    def stats(x, first):
        def c(r_):
            return "0" if first else "v[%d:%d]" % (r_, r_ + 3)
        a("v_mfma_f32_4x4x4_16b_bf16 v[%d:%d], v[%d:%d], v[%d:%d], %s" % (XQ, XQ + 3, x, x + 1, x, x + 1, c(XQ)))
        a("v_mfma_f32_4x4x4_16b_bf16 v[%d:%d], v[%d:%d], v[%d:%d], %s" % (XQ2, XQ2 + 3, x + 2, x + 3, x + 2, x + 3, c(XQ2)))
        a("v_mfma_f32_16x16x32_bf16 v[%d:%d], v[%d:%d], v[%d:%d], %s" % (XS, XS + 3, SEL, SEL + 3, x, x + 3, c(XS)))

    def vmwait(need):
        last = max(seq.index(n) for n in need)
        a("s_waitcnt vmcnt(%d)" % sum(1 if t == "T" else 2 for t in seq[last + 1:]))

    vmwait(["x0", "b0"])
    a("s_barrier")
    stamp(a, 2)
    for t in range(4):
        xread(0, t)
    for j in range(3):
        frag_reads(q, 0, j)
    for it in plan[-1]:
        for t in dma_list(it):
            a(t)
        seq.append(it)
    lp = 0
    for h in range(10):
        i, hh = h >> 1, h & 1
        need = []
        if h < 9:
            need.append("x%d" % (h + 1))
        if hh == 1:
            need.append("b%d" % (i + 1) if i < 4 else "u0")
        q.wait("x%d" % h)
        vmwait(need)
        a("s_barrier")
        if h in (2, 4, 6, 8):
            stamp(a, 2 + i)
        dl = []
        for it in plan[h]:
            dl.append(dma_list(it))
            seq.append(it)
        if h == 9:
            stats(X0 + 16 * h, False)
            stats(X0 + 16 * h + 8, False)
        for t in range(4):
            j = 4 * hh + t
            x = X0 + 32 * i + 4 * j
            q.wait("f%d" % j)
            mfma(a, i, j)
            if h == 9 and t == 2:
                q.issue("ds_write_b32 v%d, v%d" % (vCsW, CSA), "csw")
                a("v_add_u32 v%d, s%d, v%d" % (vCsW, sDelta, vCsW))
            jn = j + 3
            if jn < 8:
                frag_reads(q, i, jn)
            else:
                frag_reads(q, (i + 1) % 5, jn - 8)
            if i == 4 and 1 <= j <= 4:
                tt = (j + 3) & 3
                a("v_add_u32 v%d, s%d, v%d" % (vA + tt, sDelta, vA + tt))
            if h < 9 and t < 2:
                xread(h + 1, 2 * t)
                xread(h + 1, 2 * t + 1)
            n, half = t >> 1, t & 1
            if len(dl) == 1:
                n, half = 0, (0 if t == 0 else 1 if t == 2 else None)
            if half == 0:
                a(dl[n][0])
                a(dl[n][1])
            elif half == 1:
                a(dl[n][2])
                if plan[h][n][0] == "u":
                    MARK[5 + int(plan[h][n][1:])] = len(a.ins)
                if plan[h][n][0] == "w":
                    MARK[10 + int(plan[h][n][1:])] = len(a.ins)
                a(dl[n][3])
            for tx in late[lp:lp + nlate[4 * h + t]]:
                a(tx)
            lp += nlate[4 * h + t]
            if h == W1AT and t == 3:
                a("s_mul_i32 s%d, s%d, 15" % (sT0, sRb))
                a("s_add_u32 s%d, s%d, s%d" % (sT0, sT0, sCg))
                a("s_lshl_b32 s%d, s%d, 3" % (sT0, sT0))
                a("s_add_u32 s%d, s%d, s%d" % (sT0, sT0, sW))
                a("s_mul_i32 s%d, s%d, %d" % (sT0, sT0, 10 * 128))
                a("v_min_u32 v%d, 9, v0" % vPf)
                a("v_lshlrev_b32 v%d, 7, v%d" % (vPf, vPf))
                a("s_sub_u32 m0, s%d, %d" % (sWb, REG - 2 * 4096))
                a("buffer_load_dword v%d, s[%d:%d], s%d offen lds" % (vPf, sW1, sW1 + 3, sT0))
                seq.append("T")
            if t == 0:
                cs_mfma(a, i, j)
            if h < 9 and (t & 1) == 0:
                stats(x, h == 0 and t == 0)
            if h == 9 and t == 0:
                a("v_and_b32 v1, 3, v0")
                for tt in range(4):
                    a("v_add_f32 v%d, v%d, v%d" % (XQ + tt, XQ + tt, XQ2 + tt))
                for tt in range(1, 4):
                    a("v_cmp_eq_u32 vcc, %d, v1" % tt)
                    a("v_cndmask_b32 v%d, v%d, v%d, vcc" % (XQ, XQ, XQ + tt))
                a("v_mov_b32 v%d, v%d" % (XQ + 1, XS))
                a("s_lshl_b32 s%d, s%d, 9" % (sT0, sW))
                a("s_add_u32 s%d, s%d, %d" % (sT0, sT0, CH + 3 * 4096))
                a("v_lshlrev_b32 v1, 3, v0")
                a("v_add_u32 v1, s%d, v1" % sT0)
                q.issue("ds_write_b64 v1, v[%d:%d]" % (XQ, XQ + 1), "stw")
                a("v_xor_b32 v1, 0x800, v1")
            if h == 9 and t == 1:
                q.wait("stw")
                a("s_barrier")
                q.issue("ds_read_b64 v[%d:%d], v1" % (XQ + 2, XQ + 3), "str")
    assert lp == len(late)
    q.wait("str")
    assert q.q == INQ2[2:], q.q
    r = Rec()
    sq, sm, t0, t1 = XQ, XQ + 1, XQ + 2, XQ + 3
    r("v_add_f32 v%d, v%d, v%d" % (sq, sq, t0))
    r("v_add_f32 v%d, v%d, v%d" % (sm, sm, t1))
    r("v_mov_b32 v%d, v%d" % (t0, sq))
    r("v_mov_b32 v%d, v%d" % (t1, sm))
    r("v_permlane32_swap_b32 v%d, v%d" % (sq, t0))
    r("v_permlane32_swap_b32 v%d, v%d" % (sm, t1))
    r("v_add_f32 v%d, v%d, v%d" % (sq, sq, t0))
    r("v_add_f32 v%d, v%d, v%d" % (sm, sm, t1))
    r("v_mul_f32 v%d, %s, v%d" % (NEGMU, fhex(-1.0 / D), sm))
    r("v_mul_f32 v%d, %s, v%d" % (sq, fhex(1.0 / D), sq))
    r("v_fma_f32 v%d, -v%d, v%d, v%d" % (sq, NEGMU, NEGMU, sq))
    r("v_max_f32 v%d, 0, v%d" % (sq, sq))
    r("v_add_f32 v%d, %s, v%d" % (sq, fhex(1e-5), sq))
    r("v_rsq_f32 v%d, v%d" % (RSTD, sq))
    r("v_sqrt_f32 v%d, v%d" % (IRSTD, sq))
    r("v_mul_f32 v%d, %s, v%d" % (RL, fhex(LOG2E), RSTD))
    r("v_mul_f32 v%d, %s, v%d" % (K1c, fhex(GC1), RSTD))
    r("v_mul_f32 v%d, v%d, v%d" % (K2c, RSTD, RSTD))
    r("v_mul_f32 v%d, v%d, v%d" % (K2c, K2c, RSTD))
    r("v_mul_f32 v%d, %s, v%d" % (K2c, fhex(GC2), K2c))
    fin = list(r.L)
    if "zearly" not in EXP:
        a("s_load_dword s%d, s[60:61], %d" % (sZok, 4 if "fzok" in EXP else 0))
    stamp(a, 7)
    a("s_cmp_eq_u32 s%d, 1" % sOne)

    def one(lb):
        for t in fin:
            a(t)
    rare(a, "s_cbranch_scc1", one)
    RARE[-1] = (RARE[-1][0], "K1_tail", RARE[-1][2])
    a("s_sub_u32 s%d, s%d, s%d" % (sWb, sWb, sDelta))
    r = Rec()
    srd(r, sX, 58, S * S * 2)
    own_row(r, sXoff)
    r("v_min_u32 v%d, %d, v0" % (vPf, max(TLN - 1, 0)))
    r("v_lshlrev_b32 v%d, 7, v%d" % (vPf, vPf))
    pre = []
    for n in range(max(len(fin), len(r.L))):
        pre += fin[n:n + 1] + r.L[n:n + 1]
    PRE1[:] = pre
    if "jit" in EXP:
        a("s_bitcmp1_b32 s2, 4")
        a("s_cbranch_scc0 K1_j0")
        a("s_sleep 100")
        a("K1_j0:")
    body(a, "G", 1)
    a("s_cmp_eq_u32 s%d, 0" % sType)
    a("s_cbranch_scc1 K1_bodyP")
    brk = len(a.ins)
    body(a, "G", 2)
    a("K1_bodyL:")
    body(a, "P", 3)
    a("s_waitcnt lgkmcnt(0)")
    a("s_cmp_eq_u32 s%d, 0" % sReady)
    a(rare(a, "s_cbranch_scc1", lambda lb: z2_slow(a, lb)) + ":")
    tail_regs(a)
    tail(a, "P")
    import p2
    PHASE[0] = 2
    p2.gen_p2(a)
    PHASE[0] = 1
    a("K1_tail:")
    tail_one(a)
    tail(a, "G")
    a("K1_bodyP:")
    body(a, "P", 2, start=(brk, len(a.ins)))
    a("s_branch K1_bodyL")
    flush_rare(a)

    a("K1_side:")
    if "zlate" in EXP:
        for t in range(5):
            a("s_sleep 127")
    a("s_waitcnt lgkmcnt(0)")
    srd(a, sWS, 62, WS_END)
    srd(a, sDBG, 60, 256)
    for t in range(4):
        a("v_mov_b32 v%d, 0" % (8 + t))
    a("v_mov_b32 v12, 1")
    a("v_lshlrev_b32 v6, 4, v0")
    a("s_lshl_b32 s%d, s%d, 3" % (sT0, sRb))
    a("s_add_u32 s%d, s%d, s%d" % (sT0, sT0, sW))
    a("s_lshl_b32 s%d, s%d, 11" % (sT0, sT0))
    a("s_add_u32 s%d, s%d, 0x%x" % (sT0, sT0, WS_ST2))
    a("buffer_store_dwordx4 v[8:11], v6, s[%d:%d], s%d offen sc1" % (sWS, sWS + 3, sT0))
    a("buffer_store_dwordx4 v[8:11], v6, s[%d:%d], s%d offen offset:1024 sc1" % (sWS, sWS + 3, sT0))
    a("s_mul_i32 s%d, s%d, 6" % (sT0, sRb))
    a("s_add_u32 s%d, s%d, s%d" % (sT0, sT0, sW))
    a("s_lshl_b32 s%d, s%d, 10" % (sT0, sT0))
    a("s_add_u32 s%d, s%d, 0x%x" % (sT0, sT0, WS_KV))
    a("s_lshl_b32 s%d, s%d, 11" % (sT1, sRb))
    a("s_add_u32 s%d, s%d, 0x%x" % (sT1, sT1, WS_FL))
    a("s_and_b32 s%d, s%d, 1" % (sT2, sW))
    a("s_lshl_b32 s%d, s%d, 10" % (sT2, sT2))
    a("s_add_u32 s%d, s%d, s%d" % (sT2, sT2, sT1))
    a("s_cmp_ge_u32 s%d, 6" % sW)
    a("s_cselect_b32 s%d, s%d, s%d" % (sT0, sT2, sT0))
    a("buffer_store_dwordx4 v[8:11], v6, s[%d:%d], s%d offen sc1" % (sWS, sWS + 3, sT0))
    a("s_waitcnt vmcnt(0)")
    a("s_barrier")
    a("s_cmp_lg_u32 s%d, 6" % sW)
    a("s_cbranch_scc1 K1_nofl2")
    a("s_mov_b64 exec, 1")
    a("buffer_atomic_add v12, off, s[%d:%d], 0 sc1" % (sDBG, sDBG + 3))
    a("s_mov_b64 exec, -1")
    stamp(a, 1)
    if "probe" in EXP:
        a("s_cmp_lg_u32 s%d, 0" % sRb)
        a("s_cbranch_scc1 K1_nofl2")
        a("v_mov_b32 v13, s72")
        a("s_mov_b32 s%d, 0x4000000" % (sWS + 2))
        a("s_mov_b32 s%d, 0x%x" % (sT0, WS_STAMP))
        a("buffer_store_dword v13, off, s[%d:%d], s%d sc1" % (sWS, sWS + 3, sT0))
    a("K1_nofl2:")
    a("s_barrier")
    stamp(a, 12)
    pf_wsp(a)
    a("s_add_u32 s71, s%d, 1024" % sT1)
    a("s_mov_b32 s70, 0")
    a("s_mov_b32 s69, 1")
    a("P2_late:")
    pf_own(a)
    a("s_load_dwordx2 s[44:45], s[0:1], %d" % KA_WO)
    a("s_load_dwordx2 s[46:47], s[0:1], %d" % KA_WOUT)
    p2.p2_loads(a)
    retile(a)
    if "bsp" in EXP:
        srd(a, sX, 50, S * 2)
        a("v_lshlrev_b32 v95, 7, v0")
        a("buffer_load_dword v94, v95, s[%d:%d], 0 offen" % (sX, sX + 3))
    a("s_waitcnt vmcnt(0)")
    stamp(a, 13)
    stamp(a, 14)
    stamp_dump(a, 15, sWS, sW, WS_STAMP)
    a("s_barrier")
    if STAMP:
        srd(a, sWS, 52, WS_END)
    srd(a, sX, 58, S * S * 2)
    for t in p2.pre_setup(vW1b):
        a(t)
    for st in range(p2.NPRE):
        a(p2.pre_dma(st, vW1b, sX))
    p2.p2_early(a)
    p2.p2_poll(a)
    a("s_waitcnt vmcnt(0)")
    a("s_branch P2_entry")
    flush_rare(a)
    a(end + ":")
    a("s_endpgm")
```

```python
from asmlib import *
from common import *
from k1 import srd, csel, stamp, stamp_dump, STAMP, WS_STAMP, EXP, spread
import k1

RB = 81920
SIDE = 0
NSA = 5
NPRE = int(__import__('os').environ.get('NPRE', '6'))
OSC = RB + 5 * 14336
NEA = int(__import__("os").environ.get("NEA", "0"))
NEB = int(__import__("os").environ.get("NEB", "0"))
SL1, SL2 = int(__import__("os").environ.get("SL1", "3")), int(__import__("os").environ.get("SL2", "24"))
KB = int(__import__("os").environ.get("KB", "0"))
assert KB == 0
OTB = int(__import__("os").environ.get("OTB", "99"))
LREL = 155648
NPST = int(__import__('os').environ.get('NPST', '2'))
CNT_KV = WS_CNT
CNT_O = WS_CNT + 4096
CNT_U = WS_CNT + 8192

ACC = 224
FA = (128, 176)
Z1R = 112
DO = 80
ACB = 80
KVF = 48
XR = 36
import os
FRA, FRB = float(os.environ.get("FRA", "0.7")), float(os.environ.get("FRB", "0.7"))
import os
def _t(n, d): return tuple(int(x) for x in os.environ.get(n, d).split(","))
HK = _t("HK", "4,0,6")
PA = _t("PA", "0,3")
PK = _t("PK", "14,17,20,24")
if "noatt" in EXP:
    PA, PK = (99, 99), (99, 99, 99, 99)
PO = _t("PO", "27,29")
PU = _t("PU", "37,39")
sCall, sZk = 71, 70
sWrap = 29
PQR = 36
T = 24
vL16, vLA, vLB0, vA, vB0, vB1, vAt = 10, 11, 12, 13, 14, 15, 16
vBias, vPoll, vZa, vZb, vO = 19, 20, 21, 22, 23
vXl = 20
vLA3, vLB3 = 8, 9
vAd0, vAd1 = 8, 9
vT0, vT1, vT2, vT3, vXd = 11, 12, 13, 14, 15
vPz = 21
sA, sBS, sX, sWS, sO = 4, 8, 12, 16, 20
sA3, sB3 = 8, 12
sI, sJ, sW, sRR, sCC = 24, 25, 26, 27, 28
sAoff, sBoff, sRd, sRdB, sIt, sHook = 29, 30, 31, 32, 33, 34
sT0, sT1, sT2, sT3 = 36, 37, 38, 39
sMA, sMB, sHd, sCnt, sKv, sOdd = 35, 67, 42, 43, 44, 45
sA3off, sB3off, sMB3, sCntI = 56, 57, 58, 59
sXo0, sXo1 = 60, 61
sWk, sKvW, sCntW = 64, 65, 66
assert k1.sT0 == sT0


def ring(s, step, end, wrap):
    return "s_add_u32 s%d, s%d, %d\ns_cmp_eq_u32 s%d, %d\ns_cselect_b32 s%d, %d, s%d" % (s, s, step, s, end, s, wrap, s)


def kjump(st, norm, back, fwd):
    if KB and st % (2 * KB) == KB - 1:
        return back
    if KB and st % (2 * KB) == 2 * KB - 1:
        return fwd
    return norm


def slotA(st):
    return 8192 * (st if st < 4 else 4 + (st - 4) % 6)


DEEP = "deep" in EXP


def slotB(st):
    if st >= 32:
        return RB + 10240 * ((st - 32 + 7) % 8)
    if not DEEP:
        return RB + 14336 * ((st + 3) % 5)
    if st <= 17:
        return RB + 14336 * ((st + 2) % 5)
    n = (st - 13) % 7
    return RB + 14336 * n if n < 5 else 14336 * (n - 5)


def issueB(st):
    if not DEEP or st <= 17:
        return st - 5
    return {18: 12, 19: 12}.get(st, st - 7)


def pre_setup(vt):
    return [
        "s_bfe_u32 s32, s2, 0x20001",
        "s_lshl_b32 s32, s32, 3",
        "s_lshr_b32 s33, s2, 5",
        "s_add_u32 s32, s32, s33",
        "s_lshl_b32 s32, s32, 3",
        "s_add_u32 s32, s32, s%d" % sW,
        "s_lshl_b32 s32, s32, 15",
        "s_lshl_b32 s33, s%d, 2" % sW,
        "v_lshrrev_b32 v%d, 4, v0" % (vt + 1),
        "v_add_u32 v%d, s33, v%d" % (vt + 1, vt + 1),
        "v_xor_b32 v%d, v%d, v0" % (vt + 1, vt + 1),
        "v_and_b32 v%d, 7, v%d" % (vt + 1, vt + 1),
        "v_lshrrev_b32 v%d, 3, v0" % vt,
        "v_lshlrev_b32 v%d, 12, v%d" % (vt, vt),
        "v_lshl_add_u32 v%d, v%d, 4, v%d" % (vt, vt + 1, vt),
        "s_lshl_b32 s33, s%d, 10" % sW,
    ]


def pre_dma(st, vt, srdn):
    return "s_add_u32 m0, s33, %d\nbuffer_load_dwordx4 v%d, s[%d:%d], s32 offen offset:%d lds" % (
        slotA(st) - 128 * st, vt, srdn, srdn + 3, 128 * st)


vA2, vB2, vB3 = 16, 17, 18
vU, vBias2 = 30, 31


def read_A(fs, nct):
    L = []
    L.append("v_add_u32 v%d, s%d, v%d" % (vA, sRd, vLA))
    L.append("v_add_u32 v%d, s%d, v%d" % (vB0, sRdB, vLB0))
    L.append("v_xor_b32 v%d, 64, v%d" % (vB1, vB0))
    for k in range(2):
        if k:
            L.append("v_xor_b32 v%d, 64, v%d" % (vA2, vA))
        for rt in range(2):
            d = fs + 8 * k + 4 * rt
            L.append("ds_read_b128 v[%d:%d], v%d offset:%d" % (d, d + 3, vA2 if k else vA, rt * 2048))
        for ct in range(nct):
            if k == 0 and ct == 1:
                L.append("v_xor_b32 v%d, 0x80, v%d" % (vB2, vB0))
                L.append("v_xor_b32 v%d, 0xc0, v%d" % (vB3, vB0))
            d = fs + 16 + 16 * k + 4 * ct
            off = k * 7168 + ct * 1024
            L.append("ds_read_b64_tr_b16 v[%d:%d], v%d offset:%d" % (d, d + 1, vB2 if ct & 1 else vB0, off))
            L.append("ds_read_b64_tr_b16 v[%d:%d], v%d offset:%d" % (d + 2, d + 3, vB3 if ct & 1 else vB1, off))
    L.append(ring(sRd, 8192, RB, 32768))
    if DEEP:
        L.append("s_add_u32 s%d, s%d, 14336\ns_cmp_eq_u32 s%d, %d\ns_cselect_b32 s%d, s%d, s%d" % (sRdB, sRdB, sRdB, OSC, sRdB, sWrap, sRdB))
        L.append("s_cmp_eq_u32 s%d, 28672\ns_cselect_b32 s%d, %d, s%d" % (sRdB, sRdB, RB, sRdB))
    else:
        L.append(ring(sRdB, 14336, OSC, RB))
    return L


def read_B(fs, nct):
    L = []
    L.append("v_add_u32 v%d, s%d, v%d" % (vA, sRd, vLA3))
    L.append("v_add_u32 v%d, s%d, v%d" % (vB0, sRdB, vLB3))
    for k in range(2):
        for rt in range(2):
            d = fs + 8 * k + 4 * rt
            L.append("ds_read_b128 v[%d:%d], v%d offset:%d" % (d, d + 3, vA, k * 2048 + rt * 256))
        for ct in range(nct):
            d = fs + 16 + 12 * k + 4 * ct
            off = k * 5120 + ct * 32
            L.append("ds_read_b64_tr_b16 v[%d:%d], v%d offset:%d" % (d, d + 1, vB0, off))
            L.append("ds_read_b64_tr_b16 v[%d:%d], v%d offset:%d" % (d + 2, d + 3, vB0, off + 1280))
    L.append(ring(sRd, 8192, RB, 32768))
    L.append(ring(sRdB, 10240, 2 * RB, RB))
    return L


def mf_A(cur, nct):
    L = []
    for k in range(2):
        for ct in range(nct):
            for rt in range(2):
                fb, fa, acc = cur + 16 + 16 * k + 4 * ct, cur + 8 * k + 4 * rt, ACC + 16 * rt + 4 * ct
                L.append("v_mfma_f32_16x16x32_bf16 v[%d:%d], v[%d:%d], v[%d:%d], v[%d:%d]" % (
                    acc, acc + 3, fb, fb + 3, fa, fa + 3, acc, acc + 3))
    return L


def mf_B(cur, nct):
    L = []
    for k in range(2):
        for ct in range(nct):
            for rt in range(2):
                fb, fa, acc = cur + 16 + 12 * k + 4 * ct, cur + 8 * k + 4 * rt, ACB + 12 * rt + 4 * ct
                L.append("v_mfma_f32_16x16x32_bf16 v[%d:%d], v[%d:%d], v[%d:%d], v[%d:%d]" % (
                    acc, acc + 3, fb, fb + 3, fa, fa + 3, acc, acc + 3))
    return L


def cstage(a, mf, rd, frac, barrier=True):
    a("s_waitcnt lgkmcnt(0)")
    if barrier:
        a("s_barrier")
    if "nomf" in EXP:
        mf = ["s_nop 0"] * len(mf)
    if "nopmf" in EXP:
        mf = ["s_nop 2"] * len(mf)
    if "nord" in EXP:
        rd = [t for t in rd if not t.startswith("ds_")]
    ns = max(1, int(len(mf) * frac))
    nr = spread(len(rd), ns) + [0] * (len(mf) - ns)
    p = 0
    for n, m in enumerate(mf):
        a(m)
        for t in rd[p:p + nr[n]]:
            a(t)
        p += nr[n]


def quad_addr(a, dst, vq, swz, t0, t1):
    a("v_and_b32 v%d, 1, v%d" % (t0, vq))
    if swz:
        a("v_bfe_u32 v%d, v%d, 2, 1" % (t1, vq))
        a("v_lshl_add_u32 v%d, v%d, 1, v%d" % (t1, t1, t0))
        a("v_lshlrev_b32 v%d, 2, v%d" % (t1, t1))
        a("v_xor_b32 v%d, v%d, v2" % (t1, t1))
        a("v_lshl_add_u32 v%d, v%d, 5, v%d" % (t0, t0, t1))
    else:
        a("v_lshl_add_u32 v%d, v%d, 5, v2" % (t0, t0))
    a("v_lshlrev_b32 v%d, 4, v%d" % (t0, t0))
    a("v_bfe_u32 v%d, v%d, 1, 1" % (t1, vq))
    a("v_lshl_add_u32 v%d, v%d, 3, v%d" % (t0, t1, t0))
    a("v_lshrrev_b32 v%d, 2, v%d" % (t1, vq))
    a("v_lshl_add_u32 v%d, v%d, 10, v%d" % (dst, t1, t0))


def srd_off(a, d, plo, off, nbytes):
    a("s_add_u32 s%d, s%d, 0x%x" % (d, plo, off))
    a("s_addc_u32 s%d, s%d, 0" % (d + 1, plo + 1))
    a("s_and_b32 s%d, s%d, 0xffff" % (d + 1, d + 1))
    a("s_mov_b32 s%d, 0x%x" % (d + 2, nbytes))
    a("s_mov_b32 s%d, 0x20000" % (d + 3))


def signal(a, scnt, off=0, n=0):
    a("s_waitcnt vmcnt(%d)" % n)
    a("v_mov_b32 v%d, 1" % T)
    a("v_mov_b32 v%d, 0" % (T + 1))
    a("s_mov_b64 exec, 1")
    a("buffer_atomic_add v%d, v%d, s[%d:%d], s%d offen offset:%d sc1" % (T, T + 1, sWS, sWS + 3, scnt, off))
    a("s_mov_b64 exec, -1")


def poll_issue(a, scnt, off=0):
    a("v_mov_b32 v%d, 0" % T)
    a("buffer_load_dword v%d, v%d, s[%d:%d], s%d offen offset:%d sc1" % (vPoll, T, sWS, sWS + 3, scnt, off))


def poll_check(a, scnt, off=0, target=32, n=0):
    l0, l1 = a.label("Lchk"), a.label("Lok")
    a("s_waitcnt vmcnt(%d)" % n)
    a(l0 + ":")
    a("v_readfirstlane_b32 s%d, v%d" % (sT0, vPoll))
    a("s_cmp_eq_u32 s%d, %d" % (sT0, target))
    a("s_cbranch_scc1 %s" % l1)
    poll_issue(a, scnt, off)
    a("s_waitcnt vmcnt(0)")
    a("s_branch %s" % l0)
    a(l1 + ":")


def p2_loads(a):
    a("s_load_dwordx4 s[48:51], s[0:1], %d" % KA_WSP)
    a("s_load_dwordx2 s[52:53], s[0:1], %d" % KA_WS)
    a("s_load_dwordx2 s[54:55], s[0:1], %d" % KA_X)
    a("s_load_dwordx2 s[62:63], s[0:1], %d" % KA_OUT)


def p2_early(a):
    lab = a.label("Learly")
    a("v_and_b32 v%d, 15, v0" % vPz)
    a("v_lshlrev_b32 v%d, 11, v%d" % (vPz, vPz))
    a("v_lshlrev_b32 v%d, 4, v0" % vL16)
    a("s_bfe_u32 s%d, s2, 0x20001" % sI)
    a("s_lshl_b32 s%d, s%d, 3" % (sI, sI))
    a("s_lshr_b32 s%d, s2, 5" % sT0)
    a("s_add_u32 s%d, s%d, s%d" % (sI, sI, sT0))
    a("s_and_b32 s%d, s2, 1" % sJ)
    a("s_lshl_b32 s%d, s%d, 2" % (sJ, sJ))
    a("s_bfe_u32 s%d, s2, 0x20003" % sT0)
    a("s_add_u32 s%d, s%d, s%d" % (sJ, sJ, sT0))
    a("s_and_b32 s%d, s%d, 1" % (sRR, sW))
    a("s_bfe_u32 s%d, s%d, 0x10001" % (sCC, sW))
    a("s_cmp_ge_u32 s%d, 4" % sW)
    a("s_cbranch_scc1 %s" % lab)
    a("s_cmp_lg_u32 s%d, 16" % sZk)
    a(k1.rare(a, "s_cbranch_scc1", lambda lb: zk_wait(a)) + ":")
    a("s_and_b32 s%d, s2, 7" % sT3)
    a("s_lshl_b32 s%d, s%d, 7" % (sT3, sT3))
    a("s_add_u32 s%d, s%d, 0x%x" % (sT3, sT3, WS_FL))
    a("v_lshrrev_b32 v1, 3, v0")
    a("s_lshl_b32 s%d, s%d, 4" % (sT1, sW))
    a("v_add_u32 v1, s%d, v1" % sT1)
    a("v_lshlrev_b32 v1, 12, v1")
    a("v_lshrrev_b32 v6, 4, v0")
    a("v_and_b32 v7, 7, v0")
    a("v_xor_b32 v6, v6, v7")
    a("v_lshl_add_u32 v%d, v6, 4, v1" % vAd0)
    a("v_xor_b32 v6, 4, v6")
    a("v_lshl_add_u32 v%d, v6, 4, v1" % vAd1)
    a("v_add_u32 v%d, %d, v%d" % (vAd1, 8 * 4096 - 1024, vAd1))
    a("s_lshl_b32 s%d, s%d, 18" % (sAoff, sI))
    a("s_lshl_b32 s%d, s%d, 11" % (sMA, sW))
    srd(a, sA, 48, S * S * 2)
    a("s_add_u32 s%d, s%d, %d" % (sAoff, sAoff, 128 * NPRE))
    a("s_mul_i32 s%d, s%d, 7" % (sMB, sCC))
    a("s_lshl_b32 s%d, s%d, 2" % (sT1, sRR))
    a("s_add_u32 s%d, s%d, s%d" % (sMB, sMB, sT1))
    a("s_lshl_b32 s%d, s%d, 10" % (sMB, sMB))
    a("s_mul_i32 s%d, s%d, %d" % (sBoff, sCC, NG_Z))
    a("s_add_u32 s%d, s%d, s%d" % (sBoff, sBoff, sT1))
    a("s_mul_i32 s%d, s%d, 7" % (sT1, sJ))
    a("s_add_u32 s%d, s%d, s%d" % (sBoff, sBoff, sT1))
    a("s_lshl_b32 s%d, s%d, 10" % (sBoff, sBoff))
    a("s_add_u32 s%d, s%d, %d" % (sBoff, sBoff, WS_Z + 54 * 1024))
    if KB:
        a("s_add_u32 s%d, s%d, s%d" % (sT1, sI, sJ))
        a("s_and_b32 s%d, s%d, 1" % (sT1, sT1))
        a("s_mul_i32 s%d, s%d, %d" % (sT0, sT1, KB * 128))
        a("s_add_u32 s%d, s%d, s%d" % (sAoff, sAoff, sT0))
        a("s_lshl_b32 s%d, s%d, 1" % (sT0, sT0))
        a("s_sub_u32 s31, 128, s%d" % sT0)
        a("s_add_u32 s32, 128, s%d" % sT0)
        a("s_mul_i32 s%d, s%d, %d" % (sT0, sT1, KB * 2 * NG_Z * 1024))
        a("s_add_u32 s%d, s%d, s%d" % (sBoff, sBoff, sT0))
        a("s_lshl_b32 s%d, s%d, 1" % (sT0, sT0))
        a("s_sub_u32 s33, %d, s%d" % (2 * NG_Z * 1024, sT0))
        a("s_add_u32 s34, %d, s%d" % (2 * NG_Z * 1024, sT0))
    a("s_mov_b32 s46, s%d" % sRR)
    a("s_mov_b32 s47, 0")
    a("s_mov_b64 vcc, s[46:47]")
    a(lab + ":")


def p2_poll(a):
    lab = a.label("Lnp")
    a("s_cmp_lg_u32 s%d, 0" % sW)
    a("s_cbranch_scc1 %s" % lab)
    a("buffer_load_dword v%d, v%d, s[%d:%d], s%d offen sc1" % (vPoll, vPz, sWS, sWS + 3, sT3))
    a(lab + ":")


def zk_wait(a):
    srd(a, sO, 60, 256)
    l0 = a.label("Lz0")
    a(l0 + ":")
    a("s_sleep 2")
    a("buffer_load_dword v%d, off, s[%d:%d], 0 sc1" % (vPoll, sO, sO + 3))
    a("s_waitcnt vmcnt(0)")
    a("v_readfirstlane_b32 s%d, v%d" % (sZk, vPoll))
    a("s_cmp_eq_u32 s%d, 16" % sZk)
    a("s_cbranch_scc0 %s" % l0)


def gen_p2(a):
    a("P2_entry:")
    if STAMP and k1.LITE and "steps" not in EXP:
        a("s_add_u32 s98, s72, s69")
    stamp(a, 0)
    if STAMP:
        srd(a, sWS, 52, WS_END)
    a("s_cmp_ge_u32 s%d, 4" % sW)
    a("s_cbranch_scc1 K2_consumer")
    a("K2_loader:")
    if "lprio" in EXP:
        a("s_setprio 3")
    Q = []

    def younger(pred):
        idx = [n for n, t in enumerate(Q) if pred(t)]
        return min(63, len(Q) - 1 - max(idx)) if idx else 63

    def dAa(st):
        if "noA" in EXP:
            return
        a("s_add_u32 m0, s%d, %d" % (sMA, slotA(st)))
        a("buffer_load_dwordx4 v%d, s[%d:%d], s%d offen lds" % (vAd0, sA, sA + 3, sAoff))
        a("buffer_load_dwordx4 v%d, s[%d:%d], s%d offen offset:1024 lds" % (vAd1, sA, sA + 3, sAoff))
        a("s_add_u32 s%d, s%d, %s" % (sAoff, sAoff, kjump(st, "128", "s31", "s32")))
        Q.extend([("S", st)] * 2)

    class NoSc:
        def __call__(self, t):
            if "nodma2" in EXP and t.endswith(" lds"):
                return
            if "nodma2" in EXP and t.startswith("s_waitcnt vmcnt"):
                t = "s_waitcnt vmcnt(0)"
            a0(t.replace(" sc1 lds", " lds") if "nosc" in EXP else t)
        def label(self, x):
            return a0.label(x)
    a0 = a
    a = NoSc()

    def dAb(st):
        a("s_add_u32 m0, s%d, %d" % (sMB, slotB(st)))
        for t in range(3):
            a("buffer_load_dwordx4 v%d, s[%d:%d], s%d offen offset:%d sc1 lds" % (vL16, sWS, sWS + 3, sBoff, 1024 * t))
        lab = a.label("Lsk")
        a("s_cbranch_vccnz %s" % lab)
        a("buffer_load_dwordx4 v%d, s[%d:%d], s%d offen offset:3072 sc1 lds" % (vL16, sWS, sWS + 3, sBoff))
        a(lab + ":")
        a("s_add_u32 s%d, s%d, %s" % (sBoff, sBoff, kjump(st, str(2 * NG_Z * 1024), "s33", "s34")))
        Q.extend([("S", st)] * 3)

    def dB3(st):
        if "noB3" in EXP:
            return
        a("s_add_u32 m0, s%d, %d" % (sMB3, slotB(st)))
        for t in range(2):
            a("buffer_load_dwordx4 v%d, s[%d:%d], s%d offen offset:%d sc1 lds" % (vL16, sB3, sB3 + 3, sB3off, 1024 * t))
        lab = a.label("Lsk")
        a("s_cbranch_vccnz %s" % lab)
        a("buffer_load_dwordx4 v%d, s[%d:%d], s%d offen offset:2048 sc1 lds" % (vL16, sB3, sB3 + 3, sB3off))
        a(lab + ":")
        a("s_add_u32 s%d, s%d, %d" % (sB3off, sB3off, 80 * 1024))
        Q.extend([("S", st)] * 2)

    def dA3(st):
        if st == 55:
            a("s_cmp_eq_u32 s%d, 1" % sRR)
            a("s_cselect_b32 s%d, 0x40000000, s%d" % (sA3off, sA3off))
        a("s_add_u32 m0, s%d, %d" % (sMA, slotA(st)))
        for t in range(2):
            a("buffer_load_dwordx4 v%d, s[%d:%d], s%d offen offset:%d sc1 lds" % (vL16, sA3, sA3 + 3, sA3off, 1024 * t))
        a("s_add_u32 s%d, s%d, 4096" % (sA3off, sA3off))
        Q.extend([("S", st)] * 2)

    def vpoll_issue(vaddr, soff):
        a("buffer_load_dword v%d, v%d, s[%d:%d], s%d offen sc1" % (vPoll, vaddr, sWS, sWS + 3, soff))

    def vpoll_check(vaddr, soff, target, n):
        l0, l1 = a.label("Lchk"), a.label("Lok")
        a("s_waitcnt vmcnt(%d)" % n)
        a(l0 + ":")
        a("v_cmp_eq_u32 s[46:47], %d, v%d" % (target, vPoll))
        a("s_cmp_eq_u64 s[46:47], -1")
        a("s_cbranch_scc1 %s" % l1)
        a("s_sleep %d" % SL1)
        if target == 14:
            l2 = a.label("Lsl")
            a("v_cmp_eq_u32 s[46:47], 0, v%d" % vPoll)
            a("s_cmp_eq_u64 s[46:47], 0")
            a("s_cbranch_scc1 %s" % l2)
            a("s_sleep %d" % SL2)
            a(l2 + ":")
        vpoll_issue(vaddr, soff)
        a("s_waitcnt vmcnt(0)")
        a("s_branch %s" % l0)
        a(l1 + ":")

    a("v_mov_b32 v6, %d" % LREL)
    a("s_cmp_lg_u32 s%d, 0" % sW)
    a("s_cbranch_scc1 K2_nw0")
    a("s_waitcnt vmcnt(%d)" % (0 if (STAMP and not k1.LITE) else NPST))
    a("v_cmp_eq_u32 s[46:47], 14, v%d" % vPoll)
    a("s_cmp_eq_u64 s[46:47], -1")
    a("s_cselect_b32 s%d, %d, 0" % (sT0, 0 if "flate" in EXP else 1))
    a("v_mov_b32 v7, s%d" % sT0)
    a("ds_write_b32 v6, v7")
    a("s_waitcnt lgkmcnt(0)")
    a("K2_nw0:")
    a("s_barrier")
    a("ds_read_b32 v7, v6")
    for st in range(NPRE, 3):
        dAa(st)
    stamp(a, 1)
    a("s_waitcnt lgkmcnt(0)")
    a("v_readfirstlane_b32 s%d, v7" % sT0)
    a("s_cmp_eq_u32 s%d, 1" % sT0)

    def late(lb):
        a("s_waitcnt vmcnt(0)")
        a("s_barrier")
        a("s_cmp_lg_u32 s%d, 0" % sW)
        a("s_cbranch_scc1 K2_lw")
        vpoll_issue(vPz, sT3)
        vpoll_check(vPz, sT3, 14, 0)
        a("K2_lw:")
        a("s_barrier")
        n = len(Q)
        for st in range(3):
            dAb(st)
        del Q[n:]
    lb = k1.rare(a, "s_cbranch_scc0", late)
    for st in range(3):
        dAb(st)
    a("s_waitcnt vmcnt(9)")
    a("s_barrier")
    a("s_barrier")
    a(lb + ":")
    stamp(a, 2)
    a("v_and_b32 v%d, 1, v0" % vPz)
    a("v_lshlrev_b32 v%d, 11, v%d" % (vPz, vPz))
    a("s_lshr_b32 s%d, s%d, 2" % (sT3, sI))
    a("s_lshl_b32 s%d, s%d, 12" % (sT3, sT3))
    a("s_add_u32 s%d, s%d, 0x%x" % (sT3, sT3, WS_FL + 1024))
    a("s_lshl_b32 s%d, s%d, 7" % (sT0, sJ))
    a("s_add_u32 s%d, s%d, s%d" % (sT3, sT3, sT0))
    a("s_waitcnt vmcnt(%d)" % younger(lambda t: t == ("S", 0)))
    a("s_barrier")
    for st in range(3, NSA):
        if st >= NPRE:
            dAa(st)
        dAb(st)
    if NPRE <= 5:
        dAa(5)
    srd_off(a, sA3, 52, WS_A3, 64 * NG_A3 * 1024)
    srd_off(a, sB3, 52, WS_B3, 47 * 40 * 1024)
    a("s_lshl_b32 s%d, s%d, 1" % (sT0, sI))
    a("s_add_u32 s%d, s%d, s%d" % (sT0, sT0, sCC))
    a("s_mul_i32 s%d, s%d, %d" % (sA3off, sT0, NG_A3))
    a("s_lshl_b32 s%d, s%d, 1" % (sT0, sRR))
    a("s_add_u32 s%d, s%d, s%d" % (sA3off, sA3off, sT0))
    a("s_lshl_b32 s%d, s%d, 10" % (sA3off, sA3off))
    a("s_mul_i32 s%d, s%d, 3" % (sT0, sRR))
    a("s_mul_i32 s%d, s%d, 40" % (sB3off, sCC))
    a("s_add_u32 s%d, s%d, s%d" % (sB3off, sB3off, sT0))
    a("s_mul_i32 s%d, s%d, 5" % (sT1, sJ))
    a("s_add_u32 s%d, s%d, s%d" % (sB3off, sB3off, sT1))
    a("s_lshl_b32 s%d, s%d, 10" % (sB3off, sB3off))
    a("s_mul_i32 s%d, s%d, 5" % (sMB3, sCC))
    a("s_add_u32 s%d, s%d, s%d" % (sMB3, sMB3, sT0))
    a("s_lshl_b32 s%d, s%d, 10" % (sMB3, sMB3))
    a("v_lshrrev_b32 v1, 5, v0")
    a("v_and_b32 v2, 31, v0")
    a("s_lshl_b32 s%d, s%d, 2" % (sHd, sJ))
    a("s_add_u32 s%d, s%d, s%d" % (sHd, sHd, sW))
    a("s_mul_i32 s%d, s%d, 2560" % (sKv, sHd))
    a("s_add_u32 s%d, s%d, 0x%x" % (sKv, sKv, WS_KV))
    a("s_lshl_b32 s%d, s%d, 7" % (sCnt, sHd))
    a("s_add_u32 s%d, s%d, 0x%x" % (sCnt, sCnt, CNT_KV))
    a("s_lshl_b32 s%d, s%d, 7" % (sCntI, sI))
    a("s_add_u32 s%d, s%d, 0x%x" % (sCntI, sCntI, CNT_O))
    a("s_mul_i32 s%d, s%d, 5" % (sT0, sW))
    a("v_add_u32 v%d, s%d, v1" % (T + 3, sT0))
    quad_addr(a, T + 6, T + 3, False, T + 4, T + 5)
    a("v_add_u32 v%d, 2, v%d" % (T + 3, T + 3))
    quad_addr(a, T + 7, T + 3, False, T + 4, T + 5)
    a("s_add_u32 s%d, s%d, 4" % (sT0, sT0))
    a("v_mov_b32 v%d, s%d" % (T + 3, sT0))
    quad_addr(a, T + 8, T + 3, False, T + 4, T + 5)
    for n in range(3):
        a("v_add_u32 v%d, %d, v%d" % (T + 6 + n, OSC, T + 6 + n))
    a("s_lshl_b32 s%d, s%d, 10" % (sT0, sW))
    a("v_add_u32 v%d, s%d, v%d" % (vT0, sT0, vL16))
    a("s_lshl_b32 s%d, s%d, 8" % (sT0, sW))
    a("s_add_u32 s%d, s%d, 4096" % (sT0, sT0))
    a("v_add_u32 v%d, s%d, v%d" % (vT1, sT0, vL16))
    a("v_add_u32 v%d, %d, v%d" % (vT2, OSC, vT0))
    a("v_add_u32 v%d, %d, v%d" % (vT3, OSC, vT1))
    for t in range(3):
        a("v_add_u32 v%d, %d, v0" % (T + 3, 64 * t))
        a("v_min_u32 v%d, 159, v%d" % (T + 3, T + 3))
        a("v_mul_u32_u24 v%d, 205, v%d" % (T + 4, T + 3))
        a("v_lshrrev_b32 v%d, 11, v%d" % (T + 4, T + 4))
        a("v_mul_u32_u24 v%d, %d, v%d" % (T + 4, 1280 - 160, T + 4))
        a("v_lshl_add_u32 v%d, v%d, 4, v%d" % (vXd + t, T + 3, T + 4))
        if t:
            a("v_subrev_u32 v%d, %d, v%d" % (vXd + t, 1024 * t, vXd + t))
    srd(a, sO, 54, S * D * 2)
    a("s_lshl_b32 s%d, s%d, 2" % (sT0, sI))
    a("s_add_u32 s%d, s%d, s%d" % (sT0, sT0, sW))
    a("s_mul_i32 s%d, s%d, %d" % (sXo0, sT0, 16 * 1280))
    a("s_mul_i32 s%d, s%d, 160" % (sT0, sJ))
    a("s_add_u32 s%d, s%d, s%d" % (sXo0, sXo0, sT0))
    a("s_lshl_b32 s%d, s%d, 12" % (sXo1, sW))
    a("v_cmp_eq_u32 s[46:47], 24, v2")
    a("v_cndmask_b32 v%d, v2, 20, s[46:47]" % (T + 9))
    a("v_lshlrev_b32 v%d, 2, v%d" % (T + 9, T + 9))
    a("v_lshl_add_u32 v%d, v1, 10, v%d" % (T + 10, T + 9))
    a("v_lshl_add_u32 v%d, v1, 30, v%d" % (T + 9, T + 9))
    nextA = 32
    nextB = 32
    for b in range(0, 55):
        need = [("S", b + 1)] if b != 31 else []
        if b == 2 * HK[0] - 1 and "noatt" not in EXP:
            need.append(("SD", 0))
        if need:
            a("s_waitcnt vmcnt(%d)" % younger(lambda t: t in need))
        a("s_barrier")
        if b == PA[0]:
            vpoll_issue(vPz, sT3)
            Q.append(("P", b))
        if b == PA[1]:
            stamp(a, 3)
            vpoll_check(vPz, sT3, 16, younger(lambda t: t[0] == "P"))
            stamp(a, 4)
            a("s_and_b32 s%d, s%d, 3" % (sWk, sI))
            a("s_andn2_b32 s%d, s%d, 3" % (sT0, sI))
            a("s_add_u32 s%d, s%d, s%d" % (sT0, sT0, sW))
            a("s_mul_i32 s%d, s%d, %d" % (sT0, sT0, 2 * NG_QKV))
            a("s_mul_i32 s%d, s%d, 5" % (sT1, sJ))
            a("s_add_u32 s%d, s%d, s%d" % (sT0, sT0, sT1))
            a("s_add_u32 s%d, s%d, s%d" % (sT0, sT0, sWk))
            a("s_lshl_b32 s%d, s%d, 10" % (sT0, sT0))
            a("s_add_u32 s%d, s%d, %d" % (sT0, sT0, WS_QKV + 40 * 1024))
            a("s_lshl_b32 s%d, s%d, 13" % (sT2, sW))
            for n in range(4):
                a("s_add_u32 m0, s%d, %d" % (sT2, SIDE + 2048 * n))
                a("s_add_u32 s%d, s%d, %d" % (sT1, sT0, ((n & 1) * NG_QKV + (n >> 1) * 40) * 1024))
                a("buffer_load_dwordx4 v%d, s[%d:%d], s%d offen sc1 lds" % (vL16, sWS, sWS + 3, sT1))
                a("buffer_load_dwordx4 v%d, s[%d:%d], s%d offen offset:1024 sc1 lds" % (vL16, sWS, sWS + 3, sT1))
            Q.extend([("SD", 0)] * 8)
        if b == PA[1] + 6:
            a("s_mul_i32 s%d, s%d, 5" % (sT0, sHd))
            a("v_lshlrev_b32 v%d, 1, v1" % (T + 1))
            a("v_add_u32 v%d, s%d, v%d" % (T + 1, sT0, T + 1))
            a("s_mul_i32 s%d, s%d, %d" % (sT1, sI, 2 * NG_QKV * 1024))
            a("s_add_u32 s%d, s%d, %d" % (sT2, sT1, NG_QKV * 1024))
            for n in range(3):
                if n == 1:
                    a("v_add_u32 v%d, 1, v%d" % (T + 1, T + 1))
                if n == 2:
                    a("s_add_u32 s%d, s%d, 4" % (sT0, sT0))
                    a("v_mov_b32 v%d, s%d" % (T + 1, sT0))
                quad_addr(a, T + 2, T + 1, True, T + 4, T + 5)
                for sb in range(2):
                    d = PQR + 6 * sb + 2 * n
                    if "noex" not in EXP:
                        a("buffer_load_dwordx2 v[%d:%d], v%d, s[%d:%d], s%d offen sc1" % (d, d + 1, T + 2, sWS, sWS + 3, sT1 if sb == 0 else sT2))
            Q.extend([("PQ", 0)] * 6)
        if b == PK[0]:
            poll_issue(a, sCnt)
            Q.append(("P", b))
        if b == PK[1]:
            stamp(a, 5)
            poll_check(a, sCnt, target=24, n=younger(lambda t: t[0] == "P"))
            stamp(a, 6)
            for n in range(8):
                a("buffer_load_dword v%d, v%d, s[%d:%d], s%d offen offset:%d sc1" % (KVF + n, T + 10, sWS, sWS + 3, sKv, 128 * n))
            for n in range(4):
                a("buffer_load_dword v%d, v%d, s[%d:%d], s%d offen offset:%d sc1" % (KVF + 8 + n, T + 9, sWS, sWS + 3, sKv, 2048 + 128 * n))
            Q.extend([("KV", 0)] * 12)
        if "jit" in EXP and b in (2, 10, 22, 30, 40):
            lj = a.label("Lj")
            a("s_bitcmp1_b32 s2, %d" % (b % 7))
            a("s_cbranch_scc0 %s" % lj)
            a("s_sleep 60")
            a(lj + ":")
        for st in range(5, 32):
            if issueB(st) == b:
                dAb(st)
        if NPRE <= b + 6 <= 31:
            dAa(b + 6)
        if b == PO[0]:
            poll_issue(a, sCntI)
            Q.append(("P", b))
        if b == PU[0]:
            poll_issue(a, sCntI)
            Q.append(("P", b))
        avail = {32: 26, 33: 27, 34: 28, 35: 29, 36: 29, 37: 30, 38: 31, 39: 31}
        while nextB <= 55 and avail.get(nextB, nextB - 8) <= b:
            dB3(nextB)
            nextB += 1
        if b in (PO[1], PU[1]):
            stamp(a, 7 if b == PO[1] else 9)
            if not ("noatt" in EXP and b == PO[1]) and not ("nou" in EXP and b == PU[1]):
                poll_check(a, sCntI, n=younger(lambda t: t[0] == "P"))
            stamp(a, 8 if b == PO[1] else 10)
            if b == PO[1]:
                a("s_add_u32 s%d, s%d, %d" % (sCntI, sCntI, CNT_U - CNT_O))
        if b >= PO[1]:
            lim = min(b + 6, 55) if b >= PU[1] else min(b + 6, 41)
            while nextA <= lim:
                dA3(nextA)
                nextA += 1
        if b == 31:
            a("s_waitcnt vmcnt(%d)" % younger(lambda t: t == ("S", 32)))
            a("s_barrier")
        if b == 36:
            a("s_mov_b32 m0, s%d" % sXo1)
            for t in range(3):
                a("buffer_load_dwordx4 v%d, s[%d:%d], s%d offen offset:%d lds" % (vXd + t, sO, sO + 3, sXo0, 1024 * t))
            Q.extend([("X", 0)] * 3)
        if b == OTB:
            srd(a, sA, 62, S * D * 2)
            a("s_add_u32 m0, s%d, 16384" % sXo1)
            for t in range(3):
                a("buffer_load_dwordx4 v%d, s[%d:%d], s%d offen offset:%d lds" % (vXd + t, sA, sA + 3, sXo0, 1024 * t))
            Q.extend([("X", 1)] * 3)
        if b == PK[2]:
            a("s_mul_i32 s%d, s%d, %d" % (sT1, sI, 2 * NG_A3 * 1024))
            a("s_mul_i32 s%d, s%d, 5120" % (sT2, sJ))
            a("s_add_u32 s%d, s%d, s%d" % (sT1, sT1, sT2))
            a("s_add_u32 s%d, s%d, 0x%x" % (sT1, sT1, WS_A3))
            a("s_add_u32 s%d, s%d, %d" % (sT2, sT1, NG_A3 * 1024))
            a("v_cmp_eq_u32 s[46:47], 1, v1")
            a("s_waitcnt vmcnt(%d)" % younger(lambda t: t[0] == "KV"))
            for n in range(6):
                a("v_cvt_pk_bf16_f32 v%d, v%d, v%d" % (KVF + 16 + n, KVF + 2 * n, KVF + 2 * n + 1))
            for sb in range(2):
                d, p = DO + 16 * sb, PQR + 6 * sb
                a("v_mfma_f32_32x32x16_bf16 v[%d:%d], v[%d:%d], v[%d:%d], 0" % (d, d + 15, KVF + 16, KVF + 19, p, p + 3))
                a("v_mfma_f32_32x32x8_bf16 v[%d:%d], v[%d:%d], v[%d:%d], v[%d:%d]" % (d, d + 15, KVF + 20, KVF + 21, p + 4, p + 5, d, d + 15))
            for sb in range(2):
                d = DO + 16 * sb
                a("v_cndmask_b32 v%d, v%d, v%d, s[46:47]" % (T, d + 12, d + 8))
                a("v_add_f32 v%d, %s, v%d" % (T, fhex(1e-6), T))
                a("v_rcp_f32 v%d, v%d" % (T, T))
                for r in range(12):
                    a("v_mul_f32 v%d, v%d, v%d" % (d + r, d + r, T))
                for n in range(6):
                    a("v_cvt_pk_bf16_f32 v%d, v%d, v%d" % (KVF + 8 * sb + n, d + 2 * n, d + 2 * n + 1))
            for n in range(3):
                if n == 2:
                    a("s_mov_b32 exec_hi, 0")
                for sb in range(2):
                    p = KVF + 8 * sb + 2 * n
                    a("ds_write_b64 v%d, v[%d:%d] offset:%d" % (T + 6 + n, p, p + 1, 5120 * sb))
            a("s_mov_b64 exec, -1")
            a("s_waitcnt lgkmcnt(0)")
        if b == PK[2] + 1:
            for sb in range(2):
                a("ds_read_b128 v[%d:%d], v%d offset:%d" % (DO + 8 * sb, DO + 8 * sb + 3, vT2, 5120 * sb))
            a("s_mov_b64 exec, 0xffff")
            for sb in range(2):
                a("ds_read_b128 v[%d:%d], v%d offset:%d" % (DO + 8 * sb + 4, DO + 8 * sb + 7, vT3, 5120 * sb))
            a("s_waitcnt lgkmcnt(0)")
            for sb in range(2):
                a("buffer_store_dwordx4 v[%d:%d], v%d, s[%d:%d], s%d offen sc1" % (DO + 8 * sb + 4, DO + 8 * sb + 7, vT1, sWS, sWS + 3, sT1 if sb == 0 else sT2))
            a("s_mov_b64 exec, -1")
            for sb in range(2):
                a("buffer_store_dwordx4 v[%d:%d], v%d, s[%d:%d], s%d offen sc1" % (DO + 8 * sb, DO + 8 * sb + 3, vT0, sWS, sWS + 3, sT1 if sb == 0 else sT2))
            Q.extend([("O", 0)] * 4)
        if b == PK[3]:
            signal(a, sCntI, n=younger(lambda t: t[0] == "O"))
            Q.append(("G", 0))
    stamp(a, 11)
    if STAMP:
        a("s_add_u32 s%d, s%d, 4" % (sW, sW))
    stamp_dump(a, 12, sWS, sW, WS_STAMP + 0x20000)
    a("s_endpgm")
    a = a0
    a("K2_consumer:")
    if "prio" in EXP:
        a("s_setprio 2")
    a("s_barrier")
    a("s_and_b32 s%d, s%d, 3" % (sW, sW))

    a("s_lshl_b32 s%d, s%d, 2" % (sHd, sJ))
    a("s_add_u32 s%d, s%d, s%d" % (sHd, sHd, sW))
    a("s_and_b32 s%d, s%d, 3" % (sWk, sI))
    a("s_lshl_b32 s%d, s%d, 13" % (sT2, sW))
    a("s_add_u32 s%d, s%d, %d" % (sT2, sT2, SIDE))
    a("s_mov_b32 s%d, %d" % (sRd, slotA(0)))
    a("s_mov_b32 s%d, %d" % (sRdB, slotB(0)))
    if DEEP:
        a("s_mov_b32 s%d, %d" % (sWrap, RB))
    srd(a, sBS, 50, S * 2)
    srd(a, sO, 62, S * D * 2)
    a("v_lshrrev_b32 v1, 4, v0")
    a("v_and_b32 v2, 15, v0")
    a("v_and_b32 v3, 1, v1")
    a("v_lshrrev_b32 v4, 1, v1")
    a("v_lshl_add_u32 v5, v3, 5, v2")
    a("v_lshlrev_b32 v5, 4, v5")
    a("v_lshl_add_u32 v5, v4, 10, v5")
    a("s_lshl_b32 s%d, s%d, 12" % (sT0, sRR))
    a("v_add_u32 v%d, s%d, v5" % (vLA3, sT0))
    a("v_lshrrev_b32 v5, 2, v2")
    a("v_lshl_add_u32 v5, v3, 2, v5")
    a("v_lshl_add_u32 v5, v4, 4, v5")
    a("v_mul_u32_u24 v5, 160, v5")
    a("v_and_b32 v6, 3, v0")
    a("v_lshl_add_u32 v5, v6, 3, v5")
    a("s_mul_i32 s%d, s%d, 96" % (sT0, sCC))
    a("v_add_u32 v%d, s%d, v5" % (vLB3, sT0))
    a("v_mul_u32_u24 v%d, 160, v2" % vXl)
    a("v_lshl_add_u32 v%d, v1, 3, v%d" % (vXl, vXl))
    a("s_lshl_b32 s%d, s%d, 13" % (sT0, sRR))
    a("s_mul_i32 s%d, s%d, 96" % (sT1, sCC))
    a("s_add_u32 s%d, s%d, s%d" % (sT0, sT0, sT1))
    a("v_add_u32 v%d, s%d, v%d" % (vXl, sT0, vXl))
    a("v_mul_u32_u24 v%d, 1280, v2" % vO)
    a("v_lshl_add_u32 v%d, v1, 3, v%d" % (vO, vO))
    a("s_lshl_b32 s%d, s%d, 1" % (sT3, sI))
    a("s_add_u32 s%d, s%d, s%d" % (sT3, sT3, sRR))
    a("s_mul_i32 s%d, s%d, %d" % (sXo0, sT3, 32 * 1280))
    a("s_mul_i32 s%d, s%d, 160" % (sT0, sJ))
    a("s_add_u32 s%d, s%d, s%d" % (sXo0, sXo0, sT0))
    a("s_mul_i32 s%d, s%d, 96" % (sT0, sCC))
    a("s_add_u32 s%d, s%d, s%d" % (sXo0, sXo0, sT0))
    a("s_add_u32 s%d, s%d, %d" % (sXo1, sXo0, 16 * 1280))
    a("s_lshl_b32 s%d, s%d, 5" % (sT1, sRR))
    a("v_add_u32 v5, s%d, v2" % sT1)
    a("v_lshlrev_b32 v%d, 7, v5" % vLA)
    a("v_lshrrev_b32 v5, 1, v2")
    a("v_xor_b32 v5, v5, v1")
    a("v_lshl_add_u32 v%d, v5, 4, v%d" % (vLA, vLA))
    a("s_and_b32 s%d, s%d, 1" % (sT1, sJ))
    a("s_lshl_b32 s%d, s%d, 3" % (sT1, sT1))
    a("v_bfe_u32 v5, v0, 2, 2")
    a("v_lshl_add_u32 v5, v1, 3, v5")
    a("v_and_b32 v6, 1, v0")
    a("v_lshlrev_b32 v7, 2, v6")
    a("v_xor_b32 v5, v5, v7")
    a("v_xor_b32 v5, s%d, v5" % sT1)
    a("v_lshl_add_u32 v5, v6, 5, v5")
    a("v_lshlrev_b32 v5, 4, v5")
    a("v_bfe_u32 v7, v0, 1, 1")
    a("v_lshl_add_u32 v5, v7, 3, v5")
    a("s_lshl_b32 s%d, s%d, 12" % (sT0, sCC))
    a("v_add_u32 v%d, s%d, v5" % (vLB0, sT0))
    a("v_lshl_add_u32 v5, v3, 5, v2")
    a("v_lshlrev_b32 v5, 4, v5")
    a("v_lshl_add_u32 v%d, v4, 3, v5" % vU)
    a("v_lshlrev_b32 v5, 6, v3")
    a("v_xor_b32 v%d, v5, v%d" % (vZa, vU))
    a("s_lshl_b32 s%d, s%d, 4" % (sT1, sT1))
    a("v_xor_b32 v%d, s%d, v%d" % (vZa, sT1, vZa))
    a("v_xor_b32 v%d, 0x80, v%d" % (vZb, vZa))
    a("v_lshlrev_b32 v%d, 1, v2" % vBias2)
    a("v_lshrrev_b32 v1, 5, v0")
    a("v_and_b32 v2, 31, v0")
    a("v_bfe_u32 v3, v0, 2, 2")
    a("v_lshl_add_u32 v3, v1, 3, v3")
    a("v_bfe_u32 v5, v0, 4, 1")
    a("v_and_b32 v6, 3, v0")
    a("v_lshl_add_u32 v6, v5, 2, v6")
    a("v_min_u32 v6, 4, v6")
    a("v_add_u32 v6, s%d, v6" % sWk)
    a("v_and_b32 v4, 1, v6")
    a("v_lshrrev_b32 v5, 2, v6")
    a("s_add_u32 s%d, s%d, s%d" % (sT1, sJ, sWk))
    a("v_add_u32 v7, s%d, v5" % sT1)
    a("v_and_b32 v7, 1, v7")
    a("v_lshl_add_u32 v7, v7, 1, v4")
    a("v_lshlrev_b32 v7, 2, v7")
    a("v_xor_b32 v7, v7, v3")
    a("v_lshl_add_u32 v7, v4, 5, v7")
    a("v_lshlrev_b32 v7, 4, v7")
    a("v_bfe_u32 v4, v6, 1, 1")
    a("v_lshl_add_u32 v7, v4, 3, v7")
    a("v_lshl_add_u32 v7, v5, 10, v7")
    a("v_add_u32 v%d, s%d, v7" % (T + 8, sT2))
    a("v_xor_b32 v%d, 64, v%d" % (T + 9, T + 8))
    a("v_cmp_eq_u32 s[46:47], 20, v2")
    a("v_mov_b32 v%d, 0x3f803f80" % (T + 10))
    a("v_lshlrev_b32 v%d, 9, v1" % (T + 3))
    a("v_lshl_add_u32 v%d, v2, 2, v%d" % (T + 3, T + 3))
    a("s_mul_i32 s%d, s%d, 2560" % (sKv, sHd))
    a("s_add_u32 s%d, s%d, 0x%x" % (sKv, sKv, WS_KV))
    a("s_lshl_b32 s%d, s%d, 7" % (sCnt, sHd))
    a("s_add_u32 s%d, s%d, 0x%x" % (sCnt, sCnt, CNT_KV))
    a("s_lshl_b32 s%d, s%d, 2" % (sT0, sJ))
    a("s_add_u32 s%d, s%d, s%d" % (sT0, sT0, sWk))
    a("s_mul_i32 s%d, s%d, 2560" % (sKvW, sT0))
    a("s_lshl_b32 s%d, s%d, 10" % (sT1, sW))
    a("s_add_u32 s%d, s%d, s%d" % (sKvW, sKvW, sT1))
    a("s_add_u32 s%d, s%d, 0x%x" % (sKvW, sKvW, WS_KV))
    a("s_lshl_b32 s%d, s%d, 7" % (sCntW, sT0))
    a("s_add_u32 s%d, s%d, 0x%x" % (sCntW, sCntW, CNT_KV))
    a("v_add_u32 v%d, s%d, v%d" % (T + 4, sT2, vL16))
    a("s_add_u32 s%d, s%d, %d" % (sT1, sT1, SIDE))
    a("v_add_u32 v%d, s%d, v%d" % (T + 5, sT1, vL16))
    a("s_lshl_b32 s%d, s%d, 7" % (sCntI, sI))
    a("s_add_u32 s%d, s%d, 0x%x" % (sCntI, sCntI, CNT_O))
    for p in range(32):
        a("v_mov_b32 v%d, 0" % (ACC + p))
    a("s_mul_i32 s%d, s%d, 7" % (sT0, sJ))
    a("s_lshl_b32 s%d, s%d, 2" % (sT1, sCC))
    a("s_add_u32 s%d, s%d, s%d" % (sOdd, sT0, sT1))
    a("s_mul_i32 s%d, s%d, %d" % (sT2, sT3, NG_Z))
    a("s_add_u32 s%d, s%d, s%d" % (sT2, sT2, sOdd))
    a("s_lshl_b32 s%d, s%d, 10" % (sT2, sT2))
    a("s_add_u32 s%d, s%d, 0x%x" % (sT2, sT2, WS_Z))
    stamp(a, 1)
    a("s_waitcnt vmcnt(0)")
    a("s_barrier")
    a("s_cmp_lg_u32 s%d, 0" % sW)
    a("s_cbranch_scc1 K2_noall")
    a("v_mov_b32 v%d, 1" % T)
    a("v_lshlrev_b32 v%d, 7, v0" % (T + 2))
    a("s_mov_b64 exec, 0xff")
    a("buffer_atomic_add v%d, v%d, s[%d:%d], s%d offen sc1" % (T, T + 2, sWS, sWS + 3, sCall))
    a("s_cmp_eq_u32 s69, 1")
    a("s_cbranch_scc1 K2_nolate")
    a("s_sub_u32 s%d, s%d, 1024" % (sCall, sCall))
    a("buffer_atomic_add v%d, v%d, s[%d:%d], s%d offen sc1" % (T, T + 2, sWS, sWS + 3, sCall))
    a("K2_nolate:")
    a("s_mov_b64 exec, -1")
    a("K2_noall:")
    a("s_barrier")
    a("s_barrier")
    a("s_cmp_eq_u32 s%d, 1" % sCC)
    a("s_cbranch_scc1 K2_cc1")
    for cc in range(2):
        na, nb = 4 - cc, 3 - cc

        def ab(t, cc=cc):
            a(t.replace("@", "_%d" % cc))
        if cc:
            a("K2_cc1:")
        stamp(a, 2)
        for t in read_A(FA[0], na):
            a(t)
        ab("s_mov_b32 s%d, 0" % sIt)
        ab("s_mov_b32 s%d, %d" % (sHook, HK[0]))
        stamp(a, 3)
        ab("K2_loop@:")
        cstage(a, mf_A(FA[0], na), read_A(FA[1], na), FRA)
        ab("s_cmp_eq_u32 s%d, %d" % (sIt, HK[0]))
        ab("s_cbranch_scc1 K2_h1@")
        ab("K2_mid@:")
        cstage(a, mf_A(FA[1], na), read_A(FA[0], na), FRA)
        ab("s_add_u32 s%d, s%d, 1" % (sIt, sIt))
        ab("s_cmp_eq_u32 s%d, s%d" % (sIt, sHook))
        ab("s_cbranch_scc0 K2_loop@")
        ab("s_cmp_eq_u32 s%d, 15" % sIt)
        ab("s_cbranch_scc1 K2_h7@")
        ab("s_cmp_eq_u32 s%d, %d" % (sIt, HK[2]))
        ab("s_cbranch_scc1 K2_h2@")
        stamp(a, 4)
        ab("s_mov_b32 s%d, %d" % (sHook, HK[2]))
        for m in range(2):
            for k in range(4):
                d = KVF + 16 * m + 4 * k
                off = m * 4096 + (k >> 1) * 2048 + (k & 1) * 256
                ab("ds_read_b64_tr_b16 v[%d:%d], v%d offset:%d" % (d, d + 1, T + 8, off))
                ab("ds_read_b64_tr_b16 v[%d:%d], v%d offset:%d" % (d + 2, d + 3, T + 9, off))
        ab("s_waitcnt lgkmcnt(0)")
        for p in range(16):
            ab("v_cndmask_b32 v%d, v%d, v%d, s[46:47]" % (KVF + 16 + p, KVF + 16 + p, T + 10))
        for k in range(4):
            ab("v_mfma_f32_32x32x16_bf16 v[%d:%d], v[%d:%d], v[%d:%d], %s" % (
                DO, DO + 15, KVF + 4 * k, KVF + 4 * k + 3, KVF + 16 + 4 * k, KVF + 19 + 4 * k,
                "0" if k == 0 else "v[%d:%d]" % (DO, DO + 15)))
        for q in range(3):
            ab("ds_write_b128 v%d, v[%d:%d] offset:%d" % (T + 4, DO + 4 * q, DO + 4 * q + 3, 1024 * q))
        ab("s_branch K2_loop@")
        ab("K2_h1@:")
        ab("s_cmp_eq_u32 s%d, 3" % sW)
        ab("s_cbranch_scc1 K2_noat@")
        if "noatt" in EXP:
            ab("s_branch K2_noat@")
        for q in range(4):
            ab("ds_read_b128 v[%d:%d], v%d offset:%d" % (KVF + 4 * q, KVF + 4 * q + 3, T + 5, 8192 * q))
        ab("s_waitcnt lgkmcnt(0)")
        for r in range(4):
            ab("v_add_f32 v%d, v%d, v%d" % (KVF + r, KVF + r, KVF + 4 + r))
            ab("v_add_f32 v%d, v%d, v%d" % (KVF + 8 + r, KVF + 8 + r, KVF + 12 + r))
        for r in range(4):
            ab("v_add_f32 v%d, v%d, v%d" % (KVF + r, KVF + r, KVF + 8 + r))
        ab("s_cmp_eq_u32 s%d, 2" % sW)
        ab("s_cselect_b32 exec_hi, 0, 0x1fffff")
        ab("s_mov_b32 exec_lo, 0x1fffff")
        for r in range(4):
            ab("buffer_atomic_add_f32 v%d, v%d, s[%d:%d], s%d offen offset:%d" % (
                KVF + r, T + 3, sWS, sWS + 3, sKvW, r * 128))
        ab("s_mov_b64 exec, -1")
        ab("K2_noat@:")
        for p in range(24):
            ab("v_mov_b32 v%d, 0" % (ACB + p))
        ab("s_branch K2_mid@")
        ab("K2_h2@:")
        ab("s_mov_b32 s%d, 15" % sHook)
        if DEEP:
            ab("s_mov_b32 s%d, 0" % sWrap)
        stamp(a, 5)
        ab("s_cmp_eq_u32 s%d, 3" % sW)
        ab("s_cbranch_scc1 K2_nosig@")
        signal(a, sCntW)
        ab("K2_nosig@:")
        stamp(a, 6)
        for ct in range(na):
            for rt in range(2):
                z = Z1R + 8 * rt + 2 * ct
                ab("buffer_load_dwordx2 v[%d:%d], v%d, s[%d:%d], s%d offen offset:%d sc1" % (
                    z, z + 1, vZb if ct & 1 else vZa, sWS, sWS + 3, sT2, 1024 * ct + 256 * rt))
        ab("s_lshl_b32 s%d, s%d, 6" % (sT0, sT3))
        ab("buffer_load_ushort v%d, v%d, s[%d:%d], s%d offen" % (vBias, vBias2, sBS, sBS + 3, sT0))
        ab("buffer_load_ushort v%d, v%d, s[%d:%d], s%d offen offset:32" % (vBias2, vBias2, sBS, sBS + 3, sT0))
        ab("s_branch K2_loop@")
        ab("K2_h7@:")
        cstage(a, mf_A(FA[0], na), read_A(FA[1], na), FRA)
        cstage(a, mf_A(FA[1], na), [], FRA)
        stamp(a, 8)
        ab("s_mov_b32 s%d, %d" % (sRdB, slotB(32)))
        ab("s_waitcnt vmcnt(0)")
        ab("v_lshlrev_b32 v%d, 16, v%d" % (vBias, vBias))
        ab("s_mul_i32 s%d, s%d, %d" % (sT0, sT3, NG_A3))
        ab("s_add_u32 s%d, s%d, s%d" % (sT0, sT0, sOdd))
        ab("s_lshl_b32 s%d, s%d, 10" % (sT0, sT0))
        ab("s_add_u32 s%d, s%d, %d" % (sT0, sT0, WS_A3 + 40 * 1024))
        ab("v_lshlrev_b32 v%d, 16, v%d" % (vBias2, vBias2))
        for ct in range(na):
            if cc == 1 and ct == 1:
                ab("s_cmp_eq_u32 s%d, 53" % sOdd)
                ab("s_cbranch_scc1 K2_done@")
            for rt in range(2):
                acc = ACC + 16 * rt + 4 * ct
                z = Z1R + 8 * rt + 2 * ct
                vb = vBias2 if rt else vBias
                for pp in range(2):
                    t = T + 2 * pp
                    ab("v_lshlrev_b32 v%d, 16, v%d" % (t, z + pp))
                    ab("v_and_b32 v%d, 0xffff0000, v%d" % (t + 1, z + pp))
                    ab("v_add_f32 v%d, v%d, v%d" % (acc + 2 * pp, acc + 2 * pp, vb))
                    ab("v_add_f32 v%d, v%d, v%d" % (acc + 2 * pp + 1, acc + 2 * pp + 1, vb))
                    ab("v_mul_f32 v%d, v%d, v%d" % (t, t, acc + 2 * pp))
                    ab("v_mul_f32 v%d, v%d, v%d" % (t + 1, t + 1, acc + 2 * pp + 1))
                    ab("v_cvt_pk_bf16_f32 v%d, v%d, v%d" % (z + pp, t, t + 1))
                ab("buffer_store_dwordx2 v[%d:%d], v%d, s[%d:%d], s%d offen offset:%d sc1" % (
                    z, z + 1, vU, sWS, sWS + 3, sT0, 1024 * ct + 256 * rt))
        ab("K2_done@:")
        stamp(a, 9)
        ab("s_add_u32 s%d, s%d, %d" % (sCntI, sCntI, CNT_U - CNT_O))
        ab("s_barrier")
        for t in read_B(FA[0], nb):
            a(t)
        cstage(a, mf_B(FA[0], nb), read_B(FA[1], nb), FRB)
        cstage(a, mf_B(FA[1], nb), read_B(FA[0], nb), FRB)
        stamp(a, 10)
        signal(a, sCntI)
        stamp(a, 11)
        ab("s_mov_b32 s%d, 1" % sIt)
        ab("K3_loop@:")
        cstage(a, mf_B(FA[0], nb), read_B(FA[1], nb), FRB)
        cstage(a, mf_B(FA[1], nb), read_B(FA[0], nb), FRB)
        ab("s_add_u32 s%d, s%d, 1" % (sIt, sIt))
        ab("s_cmp_eq_u32 s%d, 12" % sIt)
        ab("s_cbranch_scc0 K3_loop@")
        stamp(a, 12)
        for rt in range(2):
            for ct in range(nb):
                x = XR + 6 * rt + 2 * ct
                ab("ds_read_b64 v[%d:%d], v%d offset:%d" % (x, x + 1, vXl, rt * 4096 + 32 * ct))
        ab("s_waitcnt lgkmcnt(0)")
        for rt in range(2):
            for ct in range(nb):
                acc = ACB + 12 * rt + 4 * ct
                x = XR + 6 * rt + 2 * ct
                for p in range(2):
                    t = T + 2 * p
                    ab("v_lshlrev_b32 v%d, 16, v%d" % (t, x + p))
                    ab("v_and_b32 v%d, 0xffff0000, v%d" % (t + 1, x + p))
                    ab("v_add_f32 v%d, v%d, v%d" % (t, t, acc + 2 * p))
                    ab("v_add_f32 v%d, v%d, v%d" % (t + 1, t + 1, acc + 2 * p + 1))
                    ab("v_cvt_pk_bf16_f32 v%d, v%d, v%d" % (x + p, t, t + 1))
                ab("buffer_store_dwordx2 v[%d:%d], v%d, s[%d:%d], s%d offen offset:%d%s" % (x, x + 1, vO, sO, sO + 3, sXo0 if rt == 0 else sXo1, 32 * ct, os.environ.get("OST", "")))
        stamp(a, 13)
        if STAMP:
            ab("s_waitcnt vmcnt(0)")
        stamp(a, 14)
        stamp_dump(a, 15, sWS, sW, WS_STAMP + 0x20000)
        ab("s_endpgm")
```

```python
import os
import sys
import gen, k1
from common import *
from k1 import srd
def mkspin(T):
    def spin(a, label):
        a(".p2align 8"); a(label + ":")
        a("s_cmp_ge_u32 s2, 1"); a("s_cbranch_scc1 %s_e" % label)
        a("s_load_dwordx2 s[4:5], s[0:1], %d" % KA_WS); a("s_waitcnt lgkmcnt(0)")
        srd(a, 8, 4, 0x4000000)
        a("s_mov_b32 s6, 0x%x" % k1.WS_STAMP)
        a("buffer_load_dword v1, off, s[8:11], s6 sc1"); a("s_waitcnt vmcnt(0)"); a("v_readfirstlane_b32 s7, v1")
        a(label + "_l:")
        a("s_memrealtime s[12:13]"); a("s_waitcnt lgkmcnt(0)"); a("s_sub_u32 s14, s12, s7"); a("s_cmp_lt_u32 s14, %d" % T); a("s_cbranch_scc1 %s_l" % label)
        a(label + "_e:"); a("s_endpgm")
    return spin
for T in (5000,):
    gen.build([("k1_kernel", k1.gen_k1, 256, 512, k1.K1_LDS), ("sp_kernel", mkspin(T), 1, 64, 0)], sys.argv[1])
```

```python
import sys, os
from asmlib import *
from common import *
import k1, gen
from k1 import *

NREP = int(os.environ.get("NREP", "4"))
def mk(variant):
    def fn(a, label):
        a(".p2align 8"); a(label + ":")
        a("s_load_dwordx2 s[62:63], s[0:1], %d" % KA_WS)
        a("v_lshrrev_b32 v1, 6, v0"); a("v_and_b32 v0, 63, v0"); a("v_readfirstlane_b32 s%d, v1" % sW)
        for r in range(2, 256): a("v_mov_b32 v%d, 0" % r) if "zero" in variant else a("v_mov_b32 v%d, 0x3f8%05x" % (r, (r * 7919) & 0xfffff))
        a("s_and_b32 s%d, s%d, 3" % (sR, sW)); a("s_lshr_b32 s%d, s%d, 2" % (sC, sW))
        e = E0
        a("v_lshrrev_b32 v1, 5, v0"); a("v_bfe_u32 v%d, v0, 2, 2" % e); a("v_lshl_add_u32 v%d, v1, 3, v%d" % (e, e)); a("v_lshlrev_b32 v%d, 7, v%d" % (e, e))
        a("v_bfe_u32 v%d, v0, 4, 1" % (e + 1)); a("v_lshlrev_b32 v%d, 1, v%d" % (e + 1, e + 1)); a("v_bfe_u32 v%d, v0, 1, 1" % (e + 2)); a("v_add_u32 v%d, v%d, v%d" % (e + 1, e + 1, e + 2))
        a("s_lshl_b32 s%d, s%d, 2" % (sT0, sC)); a("v_add_u32 v%d, s%d, v%d" % (e + 1, sT0, e + 1)); a("v_bfe_u32 v%d, v0, 3, 1" % (e + 2)); a("v_lshlrev_b32 v%d, 2, v%d" % (e + 2, e + 2))
        a("v_xor_b32 v%d, v%d, v%d" % (e + 1, e + 1, e + 2)); a("v_lshl_add_u32 v%d, v%d, 4, v%d" % (e, e + 1, e)); a("v_and_b32 v%d, 1, v0" % (e + 1)); a("v_lshl_add_u32 v%d, v%d, 3, v%d" % (e, e + 1, e))
        for t in range(4):
            a("s_xor_b32 s%d, s%d, %d" % (sT0, sR, t)); a("s_mul_i32 s%d, s%d, %d" % (sT0, sT0, CH)); a("v_add_u32 v%d, s%d, v%d" % (vA + t, sT0, e))
        a("s_waitcnt lgkmcnt(0)")
        srd(a, sWS, 62, 0x1000000)
        a("s_mov_b32 s%d, 0" % sA); a("s_mov_b32 s%d, 0" % sB); a("s_mov_b32 s%d, 0" % sCc)
        a("v_lshlrev_b32 v%d, 4, v0" % vW1a)
        a("s_lshl_b32 s%d, s%d, 11" % (sW1off, sW)); a("s_add_u32 s%d, s%d, 0x100000" % (sW1off, sW1off))
        a("s_mul_i32 s%d, s%d, %d" % (sWb, sR, CH)); a("s_lshl_b32 s%d, s%d, 11" % (sT0, sC)); a("s_add_u32 s%d, s%d, s%d" % (sWb, sWb, sT0)); a("s_add_u32 s%d, s%d, %d" % (sWb, sWb, REG))
        if "oob" in variant: a("s_mov_b32 s%d, 0x40000000" % sW1off)
        a("s_lshl_b32 s%d, s%d, 16" % (sT0, sW)); a("s_add_u32 s%d, s%d, 0x200000" % (sT0, sT0))
        for r in range(48, 256, 4):
            a("buffer_load_dwordx4 v[%d:%d], v%d, s[%d:%d], s%d offen" % (r, r + 3, vW1a, sWS, sWS + 3, sT0)); a("s_add_u32 s%d, s%d, 1024" % (sT0, sT0))
        a("s_mul_i32 s%d, s%d, 20480" % (sT1, sW))
        for n in range(20):
            a("s_add_u32 m0, s%d, %d" % (sT1, n * 1024)); a("buffer_load_dwordx4 v%d, s[%d:%d], s%d offen lds" % (vW1a, sWS, sWS + 3, sT0)); a("s_add_u32 s%d, s%d, 1024" % (sT0, sT0))
        a("s_waitcnt vmcnt(0)"); a("s_barrier")
        for r in range(M0, M0 + 16): a("v_mov_b32 v%d, 0" % r)
        a("s_mov_b32 s%d, 0" % sLine)
        q = LdsQ(a)
        for j in range(3): frag_reads(q, 0, j)
        a("s_barrier")
        a("s_memtime s[72:73]")
        a("s_memrealtime s[76:77]")
        a(label + "_L:")
        typ = "P" if "phi" in variant else "G"
        for rep in range(1):
            for i in range(5):
                if "bar" in variant: a("s_barrier")
                fill = epi_quad(typ, i & 3) if "epi" in variant else []
                if "cont" in variant:
                    L = [t for t in epi_cont(typ, False) if not isinstance(t, tuple)]; n4 = len(L) // 4; fill = L[(i & 3) * n4:(i & 3) * n4 + n4]
                if "pk" in variant:
                    items = []
                    for e in range(8):
                        p, x = T0 + 2 * (e & 3), E0 + 2 * e
                        ops = ["v_pk_mul_f32 v[%d:%d], v[%d:%d], v[%d:%d]" % (p, p + 1, x, x + 1, x, x + 1),
                               "v_pk_fma_f32 v[%d:%d], v[%d:%d], v[14:15], v[16:17] op_sel:[0@1@0] op_sel_hi:[1@1@0]" % (p, p + 1, p, p + 1),
                               "v_pk_mul_f32 v[%d:%d], v[%d:%d], v[%d:%d]" % (p, p + 1, p, p + 1, x, x + 1),
                               "v_exp_f32 v%d, v%d" % (p, p), "v_exp_f32 v%d, v%d" % (p + 1, p + 1),
                               "v_pk_fma_f32 v[%d:%d], v[%d:%d], v[14:15], v[14:15] op_sel:[0@0@0] op_sel_hi:[1@0@0]" % (p, p + 1, p, p + 1),
                               "v_rcp_f32 v%d, v%d" % (p, p), "v_rcp_f32 v%d, v%d" % (p + 1, p + 1),
                               "v_pk_mul_f32 v[%d:%d], v[%d:%d], v[%d:%d]" % (p, p + 1, x, x + 1, p, p + 1),
                               "v_cvt_pk_bf16_f32 v%d, v%d, v%d" % (PK + (e & 3), p, p + 1)]
                        items += [(e * 2.5 + k, e, o) for k, o in enumerate(ops)]
                    L = [o for _, _, o in sorted(items)]; fill = L[(i & 3) * 20:(i & 3) * 20 + 20]
                if "indep" in variant: fill = ["v_add_f32 v28, v29, v30"] * 22 + ["v_exp_f32 v31, v32"] * 8; fill = [fill[(n * 11) % 30] for n in range(30)]
                cnt = spread(len(fill), 8); pos = 0
                for j in range(8):
                    if "w2" in variant:
                        if (j & 1) == 0: q.wait("f%d" % j, "f%d" % (j + 1))
                    else: q.wait("f%d" % j)
                    x = X0 + 32 * i + 4 * j; f = FR + 4 * (j & 3)
                    if "fixop" in variant: x, f = 96, 100
                    if "m16" in variant:
                        for u in range(2):
                            m = M0 + 8 * (j & 1) + 4 * u; xx = X0 + (x - X0 + 4 * u * 11) % 160
                            a("v_mfma_f32_16x16x32_bf16 v[%d:%d], v[%d:%d], v[%d:%d], v[%d:%d]" % (m, m + 3, f, f + 3, xx, xx + 3, m, m + 3))
                    elif "nomf" not in variant:
                        a("v_mfma_f32_32x32x16_bf16 v[%d:%d], v[%d:%d], v[%d:%d], v[%d:%d]" % (M0, M0 + 15, f, f + 3, x, x + 3, M0, M0 + 15))
                    for v_ in variant:
                        if v_.startswith("pad"):
                            n = int(v_[3:])
                            while n > 0:
                                a("s_nop %d" % (min(n, 16) - 1)); n -= 16
                    jn = j + 3
                    if "nolds" in variant: q.q += ["f%d" % (jn & 7)] * 2
                    elif "halflds" in variant and (j & 1): q.q += ["f%d" % (jn & 7)] * 2
                    else: frag_reads(q, i if jn < 8 else (i + 1) % 5, jn & 7)
                    for t in fill[pos:pos + cnt[j]]: a(t)
                    pos += cnt[j]
                    dsl = {"d01": (0, 0), "d04": (0, 4), "d15": (1, 5), "d23": (2,3)}
                    for kx, (p0, p1) in dsl.items():
                        if kx in variant:
                            if j == p0:
                                a("s_add_u32 m0, s%d, %d" % (sWb, i * 4096))
                                a("buffer_load_dwordx4 v%d, s[%d:%d], s%d offen lds" % (vW1a, sWS, sWS + 3, sW1off))
                            if j == p1:
                                a("buffer_load_dwordx4 v%d, s[%d:%d], s%d offen offset:1024 lds" % (vW1a, sWS, sWS + 3, sW1off))
                                a("s_add_u32 s%d, s%d, 16384" % (sW1off, sW1off))
                    if "cs" in variant and (j & 3) == 0: cs_mfma(a, 1, j)
        a("s_add_u32 s%d, s%d, 1" % (sLine, sLine)); a("s_cmp_lt_u32 s%d, %d" % (sLine, NREP)); a("s_cbranch_scc1 %s_L" % label)
        a("s_waitcnt lgkmcnt(0)"); a("s_nop 15"); a("s_barrier")
        a("s_memtime s[74:75]")
        a("s_memrealtime s[78:79]")
        a("s_waitcnt lgkmcnt(0)")
        a("s_sub_u32 s74, s74, s72"); a("s_sub_u32 s78, s78, s76")
        a("v_mov_b32 v2, s74"); a("v_mov_b32 v3, s78"); a("v_mov_b32 v1, 0"); a("s_lshl_b32 s%d, s2, 3" % sT0); a("s_mov_b64 exec, 1")
        a("buffer_store_dwordx2 v[2:3], v1, s[%d:%d], s%d offen" % (sWS, sWS + 3, sT0))
        a("s_endpgm")
    return fn
V = ["epi,cs,bar", "cont,cs,bar", "pk,cs,bar", "epi", "cont", "pk", "none", "cs,bar"]
V3 = ["nolds", "nolds,pad16", "nolds,pad20", "nolds,pad24", "nolds,pad32", "nolds,pad48", "nolds,pad64", "nolds,nomf,pad16", "m16,nolds,pad24", "m16,nolds,pad32"]
V2 = ["nolds", "none", "halflds", "m16,nolds", "m16", "m16,halflds", "epi", "epi,cs,bar", "epi,m16", "nomf,epi"]
V1 = ["epi,cs,bar", "epi,cs,bar,d01", "epi,cs,bar,d04", "epi,cs,bar,d15", "epi,cs,bar,d23", "epi,cs,bar,d15,oob", "d15", "epi,cs,bar,w2", "epi,cs,bar,d15,w2", "epi,phi,cs,bar,d15,w2", "epi,cs,d15"]
V0 = ["none", "epi", "epi,phi", "indep", "epi,fixop", "epi,zero", "epi,cs", "epi,bar", "epi,cs,bar", "cs", "bar"]
gen.build([("m%d_kernel" % n, mk(v.split(",")), 256, 512, K1_LDS) for n, v in enumerate(V)], "mb.s")
t = open("mb.s").read().replace("[0@1@0]", "[0,1,0]").replace("[1@1@0]", "[1,1,0]").replace("[0@0@0]", "[0,0,0]").replace("[1@0@0]", "[1,0,0]"); open("mb.s", "w").write(t)
open("mb.txt", "w").write("\n".join(V))
```

```python
import os
from asmlib import *
from common import *

LOG2E = 1.4426950408889634
GC1 = -2.0 * 0.7978845608028654 * LOG2E
GC2 = GC1 * 0.044715

REG = 81920
CH = 20480
K1_LDS = 2 * REG

X0, M0, E0, FR, HOLD, PK, T0 = 96, 80, 64, 48, 40, 36, 28
SEL, CSA = 24, 20
NEGMU, RSTD, RL, K1c, K2c, IRSTD = 19, 18, 17, 16, 15, 14
ZSUM, ZSQ = 12, 13
vA = 8
vW1a, vW1b, vSt0, vSt1, vCsR, vCsW = 7, 6, 5, 4, 3, 2
vXA, vXd0, vXd1, vW0a, vW0b = 40, 44, 45, 46, 47
XS, XQ, XQ2 = 36, 28, 32
sX, sW0, sW1, sWS, sDBG = 4, 8, 12, 16, 20
sRb, sCg, sW, sR, sC = 24, 25, 26, 27, 28
sXoff, sW0off, sW1off, sUstep, sUoff = 29, 30, 31, 32, 33
sWu, sOut2, sZok, sL0 = 52, 3, 56, 57
sGl = 70
sFl = 65
vUa, vUb = 74, 75
sDelta, sWb, sT0, sXb, sReady = 34, 35, 36, 37, 38
sOnes, sA, sB, sCc, sOut, sLine, sIsZ2, sType, sOne = 39, 40, 41, 42, 43, 44, 45, 46, 47
sOut1, sL1, sZ2w, sT1, sT2, sOut0, sZ2keep, sLg = 64, 65, 66, 67, 68, 69, 70, 71

STAMP = os.environ.get("STAMP", "0") in ("1", "2")
STOP = "s_memrealtime" if os.environ.get("STAMP") == "2" else "s_memtime"
WS_STAMP = 0x1800000
EXP = os.environ.get("EXP", "").split(",")


LITE = "lite" in EXP
PHASE = [1]
MAP1 = {0: 0, 7: 1, 10: 2, 13: 3}
MAP2 = {1: 4, 2: 5, 3: 6, 4: 7, 6: 8, 8: 9, 10: 10, 11: 11, 12: 12, 14: 14}


def stamp(a, i):
    if ("pp%d_%d" % (PHASE[0], i)) in EXP:
        a("s_memrealtime s[72:73]")
    if STAMP and LITE:
        m = MAP1 if PHASE[0] == 1 else ({14: 14} if "steps" in EXP else MAP2)
        if i in m:
            a("%s s[%d:%d]" % (STOP, 72 + 2 * m[i], 73 + 2 * m[i]))
        return
    if STAMP:
        a("%s s[%d:%d]" % (STOP, 72 + 2 * i, 73 + 2 * i))


def stamp_dump(a, n, srdn, wreg, base):
    if any(e.startswith("pp") for e in EXP) and base != WS_STAMP and n == 15:
        lab = a.label("Lpp")
        a("s_waitcnt lgkmcnt(0)")
        a("s_cmp_lg_u32 s2, 37")
        a("s_cbranch_scc1 %s" % lab)
        a("s_cmp_lg_u32 s%d, 0" % wreg)
        a("s_cbranch_scc1 %s" % lab)
        a("v_mov_b32 v2, s72")
        a("s_mov_b32 s%d, 0x4000000" % (srdn + 2))
        a("s_mov_b32 s%d, 0x%x" % (sT0, WS_STAMP))
        a("buffer_store_dword v2, off, s[%d:%d], s%d sc1" % (srdn, srdn + 3, sT0))
        a(lab + ":")
    if not STAMP or (LITE and base == WS_STAMP):
        return
    if LITE:
        n = 15
    if "dbgt" in EXP:
        lab = a.label("Ldb")
        sel = [0, 2, 7, 8, 9, 10, 13] if base == WS_STAMP else [0, 2, 4, 8, 11, 12, 14]
        first = 1 if base == WS_STAMP else 8
        a("s_load_dwordx2 s[%d:%d], s[0:1], %d" % (srdn, srdn + 1, KA_DBG))
        a("s_waitcnt lgkmcnt(0)")
        a("s_and_b32 s%d, s%d, 0xffff" % (srdn + 1, srdn + 1))
        a("s_mov_b32 s%d, 256" % (srdn + 2))
        a("s_mov_b32 s%d, 0x20000" % (srdn + 3))
        a("s_cmp_lg_u32 s%d, 0" % wreg)
        a("s_cbranch_scc1 %s" % lab)
        a("s_mov_b64 exec, 1")
        if base != WS_STAMP:
            a("v_mov_b32 v2, s100")
            a("buffer_atomic_umax v2, off, s[%d:%d], 0 offset:60 sc1" % (srdn, srdn + 3))
        a("s_cmp_lg_u32 s2, 37")
        a("s_cbranch_scc1 %s" % lab)
        for k, i in enumerate(sel):
            a("v_mov_b32 v2, s%d" % (72 + 2 * i))
            a("buffer_store_dword v2, off, s[%d:%d], 0 offset:%d sc1" % (srdn, srdn + 3, 4 * (first + k)))
        a(lab + ":")
        a("s_mov_b64 exec, -1")
        return
    a("s_waitcnt lgkmcnt(0)")
    a("s_lshl_b32 s%d, s2, 3" % sT0)
    a("s_add_u32 s%d, s%d, s%d" % (sT0, sT0, wreg))
    a("s_lshl_b32 s%d, s%d, 6" % (sT0, sT0))
    a("s_add_u32 s%d, s%d, 0x%x" % (sT0, sT0, base))
    a("s_mov_b32 s%d, 0x4000000" % (srdn + 2))
    a("v_mov_b32 v1, 0")
    a("s_mov_b64 exec, 1")
    for i in range(n):
        a("v_mov_b32 v2, s%d" % (72 + 2 * i))
        a("buffer_store_dword v2, v1, s[%d:%d], s%d offen offset:%d" % (srdn, srdn + 3, sT0, 4 * i))
    a("s_mov_b64 exec, -1")


class LdsQ:
    def __init__(self, a, init=()):
        self.a = a
        self.q = list(init)

    def issue(self, text, tag):
        self.a(text)
        self.q.append(tag)

    def wait(self, *tags):
        idx = [i for i, t in enumerate(self.q) if t in tags]
        if not idx:
            return
        last = max(idx)
        n = len(self.q) - 1 - last
        assert n <= 15
        self.a("s_waitcnt lgkmcnt(%d)" % n)
        self.q = self.q[last + 1:]


def srd(a, d, plo, nbytes):
    a("s_mov_b32 s%d, s%d" % (d, plo))
    a("s_and_b32 s%d, s%d, 0xffff" % (d + 1, plo + 1))
    a("s_mov_b32 s%d, 0x%x" % (d + 2, nbytes))
    a("s_mov_b32 s%d, 0x20000" % (d + 3))


def csel(a, d, t, f):
    a("s_mov_b32 s%d, %s" % (d, f))
    a("s_cselect_b32 s%d, %s, s%d" % (d, t, d))


def spread(n_items, n_slots):
    base, rem = divmod(n_items, n_slots)
    return [base + (1 if i < rem else 0) for i in range(n_slots)]


def frag_reads(q, pos, j):
    d = FR + 4 * (j & 3)
    off = pos * 4096 + (j >> 2) * 2048
    q.issue("ds_read_b64_tr_b16 v[%d:%d], v%d offset:%d" % (d, d + 1, vA + (j & 3), off), "f%d" % j)
    q.issue("ds_read_b64_tr_b16 v[%d:%d], v%d offset:%d" % (d + 2, d + 3, vA + (j & 3), off + 512), "f%d" % j)


def skew(seqs, d):
    if "noskew" in EXP:
        d = 0
    items = sorted((i + d * n, n, op) for n, s in enumerate(seqs) for i, op in enumerate(s))
    return [op for _, _, op in items]


def gelu_ops(regs, outs):
    seqs = []
    for e, (t, p) in zip(regs, outs):
        seqs.append([
            "v_mul_f32 v%d, v%d, v%d" % (t, e, e),
            "v_fma_f32 v%d, v%d, v%d, v%d" % (p, t, K2c, K1c),
            "v_mul_f32 v%d, v%d, v%d" % (p, p, e),
            "v_exp_f32 v%d, v%d" % (p, p),
            "v_fma_f32 v%d, v%d, v%d, v%d" % (p, p, IRSTD, IRSTD),
            "v_rcp_f32 v%d, v%d" % (p, p),
            "v_mul_f32 v%d, v%d, v%d" % (t, e, p),
        ])
    return skew(seqs, float(os.environ.get('SKG', '2')))


def phi_ops(regs, outs):
    seqs = []
    for e, (t, p) in zip(regs, outs):
        seqs.append([
            "v_mul_f32 v%d, v%d, v%d" % (p, e, RL),
            "v_exp_f32 v%d, v%d clamp" % (p, p),
            "v_fma_f32 v%d, v%d, v%d, s%d" % (t, e, RSTD, sCc),
            "v_max_f32 v%d, s%d, v%d" % (t, sA, t),
            "v_fma_f32 v%d, v%d, s%d, v%d" % (t, p, sB, t),
        ])
    return skew(seqs, float(os.environ.get('SKP', '1')))


def epi_cont(typ, hold):
    d = float(os.environ.get("CD", "1.0"))
    items = []
    for e in range(16):
        p, x = T0 + (e & 7), E0 + e
        if typ == "G":
            ops = ["v_mul_f32 v%d, v%d, v%d" % (p, x, x),
                   "v_fma_f32 v%d, v%d, v%d, v%d" % (p, p, K2c, K1c),
                   "v_mul_f32 v%d, v%d, v%d" % (p, p, x),
                   "v_exp_f32 v%d, v%d" % (p, p),
                   "v_fma_f32 v%d, v%d, v%d, v%d" % (p, p, IRSTD, IRSTD),
                   "v_rcp_f32 v%d, v%d" % (p, p),
                   "v_mul_f32 v%d, v%d, v%d" % (x, x, p)]
        else:
            ops = ["v_mul_f32 v%d, v%d, v%d" % (p, x, RL),
                   "v_exp_f32 v%d, v%d clamp" % (p, p),
                   "v_fma_f32 v%d, v%d, v%d, s%d" % (x, x, RSTD, sCc),
                   "v_max_f32 v%d, s%d, v%d" % (x, sA, x),
                   "v_fma_f32 v%d, v%d, s%d, v%d" % (x, p, sB, x)]
        n = len(ops)
        assert 8 * d > n - 1
        for i, op in enumerate(ops):
            items.append((e * d + i, e, op))
        if e & 1:
            o = (HOLD + e // 2) if hold else PK + (e // 2) % 4
            t = e * d + n
            items.append((t, e, "v_cvt_pk_bf16_f32 v%d, v%d, v%d" % (o, x - 1, x)))
            if hold:
                items.append((t + 1, e, "v_dot2c_f32_bf16 v%d, s%d, v%d" % (ZSUM, sOnes, o)))
                items.append((t + 2, e, "v_dot2c_f32_bf16 v%d, v%d, v%d" % (ZSQ, o, o)))
        if (e & 7) == 7:
            items.append((e * d + n + (2.5 if hold else 0.5), e, ("out", e >> 3)))
    items.sort(key=lambda x: (x[0], x[1]))
    if "noepi" in EXP:
        return [x[2] for x in items if isinstance(x[2], tuple) or "cvt" in x[2]]
    return [x[2] for x in items]


def epi_quad(typ, qd, hold=False):
    regs = [E0 + 4 * qd + i for i in range(4)]
    outs = [(T0 + 2 * i, T0 + 2 * i + 1) for i in range(4)]
    ops = gelu_ops(regs, outs) if typ == "G" else phi_ops(regs, outs)
    o = HOLD + 2 * qd if hold else PK + 2 * (qd & 1)
    ops.append("v_cvt_pk_bf16_f32 v%d, v%d, v%d" % (o, outs[0][0], outs[1][0]))
    ops.append("v_cvt_pk_bf16_f32 v%d, v%d, v%d" % (o + 1, outs[2][0], outs[3][0]))
    return ops


RARE = []


def rare(a, cond_branch, fn):
    lr, lb = a.label("Lrare"), a.label("Lback")
    a("%s %s" % (cond_branch, lr))
    RARE.append((lr, lb, fn))
    return lb


def flush_rare(a):
    for lr, lb, fn in RARE:
        a(lr + ":")
        fn(lb)
        a("s_branch %s" % lb)
    del RARE[:]


def epi_out(a, typ, half, z2=False):
    vst = vSt0 if half == 0 else vSt1
    src = HOLD + 4 * half if z2 else PK
    if "nost" in EXP:
        a("s_mov_b32 s%d, 0x40000000" % sOut)
    a("buffer_store_dwordx4 v[%d:%d], v%d, s[%d:%d], s%d offen sc1" % (src, src + 3, vst, sWS, sWS + 3, sOut))
    if not z2:
        return
    if half == 1:
        a("s_lshl_b32 s%d, s%d, 9" % (sT0, sW))
        a("s_add_u32 s%d, s%d, %d" % (sT0, sT0, REG + CH + 2 * 4096))
        a("v_lshlrev_b32 v%d, 3, v0" % (T0 + 2))
        a("v_add_u32 v%d, s%d, v%d" % (T0 + 2, sT0, T0 + 2))
        a("v_mul_f32 v%d, s%d, v%d" % (ZSUM, sIsZ2, ZSUM))
        a("v_mul_f32 v%d, s%d, v%d" % (ZSQ, sIsZ2, ZSQ))
        a("v_mov_b32 v%d, v%d" % (T0, ZSUM))
        a("v_mov_b32 v%d, v%d" % (T0 + 1, ZSQ))
        a("v_permlane32_swap_b32 v%d, v%d" % (ZSUM, T0))
        a("v_permlane32_swap_b32 v%d, v%d" % (ZSQ, T0 + 1))
        a("v_add_f32 v%d, v%d, v%d" % (ZSUM, ZSUM, T0))
        a("v_add_f32 v%d, v%d, v%d" % (ZSQ, ZSQ, T0 + 1))


def dma_unit(pos):
    return [
        "s_add_u32 m0, s%d, %d" % (sWb, pos * 4096),
        "buffer_load_dwordx4 v%d, s[%d:%d], s%d offen lds" % (vW1a, sW1, sW1 + 3, sW1off),
        "buffer_load_dwordx4 v%d, s[%d:%d], s%d offen offset:1024 lds" % (vW1b, sW1, sW1 + 3, sW1off),
        "s_add_u32 s%d, s%d, %d" % (sW1off, sW1off, (128 - 4 * 128 * 3840) & 0xffffffff if pos == 4 else 128 * 3840),
    ]


def dma_u(pos):
    return [
        "s_add_u32 m0, s%d, %d" % (sWb, pos * 4096),
        "buffer_load_dwordx4 v%d, s[%d:%d], s%d offen lds" % (vUa, sWu, sWu + 3, sUoff),
        "buffer_load_dwordx4 v%d, s[%d:%d], s%d offen offset:1024 lds" % (vUb, sWu, sWu + 3, sUoff),
        "s_add_u32 s%d, s%d, s%d" % (sUoff, sUoff, sUstep),
    ]


def dma_x(hp):
    return [
        "s_add_u32 m0, s%d, %d" % (sXb, (hp % 5) * 4096),
        "buffer_load_dwordx4 v%d, s[%d:%d], s%d offen lds" % (vXd0, sX, sX + 3, sXoff),
        "buffer_load_dwordx4 v%d, s[%d:%d], s%d offen offset:1024 lds" % (vXd1, sX, sX + 3, sXoff),
        "s_add_u32 s%d, s%d, 128" % (sXoff, sXoff),
    ]


def dma_b0(i):
    return [
        "s_add_u32 m0, s%d, %d" % (sWb, i * 4096 - REG),
        "buffer_load_dwordx4 v%d, s[%d:%d], s%d offen lds" % (vW0a, sW0, sW0 + 3, sW0off),
        "buffer_load_dwordx4 v%d, s[%d:%d], s%d offen offset:1024 lds" % (vW0b, sW0, sW0 + 3, sW0off),
        "s_add_u32 s%d, s%d, %d" % (sW0off, sW0off, 128 * 3456),
    ]


def mfma(a, i, j):
    x = X0 + 32 * i + 4 * j
    f = FR + 4 * (j & 3)
    d = E0 if (i == 4 and j == 7) else M0
    c = "0" if (i == 0 and j == 0) else "v[%d:%d]" % (M0, M0 + 15)
    a("v_mfma_f32_32x32x16_bf16 v[%d:%d], v[%d:%d], v[%d:%d], %s" % (d, d + 15, f, f + 3, x, x + 3, c))


def cs_mfma(a, i, j):
    if "nocs" in EXP:
        return
    f = FR + 4 * (j & 3)
    c = "0" if (i == 0 and j == 0) else "v[%d:%d]" % (CSA, CSA + 3)
    a("v_mfma_f32_16x16x32_bf16 v[%d:%d], v[%d:%d], v[%d:%d], %s" % (CSA, CSA + 3, SEL, SEL + 3, f, f + 3, c))


def ext_mfma(a, q):
    q.wait("csr")
    a("v_add_f32 v%d, v%d, v%d" % (PK, PK, PK + 1))
    a("v_add_f32 v%d, v%d, v%d" % (PK + 2, PK + 2, PK + 3))
    a("v_add_f32 v%d, v%d, v%d" % (PK, PK, PK + 2))
    a("v_add_u32 v%d, s%d, v%d" % (vCsR, sDelta, vCsR))
    a("v_mfma_f32_32x32x2_f32 v[%d:%d], v%d, v%d, v[%d:%d]" % (E0, E0 + 15, PK, NEGMU, E0, E0 + 15))


ST = X0
ZN = X0 + 16
ZT = X0 + 24
XE = X0 + 48
vPf = 1
OWN = int(os.environ.get("OWN", "16"))
SIDE_END = int(os.environ.get("SIDE_END", "32"))
TPOS = [tuple(int(c) for c in t.split(".")) for t in os.environ.get("TPOS", "1.2,2.0").split(",") if t]
PULL = [tuple(int(c) for c in t.split(".")) for t in os.environ.get("PULL", "").split(",") if t]
TLN = OWN // max(len(TPOS), 1)
TAT = int(os.environ.get("TAT", "2"))
W1AT = int(os.environ.get("W1AT", "8"))
N15 = int(os.environ.get("N15", "4"))
N14 = int(os.environ.get("N14", "0"))
PFREST = 65536 - 128 * 64 * (N15 + N14)
PFL = -(-PFREST // (1792 * 2))
LRDY = 2 * 4096 + 3584


def zok_check(a, tmp):
    l0, l1 = a.label("Lz0"), a.label("Lz1")
    a(l0 + ":")
    a("s_cmp_eq_u32 s%d, 16" % sZok)
    a("s_cbranch_scc1 %s" % l1)
    a("buffer_load_dword v%d, off, s[%d:%d], 0 sc1" % (tmp, sDBG, sDBG + 3))
    a("s_waitcnt vmcnt(0)")
    a("v_readfirstlane_b32 s%d, v%d" % (sZok, tmp))
    a("s_branch %s" % l0)
    a(l1 + ":")


def stat_lane(v):
    return ["v_and_b32 v%d, 31, v0" % v,
            "v_lshlrev_b32 v%d, 3, v%d" % (v, v),
            "v_lshrrev_b32 v%d, 5, v0" % (v + 1),
            "v_mul_u32_u24 v%d, %d, v%d" % (v + 1, 7 * 256, v + 1),
            "v_add_u32 v%d, v%d, v%d" % (v, v, v + 1)]


def valid_ops(t):
    L = ["v_and_b32 v%d, v%d, v%d" % (t, ST + 1, ST + 3),
         "v_and_b32 v%d, v%d, v%d" % (t + 1, ST + 5, ST + 7),
         "v_and_b32 v%d, v%d, v%d" % (t + 2, ST + 9, ST + 11),
         "v_and_b32 v%d, v%d, v%d" % (t, t, ST + 13),
         "v_and_b32 v%d, v%d, v%d" % (t + 1, t + 1, t + 2),
         "v_and_b32 v%d, v%d, v%d" % (t, t, t + 1),
         "v_cmp_gt_i32 vcc, 0, v%d" % t,
         "s_cmp_eq_u64 vcc, -1"]
    return L


def sum_ops():
    L = []
    for (d, s_) in ((0, 4), (1, 5), (2, 6), (0, 3), (1, 2), (0, 1)):
        L.append("v_add_f32 v%d, v%d, v%d" % (ST + 2 * d, ST + 2 * d, ST + 2 * s_))
        L.append("v_add_f32 v%d, v%d, v%d" % (ST + 2 * d + 1, ST + 2 * d + 1, ST + 2 * s_ + 1))
    return L


def norm_ops():
    L = ["v_mov_b32 v%d, v%d" % (ST + 2, ST),
         "v_mov_b32 v%d, v%d" % (ST + 3, ST + 1),
         "v_lshlrev_b32 v%d, 16, v%d" % (ZT, HOLD),
         "v_and_b32 v%d, 0xffff0000, v%d" % (ZT + 1, HOLD),
         "v_permlane32_swap_b32 v%d, v%d" % (ST, ST + 2),
         "v_permlane32_swap_b32 v%d, v%d" % (ST + 1, ST + 3),
         "v_add_f32 v%d, v%d, v%d" % (ST, ST, ST + 2),
         "v_add_f32 v%d, v%d, v%d" % (ST + 1, ST + 1, ST + 3),
         "v_mul_f32 v%d, %s, v%d" % (ST, fhex(-1.0 / FH), ST),
         "v_mul_f32 v%d, %s, v%d" % (ST + 1, fhex(-1.0 / FH), ST + 1),
         "v_fma_f32 v%d, -v%d, v%d, v%d" % (ST + 1, ST, ST, ST + 1),
         "v_max_f32 v%d, 0, v%d" % (ST + 1, ST + 1),
         "v_add_f32 v%d, %s, v%d" % (ST + 1, fhex(1e-5), ST + 1),
         "v_rsq_f32 v%d, v%d" % (ST + 1, ST + 1),
         "v_lshlrev_b32 v%d, 16, v%d" % (ZT + 2, HOLD + 1),
         "v_and_b32 v%d, 0xffff0000, v%d" % (ZT + 3, HOLD + 1)]
    for t in range(8):
        z = ZT + 2 * (t & 3)
        L.append("v_add_f32 v%d, v%d, v%d" % (z, z, ST))
        L.append("v_add_f32 v%d, v%d, v%d" % (z + 1, z + 1, ST))
        if t + 2 < 8:
            z2 = ZT + 2 * ((t + 2) & 3)
            L.append("v_lshlrev_b32 v%d, 16, v%d" % (z2, HOLD + t + 2))
            L.append("v_and_b32 v%d, 0xffff0000, v%d" % (z2 + 1, HOLD + t + 2))
        L.append("v_mul_f32 v%d, v%d, v%d" % (z, z, ST + 1))
        L.append("v_mul_f32 v%d, v%d, v%d" % (z + 1, z + 1, ST + 1))
        L.append("v_cvt_pk_bf16_f32 v%d, v%d, v%d" % (ZN + t, z, z + 1))
    return L


def zn_stores(a, soff):
    a("buffer_store_dwordx4 v[%d:%d], v%d, s[%d:%d], s%d offen sc1" % (ZN, ZN + 3, vSt0, sWS, sWS + 3, soff))
    a("buffer_store_dwordx4 v[%d:%d], v%d, s[%d:%d], s%d offen sc1" % (ZN + 4, ZN + 7, vSt1, sWS, sWS + 3, soff))


def cz_signal(a):
    a("v_mov_b32 v%d, 1" % ZSUM)
    a("v_lshlrev_b32 v%d, 7, v0" % ZSQ)
    a("s_mov_b64 exec, 0xff")
    a("buffer_atomic_add v%d, v%d, s[%d:%d], s%d offen sc1" % (ZSUM, ZSQ, sWS, sWS + 3, sT2))
    a("s_mov_b64 exec, -1")


INQ2 = ["f0", "f0", "csw", "f1", "f1", "f2", "f2"]


def next_line_ops():
    return [
        "s_mov_b32 s%d, s%d" % (sOut, sOut1),
        "s_mov_b32 s%d, s%d" % (sOut1, sOut2),
        "s_add_u32 s%d, s%d, 4096" % (sOut2, sOut2),
        "s_cmp_ge_u32 s%d, 20\ns_mov_b32 s%d, %s\ns_cselect_b32 s%d, 0xff800000, s%d\ns_cselect_b32 s%d, 0, 1.0\ns_cselect_b32 s%d, 0, %s" % (
            sLg, sA, fhex(1e-6), sA, sA, sB, sCc, fhex(1e-6)),
        "s_add_u32 s%d, s%d, 1" % (sLg, sLg),
    ]


PRE1 = []
PRE_AT = {(0, 1): 0, (0, 4): 2, (0, 7): 4, (2, 0): 1, (2, 2): 3, (2, 4): 5, (2, 6): 6, (3, 0): 7, (3, 2): 8, (3, 4): 9}
if "prelate" in EXP:
    PRE_AT = {(2, 0): 0, (2, 2): 1, (2, 4): 2, (2, 6): 3, (3, 0): 4, (3, 2): 5, (3, 4): 6, (3, 6): 7, (4, 0): 8, (4, 2): 9}
MARK = {}


def vm_since(a, idx, pre=0):
    return pre + sum(1 for t in a.ins[idx:] if t.kind in ("vmem", "vmem_lds"))


def body(a, typ, line, start=None):
    last = line == 3
    q = LdsQ(a, INQ2)
    allp = []
    if "nocont" not in EXP:
        allp = epi_cont(typ, line == 1)
    for qd in range(0 if "nocont" in EXP else 4, 4):
        allp += epi_quad(typ, qd, hold=(line == 1))
        if line == 1:
            for t in (HOLD + 2 * qd, HOLD + 2 * qd + 1):
                allp.append("v_dot2c_f32_bf16 v%d, s%d, v%d" % (ZSUM, sOnes, t))
                allp.append("v_dot2c_f32_bf16 v%d, v%d, v%d" % (ZSQ, t, t))
        if qd & 1:
            allp.append(("out", qd >> 1))
    if not last:
        if line == 1:
            ecnt = spread(len(PRE1), 6) + [0] + spread(len(allp), 24) + [0] * 9
            allp = PRE1 + allp
        else:
            ecnt = [0] * 6 + spread(len(allp), 33) + [0]
        lfill, p0 = [], 0
        for i in range(5):
            n = sum(ecnt[8 * i:8 * i + 8])
            lfill.append(allp[p0:p0 + n])
            p0 += n
    if last:
        n3 = spread(len(allp), 3)
        lfill = [[], norm_ops(), allp[:n3[0]], allp[n3[0]:n3[0] + n3[1]], allp[n3[0] + n3[1]:]]
    for i in range(5):
        q.wait("csw")
        if not last:
            u = 5 * line + i + 1
            if start is not None and MARK[u] <= start[0]:
                n = sum(1 for t in a.ins[MARK[u]:start[0]] if t.kind in ("vmem", "vmem_lds")) + vm_since(a, start[1])
            else:
                n = vm_since(a, MARK[u])
            a("s_waitcnt vmcnt(%d)" % (10 if "vm10" in EXP else n))
        elif i in (0, 4):
            a("s_waitcnt vmcnt(%d)" % (1 if i == 0 else vm_since(a, MARK["zn"])))
        a("s_barrier")
        SM = {(1, 1): 4, (1, 3): 5, (2, 0): 6, (2, 2): 7, (2, 3): 8, (2, 4): 9, (3, 0): 10, (3, 1): 11, (3, 3): 12, (3, 4): 13}
        if "steps" in EXP and (line, i) in SM:
            a("%s s[%d:%d]" % (STOP, 72 + 2 * SM[(line, i)], 73 + 2 * SM[(line, i)]))
        if ("st2" in EXP and line == 2) or ("st1" in EXP and line == 1):
            stamp(a, 2 + i)
        if "st3" in EXP and last:
            stamp(a, 2 + i)
        du = dma_unit((i + 2) % 5)
        lump = None
        hasdma = line == 1 or (line == 2 and i < 3)
        fill = lfill[i]
        if last:
            nslots = 7 if i == 4 else 8
            cnt = spread(len(fill), nslots) + [0] * (8 - nslots)
        else:
            cnt = ecnt[8 * i:8 * i + 8]
        pos = 0
        for j in range(8):
            q.wait("f%d" % j)
            mfma(a, i, j)
            if i == 0 and j == 0:
                q.issue("ds_read_b128 v[%d:%d], v%d" % (PK, PK + 3, vCsR), "csr")
            if last and i == 2 and j in (1, 2):
                d, off = XE + 4 * (j - 1), 4 * 4096 + (j - 1) * 2048
                q.issue("ds_read_b64_tr_b16 v[%d:%d], v%d offset:%d" % (d, d + 1, vA, off), "xe")
                q.issue("ds_read_b64_tr_b16 v[%d:%d], v%d offset:%d" % (d + 2, d + 3, vA, off + 512), "xe")
            if last and i == 4 and j == 0:
                q.issue("ds_read_b128 v[%d:%d], v%d" % (XE + 8, XE + 11, vCsR), "csr")
            if i == (3 if last else 4) and j == 6:
                q.issue("ds_write_b32 v%d, v%d" % (vCsW, CSA), "csw")
                if line == 1:
                    a("v_subrev_u32 v%d, %d, v%d" % (vCsW, REG, vCsW))
                if line == 2:
                    a("v_add_u32 v%d, %d, v%d" % (vCsW, REG + 3 * CH - 4096, vCsW))
            if last and i == 4 and j == 2:
                import p2
                p2.p2_loads(a)
            jn = j + 3
            if jn < 8:
                frag_reads(q, i, jn)
            elif not (last and i == 4):
                frag_reads(q, (i + 1) % 5, jn - 8)
            if i == 4 and 1 <= j <= 4 and not last:
                t = (j + 3) & 3
                a("v_add_u32 v%d, s%d, v%d" % (vA + t, sDelta, vA + t))
            if i == 0 and j == (3 if line == 1 else 2):
                ext_mfma(a, q)
                if last:
                    a("v_add_u32 v%d, %d, v%d" % (vCsR, 3 * CH - 4096, vCsR))
                a("s_sub_u32 s%d, 0, s%d" % (sDelta, sDelta))
            if last and i == 0:
                if j == 0:
                    for t in stat_lane(T0):
                        a(t)
                    a("s_mul_i32 s%d, s%d, %d" % (sT0, sR, CH))
                    a("s_add_u32 s%d, s%d, 8192" % (sT0, sT0))
                    a("v_add_u32 v%d, s%d, v%d" % (T0, sT0, T0))
                if j <= 3:
                    for t in (2 * j, 2 * j + 1):
                        if t < 7:
                            q.issue("ds_read_b64 v[%d:%d], v%d offset:%d" % (ST + 2 * t, ST + 2 * t + 1, T0, 256 * t), "st")
                if j == 5:
                    q.wait("st")
                    for t in valid_ops(T0 + 2):
                        a(t)
                    a("s_cselect_b32 s%d, 1, 0" % sT0)
                    a("v_mov_b32 v%d, s%d" % (T0 + 2, sT0))
                    a("v_mov_b32 v%d, %d" % (T0 + 3, LRDY))
                    a("s_mov_b64 exec, 1")
                    q.issue("ds_add_u32 v%d, v%d" % (T0 + 3, T0 + 2), "csw")
                    a("s_mov_b64 exec, -1")
                if j >= 6:
                    for t in sum_ops()[6 * (j - 6):6 * (j - 5)]:
                        a(t)
            if last and i == 1:
                if j == 0:
                    q.issue("ds_read_b32 v%d, v%d" % (T0 + 2, T0 + 3), "rdy")
                if j == 4:
                    q.wait("rdy")
                    a("v_readfirstlane_b32 s%d, v%d" % (sT1, T0 + 2))
                    a("s_cmp_eq_u32 s%d, %d" % (sT1, 9 if "fslow" in EXP else 8))
                    a("s_cselect_b32 s%d, 1, 0" % sReady)
                    a("s_cselect_b32 s%d, s%d, 0x40000000" % (sT0, sOut0))
                    a("s_cselect_b32 s%d, s%d, 99" % (sL1, sL1))
            if not last:
                if j == 0 and i == 3 and line == 2:
                    a("s_mov_b32 m0, s%d" % sGl)
                    a("v_lshlrev_b32 v%d, 4, v0" % ZSUM)
                    a("s_and_b32 s%d, s%d, 0xfffff000" % (sT0, sZ2w))
                    a("s_lshl_b32 s%d, s%d, 11" % (sT1, sC))
                    a("s_add_u32 s%d, s%d, s%d" % (sT0, sT0, sT1))
                    a("buffer_load_dwordx4 v%d, s[%d:%d], s%d offen sc1 lds" % (ZSUM, sWS, sWS + 3, sT0))
                if j == 4 and i == 3 and line == 2:
                    a("buffer_load_dwordx4 v%d, s[%d:%d], s%d offen offset:1024 sc1 lds" % (ZSUM, sWS, sWS + 3, sT0))
                if j == 0 and hasdma:
                    a(du[0])
            for t in fill[pos:pos + cnt[j]]:
                if isinstance(t, tuple):
                    epi_out(a, typ, t[1], z2=(line == 1))
                    if line == 1 and t[1] == 1:
                        q.issue("ds_write_b64 v%d, v[%d:%d]" % (T0 + 2, ZSUM, ZSQ), "csw")
                else:
                    a(t)
            pos += cnt[j]
            if last and i == 1 and j == 7:
                zn_stores(a, sT0)
            if line == 2 and i == 4 and j < 4:
                import p2
                for t in p2.pre_setup(vW1b)[4 * j:4 * j + 4]:
                    a(t)
            import p2
            if last and PRE_AT.get((i, j), 99) < p2.NPRE:
                a(p2.pre_dma(PRE_AT[(i, j)], vW1b, sX))
            if last and i == 1 and j == 7:
                MARK["zn"] = len(a.ins)
            if last and j == 7 and (line, i) in TPOS:
                a("buffer_load_dword v%d, v%d, s[%d:%d], s%d offen" % (X0 + 40, vPf, sX, sX + 3, sXoff))
            if PULL and line == 2 and i == 0 and j == 2:
                a("s_andn2_b32 s%d, s%d, 0x3ffff" % (sXoff, sXoff))
                a("s_bfe_u32 s%d, s2, 0x20003" % sT0)
                a("s_lshl_b32 s%d, s%d, 3" % (sT0, sT0))
                a("s_add_u32 s%d, s%d, s%d" % (sT0, sT0, sW))
                a("s_lshl_b32 s%d, s%d, 13" % (sT0, sT0))
                a("s_add_u32 s%d, s%d, s%d" % (sXoff, sXoff, sT0))
                a("v_and_b32 v%d, 8, v0" % ZSQ)
                a("v_lshlrev_b32 v%d, 9, v%d" % (ZSQ, ZSQ))
                a("v_and_b32 v%d, 7, v0" % vPf)
                a("v_lshl_add_u32 v%d, v%d, 7, v%d" % (vPf, vPf, ZSQ))
            if last and j == 5 and (line, i) in PULL:
                a("s_add_u32 s%d, s%d, 1024" % (sXoff, sXoff))
                a("buffer_load_dword v%d, v%d, s[%d:%d], s%d offen" % (X0 + 41, vPf, sX, sX + 3, sXoff))
            if hasdma:
                if j == 0 and (line, i) in PULL:
                    a("s_add_u32 s%d, s%d, 1024" % (sXoff, sXoff))
                    a("buffer_load_dword v%d, s[%d:%d], s%d offen lds" % (vPf, sX, sX + 3, sXoff))
                if j == 0:
                    if (line, i) in TPOS:
                        a("buffer_load_dword v%d, s[%d:%d], s%d offen lds" % (vPf, sX, sX + 3, sXoff))
                        a("s_add_u32 s%d, s%d, %d" % (sXoff, sXoff, TLN * 128))
                    a(du[1])
                if j == 4:
                    a(du[2])
                    MARK[5 * line + i + 7] = len(a.ins)
                    a(du[3])
                    if i == 2:
                        a("s_sub_u32 s%d, s%d, s%d" % (sWb, sWb, sDelta))
            if lump and j == 6:
                lump()
            if (j & 3) == 0 and not (last and i == 4):
                cs_mfma(a, i, j)
            if last and (i, j) in ((2, 6), (3, 2)):
                q.wait("xe")
                f = XE + (0 if i == 2 else 4)
                a("v_mfma_f32_16x16x32_bf16 v[%d:%d], v[%d:%d], v[%d:%d], v[%d:%d]" % (CSA, CSA + 3, SEL, SEL + 3, f, f + 3, CSA, CSA + 3))
            if last and i == 4 and j == 3:
                c = XE + 8
                q.wait("csr")
                a("v_add_f32 v%d, v%d, v%d" % (c, c, c + 1))
                a("v_add_f32 v%d, v%d, v%d" % (c + 2, c + 2, c + 3))
                a("v_add_f32 v%d, v%d, v%d" % (c, c, c + 2))
                a("v_mfma_f32_32x32x2_f32 v[%d:%d], v%d, v%d, v[%d:%d]" % (M0, M0 + 15, c, NEGMU, M0, M0 + 15))
            if line == 1 and i == 4:
                if j == 0:
                    a("v_xor_b32 v%d, 0x800, v%d" % (T0 + 2, T0 + 2))
                    q.issue("ds_read_b64 v[%d:%d], v%d" % (T0 + 4, T0 + 5, T0 + 2), "zp")
                    a("v_lshlrev_b32 v%d, 3, v0" % T0)
                if j == 2:
                    a("s_waitcnt lgkmcnt(0)")
                    q.q = []
                    a("s_cmp_lg_u32 s%d, 16" % sZok)
                    a(rare(a, "s_cbranch_scc1", lambda lb: zok_check(a, T0 + 6)) + ":")
                    a("v_add_f32 v%d, v%d, v%d" % (ZSUM, ZSUM, T0 + 4))
                    a("v_add_f32 v%d, v%d, v%d" % (ZSQ, ZSQ, T0 + 5))
                    a("v_or_b32 v%d, 0x80000000, v%d" % (ZSQ, ZSQ))
                    a("s_mov_b32 exec_hi, 0")
                    a("buffer_store_dwordx2 v[%d:%d], v%d, s[%d:%d], s%d offen sc1" % (ZSUM, ZSQ, T0, sWS, sWS + 3, sL0))
                    a("s_mov_b64 exec, -1")
            if j == 0 and i == 4 and last:
                a("s_cmp_eq_u32 s%d, 0" % sReady)
                a(rare(a, "s_cbranch_scc1", lambda lb: z2_fetch(a)) + ":")
            if j == 1 and i == 4 and last:
                lsk = a.label("Lns")
                a("s_cmp_lg_u32 s%d, 2" % sL1)
                a("s_cbranch_scc1 %s" % lsk)
                cz_signal(a)
                a(lsk + ":")
            if i == 4 and j == 7:
                for t in next_line_ops():
                    a(t)
        assert pos == len(fill)
    assert q.q == ([] if last else INQ2), q.q
    if STAMP and not LITE:
        a("s_mov_b32 s88, s90")
        a("s_mov_b32 s90, s92")
    stamp(a, 10)


def z2_fetch(a):
    for t in stat_lane(ZT + 8):
        a(t)
    a("s_and_b32 s%d, s%d, 0xfffff000" % (sT0, sZ2w))
    for t in range(7):
        a("buffer_load_dwordx2 v[%d:%d], v%d, s[%d:%d], s%d offen offset:%d sc1" % (
            ST + 2 * t, ST + 2 * t + 1, ZT + 8, sWS, sWS + 3, sT0, 256 * t))


def z2_slow(a, lb):
    lp, lo = a.label("Lpoll"), a.label("Lok")
    a("s_waitcnt vmcnt(1)")
    a(lp + ":")
    for t in valid_ops(ZT):
        a(t)
    a("s_cbranch_scc1 %s" % lo)
    z2_fetch(a)
    a("s_waitcnt vmcnt(0)")
    a("s_branch %s" % lp)
    a(lo + ":")
    for t in sum_ops() + norm_ops():
        a(t)
    zn_stores(a, sOut0)


def tail_regs(a):
    a("s_add_u32 s71, s%d, 1024" % sT2)
    a("s_mov_b32 s70, %s" % ("0" if "fzok" in EXP else "s%d" % sZok))
    a("s_mov_b32 s69, s%d" % sReady)


def tail_one(a):
    q = LdsQ(a)
    a("s_waitcnt lgkmcnt(0)")
    a("s_barrier")
    q.issue("ds_read_b128 v[%d:%d], v%d" % (PK, PK + 3, vCsR), "csr")
    ext_mfma(a, q)
    tail_regs(a)
    a("s_nop 3")


def own_row(a, d):
    a("s_bfe_u32 s%d, s2, 0x20001" % d)
    a("s_lshl_b32 s%d, s%d, 3" % (d, d))
    a("s_lshr_b32 s%d, s2, 5" % sT0)
    a("s_add_u32 s%d, s%d, s%d" % (d, d, sT0))
    a("s_lshl_b32 s%d, s%d, 1" % (d, d))
    a("s_and_b32 s%d, s2, 1" % sT0)
    a("s_add_u32 s%d, s%d, s%d" % (d, d, sT0))
    a("s_lshl_b32 s%d, s%d, 2" % (d, d))
    a("s_bfe_u32 s%d, s2, 0x20003" % sT0)
    a("s_add_u32 s%d, s%d, s%d" % (d, d, sT0))
    a("s_lshl_b32 s%d, s%d, 3" % (d, d))
    a("s_add_u32 s%d, s%d, s%d" % (d, d, sW))
    a("s_lshl_b32 s%d, s%d, 12" % (d, d))


def pf_own(a):
    if OWN == 0:
        return
    srd(a, sDBG, 58, S * S * 2)
    own_row(a, sXoff)
    a("v_min_u32 v99, %d, v0" % (OWN - 1))
    a("v_lshlrev_b32 v99, 7, v99")
    a("buffer_load_dword v98, v99, s[%d:%d], s%d offen" % (sDBG, sDBG + 3, sXoff))


def pf_wsp(a):
    srd(a, sDBG, 58, S * S * 2)
    a("s_lshl_b32 s%d, s%d, 3" % (sT0, sRb))
    a("s_add_u32 s%d, s%d, s%d" % (sT0, sT0, sW))
    a("s_lshl_b32 s%d, s%d, 16" % (sT0, sT0))
    a("s_add_u32 s%d, s%d, 32768" % (sT2, sT0))
    a("v_and_b32 v97, 7, v0")
    a("v_lshlrev_b32 v97, 7, v97")
    a("v_lshrrev_b32 v96, 3, v0")
    a("v_lshl_add_u32 v97, v96, 12, v97")
    n = 0
    for g in range(OWN, SIDE_END, 8):
        for so in (sT0, sT2):
            a("buffer_load_dword v%d, v97, s[%d:%d], s%d offen offset:%d" % (100 + n, sDBG, sDBG + 3, so, g * 128))
            n += 1


def retile(a):
    a("s_lshl_b32 s%d, s%d, 1" % (sRb, sRb))
    a("s_and_b32 s%d, s%d, 1" % (sT0, sCg))
    a("s_add_u32 s%d, s%d, s%d" % (sRb, sRb, sT0))
    a("s_waitcnt lgkmcnt(0)")
    srd(a, sW0, 46, FH * D * 2)
    a("s_mov_b32 s%d, -20" % sT1)
    a("s_cmp_lt_u32 s%d, 20" % sRb)
    a("s_cselect_b32 s%d, s44, s46" % sW1)
    a("s_cselect_b32 s%d, s45, s47" % (sW1 + 1))
    csel(a, sW1 + 2, hex(D * D * 2), hex(FH * D * 2))
    a("s_cselect_b32 s%d, 0, s%d" % (sT1, sT1))
    a("s_and_b32 s%d, s%d, 0xffff" % (sW1 + 1, sW1 + 1))
    a("s_mov_b32 s%d, 0x20000" % (sW1 + 3))
    a("s_mul_i32 s%d, s%d, 160" % (sT0, sW))
    for t in range(5):
        a("v_add_u32 v120, %d, v0" % (64 * t))
        a("v_mul_u32_u24 v121, 205, v120")
        a("v_lshrrev_b32 v121, 11, v121")
        a("v_mul_u32_u24 v121, %d, v121" % (1280 - 160))
        a("v_lshl_add_u32 v121, v120, 4, v121")
        a("v_add_u32 v%d, s%d, v121" % (124 + t, sT0))
    a("s_add_u32 s%d, s%d, s%d" % (sT1, sRb, sT1))
    a("s_mul_i32 s%d, s%d, %d" % (sW1off, sT1, 32 * 1280))
    a("s_add_u32 s%d, s%d, 12" % (sT1, sRb))
    a("s_mul_i32 s%d, s%d, %d" % (sW0off, sT1, 32 * 1280))
    for n, (sd, so) in enumerate(((sW1, sW1off), (sW0, sW0off))):
        for t in range(5):
            d = 132 + 20 * n + 4 * t
            a("buffer_load_dwordx4 v[%d:%d], v%d, s[%d:%d], s%d offen" % (d, d + 3, 124 + t, sd, sd + 3, so))
    a("v_lshlrev_b32 v122, 4, v0")
    a("s_mul_i32 s%d, s%d, 40" % (sT0, sRb))
    a("s_mul_i32 s%d, s%d, 5" % (sT1, sW))
    a("s_add_u32 s%d, s%d, s%d" % (sT0, sT0, sT1))
    a("s_lshl_b32 s%d, s%d, 10" % (sT0, sT0))
    a("s_add_u32 s%d, s%d, 0x%x" % (sT2, sT0, WS_B3))
    for n in range(2):
        if n == 1:
            a("s_cmp_ge_u32 s%d, 15" % sRb)
            a("s_cbranch_scc1 K1_rtd")
        a("s_waitcnt vmcnt(5)")
        for t in range(5):
            d = 132 + 20 * n + 4 * t
            a("s_add_u32 s%d, s%d, %d" % (sT1, sT2, (n * 32 * 40 + t) * 1024))
            a("buffer_store_dwordx4 v[%d:%d], v122, s[%d:%d], s%d offen sc1" % (d, d + 3, sWS, sWS + 3, sT1))
    a("K1_rtd:")


def tail(a, typ):
    import p2
    if typ == "P":
        p2.p2_early(a)
    else:
        a("s_nop 10")
    if "nocont" not in EXP:
        for t in epi_cont(typ, False):
            if isinstance(t, tuple):
                if t[1] == 0 and typ == "P":
                    p2.p2_poll(a)
                epi_out(a, typ, t[1])
            else:
                a(t)
    for qd in range(0 if "nocont" in EXP else 4, 4):
        for t in epi_quad(typ, qd):
            a(t)
        if qd == (1 if p2.NPST == 2 else 3) and typ == "P" and p2.NPST:
            p2.p2_poll(a)
        if qd & 1:
            epi_out(a, typ, qd >> 1)
    if typ == "G":
        a("s_branch P2_late")
        return
    if p2.NPST == 0:
        p2.p2_poll(a)
    stamp(a, 13)
    stamp(a, 14)
    stamp_dump(a, 15, sWS, sW, WS_STAMP)


def gen_k1(a, label):
    a(".p2align 8")
    a(label + ":")
    end = "K1_end"
    a("s_cmp_ge_u32 s2, 256")
    a("s_cbranch_scc1 %s" % end)
    stamp(a, 0)
    if "probe" in EXP:
        a("s_memrealtime s[72:73]")
    a("s_load_dwordx4 s[48:51], s[0:1], %d" % KA_X)
    a("s_load_dwordx2 s[54:55], s[0:1], %d" % KA_WIN)
    a("s_load_dwordx2 s[58:59], s[0:1], %d" % KA_WSP)
    a("s_load_dwordx4 s[60:63], s[0:1], %d" % KA_DBG)
    a("v_lshrrev_b32 v1, 6, v0")
    a("v_and_b32 v0, 63, v0")
    a("v_readfirstlane_b32 s%d, v1" % sW)
    if "map2" in EXP:
        a("s_bfe_u32 s%d, s2, 0x10002" % sRb)
    else:
        a("s_and_b32 s%d, s2, 1" % sRb)
    a("s_lshl_b32 s%d, s%d, 3" % (sRb, sRb))
    a("s_lshr_b32 s%d, s2, 5" % sT0)
    a("s_add_u32 s%d, s%d, s%d" % (sRb, sRb, sT0))
    if "map2" in EXP:
        a("s_and_b32 s%d, s2, 1" % sT1)
        a("s_lshl_b32 s%d, s%d, 1" % (sT1, sT1))
        a("s_bfe_u32 s%d, s2, 0x10001" % sT0)
        a("s_add_u32 s%d, s%d, s%d" % (sT1, sT1, sT0))
    else:
        a("s_bfe_u32 s%d, s2, 0x20001" % sT1)
    a("s_bfe_u32 s%d, s2, 0x20003" % sT0)
    a("s_mul_i32 s%d, s%d, 3" % (sCg, sT1))
    a("s_add_u32 s%d, s%d, s%d" % (sCg, sCg, sT0))
    if "bal" in EXP:
        a("s_add_u32 s%d, s%d, s%d" % (sT1, sT1, sRb))
        a("s_and_b32 s%d, s%d, 3" % (sT1, sT1))
    a("s_add_u32 s%d, s%d, 12" % (sT1, sT1))
    a("s_cmp_eq_u32 s%d, 3" % sT0)
    a("s_cselect_b32 s%d, s%d, s%d" % (sCg, sT1, sCg))
    a("s_and_b32 s%d, s%d, 3" % (sR, sW))
    a("s_lshr_b32 s%d, s%d, 2" % (sC, sW))
    if "prio1" in EXP:
        a("s_cmp_lt_u32 s%d, 4" % sW)
        a("s_cbranch_scc1 K1_pr")
        a("s_setprio 1")
        a("K1_pr:")
    a("s_cmp_eq_u32 s%d, 15" % sCg)
    a("s_cbranch_scc1 K1_side")
    a("v_lshrrev_b32 v3, 3, v0")
    a("s_lshl_b32 s%d, s%d, 4" % (sT0, sW))
    a("v_add_u32 v3, s%d, v3" % sT0)
    a("v_lshrrev_b32 v1, 4, v0")
    a("v_and_b32 v2, 7, v0")
    a("v_xor_b32 v4, v1, v2")
    a("v_mul_u32_u24 v5, 1280, v3")
    a("v_lshl_add_u32 v%d, v4, 4, v5" % vXd0)
    a("v_xor_b32 v4, 4, v4")
    a("v_lshl_add_u32 v%d, v4, 4, v5" % vXd1)
    a("v_add_u32 v%d, %d, v%d" % (vXd1, 8 * 1280 - 1024, vXd1))
    a("v_and_b32 v1, 1, v1")
    a("v_lshlrev_b32 v1, 2, v1")
    a("v_xor_b32 v2, v1, v2")
    a("v_lshlrev_b32 v2, 4, v2")
    a("v_mul_u32_u24 v%d, 3456, v3" % vW0a)
    a("v_add_u32 v%d, v%d, v2" % (vW0a, vW0a))
    a("v_add_u32 v%d, %d, v%d" % (vW0b, 8 * 3456 - 1024, vW0a))
    a("s_mul_i32 s%d, s%d, %d" % (sXoff, sRb, 128 * 1280))
    a("s_add_u32 s%d, s%d, 13" % (sLg, sCg))
    a("s_cmp_eq_u32 s%d, 14" % sCg)
    a("s_cselect_b32 s%d, 12, s%d" % (sLg, sLg))
    a("s_cselect_b32 s%d, 1, 0" % sOne)
    a("s_lshl_b32 s%d, s%d, 7" % (sW0off, sLg))
    a("s_mul_i32 s%d, s%d, %d" % (sWb, sR, CH))
    a("s_lshl_b32 s%d, s%d, 11" % (sT0, sC))
    a("s_add_u32 s%d, s%d, s%d" % (sWb, sWb, sT0))
    a("s_add_u32 s%d, s%d, %d" % (sWb, sWb, REG))
    a("s_lshr_b32 s%d, s%d, 1" % (sT0, sW))
    a("s_mul_i32 s%d, s%d, %d" % (sXb, sT0, CH))
    a("s_and_b32 s%d, s%d, 1" % (sT0, sW))
    a("s_lshl_b32 s%d, s%d, 11" % (sT0, sT0))
    a("s_add_u32 s%d, s%d, s%d" % (sXb, sXb, sT0))
    a("s_add_u32 s%d, s%d, %d" % (sXb, sXb, REG))
    a("s_waitcnt lgkmcnt(0)")
    if "zearly" in EXP:
        a("s_load_dword s%d, s[60:61], 0" % sZok)
    srd(a, sX, 48, S * D * 2)
    srd(a, sW0, 54, D * F * 2)
    for L in (dma_x(0), dma_b0(0)):
        for t in L:
            a(t)
    if "nopf" not in EXP:
        lskip = a.label("Lpf")
        a("s_cmp_eq_u32 s%d, %d" % (sW, 77 if "nocode" in EXP else 7))
        a("s_cbranch_scc1 K1_pfcode")
        if "nopfx" in EXP:
            a("s_branch %s" % lskip)
        a("s_cmp_gt_u32 s%d, %d" % (sW, 2 if "w0str" in EXP else 3))
        a("s_cbranch_scc1 %s" % lskip)
        a("s_cmp_ge_u32 s%d, 2" % sW)
        a("s_cbranch_scc1 K1_pfw0")
        a("s_mul_i32 s%d, s%d, %d" % (sT0, sCg, 86 * 128))
        a("s_mul_i32 s%d, s%d, %d" % (sT1, sW, 43 * 128))
        a("s_add_u32 s%d, s%d, s%d" % (sT0, sT0, sT1))
        a("s_mul_i32 s%d, s%d, %d" % (sT1, sRb, 128 * 1280))
        a("s_add_u32 s%d, s%d, s%d" % (sT0, sT0, sT1))
        a("v_min_u32 v%d, 42, v0" % (E0 + 12))
        a("v_lshlrev_b32 v%d, 7, v%d" % (E0 + 12, E0 + 12))
        a("buffer_load_dword v%d, v%d, s[%d:%d], s%d offen" % (E0 + 13, E0 + 12, sX, sX + 3, sT0))
        a("s_branch %s" % lskip)

        def pfw0(lb):
            if "w0str" not in EXP:
                a("s_mul_i32 s%d, s%d, 15" % (sT0, sRb))
                a("s_add_u32 s%d, s%d, s%d" % (sT0, sT0, sCg))
                a("s_lshl_b32 s%d, s%d, 1" % (sT0, sT0))
                a("s_add_u32 s%d, s%d, s%d" % (sT0, sT0, sW))
                a("s_sub_u32 s%d, s%d, 2" % (sT0, sT0))
                a("s_mul_i32 s%d, s%d, %d" % (sT0, sT0, 36 * 128))
                a("v_min_u32 v%d, 35, v0" % (E0 + 12))
                a("v_lshlrev_b32 v%d, 7, v%d" % (E0 + 12, E0 + 12))
                a("buffer_load_dword v%d, v%d, s[%d:%d], s%d offen" % (E0 + 13, E0 + 12, sW0, sW0 + 3, sT0))
                return
            a("s_mul_i32 s%d, s%d, %d" % (sT0, sRb, 40 * 3456))
            a("s_lshl_b32 s%d, s%d, 7" % (sT1, sLg))
            a("s_add_u32 s%d, s%d, s%d" % (sT0, sT0, sT1))
            a("v_min_u32 v%d, 39, v0" % (E0 + 12))
            a("v_mul_u32_u24 v%d, 3456, v%d" % (E0 + 12, E0 + 12))
            a("buffer_load_dword v%d, v%d, s[%d:%d], s%d offen" % (E0 + 13, E0 + 12, sW0, sW0 + 3, sT0))

        def pfcode(lb):
            a("s_getpc_b64 s[52:53]")
            a("K1_pc:")
            a("s_sub_u32 s52, s52, K1_pc-%s" % label)
            a("s_subb_u32 s53, s53, 0")
            a("s_bfe_u32 s%d, s2, 0x30003" % sT0)
            a("s_lshl_b32 s%d, s%d, 6" % (sT0, sT0))
            a("v_add_u32 v%d, s%d, v0" % (E0 + 12, sT0))
            a("v_lshlrev_b32 v%d, 7, v%d" % (E0 + 12, E0 + 12))
            a("v_min_u32 v%d, (CODE_END-%s-4), v%d" % (E0 + 12, label, E0 + 12))
            a("global_load_dword v%d, v%d, s[52:53]" % (E0 + 13, E0 + 12))
        a("K1_pfw0:")
        pfw0(None)
        a("s_branch %s" % lskip)
        a("K1_pfcode:")
        pfcode(None)
        a(lskip + ":")
    for t in dma_x(1):
        a(t)
    stamp(a, 1)
    a("v_mov_b32 v%d, v3" % (E0 + 8))
    a("v_mov_b32 v%d, v2" % (E0 + 9))
    e = E0
    a("s_xor_b32 s%d, s%d, s%d" % (sT1, sR, sC))
    a("v_lshrrev_b32 v1, 5, v0")
    a("v_and_b32 v%d, 31, v0" % (e + 1))
    a("v_lshlrev_b32 v%d, 7, v%d" % (e + 1, e + 1))
    a("v_bfe_u32 v%d, v0, 1, 3" % (e + 2))
    a("v_xor_b32 v%d, v%d, v1" % (e + 2, e + 2))
    a("s_lshl_b32 s%d, s%d, 1" % (sT0, sT1))
    a("v_xor_b32 v%d, s%d, v%d" % (e + 2, sT0, e + 2))
    a("v_lshl_add_u32 v%d, v%d, 4, v%d" % (e + 1, e + 2, e + 1))
    a("s_mul_i32 s%d, s%d, %d" % (sT0, sR, CH))
    a("s_add_u32 s%d, s%d, %d" % (sT0, sT0, REG))
    a("v_add_u32 v%d, s%d, v%d" % (vXA, sT0, e + 1))
    for t in range(1, 4):
        a("v_xor_b32 v%d, %d, v%d" % (vXA + t, 32 * t, vXA))
    a("v_bfe_u32 v%d, v0, 2, 2" % e)
    a("v_lshl_add_u32 v%d, v1, 3, v%d" % (e, e))
    a("v_lshlrev_b32 v%d, 7, v%d" % (e, e))
    a("v_bfe_u32 v%d, v0, 4, 1" % (e + 1))
    a("v_lshlrev_b32 v%d, 1, v%d" % (e + 1, e + 1))
    a("v_bfe_u32 v%d, v0, 1, 1" % (e + 2))
    a("v_add_u32 v%d, v%d, v%d" % (e + 1, e + 1, e + 2))
    a("s_lshl_b32 s%d, s%d, 2" % (sT0, sC))
    a("v_add_u32 v%d, s%d, v%d" % (e + 1, sT0, e + 1))
    a("v_bfe_u32 v%d, v0, 3, 1" % (e + 2))
    a("v_lshlrev_b32 v%d, 2, v%d" % (e + 2, e + 2))
    a("v_xor_b32 v%d, v%d, v%d" % (e + 1, e + 1, e + 2))
    a("v_lshl_add_u32 v%d, v%d, 4, v%d" % (e, e + 1, e))
    a("v_and_b32 v%d, 1, v0" % (e + 1))
    a("v_lshl_add_u32 v%d, v%d, 3, v%d" % (e, e + 1, e))
    for t in range(4):
        a("s_xor_b32 s%d, s%d, %d" % (sT0, sT1, t))
        a("s_mul_i32 s%d, s%d, %d" % (sT0, sT0, CH))
        a("v_add_u32 v%d, s%d, v%d" % (vA + t, sT0, e))
    for L in (dma_x(2), dma_b0(1)):
        for t in L:
            a(t)
    a("s_mov_b32 s%d, 0x3f803f80" % sOnes)
    a("v_lshrrev_b32 v%d, 4, v0" % (e + 1))
    a("v_bfe_u32 v%d, v0, 2, 2" % (e + 2))
    a("v_cmp_eq_u32 vcc, v%d, v%d" % (e + 1, e + 2))
    a("v_mov_b32 v%d, s%d" % (e + 1, sOnes))
    for t in range(4):
        a("v_cndmask_b32 v%d, 0, v%d, vcc" % (SEL + t, e + 1))

    class Rec:
        def __init__(self):
            self.L = []

        def __call__(self, t):
            self.L.append(t)
    r = Rec()
    srd(r, sW1, 50, D * 3 * D * 2)
    r("v_mul_u32_u24 v%d, 3840, v%d" % (vW1a, E0 + 8))
    r("v_add_u32 v%d, v%d, v%d" % (vW1a, vW1a, E0 + 9))
    r("v_add_u32 v%d, %d, v%d" % (vW1b, 8 * 3840 - 1024, vW1a))
    r("s_lshl_b32 s%d, s%d, 1" % (sT0, sLg))
    r("s_add_u32 s%d, s%d, s%d" % (sT0, sT0, sC))
    r("s_cmp_ge_u32 s%d, 27\ns_cselect_b32 s%d, 1.0, 0" % (sT0, sIsZ2))
    r("s_lshl_b32 s%d, s%d, 2" % (sT2, sRb))
    r("s_add_u32 s%d, s%d, s%d" % (sT2, sT2, sR))
    r("s_mul_i32 s%d, s%d, %d" % (sA, sT2, NG_Z * 1024))
    r("s_add_u32 s%d, s%d, 0x%x" % (sA, sA, WS_Z))
    r("s_lshl_b32 s%d, s%d, 11" % (sOut, sT0))
    r("s_add_u32 s%d, s%d, s%d" % (sOut, sOut, sA))
    if "pre" not in EXP:
        r("s_cmp_lg_u32 s%d, 0\ns_cselect_b32 s%d, s%d, 0x40000000\ns_cselect_b32 s%d, 0x40000000, s%d" % (sIsZ2, sOut0, sOut, sOut, sOut))
    else:
        r("s_cmp_lg_u32 s%d, 0\ns_cselect_b32 s%d, s%d, 0x40000000" % (sIsZ2, sOut0, sOut))
    r("s_sub_u32 s%d, s%d, %d" % (sGl, sWb, REG - 8192))
    r("s_lshl_b32 s%d, s%d, 12" % (sZ2w, sT2))
    r("s_lshl_b32 s%d, s%d, 8" % (sT0, sCg))
    r("s_add_u32 s%d, s%d, s%d" % (sZ2w, sZ2w, sT0))
    r("s_add_u32 s%d, s%d, 0x%x" % (sZ2w, sZ2w, WS_ST2))
    r("s_lshl_b32 s%d, s%d, 1" % (sT0, sCg))
    r("s_mul_i32 s%d, s%d, 3" % (sT1, sCg))
    r("s_sub_u32 s%d, s%d, 11" % (sT1, sT1))
    r("s_cmp_lt_u32 s%d, 12\ns_cselect_b32 s%d, s%d, s%d\ns_cselect_b32 s%d, 1, 0" % (sCg, sLg, sT0, sT1, sType))
    r("s_lshl_b32 s%d, s%d, 7" % (sW1off, sLg))
    r("s_mul_i32 s%d, s%d, %d" % (sOut2, sT2, NG_QKV * 1024))
    r("s_lshl_b32 s%d, s%d, 12" % (sT0, sLg))
    r("s_add_u32 s%d, s%d, s%d" % (sOut2, sOut2, sT0))
    r("s_lshl_b32 s%d, s%d, 11" % (sT1, sC))
    r("s_add_u32 s%d, s%d, s%d" % (sOut2, sOut2, sT1))
    r("s_sub_u32 s%d, s%d, 1" % (sLg, sLg))
    r("s_lshl_b32 s%d, s%d, 12" % (sT0, sCg))
    r("s_add_u32 s%d, s%d, s%d" % (sT0, sT0, sT1))
    r("s_add_u32 s%d, s%d, s%d" % (sT0, sT0, sA))
    r("s_sub_u32 s%d, s%d, 4096" % (sT1, sOut2))
    r1 = Rec()
    r1("s_cmp_lt_u32 s%d, 12" % sCg)
    r1("s_cselect_b32 s%d, s%d, s%d" % (sOut1, sT0, sT1))
    r1("s_cselect_b32 s%d, s%d, s%d" % (sUoff, sCg, sLg))
    csel(r1, sUstep, str(128 * 3456), str(128 * 3840))
    r1("s_cselect_b64 s[%d:%d], s[%d:%d], s[%d:%d]" % (sWu, sWu + 1, sW0, sW0 + 1, sW1, sW1 + 1))
    r1("s_cselect_b32 s%d, s%d, s%d" % (sWu + 2, sW0 + 2, sW1 + 2))
    r1("s_cselect_b64 vcc, -1, 0")
    r("\n".join(r1.L))
    r("s_mov_b32 s%d, 0x20000" % (sWu + 3))
    r("v_cndmask_b32 v%d, v%d, v%d, vcc" % (vUa, vW1a, vW0a))
    r("v_cndmask_b32 v%d, v%d, v%d, vcc" % (vUb, vW1b, vW0b))
    r("s_lshl_b32 s%d, s%d, 7" % (sUoff, sUoff))
    r("s_cmp_eq_u32 s%d, 1\ns_cselect_b32 s%d, 0x40000000, s%d\ns_cselect_b32 s%d, 0x40000000, s%d" % (sOne, sUoff, sUoff, sW1off, sW1off))
    late = []
    srd(r, sWS, 62, WS_END)
    srd(r, sDBG, 60, 256)
    r("v_lshlrev_b32 v%d, 2, v1" % (e + 1))
    r("v_xor_b32 v%d, v%d, v0" % (e + 1, e + 1))
    r("v_lshlrev_b32 v%d, 4, v%d" % (vSt0, e + 1))
    r("v_xor_b32 v%d, 0x80, v%d" % (vSt1, vSt0))
    r("v_add_u32 v%d, 1024, v%d" % (vSt1, vSt1))
    r("s_lshl_b32 s%d, s%d, 10" % (sT0, sC))
    r("s_add_u32 s%d, s%d, %d" % (sT0, sT0, 3 * 4096))
    r("v_lshlrev_b32 v%d, 4, v0" % vCsR)
    r("v_add_u32 v%d, s%d, v%d" % (vCsR, sT0, vCsR))
    r("s_lshl_b32 s%d, s%d, 2" % (sT0, sR))
    r("v_add_u32 v%d, s%d, v%d" % (vCsW, sT0, vCsR))
    r("v_mov_b32 v%d, 0" % ZSUM)
    r("v_mov_b32 v%d, 0" % ZSQ)
    r("s_mov_b32 s%d, %d" % (sDelta, REG))
    r("s_mov_b32 s%d, s%d" % (sReady, sOne))
    r("s_lshl_b32 s%d, s%d, 11" % (sT2, sRb))
    r("s_add_u32 s%d, s%d, 0x%x" % (sT2, sT2, WS_FL))
    r("s_cmp_eq_u32 s%d, 0\ns_cselect_b32 s%d, 2, 99" % (sW, sL1))
    r("s_cmp_eq_u32 s%d, 0\ns_cselect_b32 s%d, s%d, 0x40000000" % (sC, sL0, sZ2w))
    late += r.L
    nlate = spread(len(late), 16) + [0] * 24

    seq = ["x0", "b0", "x1", "x2", "b1"]
    plan = {-1: ["x3", "x4"], 0: ["b2", "x5"], 1: ["x6"], 2: ["b3", "x7"], 3: ["x8"], 4: ["b4", "x9"],
            5: ["u0"], 6: ["u1"], 7: ["u2"], 8: ["u3", "w0"], 9: ["u4", "w1"]}
    q = LdsQ(a)

    def dma_list(it):
        if it[0] == "w":
            L = dma_unit(int(it[1:]))
            L[0] = "s_sub_u32 m0, s%d, %d" % (sWb, REG - 4096 * int(it[1:]))
            return L
        return dma_x(int(it[1:])) if it[0] == "x" else dma_b0(int(it[1:])) if it[0] == "b" else dma_u(int(it[1:]))

    def xread(hp, t):
        x = X0 + 16 * hp + 4 * t
        q.issue("ds_read_b128 v[%d:%d], v%d offset:%d" % (x, x + 3, vXA + t, (hp % 5) * 4096), "x%d" % hp)

    def stats(x, first):
        if "nostats" in EXP and not first:
            return
        def c(r_):
            return "0" if first else "v[%d:%d]" % (r_, r_ + 3)
        a("v_mfma_f32_4x4x4_16b_bf16 v[%d:%d], v[%d:%d], v[%d:%d], %s" % (XQ, XQ + 3, x, x + 1, x, x + 1, c(XQ)))
        a("v_mfma_f32_4x4x4_16b_bf16 v[%d:%d], v[%d:%d], v[%d:%d], %s" % (XQ2, XQ2 + 3, x + 2, x + 3, x + 2, x + 3, c(XQ2)))
        a("v_mfma_f32_16x16x32_bf16 v[%d:%d], v[%d:%d], v[%d:%d], %s" % (XS, XS + 3, SEL, SEL + 3, x, x + 3, c(XS)))

    def vmwait(need):
        last = max(seq.index(n) for n in need)
        a("s_waitcnt vmcnt(%d)" % sum(1 if t == "T" else 2 for t in seq[last + 1:]))

    vmwait(["x0", "b0"])
    a("s_barrier")
    stamp(a, 2)
    for t in range(4):
        xread(0, t)
    for j in range(3):
        frag_reads(q, 0, j)
    for it in plan[-1]:
        for t in dma_list(it):
            a(t)
        seq.append(it)
    lp = 0
    for h in range(10):
        i, hh = h >> 1, h & 1
        need = []
        if h < 9:
            need.append("x%d" % (h + 1))
        if hh == 1:
            need.append("b%d" % (i + 1) if i < 4 else "u0")
        q.wait("x%d" % h)
        vmwait(need)
        a("s_barrier")
        if h in (2, 4, 6, 8):
            stamp(a, 2 + i)
        dl = []
        for it in plan[h]:
            dl.append(dma_list(it))
            seq.append(it)
        if h == 9:
            stats(X0 + 16 * h, False)
            stats(X0 + 16 * h + 8, False)
        for t in range(4):
            j = 4 * hh + t
            x = X0 + 32 * i + 4 * j
            q.wait("f%d" % j)
            mfma(a, i, j)
            if h == 9 and t == 2:
                q.issue("ds_write_b32 v%d, v%d" % (vCsW, CSA), "csw")
                a("v_add_u32 v%d, s%d, v%d" % (vCsW, sDelta, vCsW))
            jn = j + 3
            if jn < 8:
                frag_reads(q, i, jn)
            else:
                frag_reads(q, (i + 1) % 5, jn - 8)
            if i == 4 and 1 <= j <= 4:
                tt = (j + 3) & 3
                a("v_add_u32 v%d, s%d, v%d" % (vA + tt, sDelta, vA + tt))
            if h < 9 and t < 2:
                xread(h + 1, 2 * t)
                xread(h + 1, 2 * t + 1)
            n, half = t >> 1, t & 1
            if len(dl) == 1:
                n, half = 0, (0 if t == 0 else 1 if t == 2 else None)
            if half == 0:
                a(dl[n][0])
                a(dl[n][1])
            elif half == 1:
                a(dl[n][2])
                if plan[h][n][0] == "u":
                    MARK[5 + int(plan[h][n][1:])] = len(a.ins)
                if plan[h][n][0] == "w":
                    MARK[10 + int(plan[h][n][1:])] = len(a.ins)
                a(dl[n][3])
            for tx in late[lp:lp + nlate[4 * h + t]]:
                a(tx)
            lp += nlate[4 * h + t]
            if h == W1AT and t == 3:
                a("s_mul_i32 s%d, s%d, 15" % (sT0, sRb))
                a("s_add_u32 s%d, s%d, s%d" % (sT0, sT0, sCg))
                a("s_lshl_b32 s%d, s%d, 3" % (sT0, sT0))
                a("s_add_u32 s%d, s%d, s%d" % (sT0, sT0, sW))
                a("s_mul_i32 s%d, s%d, %d" % (sT0, sT0, 10 * 128))
                a("v_min_u32 v%d, 9, v0" % vPf)
                a("v_lshlrev_b32 v%d, 7, v%d" % (vPf, vPf))
                a("s_sub_u32 m0, s%d, %d" % (sWb, REG - 2 * 4096))
                a("buffer_load_dword v%d, s[%d:%d], s%d offen lds" % (vPf, sW1, sW1 + 3, sT0))
                seq.append("T")
            if t == 0:
                cs_mfma(a, i, j)
            if h < 9 and (t & 1) == 0:
                stats(x, h == 0 and t == 0)
            if h == 9 and t == 0:
                a("v_and_b32 v1, 3, v0")
                for tt in range(4):
                    a("v_add_f32 v%d, v%d, v%d" % (XQ + tt, XQ + tt, XQ2 + tt))
                for tt in range(1, 4):
                    a("v_cmp_eq_u32 vcc, %d, v1" % tt)
                    a("v_cndmask_b32 v%d, v%d, v%d, vcc" % (XQ, XQ, XQ + tt))
                a("v_mov_b32 v%d, v%d" % (XQ + 1, XS))
                a("s_lshl_b32 s%d, s%d, 9" % (sT0, sW))
                a("s_add_u32 s%d, s%d, %d" % (sT0, sT0, CH + 3 * 4096))
                a("v_lshlrev_b32 v1, 3, v0")
                a("v_add_u32 v1, s%d, v1" % sT0)
                q.issue("ds_write_b64 v1, v[%d:%d]" % (XQ, XQ + 1), "stw")
                a("v_xor_b32 v1, 0x800, v1")
            if h == 9 and t == 1:
                q.wait("stw")
                a("s_barrier")
                q.issue("ds_read_b64 v[%d:%d], v1" % (XQ + 2, XQ + 3), "str")
    assert lp == len(late)
    q.wait("str")
    assert q.q == INQ2[2:], q.q
    r = Rec()
    sq, sm, t0, t1 = XQ, XQ + 1, XQ + 2, XQ + 3
    r("v_add_f32 v%d, v%d, v%d" % (sq, sq, t0))
    r("v_add_f32 v%d, v%d, v%d" % (sm, sm, t1))
    r("v_mov_b32 v%d, v%d" % (t0, sq))
    r("v_mov_b32 v%d, v%d" % (t1, sm))
    r("v_permlane32_swap_b32 v%d, v%d" % (sq, t0))
    r("v_permlane32_swap_b32 v%d, v%d" % (sm, t1))
    r("v_add_f32 v%d, v%d, v%d" % (sq, sq, t0))
    r("v_add_f32 v%d, v%d, v%d" % (sm, sm, t1))
    r("v_mul_f32 v%d, %s, v%d" % (NEGMU, fhex(-1.0 / D), sm))
    r("v_mul_f32 v%d, %s, v%d" % (sq, fhex(1.0 / D), sq))
    r("v_fma_f32 v%d, -v%d, v%d, v%d" % (sq, NEGMU, NEGMU, sq))
    r("v_max_f32 v%d, 0, v%d" % (sq, sq))
    r("v_add_f32 v%d, %s, v%d" % (sq, fhex(1e-5), sq))
    r("v_rsq_f32 v%d, v%d" % (RSTD, sq))
    r("v_sqrt_f32 v%d, v%d" % (IRSTD, sq))
    r("v_mul_f32 v%d, %s, v%d" % (RL, fhex(LOG2E), RSTD))
    r("v_mul_f32 v%d, %s, v%d" % (K1c, fhex(GC1), RSTD))
    r("v_mul_f32 v%d, v%d, v%d" % (K2c, RSTD, RSTD))
    r("v_mul_f32 v%d, v%d, v%d" % (K2c, K2c, RSTD))
    r("v_mul_f32 v%d, %s, v%d" % (K2c, fhex(GC2), K2c))
    fin = list(r.L)
    if "zearly" not in EXP:
        a("s_load_dword s%d, s[60:61], %d" % (sZok, 4 if "fzok" in EXP else 0))
    stamp(a, 7)
    a("s_cmp_eq_u32 s%d, 1" % sOne)

    def one(lb):
        for t in fin:
            a(t)
    rare(a, "s_cbranch_scc1", one)
    RARE[-1] = (RARE[-1][0], "K1_tail", RARE[-1][2])
    a("s_sub_u32 s%d, s%d, s%d" % (sWb, sWb, sDelta))
    r = Rec()
    srd(r, sX, 58, S * S * 2)
    own_row(r, sXoff)
    r("v_min_u32 v%d, %d, v0" % (vPf, max(TLN - 1, 0)))
    r("v_lshlrev_b32 v%d, 7, v%d" % (vPf, vPf))
    pre = []
    for n in range(max(len(fin), len(r.L))):
        pre += fin[n:n + 1] + r.L[n:n + 1]
    PRE1[:] = pre
    if "jit" in EXP:
        a("s_bitcmp1_b32 s2, 4")
        a("s_cbranch_scc0 K1_j0")
        a("s_sleep 100")
        a("K1_j0:")
    body(a, "G", 1)
    a("s_cmp_eq_u32 s%d, 0" % sType)
    a("s_cbranch_scc1 K1_bodyP")
    brk = len(a.ins)
    body(a, "G", 2)
    a("K1_bodyL:")
    body(a, "P", 3)
    a("s_waitcnt lgkmcnt(0)")
    a("s_cmp_eq_u32 s%d, 0" % sReady)
    a(rare(a, "s_cbranch_scc1", lambda lb: z2_slow(a, lb)) + ":")
    tail_regs(a)
    tail(a, "P")
    import p2
    PHASE[0] = 2
    p2.gen_p2(a)
    PHASE[0] = 1
    a("K1_tail:")
    tail_one(a)
    tail(a, "G")
    a("K1_bodyP:")
    body(a, "P", 2, start=(brk, len(a.ins)))
    a("s_branch K1_bodyL")
    flush_rare(a)

    a("K1_side:")
    if "zlate" in EXP:
        for t in range(5):
            a("s_sleep 127")
    a("s_waitcnt lgkmcnt(0)")
    srd(a, sWS, 62, WS_END)
    srd(a, sDBG, 60, 256)
    for t in range(4):
        a("v_mov_b32 v%d, 0" % (8 + t))
    a("v_mov_b32 v12, 1")
    a("v_lshlrev_b32 v6, 4, v0")
    a("s_lshl_b32 s%d, s%d, 3" % (sT0, sRb))
    a("s_add_u32 s%d, s%d, s%d" % (sT0, sT0, sW))
    a("s_lshl_b32 s%d, s%d, 11" % (sT0, sT0))
    a("s_add_u32 s%d, s%d, 0x%x" % (sT0, sT0, WS_ST2))
    a("buffer_store_dwordx4 v[8:11], v6, s[%d:%d], s%d offen sc1" % (sWS, sWS + 3, sT0))
    a("buffer_store_dwordx4 v[8:11], v6, s[%d:%d], s%d offen offset:1024 sc1" % (sWS, sWS + 3, sT0))
    a("s_mul_i32 s%d, s%d, 6" % (sT0, sRb))
    a("s_add_u32 s%d, s%d, s%d" % (sT0, sT0, sW))
    a("s_lshl_b32 s%d, s%d, 10" % (sT0, sT0))
    a("s_add_u32 s%d, s%d, 0x%x" % (sT0, sT0, WS_KV))
    a("s_lshl_b32 s%d, s%d, 11" % (sT1, sRb))
    a("s_add_u32 s%d, s%d, 0x%x" % (sT1, sT1, WS_FL))
    a("s_and_b32 s%d, s%d, 1" % (sT2, sW))
    a("s_lshl_b32 s%d, s%d, 10" % (sT2, sT2))
    a("s_add_u32 s%d, s%d, s%d" % (sT2, sT2, sT1))
    a("s_cmp_ge_u32 s%d, 6" % sW)
    a("s_cselect_b32 s%d, s%d, s%d" % (sT0, sT2, sT0))
    a("buffer_store_dwordx4 v[8:11], v6, s[%d:%d], s%d offen sc1" % (sWS, sWS + 3, sT0))
    a("s_waitcnt vmcnt(0)")
    a("s_barrier")
    a("s_cmp_lg_u32 s%d, 6" % sW)
    a("s_cbranch_scc1 K1_nofl2")
    a("s_mov_b64 exec, 1")
    a("buffer_atomic_add v12, off, s[%d:%d], 0 sc1" % (sDBG, sDBG + 3))
    a("s_mov_b64 exec, -1")
    stamp(a, 1)
    if "probe" in EXP:
        a("s_cmp_lg_u32 s%d, 0" % sRb)
        a("s_cbranch_scc1 K1_nofl2")
        a("v_mov_b32 v13, s72")
        a("s_mov_b32 s%d, 0x4000000" % (sWS + 2))
        a("s_mov_b32 s%d, 0x%x" % (sT0, WS_STAMP))
        a("buffer_store_dword v13, off, s[%d:%d], s%d sc1" % (sWS, sWS + 3, sT0))
    a("K1_nofl2:")
    a("s_barrier")
    stamp(a, 12)
    pf_wsp(a)
    a("s_add_u32 s71, s%d, 1024" % sT1)
    a("s_mov_b32 s70, 0")
    a("s_mov_b32 s69, 1")
    a("P2_late:")
    pf_own(a)
    a("s_load_dwordx2 s[44:45], s[0:1], %d" % KA_WO)
    a("s_load_dwordx2 s[46:47], s[0:1], %d" % KA_WOUT)
    p2.p2_loads(a)
    if "nort" not in EXP:
        retile(a)
    else:
        a("s_waitcnt lgkmcnt(0)")
        a("s_lshl_b32 s%d, s%d, 1" % (sRb, sRb))
        a("s_and_b32 s%d, s%d, 1" % (sT0, sCg))
        a("s_add_u32 s%d, s%d, s%d" % (sRb, sRb, sT0))
        a("s_lshl_b32 s%d, s%d, 3" % (sT0, sRb))
        a("s_add_u32 s%d, s%d, s%d" % (sT0, sT0, sW))
        a("s_lshl_b32 s%d, s%d, 13" % (sT0, sT0))
        a("s_add_u32 s%d, s%d, 0x%x" % (sT0, sT0, WS_B3))
        a("v_lshlrev_b32 v120, 7, v0")
        a("buffer_load_dword v121, v120, s[%d:%d], s%d offen" % (sWS, sWS + 3, sT0))
    if "bsp" in EXP:
        srd(a, sX, 50, S * 2)
        a("v_lshlrev_b32 v95, 7, v0")
        a("buffer_load_dword v94, v95, s[%d:%d], 0 offen" % (sX, sX + 3))
    a("s_waitcnt vmcnt(0)")
    stamp(a, 13)
    stamp(a, 14)
    stamp_dump(a, 15, sWS, sW, WS_STAMP)
    a("s_barrier")
    if STAMP:
        srd(a, sWS, 52, WS_END)
    srd(a, sX, 58, S * S * 2)
    for t in p2.pre_setup(vW1b):
        a(t)
    for st in range(p2.NPRE):
        a(p2.pre_dma(st, vW1b, sX))
    p2.p2_early(a)
    p2.p2_poll(a)
    a("s_waitcnt vmcnt(0)")
    a("s_branch P2_entry")
    flush_rare(a)
    a(end + ":")
    a("s_endpgm")
```

```python
from asmlib import *
from common import *
from k1 import srd, csel, stamp, stamp_dump, STAMP, WS_STAMP, EXP, spread
import k1

RB = 81920
SIDE = 0
NSA = 5
NPRE = int(__import__('os').environ.get('NPRE', '6'))
OSC = RB + 5 * 14336
NEA = int(__import__("os").environ.get("NEA", "0"))
NEB = int(__import__("os").environ.get("NEB", "0"))
SL1, SL2 = int(__import__("os").environ.get("SL1", "3")), int(__import__("os").environ.get("SL2", "24"))
KB = int(__import__("os").environ.get("KB", "0"))
assert KB == 0
OTB = int(__import__("os").environ.get("OTB", "99"))
LREL = 155648
NPST = int(__import__('os').environ.get('NPST', '2'))
CNT_KV = WS_CNT
CNT_O = WS_CNT + 4096
CNT_U = WS_CNT + 8192

ACC = 224
FA = (128, 176)
Z1R = 112
DO = 80
ACB = 80
KVF = 48
XR = 36
import os
FRA, FRB = float(os.environ.get("FRA", "0.7")), float(os.environ.get("FRB", "0.7"))
import os
def _t(n, d): return tuple(int(x) for x in os.environ.get(n, d).split(","))
HK = _t("HK", "5,0,7")
PA = _t("PA", "1,3")
PK = _t("PK", "16,18,20,23")
if "noatt" in EXP:
    PA, PK = (99, 99), (99, 99, 99, 99)
    os.environ["KJ"] = "99,99"
KJ = _t("KJ", "9,12")
assert SIDE == 0
SDP = int(os.environ.get("SDP", "1"))
PQB, PQS = _t("PQ", "8,2")
ZL = [int(x) for x in os.environ.get("ZL", "13,15,19,23").split(",") if x]
ZSP = 16384
PQD = [int(x) for x in os.environ.get("PQD", "").split(",") if x]
XB = _t("XB", "14,17,22")
PO = _t("PO", "28,29")
PU = _t("PU", "37,39")
sCall, sZk = 71, 70
sWrap = 29
PQR = 36
T = 24
vL16, vLA, vLB0, vA, vB0, vB1, vAt = 10, 11, 12, 13, 14, 15, 16
vBias, vPoll, vZa, vZb, vO = 19, 20, 21, 22, 23
vXl = 20
vLA3, vLB3 = 8, 9
vAd0, vAd1 = 8, 9
vT0, vT1, vT2, vT3, vXd = 11, 12, 13, 14, 15
vPz = 21
sA, sBS, sX, sWS, sO = 4, 8, 12, 16, 20
sA3, sB3 = 8, 12
sI, sJ, sW, sRR, sCC = 24, 25, 26, 27, 28
sAoff, sBoff, sRd, sRdB, sIt, sHook = 29, 30, 31, 32, 33, 34
sT0, sT1, sT2, sT3 = 36, 37, 38, 39
sMA, sMB, sHd, sCnt, sKv, sOdd = 35, 67, 42, 43, 44, 45
sA3off, sB3off, sMB3, sCntI = 56, 57, 58, 59
sXo0, sXo1 = 60, 61
sWk, sKvW, sCntW = 64, 65, 66
assert k1.sT0 == sT0


def ring(s, step, end, wrap):
    return "s_add_u32 s%d, s%d, %d\ns_cmp_eq_u32 s%d, %d\ns_cselect_b32 s%d, %d, s%d" % (s, s, step, s, end, s, wrap, s)


def kjump(st, norm, back, fwd):
    if KB and st % (2 * KB) == KB - 1:
        return back
    if KB and st % (2 * KB) == 2 * KB - 1:
        return fwd
    return norm


def slotA(st):
    return 8192 * (st if st < 4 else 4 + (st - 4) % 6)


DEEP = "deep" in EXP


def slotB(st):
    if st >= 32:
        return RB + 10240 * ((st - 32 + 7) % 8)
    if not DEEP:
        return RB + 14336 * ((st + 3) % 5)
    if st <= 17:
        return RB + 14336 * ((st + 2) % 5)
    n = (st - 13) % 7
    return RB + 14336 * n if n < 5 else 14336 * (n - 5)


def issueB(st):
    if not DEEP or st <= 17:
        return st - 5
    return {18: 12, 19: 12}.get(st, st - 7)


def pre_setup(vt):
    return [
        "s_bfe_u32 s32, s2, 0x20001",
        "s_lshl_b32 s32, s32, 3",
        "s_lshr_b32 s33, s2, 5",
        "s_add_u32 s32, s32, s33",
        "s_lshl_b32 s32, s32, 3",
        "s_add_u32 s32, s32, s%d" % sW,
        "s_lshl_b32 s32, s32, 15",
        "s_lshl_b32 s33, s%d, 2" % sW,
        "v_lshrrev_b32 v%d, 4, v0" % (vt + 1),
        "v_add_u32 v%d, s33, v%d" % (vt + 1, vt + 1),
        "v_xor_b32 v%d, v%d, v0" % (vt + 1, vt + 1),
        "v_and_b32 v%d, 7, v%d" % (vt + 1, vt + 1),
        "v_lshrrev_b32 v%d, 3, v0" % vt,
        "v_lshlrev_b32 v%d, 12, v%d" % (vt, vt),
        "v_lshl_add_u32 v%d, v%d, 4, v%d" % (vt, vt + 1, vt),
        "s_lshl_b32 s33, s%d, 10" % sW,
    ]


def pre_dma(st, vt, srdn):
    return "s_add_u32 m0, s33, %d\nbuffer_load_dwordx4 v%d, s[%d:%d], s32 offen offset:%d lds" % (
        slotA(st) - 128 * st, vt, srdn, srdn + 3, 128 * st)


vA2, vB2, vB3 = 16, 17, 18
vU, vBias2 = 30, 31


def read_A(fs, nct):
    L = []
    L.append("v_add_u32 v%d, s%d, v%d" % (vA, sRd, vLA))
    L.append("v_add_u32 v%d, s%d, v%d" % (vB0, sRdB, vLB0))
    L.append("v_xor_b32 v%d, 64, v%d" % (vB1, vB0))
    for k in range(2):
        if k:
            L.append("v_xor_b32 v%d, 64, v%d" % (vA2, vA))
        for rt in range(2):
            d = fs + 8 * k + 4 * rt
            L.append("ds_read_b128 v[%d:%d], v%d offset:%d" % (d, d + 3, vA2 if k else vA, rt * 2048))
        for ct in range(nct):
            if k == 0 and ct == 1:
                L.append("v_xor_b32 v%d, 0x80, v%d" % (vB2, vB0))
                L.append("v_xor_b32 v%d, 0xc0, v%d" % (vB3, vB0))
            d = fs + 16 + 16 * k + 4 * ct
            off = k * 7168 + ct * 1024
            L.append("ds_read_b64_tr_b16 v[%d:%d], v%d offset:%d" % (d, d + 1, vB2 if ct & 1 else vB0, off))
            L.append("ds_read_b64_tr_b16 v[%d:%d], v%d offset:%d" % (d + 2, d + 3, vB3 if ct & 1 else vB1, off))
    L.append(ring(sRd, 8192, RB, 32768))
    if DEEP:
        L.append("s_add_u32 s%d, s%d, 14336\ns_cmp_eq_u32 s%d, %d\ns_cselect_b32 s%d, s%d, s%d" % (sRdB, sRdB, sRdB, OSC, sRdB, sWrap, sRdB))
        L.append("s_cmp_eq_u32 s%d, 28672\ns_cselect_b32 s%d, %d, s%d" % (sRdB, sRdB, RB, sRdB))
    else:
        L.append(ring(sRdB, 14336, OSC, RB))
    return L


def read_B(fs, nct):
    L = []
    L.append("v_add_u32 v%d, s%d, v%d" % (vA, sRd, vLA3))
    L.append("v_add_u32 v%d, s%d, v%d" % (vB0, sRdB, vLB3))
    for k in range(2):
        for rt in range(2):
            d = fs + 8 * k + 4 * rt
            L.append("ds_read_b128 v[%d:%d], v%d offset:%d" % (d, d + 3, vA, k * 2048 + rt * 256))
        for ct in range(nct):
            d = fs + 16 + 12 * k + 4 * ct
            off = k * 5120 + ct * 32
            L.append("ds_read_b64_tr_b16 v[%d:%d], v%d offset:%d" % (d, d + 1, vB0, off))
            L.append("ds_read_b64_tr_b16 v[%d:%d], v%d offset:%d" % (d + 2, d + 3, vB0, off + 1280))
    L.append(ring(sRd, 8192, RB, 32768))
    L.append(ring(sRdB, 10240, 2 * RB, RB))
    return L


def mf_A(cur, nct):
    L = []
    for k in range(2):
        for ct in range(nct):
            for rt in range(2):
                fb, fa, acc = cur + 16 + 16 * k + 4 * ct, cur + 8 * k + 4 * rt, ACC + 16 * rt + 4 * ct
                L.append("v_mfma_f32_16x16x32_bf16 v[%d:%d], v[%d:%d], v[%d:%d], v[%d:%d]" % (
                    acc, acc + 3, fb, fb + 3, fa, fa + 3, acc, acc + 3))
    return L


def mf_B(cur, nct):
    L = []
    for k in range(2):
        for ct in range(nct):
            for rt in range(2):
                fb, fa, acc = cur + 16 + 12 * k + 4 * ct, cur + 8 * k + 4 * rt, ACB + 12 * rt + 4 * ct
                L.append("v_mfma_f32_16x16x32_bf16 v[%d:%d], v[%d:%d], v[%d:%d], v[%d:%d]" % (
                    acc, acc + 3, fb, fb + 3, fa, fa + 3, acc, acc + 3))
    return L


def cstage(a, mf, rd, frac, barrier=True):
    a("s_waitcnt lgkmcnt(0)")
    if barrier:
        a("s_barrier")
    if "nomf" in EXP:
        mf = ["s_nop 0"] * len(mf)
    if "nopmf" in EXP:
        mf = ["s_nop 2"] * len(mf)
    if "nord" in EXP:
        rd = [t for t in rd if not t.startswith("ds_")]
    ns = max(1, int(len(mf) * frac))
    nr = spread(len(rd), ns) + [0] * (len(mf) - ns)
    p = 0
    for n, m in enumerate(mf):
        a(m)
        for t in rd[p:p + nr[n]]:
            a(t)
        p += nr[n]


def quad_addr(a, dst, vq, swz, t0, t1):
    a("v_and_b32 v%d, 1, v%d" % (t0, vq))
    if swz:
        a("v_bfe_u32 v%d, v%d, 2, 1" % (t1, vq))
        a("v_lshl_add_u32 v%d, v%d, 1, v%d" % (t1, t1, t0))
        a("v_lshlrev_b32 v%d, 2, v%d" % (t1, t1))
        a("v_xor_b32 v%d, v%d, v2" % (t1, t1))
        a("v_lshl_add_u32 v%d, v%d, 5, v%d" % (t0, t0, t1))
    else:
        a("v_lshl_add_u32 v%d, v%d, 5, v2" % (t0, t0))
    a("v_lshlrev_b32 v%d, 4, v%d" % (t0, t0))
    a("v_bfe_u32 v%d, v%d, 1, 1" % (t1, vq))
    a("v_lshl_add_u32 v%d, v%d, 3, v%d" % (t0, t1, t0))
    a("v_lshrrev_b32 v%d, 2, v%d" % (t1, vq))
    a("v_lshl_add_u32 v%d, v%d, 10, v%d" % (dst, t1, t0))


def srd_off(a, d, plo, off, nbytes):
    a("s_add_u32 s%d, s%d, 0x%x" % (d, plo, off))
    a("s_addc_u32 s%d, s%d, 0" % (d + 1, plo + 1))
    a("s_and_b32 s%d, s%d, 0xffff" % (d + 1, d + 1))
    a("s_mov_b32 s%d, 0x%x" % (d + 2, nbytes))
    a("s_mov_b32 s%d, 0x20000" % (d + 3))


def signal(a, scnt, off=0, n=0):
    a("s_waitcnt vmcnt(%d)" % n)
    a("v_mov_b32 v%d, 1" % T)
    a("v_mov_b32 v%d, 0" % (T + 1))
    a("s_mov_b64 exec, 1")
    a("buffer_atomic_add v%d, v%d, s[%d:%d], s%d offen offset:%d sc1" % (T, T + 1, sWS, sWS + 3, scnt, off))
    a("s_mov_b64 exec, -1")


def poll_issue(a, scnt, off=0):
    if "nopoll" in EXP:
        a("v_mov_b32 v%d, 0x40000000" % T)
        a("buffer_load_dword v%d, v%d, s[%d:%d], s%d offen" % (vPoll, T, sWS, sWS + 3, scnt))
        return
    a("v_mov_b32 v%d, 0" % T)
    a("buffer_load_dword v%d, v%d, s[%d:%d], s%d offen offset:%d sc1" % (vPoll, T, sWS, sWS + 3, scnt, off))


def poll_check(a, scnt, off=0, target=32, n=0):
    if "nopoll" in EXP:
        return
    l0, l1 = a.label("Lchk"), a.label("Lok")
    a("s_waitcnt vmcnt(%d)" % n)
    a(l0 + ":")
    a("v_readfirstlane_b32 s%d, v%d" % (sT0, vPoll))
    a("s_cmp_eq_u32 s%d, %d" % (sT0, target))
    a("s_cbranch_scc1 %s" % l1)
    poll_issue(a, scnt, off)
    a("s_waitcnt vmcnt(0)")
    a("s_branch %s" % l0)
    a(l1 + ":")


def p2_loads(a):
    a("s_load_dwordx4 s[48:51], s[0:1], %d" % KA_WSP)
    a("s_load_dwordx2 s[52:53], s[0:1], %d" % KA_WS)
    a("s_load_dwordx2 s[54:55], s[0:1], %d" % KA_X)
    a("s_load_dwordx2 s[62:63], s[0:1], %d" % KA_OUT)


def p2_early(a):
    lab = a.label("Learly")
    a("v_and_b32 v%d, 15, v0" % vPz)
    a("v_lshlrev_b32 v%d, 11, v%d" % (vPz, vPz))
    a("v_lshlrev_b32 v%d, 4, v0" % vL16)
    a("s_bfe_u32 s%d, s2, 0x20001" % sI)
    a("s_lshl_b32 s%d, s%d, 3" % (sI, sI))
    a("s_lshr_b32 s%d, s2, 5" % sT0)
    a("s_add_u32 s%d, s%d, s%d" % (sI, sI, sT0))
    a("s_and_b32 s%d, s2, 1" % sJ)
    a("s_lshl_b32 s%d, s%d, 2" % (sJ, sJ))
    a("s_bfe_u32 s%d, s2, 0x20003" % sT0)
    a("s_add_u32 s%d, s%d, s%d" % (sJ, sJ, sT0))
    a("s_and_b32 s%d, s%d, 1" % (sRR, sW))
    a("s_bfe_u32 s%d, s%d, 0x10001" % (sCC, sW))
    a("s_cmp_ge_u32 s%d, 4" % sW)
    a("s_cbranch_scc1 %s" % lab)
    a("s_cmp_lg_u32 s%d, 16" % sZk)
    a(k1.rare(a, "s_cbranch_scc1", lambda lb: zk_wait(a)) + ":")
    a("s_and_b32 s%d, s2, 7" % sT3)
    a("s_lshl_b32 s%d, s%d, 7" % (sT3, sT3))
    a("s_add_u32 s%d, s%d, 0x%x" % (sT3, sT3, WS_FL))
    a("v_lshrrev_b32 v1, 3, v0")
    a("s_lshl_b32 s%d, s%d, 4" % (sT1, sW))
    a("v_add_u32 v1, s%d, v1" % sT1)
    a("v_lshlrev_b32 v1, 12, v1")
    a("v_lshrrev_b32 v6, 4, v0")
    a("v_and_b32 v7, 7, v0")
    a("v_xor_b32 v6, v6, v7")
    a("v_lshl_add_u32 v%d, v6, 4, v1" % vAd0)
    a("v_xor_b32 v6, 4, v6")
    a("v_lshl_add_u32 v%d, v6, 4, v1" % vAd1)
    a("v_add_u32 v%d, %d, v%d" % (vAd1, 8 * 4096 - 1024, vAd1))
    a("s_lshl_b32 s%d, s%d, 18" % (sAoff, sI))
    a("s_lshl_b32 s%d, s%d, 11" % (sMA, sW))
    srd(a, sA, 48, S * S * 2)
    a("s_add_u32 s%d, s%d, %d" % (sAoff, sAoff, 128 * NPRE))
    a("s_mul_i32 s%d, s%d, 7" % (sMB, sCC))
    a("s_lshl_b32 s%d, s%d, 2" % (sT1, sRR))
    a("s_add_u32 s%d, s%d, s%d" % (sMB, sMB, sT1))
    a("s_lshl_b32 s%d, s%d, 10" % (sMB, sMB))
    a("s_mul_i32 s%d, s%d, %d" % (sBoff, sCC, NG_Z))
    a("s_add_u32 s%d, s%d, s%d" % (sBoff, sBoff, sT1))
    a("s_mul_i32 s%d, s%d, 7" % (sT1, sJ))
    a("s_add_u32 s%d, s%d, s%d" % (sBoff, sBoff, sT1))
    a("s_lshl_b32 s%d, s%d, 10" % (sBoff, sBoff))
    a("s_add_u32 s%d, s%d, %d" % (sBoff, sBoff, WS_Z + 54 * 1024))
    if KB:
        a("s_add_u32 s%d, s%d, s%d" % (sT1, sI, sJ))
        a("s_and_b32 s%d, s%d, 1" % (sT1, sT1))
        a("s_mul_i32 s%d, s%d, %d" % (sT0, sT1, KB * 128))
        a("s_add_u32 s%d, s%d, s%d" % (sAoff, sAoff, sT0))
        a("s_lshl_b32 s%d, s%d, 1" % (sT0, sT0))
        a("s_sub_u32 s31, 128, s%d" % sT0)
        a("s_add_u32 s32, 128, s%d" % sT0)
        a("s_mul_i32 s%d, s%d, %d" % (sT0, sT1, KB * 2 * NG_Z * 1024))
        a("s_add_u32 s%d, s%d, s%d" % (sBoff, sBoff, sT0))
        a("s_lshl_b32 s%d, s%d, 1" % (sT0, sT0))
        a("s_sub_u32 s33, %d, s%d" % (2 * NG_Z * 1024, sT0))
        a("s_add_u32 s34, %d, s%d" % (2 * NG_Z * 1024, sT0))
    a("s_mov_b32 s46, s%d" % sRR)
    a("s_mov_b32 s47, 0")
    a("s_mov_b64 vcc, s[46:47]")
    a(lab + ":")


def p2_poll(a):
    lab = a.label("Lnp")
    a("s_cmp_lg_u32 s%d, 0" % sW)
    a("s_cbranch_scc1 %s" % lab)
    a("buffer_load_dword v%d, v%d, s[%d:%d], s%d offen sc1" % (vPoll, vPz, sWS, sWS + 3, sT3))
    a(lab + ":")


def zk_wait(a):
    srd(a, sO, 60, 256)
    l0 = a.label("Lz0")
    a(l0 + ":")
    a("s_sleep 2")
    a("buffer_load_dword v%d, off, s[%d:%d], 0 sc1" % (vPoll, sO, sO + 3))
    a("s_waitcnt vmcnt(0)")
    a("v_readfirstlane_b32 s%d, v%d" % (sZk, vPoll))
    a("s_cmp_eq_u32 s%d, 16" % sZk)
    a("s_cbranch_scc0 %s" % l0)


def gen_p2(a):
    a("P2_entry:")
    if STAMP and k1.LITE and "steps" not in EXP:
        a("s_add_u32 s98, s72, s69")
    stamp(a, 0)
    if STAMP:
        srd(a, sWS, 52, WS_END)
    a("s_cmp_ge_u32 s%d, 4" % sW)
    a("s_cbranch_scc1 K2_consumer")
    a("K2_loader:")
    if "lprio" in EXP:
        a("s_setprio 3")
    Q = []

    def younger(pred):
        idx = [n for n, t in enumerate(Q) if pred(t)]
        return min(63, len(Q) - 1 - max(idx)) if idx else 63

    def dAa(st):
        if "noA" in EXP:
            return
        a("s_add_u32 m0, s%d, %d" % (sMA, slotA(st)))
        a("buffer_load_dwordx4 v%d, s[%d:%d], s%d offen lds" % (vAd0, sA, sA + 3, sAoff))
        a("buffer_load_dwordx4 v%d, s[%d:%d], s%d offen offset:1024 lds" % (vAd1, sA, sA + 3, sAoff))
        a("s_add_u32 s%d, s%d, %s" % (sAoff, sAoff, kjump(st, "128", "s31", "s32")))
        Q.extend([("S", st)] * 2)

    class NoSc:
        def __call__(self, t):
            if "nodma2" in EXP and t.endswith(" lds"):
                return
            if "nodma2" in EXP and t.startswith("s_waitcnt vmcnt"):
                t = "s_waitcnt vmcnt(0)"
            a0(t.replace(" sc1 lds", " lds") if "nosc" in EXP else t)
        def label(self, x):
            return a0.label(x)
    a0 = a
    a = NoSc()

    def dAb(st):
        a("s_add_u32 m0, s%d, %d" % (sMB, slotB(st)))
        for t in range(3):
            a("buffer_load_dwordx4 v%d, s[%d:%d], s%d offen offset:%d sc1 lds" % (vL16, sWS, sWS + 3, sBoff, 1024 * t))
        lab = a.label("Lsk")
        a("s_cbranch_vccnz %s" % lab)
        a("buffer_load_dwordx4 v%d, s[%d:%d], s%d offen offset:3072 sc1 lds" % (vL16, sWS, sWS + 3, sBoff))
        a(lab + ":")
        a("s_add_u32 s%d, s%d, %s" % (sBoff, sBoff, kjump(st, str(2 * NG_Z * 1024), "s33", "s34")))
        Q.extend([("S", st)] * 3)

    def dB3(st):
        if "noB3" in EXP:
            return
        a("s_add_u32 m0, s%d, %d" % (sMB3, slotB(st)))
        for t in range(2):
            a("buffer_load_dwordx4 v%d, s[%d:%d], s%d offen offset:%d sc1 lds" % (vL16, sB3, sB3 + 3, sB3off, 1024 * t))
        lab = a.label("Lsk")
        a("s_cbranch_vccnz %s" % lab)
        a("buffer_load_dwordx4 v%d, s[%d:%d], s%d offen offset:2048 sc1 lds" % (vL16, sB3, sB3 + 3, sB3off))
        a(lab + ":")
        a("s_add_u32 s%d, s%d, %d" % (sB3off, sB3off, 80 * 1024))
        Q.extend([("S", st)] * 2)

    def dA3(st):
        if st == 55:
            a("s_cmp_eq_u32 s%d, 1" % sRR)
            a("s_cselect_b32 s%d, 0x40000000, s%d" % (sA3off, sA3off))
        a("s_add_u32 m0, s%d, %d" % (sMA, slotA(st)))
        for t in range(2):
            a("buffer_load_dwordx4 v%d, s[%d:%d], s%d offen offset:%d sc1 lds" % (vL16, sA3, sA3 + 3, sA3off, 1024 * t))
        a("s_add_u32 s%d, s%d, 4096" % (sA3off, sA3off))
        Q.extend([("S", st)] * 2)

    def vpoll_issue(vaddr, soff):
        a("buffer_load_dword v%d, v%d, s[%d:%d], s%d offen sc1" % (vPoll, vaddr, sWS, sWS + 3, soff))

    def vpoll_check(vaddr, soff, target, n):
        l0, l1 = a.label("Lchk"), a.label("Lok")
        a("s_waitcnt vmcnt(%d)" % n)
        a(l0 + ":")
        a("v_cmp_eq_u32 s[46:47], %d, v%d" % (target, vPoll))
        a("s_cmp_eq_u64 s[46:47], -1")
        a("s_cbranch_scc1 %s" % l1)
        a("s_sleep %d" % SL1)
        if target == 14:
            l2 = a.label("Lsl")
            a("v_cmp_eq_u32 s[46:47], 0, v%d" % vPoll)
            a("s_cmp_eq_u64 s[46:47], 0")
            a("s_cbranch_scc1 %s" % l2)
            a("s_sleep %d" % SL2)
            a(l2 + ":")
        vpoll_issue(vaddr, soff)
        a("s_waitcnt vmcnt(0)")
        a("s_branch %s" % l0)
        a(l1 + ":")

    a("v_mov_b32 v6, %d" % LREL)
    a("s_cmp_lg_u32 s%d, 0" % sW)
    a("s_cbranch_scc1 K2_nw0")
    if "fpass" in EXP:
        a("s_branch K2_nw0")
    a("s_waitcnt vmcnt(%d)" % (0 if (STAMP and not k1.LITE) else NPST))
    a("v_cmp_eq_u32 s[46:47], 14, v%d" % vPoll)
    a("s_cmp_eq_u64 s[46:47], -1")
    a("s_cselect_b32 s%d, %d, 0" % (sT0, 0 if "flate" in EXP else 1))
    a("v_mov_b32 v7, s%d" % sT0)
    a("ds_write_b32 v6, v7")
    a("s_waitcnt lgkmcnt(0)")
    a("K2_nw0:")
    a("s_barrier")
    a("ds_read_b32 v7, v6")
    for st in range(NPRE, 3):
        dAa(st)
    stamp(a, 1)
    a("s_waitcnt lgkmcnt(0)")
    a("v_readfirstlane_b32 s%d, v7" % sT0)
    a("s_cmp_eq_u32 s%d, %s" % (sT0, "s%d" % sT0 if "fpass" in EXP else "1"))

    def late(lb):
        a("s_waitcnt vmcnt(0)")
        a("s_barrier")
        a("s_cmp_lg_u32 s%d, 0" % sW)
        a("s_cbranch_scc1 K2_lw")
        vpoll_issue(vPz, sT3)
        vpoll_check(vPz, sT3, 14, 0)
        a("K2_lw:")
        a("s_barrier")
        n = len(Q)
        for st in range(3):
            dAb(st)
        del Q[n:]
    lb = k1.rare(a, "s_cbranch_scc0", late)
    for st in range(3):
        dAb(st)
    a("s_waitcnt vmcnt(9)")
    a("s_barrier")
    a("s_barrier")
    a(lb + ":")
    stamp(a, 2)
    a("v_and_b32 v%d, 1, v0" % vPz)
    a("v_lshlrev_b32 v%d, 11, v%d" % (vPz, vPz))
    a("s_lshr_b32 s%d, s%d, 2" % (sT3, sI))
    a("s_lshl_b32 s%d, s%d, 12" % (sT3, sT3))
    a("s_add_u32 s%d, s%d, 0x%x" % (sT3, sT3, WS_FL + 1024))
    a("s_lshl_b32 s%d, s%d, 7" % (sT0, sJ))
    a("s_add_u32 s%d, s%d, s%d" % (sT3, sT3, sT0))
    def rest():
        for st in range(3, NSA):
            if st >= NPRE:
                dAa(st)
            dAb(st)
        if NPRE <= 5:
            dAa(5)
    if "oldset" not in EXP:
        rest()
    a("s_waitcnt vmcnt(%d)" % younger(lambda t: t == ("S", 0)))
    a("s_barrier")
    if "oldset" in EXP:
        rest()
    def setupB():
        srd_off(a, sA3, 52, WS_A3, 64 * NG_A3 * 1024)
        srd_off(a, sB3, 52, WS_B3, 47 * 40 * 1024)
        a("s_lshl_b32 s%d, s%d, 1" % (sT0, sI))
        a("s_add_u32 s%d, s%d, s%d" % (sT0, sT0, sCC))
        a("s_mul_i32 s%d, s%d, %d" % (sA3off, sT0, NG_A3))
        a("s_lshl_b32 s%d, s%d, 1" % (sT0, sRR))
        a("s_add_u32 s%d, s%d, s%d" % (sA3off, sA3off, sT0))
        a("s_lshl_b32 s%d, s%d, 10" % (sA3off, sA3off))
        a("s_mul_i32 s%d, s%d, 3" % (sT0, sRR))
        a("s_mul_i32 s%d, s%d, 40" % (sB3off, sCC))
        a("s_add_u32 s%d, s%d, s%d" % (sB3off, sB3off, sT0))
        a("s_mul_i32 s%d, s%d, 5" % (sT1, sJ))
        a("s_add_u32 s%d, s%d, s%d" % (sB3off, sB3off, sT1))
        a("s_lshl_b32 s%d, s%d, 10" % (sB3off, sB3off))
        a("s_mul_i32 s%d, s%d, 5" % (sMB3, sCC))
        a("s_add_u32 s%d, s%d, s%d" % (sMB3, sMB3, sT0))
        a("s_lshl_b32 s%d, s%d, 10" % (sMB3, sMB3))

    def setupC():
        a("v_lshrrev_b32 v1, 5, v0")
        a("v_and_b32 v2, 31, v0")
        a("s_lshl_b32 s%d, s%d, 2" % (sHd, sJ))
        a("s_add_u32 s%d, s%d, s%d" % (sHd, sHd, sW))
        a("s_mul_i32 s%d, s%d, 2560" % (sKv, sHd))
        a("s_add_u32 s%d, s%d, 0x%x" % (sKv, sKv, WS_KV))
        a("s_lshl_b32 s%d, s%d, 7" % (sCnt, sHd))
        a("s_add_u32 s%d, s%d, 0x%x" % (sCnt, sCnt, CNT_KV))
        a("s_lshl_b32 s%d, s%d, 7" % (sCntI, sI))
        a("s_add_u32 s%d, s%d, 0x%x" % (sCntI, sCntI, CNT_O))

    def setupO():
        a("s_mul_i32 s%d, s%d, 5" % (sT0, sW))
        a("v_add_u32 v%d, s%d, v1" % (T + 3, sT0))
        quad_addr(a, T + 6, T + 3, False, T + 4, T + 5)
        a("v_add_u32 v%d, 2, v%d" % (T + 3, T + 3))
        quad_addr(a, T + 7, T + 3, False, T + 4, T + 5)
        a("s_add_u32 s%d, s%d, 4" % (sT0, sT0))
        a("v_mov_b32 v%d, s%d" % (T + 3, sT0))
        quad_addr(a, T + 8, T + 3, False, T + 4, T + 5)
        for n in range(3):
            a("v_add_u32 v%d, %d, v%d" % (T + 6 + n, OSC, T + 6 + n))
        a("s_lshl_b32 s%d, s%d, 10" % (sT0, sW))
        a("v_add_u32 v%d, s%d, v%d" % (vT0, sT0, vL16))
        a("s_lshl_b32 s%d, s%d, 8" % (sT0, sW))
        a("s_add_u32 s%d, s%d, 4096" % (sT0, sT0))
        a("v_add_u32 v%d, s%d, v%d" % (vT1, sT0, vL16))
        a("v_add_u32 v%d, %d, v%d" % (vT2, OSC, vT0))
        a("v_add_u32 v%d, %d, v%d" % (vT3, OSC, vT1))
        for t in range(3):
            a("v_add_u32 v%d, %d, v0" % (T + 3, 64 * t))
            a("v_min_u32 v%d, 159, v%d" % (T + 3, T + 3))
            a("v_mul_u32_u24 v%d, 205, v%d" % (T + 4, T + 3))
            a("v_lshrrev_b32 v%d, 11, v%d" % (T + 4, T + 4))
            a("v_mul_u32_u24 v%d, %d, v%d" % (T + 4, 1280 - 160, T + 4))
            a("v_lshl_add_u32 v%d, v%d, 4, v%d" % (vXd + t, T + 3, T + 4))
            if t:
                a("v_subrev_u32 v%d, %d, v%d" % (vXd + t, 1024 * t, vXd + t))
        srd(a, sO, 54, S * D * 2)
        a("s_lshl_b32 s%d, s%d, 2" % (sT0, sI))
        a("s_add_u32 s%d, s%d, s%d" % (sT0, sT0, sW))
        a("s_mul_i32 s%d, s%d, %d" % (sXo0, sT0, 16 * 1280))
        a("s_mul_i32 s%d, s%d, 160" % (sT0, sJ))
        a("s_add_u32 s%d, s%d, s%d" % (sXo0, sXo0, sT0))
        a("s_lshl_b32 s%d, s%d, 12" % (sXo1, sW))
        a("v_cmp_eq_u32 s[46:47], 24, v2")
        a("v_cndmask_b32 v%d, v2, 20, s[46:47]" % (T + 9))
        a("v_lshlrev_b32 v%d, 2, v%d" % (T + 9, T + 9))
        a("v_lshl_add_u32 v%d, v1, 10, v%d" % (T + 10, T + 9))
        a("v_lshl_add_u32 v%d, v1, 30, v%d" % (T + 9, T + 9))

    if "oldset" in EXP:
        setupB()
        setupC()
        setupO()
    nextA = 32
    nextB = 32
    for b in range(0, 55):
        need = [("S", b + 1)] if b != 31 else []
        if PQD and b == PK[2] - 1:
            need.append(("PD", 0))
        if need:
            a("s_waitcnt vmcnt(%d)" % younger(lambda t: t in need))
        a("s_barrier")
        if b == PA[0]:
            vpoll_issue(vPz, sT3)
            Q.append(("P", b))
        if b == PA[1]:
            stamp(a, 3)
            if "nopoll" not in EXP:
                vpoll_check(vPz, sT3, 16, younger(lambda t: t[0] == "P"))
            stamp(a, 4)
            a("s_and_b32 s%d, s%d, 3" % (sWk, sI))
            a("s_andn2_b32 s%d, s%d, 3" % (sT0, sI))
            a("s_add_u32 s%d, s%d, s%d" % (sT0, sT0, sW))
            a("s_mul_i32 s%d, s%d, %d" % (sT0, sT0, 2 * NG_QKV))
            a("s_mul_i32 s%d, s%d, 5" % (sT1, sJ))
            a("s_add_u32 s%d, s%d, s%d" % (sT0, sT0, sT1))
            a("s_add_u32 s%d, s%d, s%d" % (sT0, sT0, sWk))
            a("s_lshl_b32 s%d, s%d, 10" % (sT0, sT0))
            a("s_add_u32 s%d, s%d, %d" % (sT0, sT0, WS_QKV + 40 * 1024))
            a("s_lshl_b32 s32, s%d, 13" % sW)
            a("s_mov_b32 s31, s%d" % sT0)
        for n in range(4):
            if b == PA[1] + n // SDP and "nosd" not in EXP:
                a("s_add_u32 m0, s32, %d" % (SIDE + 2048 * n))
                a("s_add_u32 s%d, s31, %d" % (sT1, ((n & 1) * NG_QKV + (n >> 1) * 40) * 1024))
                a("buffer_load_dwordx4 v%d, s[%d:%d], s%d offen sc1 lds" % (vL16, sWS, sWS + 3, sT1))
                a("buffer_load_dwordx4 v%d, s[%d:%d], s%d offen offset:1024 sc1 lds" % (vL16, sWS, sWS + 3, sT1))
                Q.extend([("SD", 0)] * 2)
        if PQD:
            if b == PQD[0]:
                a("s_mul_i32 s31, s%d, %d" % (sI, 2 * NG_QKV))
                a("s_mul_i32 s%d, s%d, 5" % (sT0, sJ))
                a("s_add_u32 s31, s31, s%d" % sT0)
                a("s_lshl_b32 s31, s31, 10")
                a("s_lshl_b32 s32, s%d, 10" % sW)
                a("s_add_u32 s%d, s31, s32" % sT1)
                a("s_mov_b32 m0, s32")
            if b == PQD[1]:
                a("s_add_u32 s%d, s31, s32" % sT1)
                a("s_add_u32 s%d, s%d, %d" % (sT1, sT1, NG_QKV * 1024))
                a("s_add_u32 m0, s32, 5120")
            if b == PQD[2]:
                a("s_mul_i32 s%d, s%d, %d" % (sT1, sRR, NG_QKV * 1024))
                a("s_add_u32 s%d, s%d, s31" % (sT1, sT1))
                a("s_add_u32 s%d, s%d, 4096" % (sT1, sT1))
                a("s_mul_i32 s%d, s%d, 5120" % (sT0, sRR))
                a("s_add_u32 m0, s%d, 4096" % sT0)
            if b in PQD:
                a("buffer_load_dwordx4 v%d, s[%d:%d], s%d offen sc1 lds" % (vL16, sWS, sWS + 3, sT1))
                Q.append(("PD", 0))
            if b == PK[2] - 1:
                a("s_mul_i32 s%d, s%d, 5120" % (sT2, sJ))
                for n in range(3):
                    a("s_mul_i32 s%d, s%d, 5" % (sT0, sHd))
                    if n < 2:
                        a("v_lshlrev_b32 v%d, 1, v1" % (T + 1))
                        a("s_add_u32 s%d, s%d, %d" % (sT0, sT0, n))
                        a("v_add_u32 v%d, s%d, v%d" % (T + 1, sT0, T + 1))
                    else:
                        a("s_add_u32 s%d, s%d, 4" % (sT0, sT0))
                        a("v_mov_b32 v%d, s%d" % (T + 1, sT0))
                    quad_addr(a, T + 2, T + 1, True, T + 4, T + 5)
                    a("v_subrev_u32 v%d, s%d, v%d" % (T + 2, sT2, T + 2))
                    for sb in range(2):
                        d = PQR + 6 * sb + 2 * n
                        a("ds_read_b64 v[%d:%d], v%d offset:%d" % (d, d + 1, T + 2, 5120 * sb))
        for n in range(3):
            if b != PQB + n * PQS or "nokv" in EXP or PQD:
                continue
            a("s_mul_i32 s%d, s%d, 5" % (sT0, sHd))
            if n < 2:
                a("v_lshlrev_b32 v%d, 1, v1" % (T + 1))
                a("s_add_u32 s%d, s%d, %d" % (sT0, sT0, n))
                a("v_add_u32 v%d, s%d, v%d" % (T + 1, sT0, T + 1))
            else:
                a("s_add_u32 s%d, s%d, 4" % (sT0, sT0))
                a("v_mov_b32 v%d, s%d" % (T + 1, sT0))
            a("s_mul_i32 s%d, s%d, %d" % (sT1, sI, 2 * NG_QKV * 1024))
            a("s_add_u32 s%d, s%d, %d" % (sT2, sT1, NG_QKV * 1024))
            quad_addr(a, T + 2, T + 1, True, T + 4, T + 5)
            for sb in range(2):
                d = PQR + 6 * sb + 2 * n
                a("buffer_load_dwordx2 v[%d:%d], v%d, s[%d:%d], s%d offen sc1" % (d, d + 1, T + 2, sWS, sWS + 3, sT1 if sb == 0 else sT2))
            Q.extend([("PQ", 0)] * 2)
        if ZL:
            if b == ZL[0]:
                a("s_lshl_b32 s%d, s%d, 1" % (sT0, sI))
                a("s_add_u32 s%d, s%d, s%d" % (sT0, sT0, sCC))
                a("s_mul_i32 s33, s%d, %d" % (sT0, NG_Z))
                a("s_mul_i32 s%d, s%d, 7" % (sT0, sJ))
                a("s_add_u32 s33, s33, s%d" % sT0)
                a("s_lshl_b32 s%d, s%d, 2" % (sT0, sRR))
                a("s_add_u32 s33, s33, s%d" % sT0)
                a("s_lshl_b32 s33, s33, 10")
                a("s_add_u32 s33, s33, 0x%x" % WS_Z)
            if b in ZL:
                t = ZL.index(b)
                lab = a.label("Lsk")
                if t == 3:
                    a("s_cbranch_vccnz %s" % lab)
                a("s_add_u32 m0, s%d, %d" % (sMB, ZSP))
                a("buffer_load_dwordx4 v%d, s[%d:%d], s33 offen offset:%d sc1 lds" % (vL16, sWS, sWS + 3, 1024 * t))
                if t == 3:
                    a(lab + ":")
                else:
                    Q.append(("Z", 0))
        if b == PK[0]:
            poll_issue(a, sCnt)
            Q.append(("P", b))
        if b == PK[1]:
            stamp(a, 5)
            poll_check(a, sCnt, target=32, n=younger(lambda t: t[0] == "P"))
            stamp(a, 6)
            for n in range(0 if "nokv" in EXP else 8):
                a("buffer_load_dword v%d, v%d, s[%d:%d], s%d offen offset:%d sc1" % (KVF + n, T + 10, sWS, sWS + 3, sKv, 128 * n))
            for n in range(0 if "nokv" in EXP else 4):
                a("buffer_load_dword v%d, v%d, s[%d:%d], s%d offen offset:%d sc1" % (KVF + 8 + n, T + 9, sWS, sWS + 3, sKv, 2048 + 128 * n))
            Q.extend([("KV", 0)] * (0 if "nokv" in EXP else 12))
        if "jit" in EXP and b in (2, 10, 22, 30, 40):
            lj = a.label("Lj")
            a("s_bitcmp1_b32 s2, %d" % (b % 7))
            a("s_cbranch_scc0 %s" % lj)
            a("s_sleep 60")
            a(lj + ":")
        for st in range(5, 32):
            if issueB(st) == b:
                dAb(st)
        if NPRE <= b + 6 <= 31:
            dAa(b + 6)
        if b == PO[0]:
            poll_issue(a, sCntI)
            Q.append(("P", b))
        if b == PU[0]:
            poll_issue(a, sCntI)
            Q.append(("P", b))
        avail = {32: 26, 33: 27, 34: 28, 35: 29, 36: 29, 37: 30, 38: 31, 39: 31}
        while nextB <= 55 and avail.get(nextB, nextB - 8) <= b:
            dB3(nextB)
            nextB += 1
        if b in (PO[1], PU[1]):
            stamp(a, 7 if b == PO[1] else 9)
            if not ("noatt" in EXP and b == PO[1]) and not ("nou" in EXP and b == PU[1]):
                poll_check(a, sCntI, n=younger(lambda t: t[0] == "P"))
            stamp(a, 8 if b == PO[1] else 10)
            if b == PO[1]:
                a("s_add_u32 s%d, s%d, %d" % (sCntI, sCntI, CNT_U - CNT_O))
        if b >= PO[1]:
            lim = min(b + 6, 55) if b >= PU[1] else min(b + 6, 41)
            while nextA <= lim:
                dA3(nextA)
                nextA += 1
        if b == 31:
            a("s_waitcnt vmcnt(%d)" % younger(lambda t: t == ("S", 32)))
            a("s_barrier")
        for t in range(3):
            if b == XB[t]:
                a("s_mov_b32 m0, s%d" % sXo1)
                a("buffer_load_dwordx4 v%d, s[%d:%d], s%d offen offset:%d lds" % (vXd + t, sO, sO + 3, sXo0, 1024 * t))
                Q.append(("X", 0))
        if b == OTB:
            srd(a, sA, 62, S * D * 2)
            a("s_add_u32 m0, s%d, 16384" % sXo1)
            for t in range(3):
                a("buffer_load_dwordx4 v%d, s[%d:%d], s%d offen offset:%d lds" % (vXd + t, sA, sA + 3, sXo0, 1024 * t))
            Q.extend([("X", 1)] * 3)
        if "oldset" not in EXP:
            if b == 5:
                setupC()
            if b == 6:
                setupB()
            if b == 11:
                setupO()
        if b == KJ[0] - 1:
            a("v_bfe_u32 v3, v0, 2, 2")
            a("v_lshl_add_u32 v3, v1, 3, v3")
            a("v_bfe_u32 v5, v0, 4, 1")
            a("v_and_b32 v6, 3, v0")
            a("v_lshl_add_u32 v6, v5, 2, v6")
            a("v_min_u32 v6, 4, v6")
            a("v_add_u32 v6, s%d, v6" % sWk)
            a("v_and_b32 v4, 1, v6")
            a("v_lshrrev_b32 v5, 2, v6")
            a("s_add_u32 s%d, s%d, s%d" % (sT1, sJ, sWk))
            a("v_add_u32 v7, s%d, v5" % sT1)
            a("v_and_b32 v7, 1, v7")
            a("v_lshl_add_u32 v7, v7, 1, v4")
            a("v_lshlrev_b32 v7, 2, v7")
            a("v_xor_b32 v7, v7, v3")
            a("v_lshl_add_u32 v7, v4, 5, v7")
            a("v_lshlrev_b32 v7, 4, v7")
            a("v_bfe_u32 v4, v6, 1, 1")
            a("v_lshl_add_u32 v7, v4, 3, v7")
            a("v_lshl_add_u32 v7, v5, 10, v7")
            a("v_add_u32 v22, s32, v7")
            a("v_xor_b32 v23, 64, v22")
            a("v_mov_b32 v19, 0x3f803f80")
            a("v_lshlrev_b32 v3, 9, v1")
            a("v_lshl_add_u32 v3, v2, 2, v3")
            a("s_lshl_b32 s%d, s%d, 2" % (sT0, sJ))
            a("s_add_u32 s%d, s%d, s%d" % (sT0, sT0, sWk))
            a("s_mul_i32 s%d, s%d, 2560" % (sKvW, sT0))
            a("s_lshl_b32 s%d, s%d, 10" % (sT1, sW))
            a("s_add_u32 s%d, s%d, s%d" % (sKvW, sKvW, sT1))
            a("s_add_u32 s%d, s%d, 0x%x" % (sKvW, sKvW, WS_KV))
            a("s_cmp_eq_u32 s%d, 3" % sW)
            a("s_cselect_b32 s%d, 0x40000000, s%d" % (sKvW, sKvW))
            a("s_lshl_b32 s%d, s%d, 7" % (sCntW, sT0))
            a("s_add_u32 s%d, s%d, 0x%x" % (sCntW, sCntW, CNT_KV))
            a("v_add_u32 v4, s32, v%d" % vL16)
            a("v_add_u32 v5, s%d, v%d" % (sT1, vL16))
        if b == KJ[0]:
            a("v_cmp_eq_u32 s[46:47], 20, v2")
            a("s_waitcnt vmcnt(%d)" % younger(lambda t: t[0] == "SD"))
            for m in range(2):
                for k in range(4):
                    d = KVF + 16 * m + 4 * k
                    off = m * 4096 + (k >> 1) * 2048 + (k & 1) * 256
                    a("ds_read_b64_tr_b16 v[%d:%d], v22 offset:%d" % (d, d + 1, off))
                    a("ds_read_b64_tr_b16 v[%d:%d], v23 offset:%d" % (d + 2, d + 3, off))
            a("s_waitcnt lgkmcnt(0)")
            for r in range(16):
                a("v_cndmask_b32 v%d, v%d, v19, s[46:47]" % (KVF + 16 + r, KVF + 16 + r))
            for k in range(4):
                a("v_mfma_f32_32x32x16_bf16 v[%d:%d], v[%d:%d], v[%d:%d], %s" % (
                    DO, DO + 15, KVF + 4 * k, KVF + 4 * k + 3, KVF + 16 + 4 * k, KVF + 19 + 4 * k,
                    "0" if k == 0 else "v[%d:%d]" % (DO, DO + 15)))
            for q in range(3):
                a("ds_write_b128 v4, v[%d:%d] offset:%d" % (DO + 4 * q, DO + 4 * q + 3, 1024 * q))
            a("s_waitcnt lgkmcnt(0)")
        if b == KJ[0] + 1:
            for q in range(4):
                a("ds_read_b128 v[%d:%d], v5 offset:%d" % (KVF + 4 * q, KVF + 4 * q + 3, 8192 * q))
            a("s_waitcnt lgkmcnt(0)")
            for r in range(4):
                a("v_add_f32 v%d, v%d, v%d" % (KVF + r, KVF + r, KVF + 4 + r))
                a("v_add_f32 v%d, v%d, v%d" % (KVF + 8 + r, KVF + 8 + r, KVF + 12 + r))
            for r in range(4):
                a("v_add_f32 v%d, v%d, v%d" % (KVF + r, KVF + r, KVF + 8 + r))
            a("s_cmp_eq_u32 s%d, 2" % sW)
            a("s_cselect_b32 exec_hi, 0, 0x1fffff")
            a("s_mov_b32 exec_lo, 0x1fffff")
            for r in range(4):
                a("buffer_atomic_add_f32 v%d, v3, s[%d:%d], s%d offen offset:%d" % (KVF + r, sWS, sWS + 3, sKvW, r * 128))
            a("s_mov_b64 exec, -1")
            Q.extend([("AT", 0)] * 4)
        if b == KJ[1]:
            signal(a, sCntW, n=younger(lambda t: t[0] == "AT"))
            Q.append(("G", 1))
        if b == PK[2] and "noo" not in EXP:
            a("s_mul_i32 s%d, s%d, %d" % (sT1, sI, 2 * NG_A3 * 1024))
            a("s_mul_i32 s%d, s%d, 5120" % (sT2, sJ))
            a("s_add_u32 s%d, s%d, s%d" % (sT1, sT1, sT2))
            a("s_add_u32 s%d, s%d, 0x%x" % (sT1, sT1, WS_A3))
            a("s_add_u32 s%d, s%d, %d" % (sT2, sT1, NG_A3 * 1024))
            a("v_cmp_eq_u32 s[46:47], 1, v1")
            a("s_waitcnt vmcnt(%d) lgkmcnt(0)" % younger(lambda t: t[0] == "KV"))
            for n in range(6):
                a("v_cvt_pk_bf16_f32 v%d, v%d, v%d" % (KVF + 16 + n, KVF + 2 * n, KVF + 2 * n + 1))
            for sb in range(2):
                d, p = DO + 16 * sb, PQR + 6 * sb
                a("v_mfma_f32_32x32x16_bf16 v[%d:%d], v[%d:%d], v[%d:%d], 0" % (d, d + 15, KVF + 16, KVF + 19, p, p + 3))
                a("v_mfma_f32_32x32x8_bf16 v[%d:%d], v[%d:%d], v[%d:%d], v[%d:%d]" % (d, d + 15, KVF + 20, KVF + 21, p + 4, p + 5, d, d + 15))
            for sb in range(2):
                d = DO + 16 * sb
                a("v_cndmask_b32 v%d, v%d, v%d, s[46:47]" % (T, d + 12, d + 8))
                a("v_add_f32 v%d, %s, v%d" % (T, fhex(1e-6), T))
                a("v_rcp_f32 v%d, v%d" % (T, T))
                for r in range(12):
                    a("v_mul_f32 v%d, v%d, v%d" % (d + r, d + r, T))
                for n in range(6):
                    a("v_cvt_pk_bf16_f32 v%d, v%d, v%d" % (KVF + 8 * sb + n, d + 2 * n, d + 2 * n + 1))
            for n in range(3):
                if n == 2:
                    a("s_mov_b32 exec_hi, 0")
                for sb in range(2):
                    p = KVF + 8 * sb + 2 * n
                    a("ds_write_b64 v%d, v[%d:%d] offset:%d" % (T + 6 + n, p, p + 1, 5120 * sb))
            a("s_mov_b64 exec, -1")
            a("s_waitcnt lgkmcnt(0)")
        if b == PK[2] + 1 and "noo" not in EXP:
            for sb in range(2):
                a("ds_read_b128 v[%d:%d], v%d offset:%d" % (DO + 8 * sb, DO + 8 * sb + 3, vT2, 5120 * sb))
            a("s_mov_b64 exec, 0xffff")
            for sb in range(2):
                a("ds_read_b128 v[%d:%d], v%d offset:%d" % (DO + 8 * sb + 4, DO + 8 * sb + 7, vT3, 5120 * sb))
            a("s_waitcnt lgkmcnt(0)")
            for sb in range(2):
                a("buffer_store_dwordx4 v[%d:%d], v%d, s[%d:%d], s%d offen sc1" % (DO + 8 * sb + 4, DO + 8 * sb + 7, vT1, sWS, sWS + 3, sT1 if sb == 0 else sT2))
            a("s_mov_b64 exec, -1")
            for sb in range(2):
                a("buffer_store_dwordx4 v[%d:%d], v%d, s[%d:%d], s%d offen sc1" % (DO + 8 * sb, DO + 8 * sb + 3, vT0, sWS, sWS + 3, sT1 if sb == 0 else sT2))
            Q.extend([("O", 0)] * 4)
        if b == PK[3]:
            signal(a, sCntI, n=younger(lambda t: t[0] == "O"))
            Q.append(("G", 0))
    stamp(a, 11)
    if STAMP:
        a("s_add_u32 s%d, s%d, 4" % (sW, sW))
    stamp_dump(a, 12, sWS, sW, WS_STAMP + 0x20000)
    a("s_endpgm")
    a = a0
    a("K2_consumer:")
    if "prio" in EXP:
        a("s_setprio 2")
    if "cons3" not in EXP:
        a("s_barrier")
    a("s_and_b32 s%d, s%d, 3" % (sW, sW))

    a("s_lshl_b32 s%d, s%d, 2" % (sHd, sJ))
    a("s_add_u32 s%d, s%d, s%d" % (sHd, sHd, sW))
    a("s_and_b32 s%d, s%d, 3" % (sWk, sI))
    a("s_lshl_b32 s%d, s%d, 13" % (sT2, sW))
    a("s_add_u32 s%d, s%d, %d" % (sT2, sT2, SIDE))
    a("s_mov_b32 s%d, %d" % (sRd, slotA(0)))
    a("s_mov_b32 s%d, %d" % (sRdB, slotB(0)))
    if DEEP:
        a("s_mov_b32 s%d, %d" % (sWrap, RB))
    srd(a, sBS, 50, S * 2)
    srd(a, sO, 62, S * D * 2)
    a("v_lshrrev_b32 v1, 4, v0")
    a("v_and_b32 v2, 15, v0")
    a("v_and_b32 v3, 1, v1")
    a("v_lshrrev_b32 v4, 1, v1")
    a("v_lshl_add_u32 v5, v3, 5, v2")
    a("v_lshlrev_b32 v5, 4, v5")
    a("v_lshl_add_u32 v5, v4, 10, v5")
    a("s_lshl_b32 s%d, s%d, 12" % (sT0, sRR))
    a("v_add_u32 v%d, s%d, v5" % (vLA3, sT0))
    a("v_lshrrev_b32 v5, 2, v2")
    a("v_lshl_add_u32 v5, v3, 2, v5")
    a("v_lshl_add_u32 v5, v4, 4, v5")
    a("v_mul_u32_u24 v5, 160, v5")
    a("v_and_b32 v6, 3, v0")
    a("v_lshl_add_u32 v5, v6, 3, v5")
    a("s_mul_i32 s%d, s%d, 96" % (sT0, sCC))
    a("v_add_u32 v%d, s%d, v5" % (vLB3, sT0))
    a("v_mul_u32_u24 v%d, 160, v2" % vXl)
    a("v_lshl_add_u32 v%d, v1, 3, v%d" % (vXl, vXl))
    a("s_lshl_b32 s%d, s%d, 13" % (sT0, sRR))
    a("s_mul_i32 s%d, s%d, 96" % (sT1, sCC))
    a("s_add_u32 s%d, s%d, s%d" % (sT0, sT0, sT1))
    a("v_add_u32 v%d, s%d, v%d" % (vXl, sT0, vXl))
    a("v_mul_u32_u24 v%d, 1280, v2" % vO)
    a("v_lshl_add_u32 v%d, v1, 3, v%d" % (vO, vO))
    a("s_lshl_b32 s%d, s%d, 1" % (sT3, sI))
    a("s_add_u32 s%d, s%d, s%d" % (sT3, sT3, sRR))
    a("s_mul_i32 s%d, s%d, %d" % (sXo0, sT3, 32 * 1280))
    a("s_mul_i32 s%d, s%d, 160" % (sT0, sJ))
    a("s_add_u32 s%d, s%d, s%d" % (sXo0, sXo0, sT0))
    a("s_mul_i32 s%d, s%d, 96" % (sT0, sCC))
    a("s_add_u32 s%d, s%d, s%d" % (sXo0, sXo0, sT0))
    a("s_add_u32 s%d, s%d, %d" % (sXo1, sXo0, 16 * 1280))
    a("s_lshl_b32 s%d, s%d, 5" % (sT1, sRR))
    a("v_add_u32 v5, s%d, v2" % sT1)
    a("v_lshlrev_b32 v%d, 7, v5" % vLA)
    a("v_lshrrev_b32 v5, 1, v2")
    a("v_xor_b32 v5, v5, v1")
    a("v_lshl_add_u32 v%d, v5, 4, v%d" % (vLA, vLA))
    a("s_and_b32 s%d, s%d, 1" % (sT1, sJ))
    a("s_lshl_b32 s%d, s%d, 3" % (sT1, sT1))
    a("v_bfe_u32 v5, v0, 2, 2")
    a("v_lshl_add_u32 v5, v1, 3, v5")
    a("v_and_b32 v6, 1, v0")
    a("v_lshlrev_b32 v7, 2, v6")
    a("v_xor_b32 v5, v5, v7")
    a("v_xor_b32 v5, s%d, v5" % sT1)
    a("v_lshl_add_u32 v5, v6, 5, v5")
    a("v_lshlrev_b32 v5, 4, v5")
    a("v_bfe_u32 v7, v0, 1, 1")
    a("v_lshl_add_u32 v5, v7, 3, v5")
    a("s_lshl_b32 s%d, s%d, 12" % (sT0, sCC))
    a("v_add_u32 v%d, s%d, v5" % (vLB0, sT0))
    a("v_lshl_add_u32 v5, v3, 5, v2")
    a("v_lshlrev_b32 v5, 4, v5")
    a("v_lshl_add_u32 v%d, v4, 3, v5" % vU)
    a("v_lshlrev_b32 v5, 6, v3")
    a("v_xor_b32 v%d, v5, v%d" % (vZa, vU))
    a("s_lshl_b32 s%d, s%d, 4" % (sT1, sT1))
    a("v_xor_b32 v%d, s%d, v%d" % (vZa, sT1, vZa))
    a("v_xor_b32 v%d, 0x80, v%d" % (vZb, vZa))
    a("v_lshlrev_b32 v%d, 1, v2" % vBias2)
    a("s_lshl_b32 s%d, s%d, 7" % (sCntI, sI))
    a("s_add_u32 s%d, s%d, 0x%x" % (sCntI, sCntI, CNT_O))
    for p in range(32):
        a("v_mov_b32 v%d, 0" % (ACC + p))
    a("s_mul_i32 s%d, s%d, 7" % (sT0, sJ))
    a("s_lshl_b32 s%d, s%d, 2" % (sT1, sCC))
    a("s_add_u32 s%d, s%d, s%d" % (sOdd, sT0, sT1))
    for p in range(24):
        a("v_mov_b32 v%d, 0" % (ACB + p))
    stamp(a, 1)
    if "cons3" in EXP:
        a("s_barrier")
    a("s_waitcnt vmcnt(0)")
    a("s_barrier")
    a("s_cmp_lg_u32 s%d, 0" % sW)
    a("s_cbranch_scc1 K2_noall")
    a("v_mov_b32 v%d, 1" % T)
    a("v_lshlrev_b32 v%d, 7, v0" % (T + 2))
    a("s_mov_b64 exec, 0xff")
    a("buffer_atomic_add v%d, v%d, s[%d:%d], s%d offen sc1" % (T, T + 2, sWS, sWS + 3, sCall))
    a("s_cmp_eq_u32 s69, 1")
    a("s_cbranch_scc1 K2_nolate")
    a("s_sub_u32 s%d, s%d, 1024" % (sCall, sCall))
    a("buffer_atomic_add v%d, v%d, s[%d:%d], s%d offen sc1" % (T, T + 2, sWS, sWS + 3, sCall))
    a("K2_nolate:")
    a("s_mov_b64 exec, -1")
    a("K2_noall:")
    a("s_barrier")
    a("s_barrier")
    a("s_cmp_eq_u32 s%d, 1" % sCC)
    a("s_cbranch_scc1 K2_cc1")
    for cc in range(2):
        na, nb = 4 - cc, 3 - cc

        def ab(t, cc=cc):
            a(t.replace("@", "_%d" % cc))
        if cc:
            a("K2_cc1:")
        stamp(a, 2)
        for t in read_A(FA[0], na):
            a(t)
        ab("s_mov_b32 s%d, 0" % sIt)
        ab("s_lshl_b32 s%d, s%d, 6" % (sT0, sT3))
        ab("buffer_load_ushort v%d, v%d, s[%d:%d], s%d offen" % (vBias, vBias2, sBS, sBS + 3, sT0))
        ab("buffer_load_ushort v%d, v%d, s[%d:%d], s%d offen offset:32" % (vBias2, vBias2, sBS, sBS + 3, sT0))
        stamp(a, 3)
        ab("K2_loop@:")
        cstage(a, mf_A(FA[0], na), read_A(FA[1], na), FRA)
        cstage(a, mf_A(FA[1], na), read_A(FA[0], na), FRA)
        ab("s_add_u32 s%d, s%d, 1" % (sIt, sIt))
        ab("s_cmp_eq_u32 s%d, 15" % sIt)
        ab("s_cbranch_scc0 K2_loop@")
        XI = "noxi" not in EXP
        xr, xu = [], []
        if XI:
            for rt in range(2):
                for ct in range(nb):
                    x, acc = XR + 6 * rt + 2 * ct, ACB + 12 * rt + 4 * ct
                    xr.append("ds_read_b64 v[%d:%d], v%d offset:%d" % (x, x + 1, vXl, rt * 4096 + 32 * ct))
                    for pp in range(2):
                        xu.append("v_lshlrev_b32 v%d, 16, v%d" % (acc + 2 * pp, x + pp))
                        xu.append("v_and_b32 v%d, 0xffff0000, v%d" % (acc + 2 * pp + 1, x + pp))
        cstage(a, mf_A(FA[0], na), read_A(FA[1], na) + xr, FRA)
        zr = []
        if ZL:
            zr.append("s_mul_i32 s%d, s%d, 7168" % (sT0, sRR))
            zr.append("v_add_u32 v%d, s%d, v%d" % (vZa, sT0, vZa))
            zr.append("v_add_u32 v%d, s%d, v%d" % (vZb, sT0, vZb))
            for ct in range(na):
                for rt in range(2):
                    z = Z1R + 8 * rt + 2 * ct
                    zr.append("ds_read_b64 v[%d:%d], v%d offset:%d" % (z, z + 1, vZb if ct & 1 else vZa, ZSP + 4096 * cc + 1024 * ct + 256 * rt))
        cstage(a, mf_A(FA[1], na), zr + xu, 1.0)
        ab("s_waitcnt lgkmcnt(0)")
        stamp(a, 8)
        ab("s_mov_b32 s%d, %d" % (sRdB, slotB(32)))
        ab("s_waitcnt vmcnt(0)")
        ab("v_lshlrev_b32 v%d, 16, v%d" % (vBias, vBias))
        ab("s_mul_i32 s%d, s%d, %d" % (sT0, sT3, NG_A3))
        ab("s_add_u32 s%d, s%d, s%d" % (sT0, sT0, sOdd))
        ab("s_lshl_b32 s%d, s%d, 10" % (sT0, sT0))
        ab("s_add_u32 s%d, s%d, %d" % (sT0, sT0, WS_A3 + 40 * 1024))
        ab("v_lshlrev_b32 v%d, 16, v%d" % (vBias2, vBias2))
        if "epov" in EXP:
            ab("s_cmp_eq_u32 s%d, 53" % sOdd)
            ab("s_cselect_b32 s%d, 0x40000000, s%d" % (sT1, sT0))
            ep = []
            for ct in range(na):
                for rt in range(2):
                    acc = ACC + 16 * rt + 4 * ct
                    z = Z1R + 8 * rt + 2 * ct
                    vb = vBias2 if rt else vBias
                    for pp in range(2):
                        t = T + 2 * pp
                        ep.append("v_lshlrev_b32 v%d, 16, v%d" % (t, z + pp))
                        ep.append("v_and_b32 v%d, 0xffff0000, v%d" % (t + 1, z + pp))
                        ep.append("v_add_f32 v%d, v%d, v%d" % (acc + 2 * pp, acc + 2 * pp, vb))
                        ep.append("v_add_f32 v%d, v%d, v%d" % (acc + 2 * pp + 1, acc + 2 * pp + 1, vb))
                        ep.append("v_mul_f32 v%d, v%d, v%d" % (t, t, acc + 2 * pp))
                        ep.append("v_mul_f32 v%d, v%d, v%d" % (t + 1, t + 1, acc + 2 * pp + 1))
                        ep.append("v_cvt_pk_bf16_f32 v%d, v%d, v%d" % (z + pp, t, t + 1))
                    ep.append("buffer_store_dwordx2 v[%d:%d], v%d, s[%d:%d], s%d offen offset:%d sc1" % (
                        z, z + 1, vU, sWS, sWS + 3, sT1 if ct else sT0, 1024 * ct + 256 * rt))
            ab("s_add_u32 s%d, s%d, %d" % (sCntI, sCntI, CNT_U - CNT_O))
            ab("s_barrier")
            for t in read_B(FA[0], nb):
                a(t)
            n3 = spread(len(ep), 3)
            for t in ep[:n3[0]]:
                a(t)
            cstage(a, mf_B(FA[0], nb), read_B(FA[1], nb) + ep[n3[0]:n3[0] + n3[1]], 1.0)
            cstage(a, mf_B(FA[1], nb), read_B(FA[0], nb) + ep[n3[0] + n3[1]:], 1.0)
            stamp(a, 9)
            cstage(a, mf_B(FA[0], nb), read_B(FA[1], nb), FRB)
            cstage(a, mf_B(FA[1], nb), read_B(FA[0], nb), FRB)
            stamp(a, 10)
            signal(a, sCntI)
            stamp(a, 11)
            ab("s_mov_b32 s%d, 2" % sIt)
        else:
            for ct in range(na):
                if cc == 1 and ct == 1:
                    ab("s_cmp_eq_u32 s%d, 53" % sOdd)
                    ab("s_cbranch_scc1 K2_done@")
                for rt in range(2):
                    acc = ACC + 16 * rt + 4 * ct
                    z = Z1R + 8 * rt + 2 * ct
                    vb = vBias2 if rt else vBias
                    for pp in range(2):
                        t = T + 2 * pp
                        ab("v_lshlrev_b32 v%d, 16, v%d" % (t, z + pp))
                        ab("v_and_b32 v%d, 0xffff0000, v%d" % (t + 1, z + pp))
                        ab("v_add_f32 v%d, v%d, v%d" % (acc + 2 * pp, acc + 2 * pp, vb))
                        ab("v_add_f32 v%d, v%d, v%d" % (acc + 2 * pp + 1, acc + 2 * pp + 1, vb))
                        ab("v_mul_f32 v%d, v%d, v%d" % (t, t, acc + 2 * pp))
                        ab("v_mul_f32 v%d, v%d, v%d" % (t + 1, t + 1, acc + 2 * pp + 1))
                        ab("v_cvt_pk_bf16_f32 v%d, v%d, v%d" % (z + pp, t, t + 1))
                    ab("buffer_store_dwordx2 v[%d:%d], v%d, s[%d:%d], s%d offen offset:%d sc1" % (
                        z, z + 1, vU, sWS, sWS + 3, sT0, 1024 * ct + 256 * rt))
            ab("K2_done@:")
            stamp(a, 9)
            ab("s_add_u32 s%d, s%d, %d" % (sCntI, sCntI, CNT_U - CNT_O))
            ab("s_barrier")
            for t in read_B(FA[0], nb):
                a(t)
            cstage(a, mf_B(FA[0], nb), read_B(FA[1], nb), FRB)
            cstage(a, mf_B(FA[1], nb), read_B(FA[0], nb), FRB)
            stamp(a, 10)
            signal(a, sCntI)
            stamp(a, 11)
            ab("s_mov_b32 s%d, 1" % sIt)
        ab("K3_loop@:")
        cstage(a, mf_B(FA[0], nb), read_B(FA[1], nb), FRB)
        cstage(a, mf_B(FA[1], nb), read_B(FA[0], nb), FRB)
        ab("s_add_u32 s%d, s%d, 1" % (sIt, sIt))
        if XI:
            ab("s_cmp_eq_u32 s%d, 11" % sIt)
            ab("s_cbranch_scc0 K3_loop@")
            half = read_B(FA[1], nb)[:2 + 2 + 2 * nb]
            cstage(a, mf_B(FA[0], nb), half, 0.4)
            cstage(a, mf_B(FA[1], nb)[:2 * nb], [], FRB, barrier=False)
            stamp(a, 12)
            for ct in range(nb):
                for rt in range(2):
                    acc = ACB + 12 * rt + 4 * ct
                    x = XR + 6 * rt + 2 * ct
                    for pp in range(2):
                        ab("v_cvt_pk_bf16_f32 v%d, v%d, v%d" % (x + pp, acc + 2 * pp, acc + 2 * pp + 1))
                    ab("buffer_store_dwordx2 v[%d:%d], v%d, s[%d:%d], s%d offen offset:%d" % (x, x + 1, vO, sO, sO + 3, sXo0 if rt == 0 else sXo1, 32 * ct))
        else:
            ab("s_cmp_eq_u32 s%d, 12" % sIt)
            ab("s_cbranch_scc0 K3_loop@")
            stamp(a, 12)
            for rt in range(2):
                for ct in range(nb):
                    x = XR + 6 * rt + 2 * ct
                    ab("ds_read_b64 v[%d:%d], v%d offset:%d" % (x, x + 1, vXl, rt * 4096 + 32 * ct))
            ab("s_waitcnt lgkmcnt(0)")
            for rt in range(2):
                for ct in range(nb):
                    acc = ACB + 12 * rt + 4 * ct
                    x = XR + 6 * rt + 2 * ct
                    for p in range(2):
                        t = T + 2 * p
                        ab("v_lshlrev_b32 v%d, 16, v%d" % (t, x + p))
                        ab("v_and_b32 v%d, 0xffff0000, v%d" % (t + 1, x + p))
                        ab("v_add_f32 v%d, v%d, v%d" % (t, t, acc + 2 * p))
                        ab("v_add_f32 v%d, v%d, v%d" % (t + 1, t + 1, acc + 2 * p + 1))
                        ab("v_cvt_pk_bf16_f32 v%d, v%d, v%d" % (x + p, t, t + 1))
                    ab("buffer_store_dwordx2 v[%d:%d], v%d, s[%d:%d], s%d offen offset:%d%s" % (x, x + 1, vO, sO, sO + 3, sXo0 if rt == 0 else sXo1, 32 * ct, os.environ.get("OST", "")))
        stamp(a, 13)
        if STAMP:
            ab("s_waitcnt vmcnt(0)")
        stamp(a, 14)
        stamp_dump(a, 15, sWS, sW, WS_STAMP + 0x20000)
        ab("s_endpgm")
```
